```python
import torch

def _softmax(x, axis=-1):
    return torch.softmax(x, dim=axis)
def _gelu(x):
    return torch.nn.functional.gelu(x, approximate="tanh")
def _silu(x):
    return torch.nn.functional.silu(x)
def _sigmoid(x):
    return torch.sigmoid(x)
def _layernorm(x, axis=-1, eps=1e-5):
    m = x.mean(dim=axis, keepdim=True)
    v = x.var(dim=axis, keepdim=True, unbiased=False)
    return (x - m) / torch.sqrt(v + eps)
def _scatter_add(tgt, idx, src, axis=0):
    return tgt.clone().index_add_(axis, idx, src)
def _segment_sum(src, seg, n):
    out = torch.zeros((n,) + src.shape[1:], dtype=src.dtype)
    return out.index_add_(0, seg, src)
def _pad(x, pw):
    flat = tuple(v for pair in reversed(pw) for v in pair)
    return torch.nn.functional.pad(x, flat)

kernel_name = 'parallel_sum__sliding_local_dilated__swiglu_ffn__prompt'

def setup_inputs():

    _w = (lambda a: (lambda t: t.to(torch.bfloat16) if t.is_floating_point() else t)(torch.as_tensor(a)))
    def _A_setup():
        B, S, D = 1, 2048, 448
        return {
            "x": _w((lambda *s: torch.randn(*s, dtype=torch.bfloat16) * 0.05)(B, S, D)),
            "wqkv": _w((lambda *s: torch.randn(*s, dtype=torch.bfloat16) * 0.05)(D, 3 * D)),
            "wo": _w((lambda *s: torch.randn(*s, dtype=torch.bfloat16) * 0.05)(D, D)),
        }
    _A_in = _A_setup()

    def _B_setup():
        B, S, D, F = 1, 2048, 448, 1792
        return {
            "x": _w((lambda *s: torch.randn(*s, dtype=torch.bfloat16) * 0.05)(B, S, D)),
            "w_gate": _w((lambda *s: torch.randn(*s, dtype=torch.bfloat16) * 0.05)(D, F)),
            "w_up": _w((lambda *s: torch.randn(*s, dtype=torch.bfloat16) * 0.05)(D, F)),
            "w_down": _w((lambda *s: torch.randn(*s, dtype=torch.bfloat16) * 0.05)(F, D)),
        }
    _B_in = _B_setup()

    return {
        "A_x": _A_in["x"],
        "A_wqkv": _A_in["wqkv"],
        "A_wo": _A_in["wo"],
        "B_x": _B_in["x"],
        "B_w_gate": _B_in["w_gate"],
        "B_w_up": _B_in["w_up"],
        "B_w_down": _B_in["w_down"],
    }

def reference(A_x, A_wqkv, A_wo, B_x, B_w_gate, B_w_up, B_w_down):
    def _A_ref(x, wqkv, wo):
        B, S, D = x.shape
        H = 16; Dh = D // H
        W, dil = 8, 2
        qkv = (lambda x, *d: x.permute(*d))((x @ wqkv).reshape(B, S, 3, H, Dh), 2, 0, 3, 1, 4)
        q, k, v = qkv[0], qkv[1], qkv[2]
        scale = Dh ** -0.5
        pos = torch.arange(S)
        off = torch.arange(W) * dil
        idx = pos[:, None] - off[None, :]
        mask = idx >= 0
        idx_c = torch.where(mask, idx, 0).reshape(-1)
        kg = k[:, :, idx_c, :].reshape(B, H, S, W, Dh)
        vg = v[:, :, idx_c, :].reshape(B, H, S, W, Dh)
        logits = torch.einsum("bhsd,bhswd->bhsw", q, kg) * scale
        logits = torch.where(mask[None, None, :, :], logits, -1e9)
        attn = _softmax(logits, axis=-1)
        o = torch.einsum("bhsw,bhswd->bhsd", attn, vg)
        return (lambda x, *d: x.permute(*d))(o, 0, 2, 1, 3).reshape(B, S, D) @ wo

    def _B_ref(x, w_gate, w_up, w_down):
        g = _silu(x @ w_gate)
        u = x @ w_up
        return (g * u) @ w_down

    x = A_x
    xn = _layernorm(x, axis=-1)
    return x + _A_ref(xn, A_wqkv, A_wo) + _B_ref(xn, B_w_gate, B_w_up, B_w_down)
```

```python
import re

REG_RE = re.compile(r'(?<![\w.])([vas])(?:\[(\d+):(\d+)\]|(\d+))(?![\w])')
TRANS = ('v_exp_f32', 'v_log_f32', 'v_rcp_f32', 'v_rsq_f32', 'v_sqrt_f32', 'v_sin_f32', 'v_cos_f32')

def regs_of(tok):
    out = []
    for m in REG_RE.finditer(tok):
        k = m.group(1)
        if m.group(2) is not None:
            out += [(k, i) for i in range(int(m.group(2)), int(m.group(3)) + 1)]
        else:
            out.append((k, int(m.group(4))))
    if re.search(r'\bvcc\b', tok): out += [('s', 106), ('s', 107)]
    if re.search(r'\bm0\b', tok): out.append(('s', 124))
    if re.search(r'\bexec(_lo|_hi)?\b', tok): out += [('s', 126), ('s', 127)]
    return out

def split_ops(rest):
    ops, depth, cur = [], 0, ''
    for ch in rest:
        if ch == '[': depth += 1
        if ch == ']': depth -= 1
        if ch == ',' and depth == 0:
            ops.append(cur.strip()); cur = ''
        else:
            cur += ch
    if cur.strip(): ops.append(cur.strip())
    return ops

class Ins:
    __slots__ = ('text', 'op', 'w', 'r', 'kind', 'passes', 'a', 'b', 'c', 'states', 'tag')
    def __init__(self, text):
        self.text = text
        t = text.split(';')[0].strip()
        parts = t.split(None, 1)
        self.op = op = parts[0]
        ops = split_ops(parts[1]) if len(parts) > 1 else []
        self.w, self.r = [], []
        self.passes = 0; self.a = self.b = self.c = []
        self.states = 1
        self.tag = None
        if op.startswith('v_mfma'):
            self.kind = 'mfma'
            self.passes = 8 if '32x32x16' in op else 4
            self.w = regs_of(ops[0]); self.a = regs_of(ops[1]); self.b = regs_of(ops[2]); self.c = regs_of(ops[3])
            self.r = self.a + self.b + self.c
        elif op.startswith('v_'):
            self.kind = 'valu'
            if op.startswith('v_cmp'):
                self.w = regs_of(ops[0]); self.r = [x for o in ops[1:] for x in regs_of(o)]
            elif op.startswith('v_permlane') and 'swap' in op:
                self.w = regs_of(ops[0]) + regs_of(ops[1]); self.r = list(self.w)
            elif op.startswith(('v_add_co', 'v_addc_co', 'v_sub_co')):
                self.w = regs_of(ops[0]) + regs_of(ops[1]); self.r = [x for o in ops[2:] for x in regs_of(o)]
            else:
                self.w = regs_of(ops[0]); self.r = [x for o in ops[1:] for x in regs_of(o)]
                if op.startswith(('v_fmac', 'v_writelane')) or 'dpp' in op: self.r += self.w
        elif op.startswith('ds_'):
            self.kind = 'ds'
            if op.startswith(('ds_read', 'ds_bpermute', 'ds_swizzle')):
                self.w = regs_of(ops[0]); self.r = [x for o in ops[1:] for x in regs_of(o)]
            else:
                self.r = [x for o in ops for x in regs_of(o)]
        elif op.startswith(('buffer_', 'global_')):
            self.kind = 'vmem'
            lds = bool(re.search(r'\blds\b', t)) or 'load_lds' in op
            if 'load' in op and not lds:
                self.w = regs_of(ops[0]); self.r = [x for o in ops[1:] for x in regs_of(o)]
            else:
                self.r = [x for o in ops for x in regs_of(o)]
                if lds: self.r.append(('s', 124))
                if 'atomic' in op and 'sc0' in t: self.w = regs_of(ops[0])
        elif op == 's_nop':
            self.kind = 'nop'; self.states = int(ops[0], 0) + 1
        elif op.startswith('s_'):
            self.kind = 'salu'
            if op.startswith(('s_cmp', 's_waitcnt', 's_barrier', 's_cbranch', 's_branch', 's_endpgm', 's_sleep', 's_setprio', 's_bitcmp')):
                self.r = [x for o in ops for x in regs_of(o)]
            elif ops:
                self.w = regs_of(ops[0]); self.r = [x for o in ops[1:] for x in regs_of(o)]
                if 'saveexec' in op: self.w += [('s', 126), ('s', 127)]
        else:
            self.kind = 'other'; self.states = 0

def need(p, c):
    n = 0
    pw, cr, cw = set(p.w), set(c.r), set(c.w)
    if p.kind == 'valu':
        vw = {x for x in pw if x[0] in 'va'}
        sw = {x for x in pw if x[0] == 's'}
        if c.kind == 'mfma' and vw & cr: n = max(n, 2)
        if c.kind == 'valu':
            if p.op.startswith(TRANS) and vw & cr: n = max(n, 1)
            if (c.op.startswith('v_permlane') or 'dpp' in c.op) and vw & cr: n = max(n, 2)
            if c.op.startswith(('v_readlane', 'v_readfirstlane')) and vw & cr: n = max(n, 1)
            if sw & cr: n = max(n, 4 if c.op.startswith(('v_readlane', 'v_writelane')) else 2)
            if 'sdwa' in p.op and vw & (cr | cw): n = max(n, 1)
        if c.kind == 'vmem' and sw & cr: n = max(n, 5)
        if c.kind == 'salu' and sw & cr: n = max(n, 1)
    elif p.kind == 'mfma':
        big = p.passes == 8
        if c.kind == 'mfma':
            if pw & set(c.c):
                if not (p.w == c.c and p.passes == c.passes): n = max(n, 10 if big else 6)
            if pw & (set(c.a) | set(c.b)): n = max(n, 12 if big else 8)
            if pw & cw and not (pw & set(c.c)): n = max(n, 10 if big else 6)
        elif c.kind in ('valu', 'ds', 'vmem'):
            if pw & (cr | cw): n = max(n, 12 if big else 8)
            if c.kind == 'valu' and set(p.c) & cw: n = max(n, 7 if big else 3)
    elif p.kind == 'salu':
        if ('s', 124) in pw and c.kind in ('vmem', 'ds') and ('s', 124) in cr: n = max(n, 1)
    elif p.kind == 'vmem':
        if ('store' in p.op) and ('x3' in p.op or 'x4' in p.op) and c.kind in ('valu', 'mfma', 'ds', 'vmem'):
            data = set(regs_of(split_ops(p.text.split(';')[0].strip().split(None, 1)[1])[0 if p.op.startswith('buffer') else 1]))
            if data & cw: n = max(n, 2)
    return n

class Asm:
    def __init__(self):
        self.lines = []
        self.hist = []
        self.vm = []
        self.lg = []
        self.nops = 0
        self.count = 0
        self.waited = set()
    def raw(self, text):
        self.lines.append(text)
    def label(self, name):
        self.lines.append(name + ':'); self.hist = []
    def __call__(self, text, tag=None):
        for t in text.split('\n'):
            t = t.strip()
            if t: self.emit(t, tag)
    def emit(self, text, tag=None):
        if text.startswith('@'):
            return self.pseudo(text)
        ins = Ins(text)
        dist, req = 0, 0
        for p in reversed(self.hist):
            k = need(p, ins)
            if k - dist > req: req = k - dist
            dist += p.states
            if dist >= 20: break
        while req > 0:
            k = min(req, 16)
            nop = Ins(f's_nop {k-1}')
            self.lines.append('    ' + nop.text); self.hist.append(nop); self.nops += k; req -= k
        self.lines.append('    ' + text)
        self.hist.append(ins); self.hist = self.hist[-24:]
        self.count += 1
        if ins.kind in ('vmem', 'ds') and tag is not None: assert tag not in self.waited, ('issued after its wait', tag, text)
        if ins.kind == 'vmem' and not ins.op.startswith(('buffer_wbl2', 'buffer_inv')): self.vm.append(tag)
        if ins.kind == 'ds': self.lg.append(tag)
        if ins.op == 's_waitcnt':
            m = re.search(r'vmcnt\((\d+)\)', text)
            if m:
                n = int(m.group(1)); self.vm = self.vm[len(self.vm) - n:] if n < len(self.vm) and n else ([] if n == 0 else self.vm)
            m = re.search(r'lgkmcnt\((\d+)\)', text)
            if m:
                n = int(m.group(1)); self.lg = self.lg[len(self.lg) - n:] if n < len(self.lg) and n else ([] if n == 0 else self.lg)
    def pseudo(self, text):
        assert text.startswith('@wait')
        vm = re.search(r'vm=(\S+)', text); lg = re.search(r'lg=(\S+)', text)
        self.wait(vm.group(1).split(',') if vm else (), lg.group(1).split(',') if lg else ())
    def wait(self, vm=(), lg=()):
        self.waited |= set(vm) | set(lg)
        parts = []
        for q, tags, name, mx in ((self.vm, vm, 'vmcnt', 63), (self.lg, lg, 'lgkmcnt', 15)):
            last = -1
            for i, t in enumerate(q):
                if t in tags or '*' in tags: last = i
            if last >= 0:
                n = len(q) - 1 - last
                parts.append(f'{name}({min(n, mx)})')
        if parts: self.emit('s_waitcnt ' + ' '.join(parts))
    def text(self):
        return '\n'.join(self.lines) + '\n'

def cost(t):
    t = t[0] if isinstance(t, tuple) else t
    return 2 if t.startswith(TRANS) else 1

def V(b, n=1, k='v'):
    return f'{k}{b}' if n == 1 else f'{k}[{b}:{b+n-1}]'
def A(b, n=1): return V(b, n, 'a')
def S(b, n=1): return V(b, n, 's')
```

```python
import sys, struct
from asmlib import *

NAME = "parallel_sum__sliding_local_dilated__swiglu_ffn__prompt"
LOG2E = 1.4426950408889634
def f2u(x): return struct.unpack('<I', struct.pack('<f', x))[0]
def hx(x): return f'0x{x & 0xffffffff:08x}'

SX, SG, SU, SH, SD, SO, SOUT = 24, 28, 32, 36, 40, 44, 48
sR, sC, sTH, sCT, sW = 52, 53, 54, 55, 56
T0, T1, T2, T3 = 57, 58, 59, 60
sMX, sMW, sSO, sST = 61, 62, 63, 64
sK = 66
sEX = 74
sM0, sM1, sM2, sM3, sM4 = 76, 78, 80, 82, 84

TH_BYTES = 5 * 72 * 1024
H_BYTES = 26 * TH_BYTES

def srd(a, dst, ptr, nbytes):
    a(f's_mov_b32 s{dst}, s{ptr}\ns_mov_b32 s{dst+1}, s{ptr+1}\ns_mov_b32 s{dst+2}, {nbytes}\ns_mov_b32 s{dst+3}, 0x20000')

def entry(a, name, done):
    a.raw(f'.globl {name}\n.p2align 8\n.type {name},@function\n{name}:')
    a(f's_cmp_ge_u32 s2, 256\ns_cbranch_scc1 {done}')
    a('s_load_dwordx16 s[4:19], s[0:1], 0\ns_load_dwordx4 s[20:23], s[0:1], 64')
    a(f'v_lshrrev_b32 v1, 6, v0\nv_and_b32 v0, 63, v0\nv_readfirstlane_b32 s{sW}, v1')

def code_prefetch(a, tag, nbytes, vtmp):
    per = ((nbytes + 31) // 32 + 127) // 128
    assert per <= 64
    a(f's_getpc_b64 s[{sK}:{sK+1}]\ns_lshr_b32 s{T0}, s2, 3\ns_mul_i32 s{T0}, s{T0}, {per*128}')
    a(f'v_min_u32 v{vtmp}, {per-1}, v0\nv_lshlrev_b32 v{vtmp}, 7, v{vtmp}\nv_add_u32 v{vtmp}, s{T0}, v{vtmp}')
    a(f'global_load_dword v{vtmp}, v{vtmp}, s[{sK}:{sK+1}]', tag='pf')

def decode(a, lab_attn, done):
    a(f's_lshr_b32 s{T0}, s2, 3\ns_bfe_u32 s{T1}, s2, 0x10002\ns_and_b32 s{T2}, s2, 3')
    a(f's_cmp_ge_u32 s{T0}, 23\ns_cbranch_scc1 {lab_attn}')
    a(f's_mul_i32 s{T2}, s{T2}, 23\ns_add_u32 s{T0}, s{T0}, s{T2}')
    a(f's_cmp_ge_u32 s{T0}, 91\ns_cbranch_scc1 {done}')
    a(f's_mul_i32 s{T2}, s{T1}, 91\ns_add_u32 s{T2}, s{T2}, s{T0}')
    a(f's_mul_i32 s{sTH}, s{T2}, 9363\ns_lshr_b32 s{sTH}, s{sTH}, 16\ns_mul_i32 s{T3}, s{sTH}, 7\ns_sub_u32 s{sCT}, s{T2}, s{T3}')
    a(f's_mul_i32 s{T2}, s{T1}, 7\ns_sub_u32 s{T2}, 49, s{T2}')
    a(f's_cmp_ge_u32 s{T0}, s{T2}\ns_cselect_b32 s{T3}, 1, 0\ns_cselect_b32 s{T2}, s{T2}, 0\ns_sub_u32 s{T0}, s{T0}, s{T2}')
    a(f's_xor_b32 s{T2}, s{T3}, s{T1}')
    a(f's_cmp_eq_u32 s{T2}, 0\ns_cselect_b32 s{sR}, 37, 43\ns_cselect_b32 s{sK}, 7, 6')
    a(f's_mul_i32 s{sC}, s{T0}, s{sR}\ns_lshr_b32 s{sC}, s{sC}, 8\ns_mul_i32 s{sK}, s{sK}, s{sC}\ns_sub_u32 s{sR}, s{T0}, s{sK}')
    a(f's_mul_i32 s{sK}, s{T3}, 7\ns_add_u32 s{sC}, s{sC}, s{sK}')
    a(f's_sub_u32 s{sK}, 7, s{T3}\ns_mul_i32 s{sK}, s{sK}, s{T1}\ns_add_u32 s{sR}, s{sR}, s{sK}')

def decode_py(b):
    i, hf, q = b >> 3, (b >> 2) & 1, b & 3
    if i >= 23: return ('A', 9 * hf + i - 23, q)
    f = i + 23 * q
    if f >= 91: return None
    p = 91 * hf + f; th = (p * 9363) >> 16; ct = p - 7 * th
    l1 = 49 - 7 * hf; sec = int(f >= l1); f2 = f - (l1 if sec else 0)
    x = sec ^ hf
    m, n = (37, 7) if x == 0 else (43, 6)
    c = (f2 * m) >> 8; r = f2 - n * c
    return ('F', r + (7 - sec) * hf, c + 7 * sec, th, ct)

def schedule(a, steps, dma, valu, cap=6, rate=0.44):
    g = 0; budget = 1.0; di = 0; vi = 0
    for st in steps:
        for p in st['pre']: a(p)
        for k, m in enumerate(st['mf']):
            a(m)
            used = 1 if (k == len(st['mf']) - 1) else 0
            head, tail = [], []
            budget = min(budget + rate, 2.0)
            fx = st['fixed'].get(k, [])
            used += sum(cost(t) for t in fx)
            if di < len(dma) and dma[di][0] <= g and budget >= 1.0 and used + len(dma[di][1]) + 1 <= cap + 1:
                head = dma[di][1]; tail = [(dma[di][2], dma[di][3])]; used += len(head) + 1; budget -= 1.0; di += 1
            for t in head: a(t)
            for t in fx:
                if isinstance(t, tuple): a(t[0], tag=t[1])
                else: a(t)
            while vi < len(valu) and valu[vi][0] <= g and used + cost(valu[vi][1]) <= cap:
                t = valu[vi][1]
                if isinstance(t, tuple): a(t[0], tag=t[1])
                else: a(t)
                used += cost(t); vi += 1
            for t, tg in tail: a(t, tag=tg)
            g += 1
    return dma[di:], valu[vi:]

def stats_ops(buf, n, SA, lo, hi, first):
    o = []
    for i in range(n):
        s, q = SA + 2 * i, SA + 2 * i + 1
        for k in range(4):
            r = buf + 4 * i + k
            o += [f'v_lshlrev_b32 v{lo}, 16, v{r}', f'v_and_b32 v{hi}, 0xffff0000, v{r}']
            if first and k == 0:
                o += [f'v_add_f32 v{s}, v{lo}, v{hi}', f'v_mul_f32 v{q}, v{lo}, v{lo}', f'v_fmac_f32 v{q}, v{hi}, v{hi}']
            else:
                o += [f'v_add_f32 v{s}, v{s}, v{lo}', f'v_fmac_f32 v{q}, v{lo}, v{lo}', f'v_add_f32 v{s}, v{s}, v{hi}', f'v_fmac_f32 v{q}, v{hi}, v{hi}']
    return o

def stats_final(n, SA, t):
    o = []
    for ctl in ('quad_perm:[1,0,3,2]', 'quad_perm:[2,3,0,1]', 'row_half_mirror'):
        for r in range(SA, SA + 2 * n):
            o.append(f'v_add_f32_dpp v{r}, v{r}, v{r} {ctl} row_mask:0xf bank_mask:0xf')
    for i in range(1, n):
        m = (sM0, sM1, sM2, sM3, sM4)[i]
        o += [f'v_cndmask_b32 v{SA}, v{SA}, v{SA+2*i}, s[{m}:{m+1}]', f'v_cndmask_b32 v{SA+1}, v{SA+1}, v{SA+2*i+1}, s[{m}:{m+1}]']
    o += [f'v_mul_f32 v{SA}, {hx(f2u(1/448))}, v{SA}', f'v_mul_f32 v{SA+1}, {hx(f2u(1/448))}, v{SA+1}',
          f'v_fma_f32 v{SA+1}, -v{SA}, v{SA}, v{SA+1}', f'v_max_f32 v{SA+1}, 0, v{SA+1}',
          f'v_cvt_pk_bf16_f32 v{SA}, -v{SA}, v{SA+1}',
          f'v_lshlrev_b32 v{t}, 16, v{SA}', f'v_and_b32 v{SA+1}, 0xffff0000, v{SA}',
          f'v_add_f32 v{SA+1}, {hx(f2u(1e-5))}, v{SA+1}', f'v_cvt_pk_bf16_f32 v{SA+1}, v{SA+1}, v{SA+1}',
          f'v_and_b32 v{SA+1}, 0xffff0000, v{SA+1}', f'v_sqrt_f32 v{SA+1}, v{SA+1}', 's_nop 0',
          f'v_cvt_pk_bf16_f32 v{SA+1}, v{SA+1}, v{SA+1}', f'v_and_b32 v{t+1}, 0xffff0000, v{SA+1}',
          f'v_rcp_f32 v{t+2}, v{t+1}', 's_nop 0']
    return o

def lane_masks(a, n, vt):
    a(f'v_and_b32 v{vt}, 7, v0')
    a(f'v_cmp_gt_u32 s[{sM0}:{sM0+1}], {n}, v{vt}')
    for i in range(1, n):
        m = (sM0, sM1, sM2, sM3, sM4)[i]
        a(f'v_cmp_eq_u32 s[{m}:{m+1}], {i}, v{vt}')

X0 = 768
FXS = 162 * 128; FW0 = X0 + 3 * FXS; FPAR = FW0 + 3 * 32768; FCS = X0 + FXS
assert FPAR + 2560 <= 163840
def ffn_p1(a):
    line0 = len(a.lines)
    XV, GV, UV = 2, 7, 8
    XA, XB, WA, SAD = 9, 13, 17, 21
    LO, HI = 22, 23
    SA = 24
    SB = (34, 54)
    t = 74
    ACC = 96
    BF = (200, 220); AF = (240, 248)
    a(f'v_lshrrev_b32 v{t}, 3, v0\nv_and_b32 v{t+1}, 7, v0\nv_lshrrev_b32 v{t+2}, 4, v0')
    a(f'v_xor_b32 v{t+1}, v{t+1}, v{t+2}\nv_lshlrev_b32 v{t+1}, 4, v{t+1}')
    a(f'v_mul_u32_u24 v{t}, 1792, v{t}\nv_add_u32 v{t}, v{t}, v{t+1}')
    a(f's_mul_i32 s{T2}, s{sR}, 158\ns_mul_i32 s{T3}, s{sW}, 5')
    for i in range(5):
        a(f's_add_u32 s{T0}, s{T3}, {i}\ns_and_b32 s{T1}, s{T0}, 1\ns_lshr_b32 s{T0}, s{T0}, 1\ns_lshl_b32 s{T0}, s{T0}, 4')
        a(f's_add_u32 s{T0}, s{T0}, s{T1}\ns_add_u32 s{T0}, s{T0}, s{T2}\ns_mul_i32 s{T0}, s{T0}, 896\ns_lshl_b32 s{T1}, s{T1}, 6')
        a(f'v_xor_b32 v{XV+i}, s{T1}, v{t}\nv_add_u32 v{XV+i}, s{T0}, v{XV+i}')
    a(f'v_lshrrev_b32 v{t}, 4, v0\nv_and_b32 v{t+1}, 15, v0\nv_lshlrev_b32 v{t+1}, 4, v{t+1}\nv_lshlrev_b32 v{t+2}, 6, v{t}')
    a(f'v_xor_b32 v{t+1}, v{t+1}, v{t+2}\nv_mul_u32_u24 v{t}, 3584, v{t}\nv_add_u32 v{t}, v{t}, v{t+1}')
    a(f's_mul_i32 s{T0}, s{sW}, {4*3584}\ns_lshl_b32 s{T1}, s{sC}, 8\ns_add_u32 s{T0}, s{T0}, s{T1}')
    a(f'v_add_u32 v{GV}, s{T0}, v{t}\nv_xor_b32 v{UV}, 32, v{GV}')
    a(f's_mul_i32 s{sMX}, s{sW}, 5120\ns_lshl_b32 s{sMW}, s{sW}, 10\ns_add_u32 s{sMW}, s{sMW}, {FW0}')
    a('s_waitcnt lgkmcnt(0)')
    srd(a, SX, 4, 2048 * 896); srd(a, SG, 12, 448 * 3584); srd(a, SU, 14, 448 * 3584)
    dma = []
    for j in range(7):
        e = 0 if j < 3 else (4 * (j - 3) + 3) * 10
        st = j % 3
        for i in range(5):
            dma.append((e, [f's_add_u32 m0, s{sMX}, {X0 + st*FXS + i*1024 - j*128}'],
                        f'buffer_load_dwordx4 v{XV+i}, s[{SX}:{SX+3}], 0 offen offset:{j*128} lds', f'x{j}'))
        for i in range(4):
            dma.append((e, [f's_mov_b32 s{sSO}, {(64*j + 16*i) * 3584}', f's_add_u32 m0, s{sMW}, {st*32768 + i*4096}'],
                        f'buffer_load_dwordx4 v{GV}, s[{SG}:{SG+3}], s{sSO} offen lds', f'w{j}'))
            dma.append((e, [f's_add_u32 m0, s{sMW}, {st*32768 + 16384 + i*4096}'],
                        f'buffer_load_dwordx4 v{UV}, s[{SU}:{SU+3}], s{sSO} offen lds', f'w{j}'))
    NPRO = 18
    for e, pre, ins, tg in dma[:NPRO]:
        for p in pre: a(p)
        a(ins, tag=tg)
    dma = dma[NPRO:]
    srd(a, SH, 22, H_BYTES)
    a(f'v_and_b32 v{t}, 31, v0\nv_lshrrev_b32 v{t+1}, 5, v0\nv_bfe_u32 v{t+2}, v0, 1, 3\nv_xor_b32 v{t+1}, v{t+1}, v{t+2}')
    a(f'v_lshlrev_b32 v{t+1}, 4, v{t+1}\nv_lshl_add_u32 v{XA}, v{t}, 7, v{t+1}')
    a(f'v_cmp_eq_u32 vcc, 31, v{t}\nv_mov_b32 v{t+3}, 0x100\nv_cndmask_b32 v{t+3}, 0, v{t+3}, vcc')
    for ks in range(1, 4): a(f'v_xor_b32 v{XA+ks}, {32*ks}, v{XA}')
    for ks in range(4): a(f'v_add_u32 v{XB+ks}, v{XA+ks}, v{t+3}')
    a(f'v_bfe_u32 v{t}, v0, 4, 1\nv_bfe_u32 v{t+1}, v0, 2, 2\nv_lshrrev_b32 v{t+2}, 5, v0\nv_and_b32 v{t+3}, 3, v0')
    a(f'v_lshl_add_u32 v{t+4}, v{t+1}, 1, v{t}\ns_lshl_b32 s{T0}, s{sW}, 1\nv_xor_b32 v{t+4}, s{T0}, v{t+4}\nv_lshlrev_b32 v{t+4}, 5, v{t+4}')
    a(f'v_lshl_add_u32 v{t+4}, v{t+3}, 3, v{t+4}\nv_lshl_add_u32 v{t+2}, v{t+2}, 3, v{t+1}\nv_lshl_add_u32 v{t+4}, v{t+2}, 8, v{t+4}')
    a(f'v_lshl_add_u32 v{t+4}, v{t}, 14, v{t+4}\nv_add_u32 v{WA}, {FW0}, v{t+4}\nv_xor_b32 v{WA+1}, 32, v{WA}')
    a(f'v_add_u32 v{WA+2}, 0x10000, v{WA}\nv_add_u32 v{WA+3}, 0x10000, v{WA+1}')
    a(f'v_lshl_add_u32 v{SAD}, v0, 4, s{sMX}')
    a(f'v_and_b32 v{t}, 7, v0\nv_lshlrev_b32 v{t}, 4, v{t}')
    for k in range(4): a(f'v_mov_b32 v{t+2+k}, 0x3f803f80')
    for st in range(3): a(f'ds_write_b128 v{t}, v[{t+2}:{t+5}] offset:{X0 + st*FXS + 161*128}')
    lane_masks(a, 5, t)

    def reads(n):
        j, ks = n >> 2, n & 3; st = j % 3; b = n & 1
        o = []
        def wr(u, jj):
            off = st * 32768 + ks * 4096 + jj * 1024
            reg = WA + u + (2 if off >= 65536 else 0)
            return (f'ds_read_b64_tr_b16 {A(AF[b] + 4*u + 2*jj, 2)}, v{reg} offset:{off & 0xffff}', f'r{n}')
        def xr(T):
            return (f'ds_read_b128 {A(BF[b] + 4*T, 4)}, v{(XB if T == 4 else XA) + ks} offset:{X0 + st*FXS + T*4096}', f'r{n}')
        return [wr(0, 0), wr(0, 1), xr(4), wr(1, 0), wr(1, 1), xr(0), xr(1), xr(2), xr(3)]
    def sreads(j):
        return [(f'ds_read_b128 {V(SB[j&1] + 4*i, 4)}, v{SAD} offset:{X0 + (j%3)*FXS + i*1024}', f's{j}') for i in range(5)]

    a('@wait vm=x0,w0 lg=*\ns_waitcnt lgkmcnt(0)\ns_barrier')
    for r_, tg in reads(0): a(r_, tag=tg)
    for r_, tg in sreads(0): a(r_, tag=tg)
    steps = []; valu = []
    order = [(4, 0), (4, 1)] + [(T, u) for T in range(4) for u in range(2)]
    sread_at = {1: 3, 2: 6, 3: 10, 4: 13, 5: 17, 6: 20}
    for n in range(28):
        j, ks = n >> 2, n & 3; b = n & 1
        pre = ['s_waitcnt lgkmcnt(0)']
        if ks == 3:
            pre = [f'@wait vm=x{j+1},w{j+1} lg=*', 's_barrier']
        mf = []
        for T, u in order:
            d = V(ACC + 16 * (2 * T + u), 16)
            mf.append(f'v_mfma_f32_32x32x16_bf16 {d}, {A(AF[b] + 4*u, 4)}, {A(BF[b] + 4*T, 4)}, {d if n else 0}')
        fixed = {}
        if n < 27:
            rr = reads(n + 1)
            for k, x in enumerate(rr): fixed.setdefault([0, 0, 1, 1, 2, 3, 4, 5, 6][k], []).append(x)
        for jj, at in sread_at.items():
            if at == n:
                fixed.setdefault(2, []).append(f'@wait vm=x{jj}')
                for k, x in enumerate(sreads(jj)): fixed.setdefault(3 + k, []).append(x)
        steps.append(dict(pre=pre, mf=mf, fixed=fixed))
    for j in range(7):
        e = 0 if j == 0 else (sread_at[j] + 1) * 10
        ops = stats_ops(SB[j & 1], 5, SA, LO, HI, j == 0)
        valu += [(e, o) for o in ops]
    PT = t
    fin = stats_final(5, SA, PT)
    fin += [f'v_mul_f32 v{PT+1}, v{PT+1}, v{PT+1}', f'v_mul_f32 v{PT+2}, {hx(f2u(-LOG2E))}, v{PT+2}',
            f'v_lshrrev_b32 v{PT+4}, 3, v0', f'v_and_b32 v{PT+5}, 7, v0', f'v_lshl_add_u32 v{PT+4}, v{PT+5}, 3, v{PT+4}',
            f's_mul_i32 s{T0}, s{sW}, 640', f's_add_u32 s{T0}, s{T0}, {FPAR}', f'v_lshl_add_u32 v{PT+4}, v{PT+4}, 4, s{T0}']
    valu += [(0, o) for o in fin]
    n_before = a.count
    ld, lv = schedule(a, steps[:27], dma, valu)
    assert not ld and not lv, (len(ld), len(lv))
    check_stats_war(a, SB, line0)
    a(f's_mov_b64 exec, s[{sM0}:{sM0+1}]\nds_write_b128 v{PT+4}, v[{PT}:{PT+3}]\ns_mov_b64 exec, -1')
    PR = 34
    last = steps[27]
    a(f'v_and_b32 v{t+6}, 31, v0\nv_lshlrev_b32 v{t+6}, 4, v{t+6}\nv_add_u32 v{t+6}, {FPAR}, v{t+6}')
    for T in range(5):
        last['fixed'].setdefault(T, []).append((f'ds_read_b128 {V(PR + 4*T, 4)}, v{t+6} offset:{T*512}', 'par'))
    ex = [f'v_lshrrev_b32 v{t+7}, 5, v0', f's_lshl_b32 s{T0}, s{sW}, 8', f's_add_u32 s{T0}, s{T0}, {FCS}', f'v_lshl_add_u32 v{t+7}, v{t+7}, 4, s{T0}',
          f'v_bfe_u32 v{t+8}, v0, 4, 1', f'v_mul_u32_u24 v{t+8}, {TH_BYTES}, v{t+8}', f'v_and_b32 v{t+9}, 15, v0', f'v_lshl_add_u32 v{t+8}, v{t+9}, 4, v{t+8}',
          f'v_lshrrev_b32 v{t+9}, 5, v0', f'v_lshl_add_u32 v{t+8}, v{t+9}, 8, v{t+8}',
          f's_lshl_b32 s{T0}, s{sC}, 2', f's_add_u32 s{T0}, s{T0}, s{sW}', f's_lshl_b32 s{T0}, s{T0}, 10', f's_mul_i32 s{T1}, s{sR}, {2*TH_BYTES}', f's_add_u32 s{sST}, s{T0}, s{T1}']
    cs = ['s_mov_b32 exec_lo, 0x80000000', 's_mov_b32 exec_hi, 0x80000000']
    for u in range(2):
        for q in range(4): cs.append((f'ds_write_b128 v{t+7}, {V(ACC + 16*(8+u) + 4*q, 4)} offset:{u*128 + q*32}', 'cw'))
    cs.append('s_mov_b64 exec, -1')
    ld, lv = schedule(a, [last], [], [(0, o) for o in ex])
    assert not lv
    for x in cs:
        if isinstance(x, tuple): a(x[0], tag=x[1])
        else: a(x)
    CS = 2
    for u in range(2):
        for q in range(4): a(f'ds_read_b128 {V(CS + 16*u + 4*q, 4)}, v{t+7} offset:{u*128 + q*32}', tag='cs')
    a('s_waitcnt lgkmcnt(0)')
    E = 54
    HV = t + 8
    for T in range(5):
        P = PR + 4 * T
        for u in range(2):
            d = ACC + 16 * (2 * T + u); c = CS + 16 * u; O = 62 + 4 * u
            for k in range(0, 16, 2):
                a(f'v_pk_fma_f32 {V(d+k, 2)}, {V(c+k, 2)}, {V(P, 2)}, {V(d+k, 2)} op_sel_hi:[1,0,1]')
            for k in range(0, 8, 2):
                a(f'v_pk_mul_f32 {V(E+k, 2)}, {V(d+k, 2)}, {V(P+2, 2)} op_sel_hi:[1,0]')
            for k in range(8): a(f'v_exp_f32 v{E+k}, v{E+k}')
            for k in range(0, 8, 2):
                a(f'v_pk_mul_f32 {V(d+k, 2)}, {V(d+k, 2)}, {V(d+8+k, 2)}')
            for k in range(0, 8, 2):
                a(f'v_pk_fma_f32 {V(E+k, 2)}, {V(E+k, 2)}, {V(P, 2)}, {V(P, 2)} op_sel:[0,1,1] op_sel_hi:[1,1,1]')
            for k in range(8): a(f'v_rcp_f32 v{E+k}, v{E+k}')
            for k in range(0, 8, 2):
                a(f'v_pk_mul_f32 {V(d+k, 2)}, {V(d+k, 2)}, {V(E+k, 2)}')
            for k in range(4): a(f'v_cvt_pk_bf16_f32 v{O+k}, v{d+2*k}, v{d+2*k+1}')
            a(f'buffer_store_dwordx4 {V(O, 4)}, v{HV}, s[{SH}:{SH+3}], s{sST} offen offset:{u*512}', tag='h')
        if T < 4: a(f's_add_u32 s{sST}, s{sST}, {72*1024}')

def check_stats_war(a, SB, start):
    pend = {}
    for ln in a.lines[start:]:
        ln = ln.strip()
        m = re.match(r'ds_read_b128 v\[(\d+):(\d+)\]', ln)
        if m and SB[0] <= int(m.group(1)) < SB[1] + (SB[1] - SB[0]):
            for r in range(int(m.group(1)), int(m.group(2)) + 1):
                assert pend.get(r, 0) == 0, ('stats WAR', ln)
                pend[r] = 2
        m = re.match(r'v_(lshlrev_b32 v\d+, 16|and_b32 v\d+, 0xffff0000), v(\d+)$', ln)
        if m and pend.get(int(m.group(2)), 0) > 0: pend[int(m.group(2))] -= 1

AXS = 130 * 128; AW0 = X0 + 3 * AXS; APAR = AW0 + 4 * 24576; AR = APAR + 2048; ACS = AR + 1024
def attn(a):
    line0 = len(a.lines)
    XV, WV = 2, 6
    XA, XB, WA, SAD = 7, 11, 15, 17
    LO, HI = 18, 19
    SA = 20
    SB = (28, 44)
    t = 28
    ACC = 64
    BF = (0, 16); AF = (32, 44)
    a(f's_mul_i32 s{sR}, s{T1}, 9\ns_add_u32 s{sR}, s{sR}, s{T0}\ns_sub_u32 s{sR}, s{sR}, 23\ns_mov_b32 s{sC}, s{T2}')
    a(f'v_lshrrev_b32 v{t}, 3, v0\nv_and_b32 v{t+1}, 7, v0\nv_lshrrev_b32 v{t+2}, 4, v0')
    a(f'v_xor_b32 v{t+1}, v{t+1}, v{t+2}\nv_lshlrev_b32 v{t+1}, 4, v{t+1}')
    a(f'v_mul_u32_u24 v{t}, 1792, v{t}\nv_add_u32 v{t}, v{t}, v{t+1}')
    a(f's_mul_i32 s{T2}, s{sR}, 113\ns_and_b32 s{T0}, s{sW}, 1\ns_lshl_b32 s{T0}, s{T0}, 6\ns_lshr_b32 s{T1}, s{sW}, 1')
    a(f's_add_u32 s{T2}, s{T2}, s{T0}\ns_add_u32 s{T2}, s{T2}, s{T1}\ns_mul_i32 s{T2}, s{T2}, 896')
    a(f'v_add_u32 v{XV}, s{T2}, v{t}\nv_xor_b32 v{t}, 64, v{t}\ns_add_u32 s{T2}, s{T2}, {16*896}\nv_add_u32 v{XV+1}, s{T2}, v{t}')
    a(f'v_add_u32 v{XV+2}, {32*896}, v{XV}\nv_add_u32 v{XV+3}, {32*896}, v{XV+1}')
    a(f'v_lshrrev_b32 v{t}, 4, v0\nv_lshlrev_b32 v{t+1}, 2, v{t}\nv_sub_u32 v{t+1}, v0, v{t+1}\nv_and_b32 v{t+1}, 15, v{t+1}\nv_min_u32 v{t+1}, 13, v{t+1}')
    a(f'v_mul_u32_u24 v{t}, 2688, v{t}\nv_lshl_add_u32 v{t}, v{t+1}, 4, v{t}')
    a(f's_mul_i32 s{T0}, s{sW}, {4*2688}\ns_mul_i32 s{T1}, s{sC}, 224\ns_add_u32 s{T0}, s{T0}, s{T1}\nv_add_u32 v{WV}, s{T0}, v{t}')
    a(f's_lshl_b32 s{sMX}, s{sW}, 12\ns_lshl_b32 s{sMW}, s{sW}, 10\ns_add_u32 s{sMW}, s{sMW}, {AW0}')
    a('s_waitcnt lgkmcnt(0)')
    srd(a, SX, 4, 2048 * 896); srd(a, SG, 6, 448 * 2688)
    def xd(j, e):
        return [(e, [f's_add_u32 m0, s{sMX}, {X0 + (j%3)*AXS + i*1024 - j*128}'],
                 f'buffer_load_dwordx4 v{XV+i}, s[{SX}:{SX+3}], 0 offen offset:{j*128} lds', f'x{j}') for i in range(4)]
    def wd(h, e):
        o = []
        for i in range(2):
            for m in range(3):
                pre = [f's_mov_b32 s{sSO}, {(32*h + 16*i) * 2688}'] if m == 0 else []
                o.append((e, pre + [f's_add_u32 m0, s{sMW}, {(h%4)*24576 + m*8192 + i*4096 - m*896}'],
                          f'buffer_load_dwordx4 v{WV}, s[{SG}:{SG+3}], s{sSO} offen offset:{m*896} lds', f'w{h}'))
        return o
    dma = []
    for h in range(14):
        if h % 2 == 0:
            j = h // 2
            dma += xd(j, 0 if j < 3 else (4 * (j - 3) + 3) * 12)
        dma += wd(h, 0 if h < 4 else (2 * (h - 4) + 1) * 12)
    NPRO = 16
    for e, pre, ins, tg in dma[:NPRO]:
        for p in pre: a(p)
        a(ins, tag=tg)
    dma = dma[NPRO:]
    srd(a, SH, 22, H_BYTES)
    a(f'v_and_b32 v{t}, 31, v0\nv_lshrrev_b32 v{t+1}, 5, v0\nv_bfe_u32 v{t+2}, v0, 1, 3\nv_xor_b32 v{t+1}, v{t+1}, v{t+2}')
    a(f'v_lshlrev_b32 v{t+1}, 4, v{t+1}\nv_lshl_add_u32 v{XA}, v{t}, 7, v{t+1}')
    a(f'v_cmp_eq_u32 vcc, 31, v{t}\nv_mov_b32 v{t+3}, 0x100\nv_cndmask_b32 v{t+3}, 0, v{t+3}, vcc')
    for ks in range(1, 4): a(f'v_xor_b32 v{XA+ks}, {32*ks}, v{XA}')
    for ks in range(4): a(f'v_add_u32 v{XB+ks}, v{XA+ks}, v{t+3}')
    a(f'v_bfe_u32 v{t}, v0, 4, 1\nv_bfe_u32 v{t+1}, v0, 2, 2\nv_lshrrev_b32 v{t+2}, 5, v0\nv_and_b32 v{t+3}, 3, v0')
    a(f'v_lshl_add_u32 v{t+4}, v{t+1}, 1, v{t}\nv_lshl_add_u32 v{t+4}, v{t+4}, 2, v{t+3}\ns_mul_i32 s{T0}, s{sW}, 56')
    a(f'v_lshl_add_u32 v{t+4}, v{t+4}, 3, s{T0}\nv_and_b32 v{t+4}, 0xff, v{t+4}')
    a(f'v_lshl_add_u32 v{t+2}, v{t+2}, 3, v{t+1}\nv_lshl_add_u32 v{t+4}, v{t+2}, 8, v{t+4}')
    a(f'v_add_u32 v{WA}, {AW0}, v{t+4}\nv_add_u32 v{WA+1}, {AW0 + 49152}, v{t+4}')
    a(f'v_lshl_add_u32 v{SAD}, v0, 4, s{sMX}')
    a(f'v_and_b32 v{t}, 7, v0\nv_lshlrev_b32 v{t}, 4, v{t}')
    for k in range(4): a(f'v_mov_b32 v{t+2+k}, 0x3f803f80')
    for st in range(3): a(f'ds_write_b128 v{t}, v[{t+2}:{t+5}] offset:{X0 + st*AXS + 129*128}')
    lane_masks(a, 4, t + 6)

    def reads(n):
        j, ks = n >> 2, n & 3; h = n >> 1; b = n & 1
        def wr(m, jj):
            off = (h % 4) * 24576 + m * 8192 + (n & 1) * 4096 + jj * 1024
            reg = WA + (1 if off >= 49152 else 0)
            return (f'ds_read_b64_tr_b16 {A(AF[b] + 4*m + 2*jj, 2)}, v{reg} offset:{off % 49152}', f'r{n}')
        def xr(T):
            return (f'ds_read_b128 {A(BF[b] + 4*T, 4)}, v{(XB if T == 3 else XA) + ks} offset:{X0 + (j%3)*AXS + T*4096}', f'r{n}')
        return [wr(0, 0), wr(0, 1), xr(3), wr(1, 0), wr(1, 1), wr(2, 0), wr(2, 1), xr(0), xr(1), xr(2)]
    def sreads(j):
        return [(f'ds_read_b128 {V(SB[j&1] + 4*i, 4)}, v{SAD} offset:{X0 + (j%3)*AXS + i*1024}', f's{j}') for i in range(4)]

    a('@wait vm=x0,w0 lg=*\ns_waitcnt lgkmcnt(0)\ns_barrier')
    for r_, tg in reads(0): a(r_, tag=tg)
    for r_, tg in sreads(0): a(r_, tag=tg)
    steps = []; valu = []
    order = [(3, 0), (3, 1), (3, 2)] + [(T, m) for T in range(3) for m in range(3)]
    sread_at = {j: 4 * j - 1 for j in range(1, 7)}
    for n in range(28):
        h = n >> 1; b = n & 1
        pre = ['s_waitcnt lgkmcnt(0)']
        if n & 1:
            pre = [f'@wait vm=x{(n+1)>>2},w{h+1} lg=*', 's_barrier']
        mf = []
        for T, m in order:
            d = V(ACC + 64 * m + 16 * T, 16)
            w_, x_ = A(AF[b] + 4 * m, 4), A(BF[b] + 4 * T, 4)
            mf.append(f'v_mfma_f32_32x32x16_bf16 {d}, {w_ if m < 2 else x_}, {x_ if m < 2 else w_}, {d if n else 0}')
        fixed = {}
        if n < 27:
            for k, x in enumerate(reads(n + 1)): fixed.setdefault([0, 0, 1, 2, 2, 3, 3, 4, 5, 6][k], []).append(x)
        for jj, at in sread_at.items():
            if at == n:
                for k, x in enumerate(sreads(jj)): fixed.setdefault(5 + k, []).append(x)
        steps.append(dict(pre=pre, mf=mf, fixed=fixed))
    for j in range(7):
        e = 0 if j == 0 else (sread_at[j] + 1) * 12
        valu += [(e, o) for o in stats_ops(SB[j & 1], 4, SA, LO, HI, j == 0)]
    PT = 44
    fin = stats_final(4, SA, PT)
    fin += [f'v_mul_f32 v{PT+1}, {hx(f2u(LOG2E * 28 ** -0.5))}, v{PT+2}', f'v_mul_f32 v{PT+3}, v{PT}, v{PT+2}',
            f'v_lshrrev_b32 v{PT+4}, 3, v0', f'v_and_b32 v{PT+5}, 7, v0', f'v_lshl_add_u32 v{PT+4}, v{PT+5}, 3, v{PT+4}',
            f's_lshl_b32 s{T0}, s{sW}, 5', f'v_add_u32 v{PT+4}, s{T0}, v{PT+4}',
            f'v_lshlrev_b32 v{PT+5}, 2, v{PT+4}', f'v_add_u32 v{PT+5}, {AR}, v{PT+5}',
            f'v_lshlrev_b32 v{PT+4}, 4, v{PT+4}', f'v_add_u32 v{PT+4}, {APAR}, v{PT+4}']
    valu += [(0, o) for o in fin]
    ld, lv = schedule(a, steps[:27], dma, valu)
    assert not ld, len(ld)
    for _, o in lv: a(o)
    check_stats_war(a, SB, line0)
    a(f's_mov_b64 exec, s[{sM0}:{sM0+1}]\nds_write_b128 v{PT+4}, v[{PT}:{PT+3}]\nds_write_b32 v{PT+5}, v{PT+2}\nds_write_b32 v{PT+5}, v{PT+3} offset:512\ns_mov_b64 exec, -1')
    last = steps[27]
    PR = 2
    PA, CA, RA, CV = 60, 61, 62, 63
    a(f'v_and_b32 v{PA}, 31, v0\nv_lshlrev_b32 v{PA}, 4, v{PA}\nv_add_u32 v{PA}, {APAR}, v{PA}')
    for T in range(4):
        last['fixed'].setdefault(T, []).append((f'ds_read_b128 {V(PR + 4*T, 4)}, v{PA} offset:{T*512}', 'par'))
    ex = [f'v_lshrrev_b32 v{RA}, 5, v0', f's_lshl_b32 s{T0}, s{sW}, 8', f's_add_u32 s{T0}, s{T0}, {ACS}', f'v_lshl_add_u32 v{CA}, v{RA}, 4, s{T0}',
          f'v_lshlrev_b32 v{RA}, 4, v{RA}', f'v_add_u32 v{RA}, {AR}, v{RA}',
          f'v_cmp_gt_u32 s[{sM1}:{sM1+1}], 32, v0']
    ld, lv = schedule(a, [last], [], [(0, o) for o in ex])
    assert not lv
    a('s_mov_b32 exec_lo, 0x80000000\ns_mov_b32 exec_hi, 0x80000000')
    for m in range(2):
        for q in range(4): a(f'ds_write_b128 v{CA}, {V(ACC + 64*m + 48 + 4*q, 4)} offset:{m*128 + q*32}', tag='cw')
    a('s_mov_b64 exec, -1')
    CS = 18
    for m in range(2):
        for q in range(4): a(f'ds_read_b128 {V(CS + 16*m + 4*q, 4)}, v{CA} offset:{m*128 + q*32}', tag='cs')
    a(f'v_mov_b32 v{PA}, v{ACC+128+48+15}\nv_mov_b32 v{CV}, v{ACC+128+48+15}\nv_permlane32_swap_b32 v{PA}, v{CV}')
    a('s_waitcnt lgkmcnt(0)')
    Q, K, Vv = ACC, ACC + 64, ACC + 128
    for T in range(4):
        P = PR + 4 * T
        d = Q + 16 * T
        for k in range(0, 16, 2): a(f'v_pk_fma_f32 {V(d+k, 2)}, {V(CS+k, 2)}, {V(P, 2)}, {V(d+k, 2)} op_sel_hi:[1,0,1]')
        for k in range(8): a(f'v_cvt_pk_bf16_f32 v{Q+8*T+k}, v{d+2*k}, v{d+2*k+1}')
        for k in (6, 7): a(f'v_cndmask_b32 v{Q+8*T+k}, 0, v{Q+8*T+k}, s[{sM1}:{sM1+1}]')
        d = K + 16 * T
        for k in range(0, 16, 2): a(f'v_pk_fma_f32 {V(d+k, 2)}, {V(CS+16+k, 2)}, {V(P, 2)}, {V(d+k, 2)} op_sel_hi:[1,0,1]')
        for k in range(0, 16, 2): a(f'v_pk_mul_f32 {V(d+k, 2)}, {V(d+k, 2)}, {V(P+2, 2)} op_sel_hi:[1,0]')
        for k in range(8): a(f'v_cvt_pk_bf16_f32 v{K+8*T+k}, v{d+2*k}, v{d+2*k+1}')
    RB = (Q + 32, K + 32)
    def rread(T):
        b = RB[T & 1]
        for q in range(4):
            a(f'ds_read_b128 {V(b + 4*q, 4)}, v{RA} offset:{T*128 + q*32}', tag=f'R{T}')
            a(f'ds_read_b128 {V(b + 16 + 4*q, 4)}, v{RA} offset:{512 + T*128 + q*32}', tag=f'R{T}')
    rread(0)
    MC, MP = 18, 34
    a(f'v_and_b32 v50, 31, v0\nv_lshrrev_b32 v51, 5, v0\nv_lshlrev_b32 v51, 2, v51\nv_sub_u32 v50, v50, v51\nv_mov_b32 v52, {hx(f2u(-1e30))}')
    for i in range(16):
        row = 8 * (i >> 2) + (i & 3)
        a(f'v_subrev_u32 v51, {row}, v50\nv_cmp_gt_u32 vcc, 8, v51\nv_cndmask_b32 v{MC+i}, v52, 0, vcc'.replace(f'v_cndmask_b32 v{MC+i}, v52, 0, vcc', f'v_cndmask_b32_e64 v{MC+i}, v52, 0, vcc'))
        if i >= 12:
            a(f'v_add_u32 v51, 32, v51\nv_cmp_gt_u32 vcc, 8, v51\nv_cndmask_b32_e64 v{MP+i}, v52, 0, vcc')
        else:
            a(f'v_mov_b32 v{MP+i}, v52')
    for T in range(4):
        if T < 3: rread(T + 1)
        a(f'@wait lg=R{T}')
        b = RB[T & 1]; d = Vv + 16 * T
        for k in range(0, 16, 2): a(f'v_pk_mul_f32 {V(d+k, 2)}, {V(d+k, 2)}, {V(b+k, 2)}')
        for k in range(0, 16, 2): a(f'v_pk_fma_f32 {V(d+k, 2)}, {V(b+16+k, 2)}, {V(CV-1, 2)}, {V(d+k, 2)} op_sel:[0,1,0] op_sel_hi:[1,1,1]')
        for k in range(8): a(f'v_cvt_pk_bf16_f32 v{Vv+8*T+k}, v{d+2*k}, v{d+2*k+1}')
    OA = 50
    a(f's_mul_i32 s{T2}, s{sR}, 113\ns_lshl_b32 s{T0}, s{sC}, 2\ns_add_u32 s{T0}, s{T0}, s{sW}\ns_add_u32 s{T0}, s{T0}, 56\ns_lshl_b32 s{sST}, s{T0}, 10')
    a(f's_cmp_eq_u32 s{sR}, 0\ns_cselect_b32 s{T3}, 0, 14\ns_mov_b32 s{sK}, 26547\ns_mov_b32 s{sK+1}, {TH_BYTES}\ns_mov_b32 s{sK+2}, {72*1024}')
    for T in range(4):
        o = OA + T
        a(f'v_and_b32 v54, 31, v0\nv_lshlrev_b32 v54, 1, v54\nv_add_u32 v54, {64*(T&1) + (T>>1)}, v54')
        a(f'v_add_u32 v55, s{T2}, v54\nv_mul_u32_u24 v56, s{sK}, v55\nv_lshrrev_b32 v56, 22, v56')
        a(f'v_mul_u32_u24 v57, 158, v56\nv_sub_u32 v55, v55, v57')
        a(f'v_bfe_u32 v57, v55, 4, 1\nv_lshl_add_u32 v56, v56, 1, v57\nv_mul_lo_u32 v56, v56, s{sK+1}')
        a(f'v_lshrrev_b32 v57, 5, v55\nv_mad_u32_u24 v56, v57, s{sK+2}, v56')
        a(f'v_bfe_u32 v57, v55, 1, 3\nv_lshl_add_u32 v56, v57, 4, v56\nv_and_b32 v57, 1, v55\nv_lshl_add_u32 v56, v57, 7, v56')
        a(f'v_lshrrev_b32 v57, 5, v0\nv_lshl_add_u32 v56, v57, 8, v56')
        a(f'v_cmp_le_u32 vcc, s{T3}, v54\nv_mov_b32 v57, 0x7fffffff\nv_cndmask_b32 v56, v57, v56, vcc')
        a(f'v_cmp_gt_u32 vcc, 127, v54\nv_cndmask_b32 v{o}, v57, v56, vcc')
    SC, SP = Q + 32, Q + 48
    PF = K + 32
    OT = K + 48
    X = Vv + 32
    a(f'v_mov_b32 v{PF+8}, 0\nv_mov_b32 v{PF+9}, 0')
    for T in range(4):
        P = PR + 4 * T
        prev = T & 1
        a(f'v_mfma_f32_32x32x16_bf16 {V(SC, 16)}, {V(K+8*T, 4)}, {V(Q+8*T, 4)}, {V(MC, 16)}')
        a(f'v_mfma_f32_32x32x16_bf16 {V(SC, 16)}, {V(K+8*T+4, 4)}, {V(Q+8*T+4, 4)}, {V(SC, 16)}')
        vals = list(range(SC, SC + 16))
        if prev:
            a(f'v_mfma_f32_32x32x16_bf16 {V(SP, 16)}, {V(K+8*(T-1), 4)}, {V(Q+8*T, 4)}, {V(MP, 16)}')
            a(f'v_mfma_f32_32x32x16_bf16 {V(SP, 16)}, {V(K+8*(T-1)+4, 4)}, {V(Q+8*T+4, 4)}, {V(SP, 16)}')
            vals += list(range(SP + 12, SP + 16))
        a(f'v_max_f32 v{X}, v{vals[0]}, v{vals[1]}')
        for k in range(2, len(vals), 2): a(f'v_max3_f32 v{X}, v{X}, v{vals[k]}, v{vals[k+1]}')
        a(f'v_mov_b32 v{X+1}, v{X}\nv_permlane32_swap_b32 v{X}, v{X+1}\nv_max_f32 v{X}, v{X}, v{X+1}')
        a(f'v_mul_f32 v{X}, v{X}, v{P+1}')
        for k in range(0, len(vals), 2):
            a(f'v_pk_fma_f32 {V(vals[k], 2)}, {V(vals[k], 2)}, {V(P, 2)}, {V(X, 2)} op_sel:[0,1,0] op_sel_hi:[1,1,0] neg_lo:[0,0,1] neg_hi:[0,0,1]')
        for r in vals: a(f'v_exp_f32 v{r}, v{r}')
        a(f'v_pk_add_f32 {V(X+2, 2)}, {V(vals[0], 2)}, {V(vals[2], 2)}')
        for k in range(4, len(vals), 2): a(f'v_pk_add_f32 {V(X+2, 2)}, {V(X+2, 2)}, {V(vals[k], 2)}')
        for k in range(8): a(f'v_cvt_pk_bf16_f32 v{PF+k}, v{SC+2*k}, v{SC+2*k+1}')
        if prev:
            for k in range(2): a(f'v_cvt_pk_bf16_f32 v{PF+10+k}, v{SP+12+2*k}, v{SP+13+2*k}')
        a(f'v_add_f32 v{X+2}, v{X+2}, v{X+3}')
        a(f'v_mfma_f32_32x32x16_bf16 {V(OT, 16)}, {V(Vv+8*T, 4)}, {V(PF, 4)}, 0')
        a(f'v_mov_b32 v{X+3}, v{X+2}')
        a(f'v_mfma_f32_32x32x16_bf16 {V(OT, 16)}, {V(Vv+8*T+4, 4)}, {V(PF+4, 4)}, {V(OT, 16)}')
        if prev:
            a(f'v_mfma_f32_32x32x16_bf16 {V(OT, 16)}, {V(Vv+8*(T-1)+4, 4)}, {V(PF+8, 4)}, {V(OT, 16)}')
        a(f'v_permlane32_swap_b32 v{X+2}, v{X+3}\nv_add_f32 v{X+2}, v{X+2}, v{X+3}\nv_rcp_f32 v{X+2}, v{X+2}')
        for k in range(0, 16, 2): a(f'v_pk_mul_f32 {V(OT+k, 2)}, {V(OT+k, 2)}, {V(X+2, 2)} op_sel_hi:[1,0]')
        O = X + 8 + 8 * (T & 1)
        for k in range(8): a(f'v_cvt_pk_bf16_f32 v{O+k}, v{OT+2*k}, v{OT+2*k+1}')
        for k in (6, 7): a(f'v_cndmask_b32 v{O+k}, 0, v{O+k}, s[{sM1}:{sM1+1}]')
        a(f'buffer_store_dwordx4 {V(O, 4)}, v{OA+T}, s[{SH}:{SH+3}], s{sST} offen', tag='o')
        a(f'buffer_store_dwordx4 {V(O+4, 4)}, v{OA+T}, s[{SH}:{SH+3}], s{sST} offen offset:512', tag='o')

def phase2(a):
    DV, HV, RAD = 2, 3, 4
    XO = 8
    XR = 14
    WRA, RDA = 24, 28
    t = 30
    HB = 48; NHB = 12
    ACC = 96
    WX = 176
    RD = 208
    def wfrag(kk, c):
        i = 16 * kk + 4 * c
        return (i, 'a') if i < 256 else (WX + i - 256, 'v')
    a(f'v_lshrrev_b32 v{t}, 3, v0\nv_and_b32 v{t+1}, 7, v0\nv_lshrrev_b32 v{t+2}, 4, v0\nv_lshlrev_b32 v{t+2}, 1, v{t+2}')
    a(f'v_xor_b32 v{t+1}, v{t+1}, v{t+2}\nv_lshlrev_b32 v{t+1}, 4, v{t+1}\nv_mul_u32_u24 v{t}, 896, v{t}')
    a(f's_lshl_b32 s{T0}, s{sCT}, 7\nv_add3_u32 v{DV}, v{t}, v{t+1}, s{T0}')
    a(f's_mul_i32 s{sMW}, s{sW}, 40960\ns_mul_i32 s{sK}, s{sW}, {448*896}\ns_mul_i32 s{sK+1}, s{sW}, {112*896}')
    a('s_waitcnt lgkmcnt(0)')
    srd(a, SD, 16, 1792 * 896); srd(a, SO, 8, 448 * 896)
    NSL = 10
    def wdma(kk):
        for i in range(4):
            if kk < 14:
                a(f's_add_u32 s{sSO}, s{sK}, {(32*kk + 8*i) * 896}'); sr = SD
            else:
                a(f's_add_u32 s{sSO}, s{sK+1}, {(28*(kk-14) + 8*i) * 896}'); sr = SO
            a(f's_add_u32 m0, s{sMW}, {(kk % NSL)*4096 + i*1024}')
            a(f'buffer_load_dwordx4 v{DV}, s[{sr}:{sr+3}], s{sSO} offen lds', tag=f'w{kk}')
    for kk in range(4): wdma(kk)
    srd(a, SH, 22, H_BYTES); srd(a, SX, 4, 2048 * 896); srd(a, SOUT, 18, 2048 * 896)
    a(f'v_bfe_u32 v{t}, v0, 2, 3\nv_lshrrev_b32 v{t+1}, 5, v0\nv_and_b32 v{t+2}, 3, v0\nv_bfe_u32 v{t+3}, v0, 3, 2')
    a(f'v_lshlrev_b32 v{t}, 7, v{t}\nv_lshl_add_u32 v{t}, v{t+1}, 11, v{t}\nv_lshl_add_u32 v{t}, v{t+2}, 3, v{t}\nv_lshl_add_u32 v{t}, v{t+3}, 5, v{t}')
    a(f'v_add_u32 v{RAD}, s{sMW}, v{t}')
    for c in range(1, 4): a(f'v_xor_b32 v{RAD+c}, {32*c}, v{RAD}')
    a(f'v_lshlrev_b32 v{HV}, 4, v0')
    a(f's_lshr_b32 s{T0}, s{sTH}, 1\ns_mul_i32 s{T0}, s{T0}, 158\ns_and_b32 s{T1}, s{sTH}, 1\ns_lshl_b32 s{T1}, s{T1}, 4')
    a(f's_and_b32 s{T2}, s{sW}, 1\ns_lshl_b32 s{T2}, s{T2}, 3\ns_lshr_b32 s{T3}, s{sW}, 1\ns_add_u32 s{T2}, s{T2}, s{T3}\ns_add_u32 s{T1}, s{T1}, s{T2}')
    a(f'v_lshrrev_b32 v{t}, 4, v0\nv_lshl_add_u32 v{t}, v{t}, 1, s{T1}')
    a(f'v_add_u32 v{t+1}, s{T0}, v{t}\nv_mul_u32_u24 v{t+1}, 896, v{t+1}\nv_and_b32 v{t+2}, 15, v0\nv_lshlrev_b32 v{t+2}, 3, v{t+2}')
    a(f's_lshl_b32 s{T0}, s{sCT}, 7\nv_add3_u32 v{XO}, v{t+1}, v{t+2}, s{T0}')
    for T in range(1, 5): a(f'v_add_u32 v{XO+T}, {32*896*T}, v{XO}')
    a(f'v_cmp_gt_u32 vcc, 30, v{t}\nv_mov_b32 v{t+1}, 0x7fffffff\nv_cndmask_b32 v{XO+4}, v{t+1}, v{XO+4}, vcc')
    a(f'v_and_b32 v{t}, 15, v0\nv_lshrrev_b32 v{t+1}, 4, v0\nv_and_b32 v{t+2}, 7, v0\nv_xor_b32 v{t+1}, v{t+1}, v{t+2}')
    a(f'v_lshlrev_b32 v{t+1}, 4, v{t+1}\nv_lshl_add_u32 v{t}, v{t}, 8, v{t+1}\ns_lshl_b32 s{T0}, s{sW}, 12\nv_add_u32 v{WRA}, s{T0}, v{t}')
    for c in range(1, 4): a(f'v_xor_b32 v{WRA+c}, {64*c}, v{WRA}')
    a(f'v_lshrrev_b32 v{t}, 4, v0\ns_lshl_b32 s{T0}, s{sW}, 2\nv_add_u32 v{t}, s{T0}, v{t}\nv_and_b32 v{t+1}, 7, v{t}\nv_and_b32 v{t+2}, 15, v0')
    a(f'v_xor_b32 v{t+1}, v{t+1}, v{t+2}\nv_lshlrev_b32 v{t+1}, 4, v{t+1}\nv_lshl_add_u32 v{RDA}, v{t}, 8, v{t+1}')
    a(f's_mul_i32 s{sST}, s{sTH}, {TH_BYTES}\ns_mul_i32 s{T0}, s{sW}, {14*1024}\ns_add_u32 s{sK+2}, s{sST}, s{T0}')
    a(f's_lshl_b32 s{T0}, s{sW}, 12\ns_add_u32 s{sK+3}, s{sST}, s{T0}\ns_add_u32 s{sK+3}, s{sK+3}, {56*1024}')
    hl = [(T, kk) for T in range(5) for kk in range(14)] + [(T, kk) for T in range(5) for kk in range(14, 18)]
    def hload(i):
        T, kk = hl[i]
        base, k0 = (sK + 2, kk) if kk < 14 else (sK + 3, kk - 14)
        if k0 % 4 == 0: a(f's_add_u32 s{sMX}, s{base}, {T*72*1024 + k0*1024}')
        a(f'buffer_load_dwordx4 {V(HB + 4*(i % NHB), 4)}, v{HV}, s[{SH}:{SH+3}], s{sMX} offen offset:{(k0 % 4)*1024}', tag=f'h{i}')
    nxt = 4; hn = 0
    for kk in range(18):
        if nxt < 18:
            if nxt >= NSL: a(f'@wait lg=t{nxt-NSL}')
            wdma(nxt); nxt += 1
        else:
            for _ in range(3):
                if hn < NHB - 2: hload(hn); hn += 1
        a(f'@wait vm=w{kk}')
        for c in range(4):
            r, k = wfrag(kk, c)
            for jj in range(2):
                a(f'ds_read_b64_tr_b16 {V(r + 2*jj, 2, k)}, v{RAD+c} offset:{(kk % NSL)*4096 + jj*1024}', tag=f't{kk}')
    for T in range(5): a(f'buffer_load_dwordx2 {V(XR + 2*T, 2)}, v{XO+T}, s[{SX}:{SX+3}], 0 offen', tag='xr')
    a('s_waitcnt lgkmcnt(0)\ns_barrier')
    pend = []
    for i, (T, kk) in enumerate(hl):
        if hn < len(hl): hload(hn); hn += 1
        a(f'@wait vm=h{i}')
        for c in range(4):
            r, k = wfrag(kk, c)
            d = V(ACC + 16 * T + 4 * c, 4)
            a(f'v_mfma_f32_16x16x32_bf16 {d}, {V(r, 4, k)}, {V(HB + 4*(i % NHB), 4)}, {d if kk else 0}')
            if pend and c == 1: a(pend.pop(0), tag='pw')
        if kk == 17:
            pend = [f'ds_write_b128 v{WRA+c}, {V(ACC + 16*T + 4*c, 4)} offset:{T*16384}' if T < 4 else
                    f'ds_write_b128 v{t+c}, {V(ACC + 16*T + 4*c, 4)}' for c in range(4)]
            if T == 0:
                for c in range(4): a(f'v_add_u32 v{t+c}, 0x10000, v{WRA+c}')
                a(f'v_add_u32 v{t+4}, 0x10000, v{RDA}')
    for p in pend: a(p, tag='pw')
    a('s_waitcnt lgkmcnt(0)\ns_barrier')
    def rd(T):
        for w in range(4):
            if T < 4: a(f'ds_read_b128 {V(RD + 16*(T&1) + 4*w, 4)}, v{RDA} offset:{T*16384 + w*4096}', tag=f'p{T}')
            else: a(f'ds_read_b128 {V(RD + 16*(T&1) + 4*w, 4)}, v{t+4} offset:{w*4096}', tag=f'p{T}')
    rd(0)
    for T in range(5):
        if T < 4: rd(T + 1)
        b = RD + 16 * (T & 1); x = XR + 2 * T; U = 240
        a(f'v_lshlrev_b32 v{U}, 16, v{x}\nv_and_b32 v{U+1}, 0xffff0000, v{x}\nv_lshlrev_b32 v{U+2}, 16, v{x+1}\nv_and_b32 v{U+3}, 0xffff0000, v{x+1}')
        a(f'@wait lg=p{T}')
        for w in range(4):
            for k in (0, 2): a(f'v_pk_add_f32 {V(U+k, 2)}, {V(U+k, 2)}, {V(b+4*w+k, 2)}')
        a(f'v_cvt_pk_bf16_f32 v{x}, v{U}, v{U+1}\nv_cvt_pk_bf16_f32 v{x+1}, v{U+2}, v{U+3}')
        a(f'buffer_store_dwordx2 {V(x, 2)}, v{XO+T}, s[{SOUT}:{SOUT+3}], 0 offen')

def desc(name):
    return f""".amdhsa_kernel {name}
  .amdhsa_next_free_vgpr 512
  .amdhsa_next_free_sgpr 102
  .amdhsa_accum_offset 256
  .amdhsa_group_segment_fixed_size 0
  .amdhsa_kernarg_size 80
  .amdhsa_user_sgpr_count 2
  .amdhsa_user_sgpr_kernarg_segment_ptr 1
  .amdhsa_system_sgpr_workgroup_id_x 1
  .amdhsa_float_denorm_mode_32 3
.end_amdhsa_kernel
"""

def build():
    hdr = open('cdna_kernels/' + NAME + '.s.ref').read().split('; Override launch')[0]
    k1, k2 = NAME + '_kernel', 'down_kernel'
    out = hdr + f'; @launch kernel={k1} grid=(256,1,1) block=(256,1,1) lds=163840\n; @launch kernel={k2} grid=(256,1,1) block=(256,1,1) lds=163840\n'
    out += '.amdgcn_target "amdgcn-amd-amdhsa--gfx950"\n.text\n'
    a = Asm()
    entry(a, k1, 'L1_done')
    code_prefetch(a, 'pf', 49152, 1)
    decode(a, 'L1_attn', 'L1_done')
    ffn_p1(a)
    a.label('L1_done'); a('s_endpgm')
    n1 = a.count
    a.label('L1_attn'); a.vm = ['pf']; a.lg = []; a.waited = set()
    attn(a); a('s_endpgm')
    n2 = a.count
    b = Asm()
    entry(b, k2, 'L2_done')
    code_prefetch(b, 'pf', 12288, 1)
    decode(b, 'L2_done', 'L2_done')
    phase2(b)
    b.label('L2_done'); b('s_endpgm')
    b.raw('.fill 4096, 4, 0xbf810000')
    sys.stderr.write(f'instr: ffn {n1} attn {n2-n1} p2 {b.count}; nops {a.nops} {b.nops}\n')
    out += a.text() + b.text() + '.section .rodata,"a"\n.p2align 6\n' + desc(k1) + '.p2align 6\n' + desc(k2)
    return out

if __name__ == '__main__':
    roles = [decode_py(b) for b in range(256)]
    F = [r for r in roles if r and r[0] == 'F']; Aa = [r for r in roles if r and r[0] == 'A']
    assert sorted((r[1], r[2]) for r in F) == [(r, c) for r in range(13) for c in range(14)]
    assert sorted((r[3], r[4]) for r in F) == [(t, c) for t in range(26) for c in range(7)]
    assert sorted((r[1], r[2]) for r in Aa) == [(x, g) for x in range(18) for g in range(4)]
    assert all(((t * 26547) >> 22) == t // 158 for t in range(2200))
    open(sys.argv[1] if len(sys.argv) > 1 else 'cdna_kernels/' + NAME + '.s', 'w').write(build())
```

```python
import re

REG_RE = re.compile(r'(?<![\w.])([vas])(?:\[(\d+):(\d+)\]|(\d+))(?![\w])')
TRANS = ('v_exp_f32', 'v_log_f32', 'v_rcp_f32', 'v_rsq_f32', 'v_sqrt_f32', 'v_sin_f32', 'v_cos_f32')

def regs_of(tok):
    out = []
    for m in REG_RE.finditer(tok):
        k = m.group(1)
        if m.group(2) is not None:
            out += [(k, i) for i in range(int(m.group(2)), int(m.group(3)) + 1)]
        else:
            out.append((k, int(m.group(4))))
    if re.search(r'\bvcc\b', tok): out += [('s', 106), ('s', 107)]
    if re.search(r'\bm0\b', tok): out.append(('s', 124))
    if re.search(r'\bexec(_lo|_hi)?\b', tok): out += [('s', 126), ('s', 127)]
    return out

def split_ops(rest):
    ops, depth, cur = [], 0, ''
    for ch in rest:
        if ch == '[': depth += 1
        if ch == ']': depth -= 1
        if ch == ',' and depth == 0:
            ops.append(cur.strip()); cur = ''
        else:
            cur += ch
    if cur.strip(): ops.append(cur.strip())
    return ops

class Ins:
    __slots__ = ('text', 'op', 'w', 'r', 'kind', 'passes', 'a', 'b', 'c', 'states', 'tag')
    def __init__(self, text):
        self.text = text
        t = text.split(';')[0].strip()
        parts = t.split(None, 1)
        self.op = op = parts[0]
        ops = split_ops(parts[1]) if len(parts) > 1 else []
        self.w, self.r = [], []
        self.passes = 0; self.a = self.b = self.c = []
        self.states = 1
        self.tag = None
        if op.startswith('v_mfma'):
            self.kind = 'mfma'
            self.passes = 8 if '32x32x16' in op else 4
            self.w = regs_of(ops[0]); self.a = regs_of(ops[1]); self.b = regs_of(ops[2]); self.c = regs_of(ops[3])
            self.r = self.a + self.b + self.c
        elif op.startswith('v_'):
            self.kind = 'valu'
            if op.startswith('v_cmp'):
                self.w = regs_of(ops[0]); self.r = [x for o in ops[1:] for x in regs_of(o)]
            elif op.startswith('v_permlane') and 'swap' in op:
                self.w = regs_of(ops[0]) + regs_of(ops[1]); self.r = list(self.w)
            elif op.startswith(('v_add_co', 'v_addc_co', 'v_sub_co')):
                self.w = regs_of(ops[0]) + regs_of(ops[1]); self.r = [x for o in ops[2:] for x in regs_of(o)]
            else:
                self.w = regs_of(ops[0]); self.r = [x for o in ops[1:] for x in regs_of(o)]
                if op.startswith(('v_fmac', 'v_writelane')) or 'dpp' in op: self.r += self.w
        elif op.startswith('ds_'):
            self.kind = 'ds'
            if op.startswith(('ds_read', 'ds_bpermute', 'ds_swizzle')):
                self.w = regs_of(ops[0]); self.r = [x for o in ops[1:] for x in regs_of(o)]
            else:
                self.r = [x for o in ops for x in regs_of(o)]
        elif op.startswith(('buffer_', 'global_')):
            self.kind = 'vmem'
            lds = bool(re.search(r'\blds\b', t)) or 'load_lds' in op
            if 'load' in op and not lds:
                self.w = regs_of(ops[0]); self.r = [x for o in ops[1:] for x in regs_of(o)]
            else:
                self.r = [x for o in ops for x in regs_of(o)]
                if lds: self.r.append(('s', 124))
                if 'atomic' in op and 'sc0' in t: self.w = regs_of(ops[0])
        elif op == 's_nop':
            self.kind = 'nop'; self.states = int(ops[0], 0) + 1
        elif op.startswith('s_'):
            self.kind = 'salu'
            if op.startswith(('s_cmp', 's_waitcnt', 's_barrier', 's_cbranch', 's_branch', 's_endpgm', 's_sleep', 's_setprio', 's_bitcmp')):
                self.r = [x for o in ops for x in regs_of(o)]
            elif ops:
                self.w = regs_of(ops[0]); self.r = [x for o in ops[1:] for x in regs_of(o)]
                if 'saveexec' in op: self.w += [('s', 126), ('s', 127)]
        else:
            self.kind = 'other'; self.states = 0

def need(p, c):
    n = 0
    pw, cr, cw = set(p.w), set(c.r), set(c.w)
    if p.kind == 'valu':
        vw = {x for x in pw if x[0] in 'va'}
        sw = {x for x in pw if x[0] == 's'}
        if c.kind == 'mfma' and vw & cr: n = max(n, 2)
        if c.kind == 'valu':
            if p.op.startswith(TRANS) and vw & cr: n = max(n, 1)
            if (c.op.startswith('v_permlane') or 'dpp' in c.op) and vw & cr: n = max(n, 2)
            if c.op.startswith(('v_readlane', 'v_readfirstlane')) and vw & cr: n = max(n, 1)
            if sw & cr: n = max(n, 4 if c.op.startswith(('v_readlane', 'v_writelane')) else 2)
            if 'sdwa' in p.op and vw & (cr | cw): n = max(n, 1)
        if c.kind == 'vmem' and sw & cr: n = max(n, 5)
        if c.kind == 'salu' and sw & cr: n = max(n, 1)
    elif p.kind == 'mfma':
        big = p.passes == 8
        if c.kind == 'mfma':
            if pw & set(c.c):
                if not (p.w == c.c and p.passes == c.passes): n = max(n, 10 if big else 6)
            if pw & (set(c.a) | set(c.b)): n = max(n, 12 if big else 8)
            if pw & cw and not (pw & set(c.c)): n = max(n, 10 if big else 6)
        elif c.kind in ('valu', 'ds', 'vmem'):
            if pw & (cr | cw): n = max(n, 12 if big else 8)
            if c.kind == 'valu' and set(p.c) & cw: n = max(n, 7 if big else 3)
    elif p.kind == 'salu':
        if ('s', 124) in pw and c.kind in ('vmem', 'ds') and ('s', 124) in cr: n = max(n, 1)
    elif p.kind == 'vmem':
        if ('store' in p.op) and ('x3' in p.op or 'x4' in p.op) and c.kind in ('valu', 'mfma', 'ds', 'vmem'):
            data = set(regs_of(split_ops(p.text.split(';')[0].strip().split(None, 1)[1])[0 if p.op.startswith('buffer') else 1]))
            if data & cw: n = max(n, 2)
    return n

class Asm:
    def __init__(self):
        self.lines = []
        self.hist = []
        self.vm = []
        self.lg = []
        self.nops = 0
        self.count = 0
        self.waited = set()
    def raw(self, text):
        self.lines.append(text)
    def label(self, name):
        self.lines.append(name + ':'); self.hist = []
    def label_keep(self, name):
        self.lines.append(name + ':')
    def __call__(self, text, tag=None):
        for t in text.split('\n'):
            t = t.strip()
            if t: self.emit(t, tag)
    def emit(self, text, tag=None):
        if text.startswith('@'):
            return self.pseudo(text)
        if text.endswith(':'):
            return self.label_keep(text[:-1])
        ins = Ins(text)
        dist, req = 0, 0
        for p in reversed(self.hist):
            k = need(p, ins)
            if k - dist > req: req = k - dist
            dist += p.states
            if dist >= 20: break
        while req > 0:
            k = min(req, 16)
            nop = Ins(f's_nop {k-1}')
            self.lines.append('    ' + nop.text); self.hist.append(nop); self.nops += k; req -= k
        self.lines.append('    ' + text)
        self.hist.append(ins); self.hist = self.hist[-24:]
        self.count += 1
        if ins.kind in ('vmem', 'ds') and tag is not None: assert tag not in self.waited, ('issued after its wait', tag, text)
        if ins.kind == 'vmem' and not ins.op.startswith(('buffer_wbl2', 'buffer_inv')): self.vm.append(tag)
        if ins.kind == 'ds': self.lg.append(tag)
        if ins.op == 's_waitcnt':
            m = re.search(r'vmcnt\((\d+)\)', text)
            if m:
                n = int(m.group(1)); self.vm = self.vm[len(self.vm) - n:] if n < len(self.vm) and n else ([] if n == 0 else self.vm)
            m = re.search(r'lgkmcnt\((\d+)\)', text)
            if m:
                n = int(m.group(1)); self.lg = self.lg[len(self.lg) - n:] if n < len(self.lg) and n else ([] if n == 0 else self.lg)
    def pseudo(self, text):
        assert text.startswith('@wait')
        vm = re.search(r'vm=(\S+)', text); lg = re.search(r'lg=(\S+)', text)
        self.wait(vm.group(1).split(',') if vm else (), lg.group(1).split(',') if lg else ())
    def wait(self, vm=(), lg=()):
        self.waited |= set(vm) | set(lg)
        parts = []
        for q, tags, name, mx in ((self.vm, vm, 'vmcnt', 63), (self.lg, lg, 'lgkmcnt', 15)):
            last = -1
            for i, t in enumerate(q):
                if t in tags or '*' in tags: last = i
            if last >= 0:
                n = len(q) - 1 - last
                parts.append(f'{name}({min(n, mx)})')
        if parts: self.emit('s_waitcnt ' + ' '.join(parts))
    def text(self):
        return '\n'.join(self.lines) + '\n'

def cost(t):
    t = t[0] if isinstance(t, tuple) else t
    if t.endswith(':'): return 0
    return 2 if t.startswith(TRANS) else 1

def V(b, n=1, k='v'):
    return f'{k}{b}' if n == 1 else f'{k}[{b}:{b+n-1}]'
def A(b, n=1): return V(b, n, 'a')
def S(b, n=1): return V(b, n, 's')

class Item:
    def __init__(self, body, tag=None, t0=0, after=None, name=None, paced=False, brk=False):
        self.body = [body] if isinstance(body, str) else list(body)
        self.tag = tag; self.t0 = t0; self.after = after or {}; self.name = name
        self.paced = paced; self.brk = brk or any(' m0,' in x for x in self.body[-1:])
        self.cost = sum(cost(x) for x in self.body)

class Stream:
    def __init__(self, items, rate=1e9, burst=1.0, maxper=99):
        self.items = list(items); self.i = 0; self.rate = rate; self.burst = burst; self.budget = 1.0; self.maxper = maxper
    def done(self): return self.i >= len(self.items)
    def left(self): return len(self.items) - self.i

class Sched:
    def __init__(self, a):
        self.a = a; self.t = 0; self.when = {}
    def ready(self, s, it):
        if it.t0 > self.t: return False
        if it.paced and s.budget < 1.0: return False
        return all(k in self.when and self.t >= self.when[k] + d for k, d in it.after.items())
    def put(self, s, it):
        for x in it.body: self.a(x, tag=it.tag)
        if it.name: self.when[it.name] = self.t
        s.i += 1
    def gap(self, streams, cap, dt=1):
        used = 0
        for s in streams:
            s.budget = min(s.budget + s.rate * dt, s.burst + 1.0)
            n = 0
            while not s.done() and n < s.maxper:
                it = s.items[s.i]
                if not self.ready(s, it): break
                if used + it.cost > cap and not (used == 0 and cap > 0): break
                self.put(s, it); used += it.cost; n += 1
                if it.paced: s.budget -= 1.0
                if it.brk: break
        self.t += dt
    def flush(self, s, npaced=None):
        while not s.done() and (npaced is None or npaced > 0):
            it = s.items[s.i]
            assert all(k in self.when for k in it.after), (it.body, it.after)
            self.put(s, it)
            if it.paced and npaced is not None: npaced -= 1
```

```python
import sys, struct
from asmlib import *

NAME = "parallel_sum__sliding_local_dilated__swiglu_ffn__prompt"
LOG2E = 1.4426950408889634
def f2u(x): return struct.unpack('<I', struct.pack('<f', x))[0]
def hx(x): return f'0x{x & 0xffffffff:08x}'

OPT = dict(rot='none', rate=0.22, rot2=True)

SX, SG, SU, SH, SD, SO, SOUT, SDB = 24, 28, 32, 36, 40, 44, 48, 52
sR, sC, sTH, sCT, sW = 56, 57, 58, 59, 60
T0, T1, T2, T3 = 61, 62, 63, 64
sMX, sMW, sSO, sJ, sWO, sST, sSPIN = 65, 66, 67, 68, 69, 70, 71
sPL = 72
sFH, sFO = 76, 78
sM0, sM1 = 80, 82
sRT = 4
sFL = 3

TH_BYTES = 5 * 72 * 1024
FH, FO, STATS, STS, WS_USED = 0x930000, 0x932000, 0x933000, 4352, 0x940000
OOB = 0x7ffffff0
MF = 'v_mfma_f32_16x16x32_bf16'

PROF = False
sP = 86
def stamp(a, i, real=False):
    if not PROF: return
    a.raw(f'    s_mem{"real" if real else ""}time s[84:85]\n    s_waitcnt lgkmcnt(0)\n    s_mov_b32 s{sP+i}, s84')
    a.lg = []
def dump(a):
    if not PROF: return
    a('s_waitcnt vmcnt(0)')
    stamp(a, 14); stamp(a, 15, True)
    a(f's_mov_b32 s{SH+2}, 0x2000000')
    a(f's_lshl_b32 s{T0}, s2, 2\ns_add_u32 s{T0}, s{T0}, s{sW}\ns_lshl_b32 s{T0}, s{T0}, 6\ns_add_u32 s{T0}, s{T0}, 0x1000000')
    for i in range(16): a(f'v_mov_b32 v{4+i}, s{sP+i}')
    a('v_mov_b32 v2, 0\ns_mov_b64 exec, 1')
    for i in range(4): a(f'buffer_store_dwordx4 v[{4+4*i}:{7+4*i}], v2, s[{SH}:{SH+3}], s{T0} offen offset:{16*i}')

def srd(dst, ptr, nbytes, back=0):
    if back:
        return [f's_sub_u32 s{dst}, s{ptr}, {back}', f's_subb_u32 s{dst+1}, s{ptr+1}, 0', f's_mov_b32 s{dst+2}, {nbytes+back}', f's_mov_b32 s{dst+3}, 0x20000']
    return [f's_mov_b64 s[{dst}:{dst+1}], s[{ptr}:{ptr+1}]', f's_mov_b32 s{dst+2}, {nbytes}', f's_mov_b32 s{dst+3}, 0x20000']
def em(a, l):
    for x in l: a(x)

SLOW = []
def slow_vec(name, vreg, vaddr):
    SLOW.append(f"""{name}:
    s_mov_b32 s{sSPIN}, 0
{name}_l:
    buffer_load_dword v{vreg}, v{vaddr}, s[{SDB}:{SDB+3}], 0 offen sc1
    s_add_u32 s{sSPIN}, s{sSPIN}, 1
    s_waitcnt vmcnt(0)
    v_cmp_ne_u32 vcc, 0x01010101, v{vreg}
    s_nop 4
    s_cbranch_vccz {name}_r
    s_cmp_lt_u32 s{sSPIN}, 0x40000
    s_cbranch_scc1 {name}_l
    s_branch {name}_r""")
def cert_check(name, vreg, vaddr):
    slow_vec(name, vreg, vaddr)
    return [f'v_cmp_ne_u32 vcc, 0x01010101, v{vreg}', 's_nop 4', f's_cbranch_vccnz {name}', f'{name}_r:']
def poll_issue(base): return f's_load_dwordx4 s[{sPL}:{sPL+3}], s[{base}:{base+1}], 0 glc'
def poll_test(bit, ormask):
    m = 0x01010101 << bit
    last = [f's_or_b32 s{sPL+3}, s{sPL+3}, {hx(ormask)}', f's_and_b32 s{sPL+2}, s{sPL+2}, s{sPL+3}'] if ormask != 0xffffffff else []
    return ['s_waitcnt lgkmcnt(0)', f's_and_b32 s{sPL}, s{sPL}, s{sPL+1}'] + last + [f's_and_b32 s{sPL}, s{sPL}, s{sPL+2}',
            f's_andn2_b32 s{sPL}, {hx(m)}, s{sPL}']
def poll_check(name, base, bit, ormask):
    t = '\n    '.join(poll_test(bit, ormask))
    SLOW.append(f"""{name}:
    s_mov_b32 s{sSPIN}, 0
{name}_l:
    {poll_issue(base)}
    s_add_u32 s{sSPIN}, s{sSPIN}, 1
    {t}
    s_cbranch_scc0 {name}_r
    s_cmp_lt_u32 s{sSPIN}, 0x40000
    s_cbranch_scc1 {name}_l
    s_branch {name}_r""")
    o = poll_test(bit, ormask)
    return o[:-1] + [[o[-1], f's_cbranch_scc1 {name}', f'{name}_r:']]

def decode_py(b):
    i, hf, q = b >> 3, (b >> 2) & 1, b & 3
    if i >= 23: return ('A', 9 * hf + i - 23, q)
    f = i + 23 * q
    if f >= 91: return None
    p = 91 * hf + f; th = (p * 9363) >> 16; ct = p - 7 * th
    l1 = 49 - 7 * hf; sec = int(f >= l1); f2 = f - (l1 if sec else 0)
    m, n = (37, 7) if (sec ^ hf) == 0 else (43, 6)
    c = (f2 * m) >> 8; r = f2 - n * c
    return ('F', r + (7 - sec) * hf, c + 7 * sec, th, ct)

ZD, ZT = 38, 46
def stats_addr(a):
    a(f's_lshr_b32 s{T3}, s2, 1\ns_lshl_b32 s{T3}, s{T3}, 2\ns_add_u32 s{T3}, s{T3}, s{sW}\ns_lshl_b32 s{sST}, s{T3}, 2\ns_and_b32 s{sSO}, s2, 1')
    a(f's_add_u32 s{T3}, s{sST}, s{sSO}\ns_mul_i32 s{T3}, s{T3}, 896')
    a(f'v_lshrrev_b32 v{ZT}, 5, v0\nv_and_b32 v{ZT+1}, 31, v0\nv_mul_u32_u24 v{ZT+2}, 1792, v{ZT}\nv_lshl_add_u32 v{ZT+2}, v{ZT+1}, 4, v{ZT+2}')
    a(f'v_cmp_gt_u32 vcc, 28, v{ZT+1}\nv_add_u32 v{ZT+2}, s{T3}, v{ZT+2}\nv_mov_b32 v{ZT+3}, {OOB}\nv_cndmask_b32 v{ZT+2}, v{ZT+3}, v{ZT+2}, vcc')
    a(f's_mul_i32 s{sSO}, s{sSO}, {STS}\ns_lshl_b32 s{sST}, s{sST}, 1\ns_add_u32 s{sST}, s{sST}, s{sSO}\ns_add_u32 s{sST}, s{sST}, {STATS}')
def stats_load(a):
    a(f'buffer_load_dwordx4 {V(ZD, 4)}, v{ZT+2}, s[{SX}:{SX+3}], 0 offen', tag='z')
    a(f'buffer_load_dwordx4 {V(ZD+4, 4)}, v{ZT+2}, s[{SX}:{SX+3}], 0 offen offset:448', tag='z')
def stats_do(a, clear_flag):
    s, q, lo, hi = ZT + 4, ZT + 5, ZT + 6, ZT + 7
    a(f'v_subrev_u32 v{ZT+1}, 16, v{ZT+1}\nv_cmp_gt_u32 vcc, 2, v{ZT+1}\nv_mul_u32_u24 v{ZT+2}, {2*STS}, v{ZT+1}\nv_lshl_add_u32 v{ZT+2}, v{ZT}, 2, v{ZT+2}')
    a(f'v_cndmask_b32 v{ZT+2}, v{ZT+3}, v{ZT+2}, vcc\nv_cmp_eq_u32 s[{sM0}:{sM0+1}], 1, v{ZT+1}')
    a(f'v_cmp_eq_u32 vcc, 0, v0\nv_mov_b32 v{ZT}, 0\nv_cndmask_b32 v1, v{ZT+3}, v{ZT}, vcc')
    a('@wait vm=z')
    for k in range(8):
        r = ZD + k
        a(f'v_lshlrev_b32 v{lo}, 16, v{r}\nv_and_b32 v{hi}, 0xffff0000, v{r}')
        if k == 0: a(f'v_add_f32 v{s}, v{lo}, v{hi}\nv_mul_f32 v{q}, v{lo}, v{lo}\nv_fmac_f32 v{q}, v{hi}, v{hi}')
        else: a(f'v_add_f32 v{s}, v{s}, v{lo}\nv_fmac_f32 v{q}, v{lo}, v{lo}\nv_add_f32 v{s}, v{s}, v{hi}\nv_fmac_f32 v{q}, v{hi}, v{hi}')
    for ctl in ('quad_perm:[1,0,3,2] row_mask:0xf', 'quad_perm:[2,3,0,1] row_mask:0xf', 'row_half_mirror row_mask:0xf', 'row_mirror row_mask:0xf', 'row_bcast:15 row_mask:0xa'):
        for r in (s, q): a(f'v_add_f32_dpp v{r}, v{r}, v{r} {ctl} bank_mask:0xf')
    a(f'v_mul_f32 v{s}, {hx(f2u(1/448))}, v{s}\nv_mul_f32 v{q}, {hx(f2u(1/448))}, v{q}\nv_fma_f32 v{q}, -v{s}, v{s}, v{q}\nv_max_f32 v{q}, 0, v{q}')
    a(f'v_cvt_pk_bf16_f32 v{s}, -v{s}, v{q}\nv_and_b32 v{q}, 0xffff0000, v{s}\nv_lshlrev_b32 v{s}, 16, v{s}')
    a(f'v_add_f32 v{q}, {hx(f2u(1e-5))}, v{q}\nv_cvt_pk_bf16_f32 v{q}, v{q}, v{q}\nv_and_b32 v{q}, 0xffff0000, v{q}\nv_sqrt_f32 v{q}, v{q}')
    a(f'v_cvt_pk_bf16_f32 v{q}, v{q}, v{q}\nv_and_b32 v{q}, 0xffff0000, v{q}\nv_rcp_f32 v{q}, v{q}')
    a(f'v_cndmask_b32 v{s}, v{s}, v{q}, s[{sM0}:{sM0+1}]')
    a(f'buffer_store_dword v{s}, v{ZT+2}, s[{SH}:{SH+3}], s{sST} offen sc1', tag='zs')
    if clear_flag: a(f'buffer_store_byte v{ZT}, v1, s[{SH}:{SH+3}], s{sFL} offen sc1', tag='zs')
def cert_post(vt, va):
    return [[f's_cmp_eq_u32 s{sW}, 0', f's_cselect_b32 s{T0}, s2, {OOB}'], [f'v_mov_b32 v{vt}, 1', f'v_add_u32 v{va}, s{T0}, v1'],
            [f'buffer_store_byte v{vt}, v{va}, s[{SDB}:{SDB+3}], 0 offen sc1']]
def rot_init(a):
    r = OPT['rot']
    if r == 'none': a(f's_mov_b32 s{sJ}, 0')
    elif r == 'xcd': a(f's_and_b32 s{sJ}, s2, 7\ns_min_u32 s{sJ}, s{sJ}, 6\ns_lshl_b32 s{sJ}, s{sJ}, 7')
    elif r == 'hf': a(f's_bfe_u32 s{sJ}, s2, 0x10002\ns_mul_i32 s{sJ}, s{sJ}, {3*128}')
    elif r == 'wg': a(f's_mul_i32 s{sJ}, s2, 9363\ns_lshr_b32 s{sJ}, s{sJ}, 16\ns_mul_i32 s{sJ}, s{sJ}, 7\ns_sub_u32 s{sJ}, s2, s{sJ}\ns_lshl_b32 s{sJ}, s{sJ}, 7')
    elif r == 'i2': a(f's_bfe_u32 s{sJ}, s2, 0x10003\ns_mul_i32 s{sJ}, s{sJ}, {3*128}')
def rot_next(mul):
    return [f's_add_u32 s{sJ}, s{sJ}, 128', [f's_cmp_eq_u32 s{sJ}, 896', f's_cselect_b32 s{sJ}, 0, s{sJ}'], f's_mul_i32 s{sWO}, s{sJ}, {mul}']

def x_read_addr(a, XA, XB, t, octet_stride):
    a(f'v_and_b32 v{t}, 7, v0\nv_bfe_u32 v{t+1}, v0, 3, 1\nv_lshrrev_b32 v{t+2}, 4, v0\nv_bfe_u32 v{t+3}, v0, 1, 3')
    a(f'v_xor_b32 v{t+2}, v{t+2}, v{t+3}\nv_lshlrev_b32 v{t+2}, 4, v{t+2}\nv_lshl_add_u32 v{t+2}, v{t}, 7, v{t+2}')
    a(f'v_mul_u32_u24 v{t+1}, {octet_stride}, v{t+1}\nv_add_u32 v{XA}, v{t+1}, v{t+2}\nv_xor_b32 v{XA+1}, 64, v{XA}')
    a(f'v_and_b32 v{t+1}, 15, v0\nv_cmp_eq_u32 vcc, 15, v{t+1}\nv_mov_b32 v{t+3}, 0x100\nv_lshlrev_b32 v{t}, 4, v{t}\nv_cndmask_b32 v{t+3}, 0, v{t+3}, vcc')
    a(f'v_add_u32 v{XB}, v{XA}, v{t+3}\nv_add_u32 v{XB+1}, v{XA+1}, v{t+3}')
    for k in range(4): a(f'v_mov_b32 v{t+2+k}, 0x3f803f80')

FXS = 162 * 128; FW0 = 3 * FXS; FPAR = FW0 + 3 * 32768
assert FPAR + 2048 <= 163840
def ffn(a):
    DV, RX, RW, RH, HV, PA = 2, 6, 10, 14, 18, 19
    CB = 20
    XV, WV, XA, XB, WA = 22, 27, 28, 30, 32
    E, O = 22, 30
    CS = 38; PR = 56; t = 56
    ACC = 96
    BF = (184, 204); AF = (224, 240)
    a(f's_mul_i32 s{sTH}, s{T1}, 91\ns_add_u32 s{sTH}, s{sTH}, s{T0}')
    a(f's_mul_i32 s{T2}, s{T1}, 7\ns_sub_u32 s{T2}, 49, s{T2}')
    a(f's_cmp_ge_u32 s{T0}, s{T2}\ns_cselect_b32 s{T3}, 7, 0\ns_cselect_b32 s{T2}, s{T2}, 0\ns_cselect_b32 s{sCT}, 6, 7\ns_cselect_b32 s{sMX}, 1, 0\ns_sub_u32 s{T0}, s{T0}, s{T2}')
    a(f's_cmp_eq_u32 s{sMX}, s{T1}\ns_cselect_b32 s{sR}, 37, 43\ns_cselect_b32 s{T2}, 7, 6')
    a(f's_mul_i32 s{sC}, s{T0}, s{sR}\ns_lshr_b32 s{sC}, s{sC}, 8\ns_mul_i32 s{T2}, s{T2}, s{sC}\ns_sub_u32 s{sR}, s{T0}, s{T2}')
    a(f's_add_u32 s{sC}, s{sC}, s{T3}\ns_mul_i32 s{sCT}, s{sCT}, s{T1}\ns_add_u32 s{sR}, s{sR}, s{sCT}')
    a(f's_and_b32 s{T0}, s{sW}, 1\ns_lshr_b32 s{T1}, s{sW}, 1\ns_mul_i32 s{T2}, s{sR}, 158\ns_lshl_b32 s{T3}, s{T1}, 4\ns_add_u32 s{T2}, s{T2}, s{T3}')
    a(f's_add_u32 s{T2}, s{T2}, s{T0}\ns_mul_i32 s{T2}, s{T2}, 896\ns_lshl_b32 s{T0}, s{T0}, 2')
    a(f'v_lshrrev_b32 v{t}, 3, v0\nv_and_b32 v{t+1}, 7, v0\nv_lshrrev_b32 v{t+2}, 4, v0\nv_xor_b32 v{t+1}, s{T0}, v{t+1}\nv_xor_b32 v{t+1}, v{t+1}, v{t+2}')
    a(f'v_mul_u32_u24 v{t}, 1792, v{t}\nv_lshl_add_u32 v{t}, v{t+1}, 4, v{t}\nv_add_u32 v{XV}, s{T2}, v{t}')
    for i in range(1, 5): a(f'v_add_u32 v{XV+i}, {i*28672 - (i*1024 if i < 4 else 0)}, v{XV}')
    a(f'v_and_b32 v{t+1}, 15, v0\nv_lshl_add_u32 v{t}, v{t+2}, 1, s{T1}\nv_lshlrev_b32 v{t}, 1, v{t}\nv_xor_b32 v{t+1}, v{t+1}, v{t}')
    a(f's_mul_i32 s{T0}, s{sW}, {4*3584}\ns_lshl_b32 s{T1}, s{sC}, 8\ns_add_u32 s{T0}, s{T0}, s{T1}')
    a(f'v_mul_u32_u24 v{t+2}, 3584, v{t+2}\nv_lshl_add_u32 v{t+2}, v{t+1}, 4, v{t+2}\nv_add_u32 v{WV}, s{T0}, v{t+2}')
    a(f's_mul_i32 s{sMX}, s{sW}, 5120\ns_lshl_b32 s{sMW}, s{sW}, 13\ns_add_u32 s{sMW}, s{sMW}, {FW0}\ns_mul_i32 s{sWO}, s{sJ}, 1792')
    a('s_waitcnt lgkmcnt(0)')
    stamp(a, 2)
    em(a, srd(SX, 4, 2048 * 896)); stats_load(a)
    em(a, srd(SG, 12, 448 * 3584) + srd(SU, 14, 448 * 3584, back=1024))
    G = 20
    d = []
    def xd(j, e):
        st = j % 3; o = []
        for i in range(5):
            if i in (0, 4): o.append(Item(f's_add_u32 m0, s{sMX}, {st*FXS + i*1024}', t0=e))
            o.append(Item(f'buffer_load_dwordx4 v{XV+i}, s[{SX}:{SX+3}], s{sJ} offen offset:{(i&3)*1024} lds', tag=f'x{j}', t0=e, paced=True))
        return o
    def wd(j, i, e):
        st = j % 3; o = [Item(f's_add_u32 s{sSO}, s{sWO}, {i*57344 - (i&1)*2048}', t0=e)]
        if i % 2 == 0: o.append(Item(f's_add_u32 m0, s{sMW}, {st*32768 + (i>>1)*4096}', t0=e))
        tg = f'w{j}' + ('a' if (j == 0 and i < 2) else '')
        o.append(Item(f'buffer_load_dwordx4 v{WV}, s[{SG}:{SG+3}], s{sSO} offen offset:{(i&1)*2048} lds', tag=tg, t0=e, paced=True))
        o.append(Item(f'buffer_load_dwordx4 v{WV}, s[{SU}:{SU+3}], s{sSO} offen offset:{(i&1)*2048 + 1024} lds', tag=tg, t0=e, paced=True))
        return o
    d += wd(0, 0, 0) + wd(0, 1, 0) + xd(0, 0) + wd(0, 2, 0) + wd(0, 3, 0)
    for j in range(1, 7):
        e = 0 if j < 3 else (4 * (j - 3) + 3) * G
        d += [Item(x) for x in rot_next(1792)] + xd(j, e)
        for i in range(4): d += wd(j, i, e)
    d.append(Item(f'buffer_load_dword v{CB}, v{CB+1}, s[{SDB}:{SDB+3}], 0 offen sc1', tag='cert', paced=True))
    slots = [(RW, 32768, sMW, 19), (RW, 32768 + 4096, sMW, 19), (RX, FXS, sMX, 19),
             (RH, 0, None, 23), (RH, 4096, None, 23), (RX, 2 * FXS, sMX, 23),
             (RW, 0, sMW, 27), (RW, 4096, sMW, 27), (RX, 0, sMX, 27)]
    kslot = [0, 1, 2, 3, 4, 5, 0, 1, 2, 6, 7, 8, 3, 4, 5, 0, 1, 2]
    WX = 56
    def wfrag(kk, c):
        i = 16 * kk + 4 * c
        return (i, 'a') if i < 256 else (WX + i - 256, 'v')
    def w2d(kk):
        reg, off, base, stp = slots[kslot[kk]]
        prev = [k for k in range(kk) if kslot[k] == kslot[kk]]
        o = []
        if kk < 14: o += [Item(f's_mul_i32 s{sSO}, s{sRT+kk}, 28'), Item(f's_add_u32 s{sSO}, s{sSO}, s{sWO}')]; sr = SD
        else: o += [Item(f's_add_u32 s{sSO}, s{sJ}, {28*(kk-14)*896}')]; sr = SO
        if prev: o.append(Item(f'@wait lg=t{prev[-1]}', after={f't{prev[-1]}': 3}))
        o.append(Item(f's_add_u32 m0, s{base or sMW}, {off + (65536 if base is None else 0)}'))
        for i in range(4):
            o.append(Item(f'buffer_load_dwordx4 v{55 if (kk >= 14 and i == 3) else DV+i}, s[{sr}:{sr+3}], s{sSO} offen offset:{i*1024} lds', tag=f'k{kk}', t0=stp*G, paced=True, name=f'k{kk}' if i == 3 else None))
        return o
    def w2r(kk, lag):
        reg, off, base, stp = slots[kslot[kk]]
        o = [Item(f'@wait vm=k{kk}', after={f'k{kk}': lag})]
        for c in range(4):
            r, k = wfrag(kk, c)
            for jj in range(2):
                o.append(Item(f'ds_read_b64_tr_b16 {V(r + 2*jj, 2, k)}, v{reg+c} offset:{off + jj*2048}', tag=f't{kk}', name=f't{kk}' if (c, jj) == (3, 1) else None))
        return o
    d += [Item(f's_mul_i32 s{sWO}, s{sW}, {448*896}'), Item(f's_mul_i32 s{sJ}, s{sW}, {112*896}')]
    d += w2d(0)
    d += [Item(f's_and_b32 s{T0}, s{sW}, 1', t0=19*G), Item(f's_lshl_b32 s{T0}, s{T0}, 10'), Item(f's_lshr_b32 s{T1}, s{sW}, 1'), Item(f's_lshl_b32 s{T1}, s{T1}, 9'),
          Item(f's_add_u32 s{T0}, s{T0}, s{T1}'), Item(f's_mul_i32 s{T1}, s{sR}, {79*4}'), Item(f's_mul_i32 s{T2}, s{sW}, {STS}'), Item(f's_add_u32 s{T1}, s{T1}, s{T2}'),
          Item(f's_add_u32 s{T1}, s{T1}, {STATS}'), Item(f's_add_u32 m0, s{T0}, {FPAR}')]
    d += [Item(f'buffer_load_dword v{CB+1}, s[{SH}:{SH+3}], s{T1} offen offset:{256*i} sc1 lds', tag='par', paced=True) for i in range(2)]
    for kk in range(1, 18): d += w2d(kk)
    dma = Stream(d, rate=OPT['rate'])
    S_ = Sched(a)
    S_.flush(dma, 7)
    em(a, srd(SH, 22, WS_USED) + srd(SDB, 20, 256))
    a(f's_lshl_b32 s{T0}, s{sC}, 2\ns_add_u32 s{T0}, s{T0}, s{sW}\ns_mul_i32 s{T1}, s{T0}, 4682\ns_lshr_b32 s{T1}, s{T1}, 16')
    a(f's_mul_i32 s{T1}, s{T1}, {128-14}\ns_add_u32 s{T0}, s{T0}, s{T1}\ns_lshl_b32 s{T1}, s{sR}, 9\ns_add_u32 s{T0}, s{T0}, s{T1}\ns_add_u32 s{sFL}, s{T0}, {FH}')
    x_read_addr(a, XA, XB, t, 5120)
    for st in range(3): a(f'ds_write_b128 v{t}, v[{t+2}:{t+5}] offset:{st*FXS + 161*128}')
    u = t + 6
    a(f'v_bfe_u32 v{u}, v0, 4, 1\nv_bfe_u32 v{u+1}, v0, 2, 2\nv_lshrrev_b32 v{u+2}, 5, v0\nv_and_b32 v{u+3}, 3, v0')
    a(f'v_lshl_add_u32 v{u+4}, v{u+1}, 1, v{u}\ns_lshl_b32 s{T0}, s{sW}, 1\nv_xor_b32 v{u+4}, s{T0}, v{u+4}\nv_lshlrev_b32 v{u+4}, 5, v{u+4}')
    a(f'v_lshl_add_u32 v{u+4}, v{u+3}, 3, v{u+4}\nv_lshl_add_u32 v{u+4}, v{u+1}, 8, v{u+4}\nv_lshl_add_u32 v{u+4}, v{u+2}, 11, v{u+4}')
    a(f'v_lshl_add_u32 v{u+4}, v{u}, 14, v{u+4}\nv_add_u32 v{WA}, {FW0}, v{u+4}\nv_xor_b32 v{WA+1}, 32, v{WA}')
    a(f'v_add_u32 v{WA+2}, 0x10000, v{WA}\nv_add_u32 v{WA+3}, 0x10000, v{WA+1}')
    S_.flush(dma, 2)
    stats_do(a, True)
    S_.flush(dma, 4)

    tiles = [[(4, 1), (0, 1), (1, 1), (2, 1), (3, 1)], [(T, 0) for T in range(5)]]
    def breads(n):
        j, ks2, grp = n >> 2, (n >> 1) & 1, n & 1
        return [f'ds_read_b128 {A(BF[grp] + 4*k, 4)}, v{(XB if (T, h) == (4, 1) else XA) + ks2} offset:{(j%3)*FXS + (10*h + T)*1024}' for k, (T, h) in enumerate(tiles[grp])]
    def areads(m):
        j, ks2 = m >> 1, m & 1; o = []
        for mat in range(2):
            for uu in range(2):
                for jj in range(2):
                    off = (j % 3) * 32768 + jj * 8192 + ks2 * 4096 + mat * 1024
                    o.append(f'ds_read_b64_tr_b16 {A(AF[m&1] + 8*mat + 4*uu + 2*jj, 2)}, v{WA + uu + (2 if off >= 65536 else 0)} offset:{off & 0xffff}')
        return o
    acc = lambda T, h: ACC + 16 * (2 * T + h)
    stamp(a, 3)
    a('@wait vm=x0,w0a lg=*\ns_barrier')
    stamp(a, 4)
    em(a, areads(0)[:4] + breads(0)[:1] + areads(0)[4:] + breads(0)[1:])
    bg = srd(SD, 16, 1792 * 896) + srd(SO, 8, 448 * 896) + srd(SOUT, 18, 2048 * 896)
    bg += [f's_mul_i32 s{T3}, s{sTH}, 9363', f's_lshr_b32 s{T3}, s{T3}, 16', f's_mul_i32 s{sCT}, s{T3}, 7', f's_sub_u32 s{sCT}, s{sTH}, s{sCT}', f's_mov_b32 s{sTH}, s{T3}']
    if OPT['rot2']:
        bg += [f's_mul_i32 s{T3}, s{sTH}, 5', f's_lshl_b32 s{sRT}, s{sCT}, 1', f's_add_u32 s{T3}, s{T3}, s{sRT}', f's_mul_i32 s{sRT}, s{T3}, 4682', f's_lshr_b32 s{sRT}, s{sRT}, 16',
               f's_mul_i32 s{sRT}, s{sRT}, 14', f's_sub_u32 s{sRT}, s{T3}, s{sRT}', f's_lshl_b32 s{sRT}, s{sRT}, 10']
    else:
        bg += [f's_mov_b32 s{sRT}, 0']
    for k in range(1, 14):
        bg += [f's_add_u32 s{sRT+k}, s{sRT+k-1}, 1024', [f's_cmp_eq_u32 s{sRT+k}, {14*1024}', f's_cselect_b32 s{sRT+k}, 0, s{sRT+k}']]
    bg += [f'v_lshrrev_b32 v{t}, 3, v0', f'v_and_b32 v{t+1}, 7, v0', f'v_lshrrev_b32 v{t+2}, 4, v0', f'v_lshlrev_b32 v{t+2}, 1, v{t+2}',
           f'v_xor_b32 v{t+1}, v{t+1}, v{t+2}', f'v_lshlrev_b32 v{t+1}, 4, v{t+1}', f'v_mul_u32_u24 v{t}, 896, v{t}',
           f's_lshl_b32 s{T3}, s{sCT}, 7', f'v_add3_u32 v{DV}, v{t}, v{t+1}, s{T3}']
    bg += [f'v_add_u32 v{DV+i}, {6144*i}, v{DV}' for i in range(1, 4)]
    bg += [f'v_cmp_gt_u32 s[{sM0}:{sM0+1}], 32, v0', f'v_mov_b32 v55, {OOB}', f'v_cndmask_b32 v55, v55, v{DV+3}, s[{sM0}:{sM0+1}]']
    bg += [f'v_bfe_u32 v{t}, v0, 2, 3', f'v_lshrrev_b32 v{t+1}, 5, v0', f'v_and_b32 v{t+2}, 3, v0', f'v_bfe_u32 v{t+3}, v0, 3, 2',
           f'v_lshlrev_b32 v{t}, 7, v{t}', f'v_lshl_add_u32 v{t}, v{t+1}, 10, v{t}', f'v_lshl_add_u32 v{t}, v{t+2}, 3, v{t}', f'v_lshl_add_u32 v{t}, v{t+3}, 5, v{t}',
           f'v_add_u32 v{RX}, s{sMX}, v{t}', f'v_add_u32 v{RW}, s{sMW}, v{t}']
    for c in range(1, 4): bg += [f'v_xor_b32 v{RX+c}, {32*c}, v{RX}', f'v_xor_b32 v{RW+c}, {32*c}, v{RW}']
    bg += [f'v_add_u32 v{RH+c}, 0x10000, v{RW+c}' for c in range(4)]
    bg += [f'v_lshlrev_b32 v{CB+1}, 2, v0', f'v_lshlrev_b32 v{HV}, 4, v0',
           f'v_and_b32 v{PA}, 7, v0', f'v_bfe_u32 v{t}, v0, 3, 1', f'v_lshlrev_b32 v{PA}, 2, v{PA}', f'v_lshl_add_u32 v{PA}, v{t}, 10, v{PA}', f'v_add_u32 v{PA}, {FPAR}, v{PA}',
           f's_lshl_b32 s{T3}, s{sC}, 2', f's_add_u32 s{T3}, s{T3}, s{sW}', f's_lshl_b32 s{T3}, s{T3}, 10', f's_mul_i32 s{sST}, s{sR}, {2*TH_BYTES}', f's_add_u32 s{sST}, s{sST}, s{T3}',
           f's_lshr_b32 s{T3}, s{sTH}, 1', f's_lshl_b32 s{sFH}, s{T3}, 2', f's_add_u32 s{sFH}, s{sFH}, s{sW}', f's_lshl_b32 s{sFH}, s{sFH}, 7', f's_add_u32 s{sFH}, s{sFH}, {FH}',
           [f's_add_u32 s{sFH}, s22, s{sFH}', f's_addc_u32 s{sFH+1}, s23, 0'],
           f's_mul_i32 s{T3}, s{T3}, 158', f's_max_u32 s{T3}, s{T3}, 14', f's_sub_u32 s{T3}, s{T3}, 14', f's_mul_i32 s{T3}, s{T3}, 580', f's_lshr_b32 s{T3}, s{T3}, 16',
           f's_min_u32 s{T3}, s{T3}, 15', f's_lshl_b32 s{sFO}, s{sW}, 5', f's_add_u32 s{T3}, s{T3}, s{sFO}', f's_lshl_b32 s{T3}, s{T3}, 2', f's_add_u32 s{T3}, s{T3}, {FO}',
           [f's_add_u32 s{sFO}, s22, s{T3}', f's_addc_u32 s{sFO+1}, s23, 0']]
    bgs = Stream([Item(x) for x in bg])
    late = []
    NT_SHADOW = 6
    for kk in range(NT_SHADOW): late += w2r(kk, 40)
    trs = Stream(late)
    par = []
    for T in range(5):
        for h in (1, 0):
            P = PR + 4 * (2 * T + h)
            par.append(Item(f'ds_read2_b32 {V(P, 2)}, v{PA} offset0:{16*T + 8*h} offset1:{128 + 16*T + 8*h}', t0=23*G, tag='pr'))
    par.append(Item('@wait lg=pr', t0=25*G))
    for T in range(5):
        for h in (1, 0):
            P = PR + 4 * (2 * T + h)
            par += [Item(f'v_mul_f32 v{P+2}, {hx(f2u(-LOG2E))}, v{P+1}', t0=25*G), Item(f'v_mul_f32 v{P+1}, v{P+1}, v{P+1}'), Item(f'v_rcp_f32 v{P+1}, v{P+1}')]
    par += [Item(f'v_mov_b32_dpp v{CS+k}, v{acc(4, 1)+k} row_newbcast:15 row_mask:0xf bank_mask:0xf', t0=26*G + 8) for k in range(16)]
    pars = Stream(par)
    for n in range(28):
        j, m, grp = n >> 2, n >> 1, n & 1
        if n == 1: a('@wait vm=w0 lg=*\ns_barrier')
        elif n & 3 == 3:
            extra = {0: ',zs', 4: ',cert', 5: ',par'}.get(j, '')
            a(f'@wait vm=x{j+1},w{j+1}{extra} lg=*\ns_barrier')
            stamp(a, 5 + j) if j in (0, 2, 4, 6) and False else None
        else: a('s_waitcnt lgkmcnt(0)')
        if n in (3, 11, 19, 27): stamp(a, 5 + (n >> 3))
        rd = []
        if n < 27:
            rd = breads(n + 1)
            if grp == 1:
                ar = areads(m + 1); rd = ar[:4] + rd[:1] + ar[4:] + rd[1:]
        fx = [Item(x) for x in rd]
        if n == 3: fx = [Item(x) for x in cert_post(CB, 54)] + fx
        if n == 19: fx = [Item(cert_check('Lf_cert', CB, CB + 1))] + fx
        rds = Stream(fx, maxper=1)
        k = 0
        for q, (T, h) in enumerate(tiles[grp]):
            for c in range(4):
                dd = V(acc(T, h) + 4 * c, 4)
                a(f'{MF} {dd}, {A(AF[m&1] + 4*c, 4)}, {A(BF[grp] + 4*q, 4)}, {dd if m else 0}')
                k += 1
                S_.gap([rds, dma, pars, trs, bgs], 2 if k < G else 1)
        assert rds.done()
        if n == 10: assert bgs.done(), bgs.left()
    S_.flush(pars)
    stamp(a, 9)
    trs2 = Stream(trs.items[trs.i:] + sum((w2r(kk, 40) for kk in range(NT_SHADOW, 9)), []))
    dma.rate = 0.2
    FV = CB
    def post(val): return [f'v_mov_b32 v{FV}, {val}', f'buffer_store_byte v{FV}, v1, s[{SH}:{SH+3}], s{sFL} offen sc1']
    for T in range(5):
        if T == 3:
            a('@wait vm=h0'); em(a, post(1))
        for h in (1, 0):
            P = PR + 4 * (2 * T + h); dd = acc(T, h); OO = O + 4 * h
            ops = []
            for k in range(0, 16, 2): ops.append(f'v_pk_fma_f32 {V(dd+k, 2)}, {V(CS+k, 2)}, {V(P, 2)}, {V(dd+k, 2)} op_sel_hi:[1,0,1]')
            for k in range(0, 8, 2): ops.append(f'v_pk_mul_f32 {V(E+k, 2)}, {V(dd+k, 2)}, {V(P+2, 2)} op_sel_hi:[1,0]')
            for k in range(8): ops.append(f'v_exp_f32 v{E+k}, v{E+k}')
            for k in range(0, 8, 2): ops.append(f'v_pk_mul_f32 {V(dd+k, 2)}, {V(dd+k, 2)}, {V(dd+8+k, 2)}')
            for k in range(0, 8, 2): ops.append(f'v_pk_fma_f32 {V(E+k, 2)}, {V(E+k, 2)}, {V(P, 2)}, {V(P, 2)} op_sel:[0,1,1] op_sel_hi:[1,1,1]')
            for k in range(8): ops.append(f'v_rcp_f32 v{E+k}, v{E+k}')
            for k in range(0, 8, 2): ops.append(f'v_pk_mul_f32 {V(dd+k, 2)}, {V(dd+k, 2)}, {V(E+k, 2)}')
            for k in range(4): ops.append(f'v_cvt_pk_bf16_f32 v{OO+k}, v{dd+2*k}, v{dd+2*k+1}')
            acc_c = 0
            for x in ops:
                a(x); acc_c += cost(x)
                if acc_c >= 4:
                    acc_c -= 4; S_.gap([dma, trs2], 1)
            a(f's_add_u32 s{T3}, s{sST}, {h*TH_BYTES + T*72*1024}')
            a(f'buffer_store_dwordx4 {V(OO, 4)}, v{HV}, s[{SH}:{SH+3}], s{T3} offen sc1', tag=f'h{T}')
            if (T, h) == (4, 1):
                S_.flush(trs2); a('s_waitcnt lgkmcnt(0)'); a(poll_issue(sFH))
    stamp(a, 10)
    print('after epilogue: dma left', dma.left(), file=sys.stderr)
    a('@wait vm=h2'); em(a, post(3))
    S_.flush(dma)
    ACC2, HB, NHB, RD = 96, 176, 12, 224
    XO, XR, WRA, RDA, t = 22, 28, 38, 46, 48
    hl = [(T, kk) for T in range(5) for kk in range(14)] + [(T, kk) for T in range(5) for kk in range(14, 18)]
    HA = 88
    a(f's_mul_i32 s{T0}, s{sTH}, {TH_BYTES}\ns_mul_i32 s{T1}, s{sW}, {14*1024}\ns_add_u32 s{T0}, s{T0}, s{T1}\nv_add_u32 v{HA}, s{T0}, v{HV}')
    for T in range(1, 5): a(f'v_add_u32 v{HA+T}, {T*72*1024}, v{HA}')
    a(f's_mul_i32 s{T1}, s{sW}, {10*1024}\ns_sub_u32 s{sST}, {56*1024}, s{T1}')
    def hload(i):
        T, kk = hl[i]
        if kk < 14: return f'buffer_load_dwordx4 {V(HB + 4*(i % NHB), 4)}, v{HA+T}, s[{SH}:{SH+3}], s{sRT+kk} offen sc1'
        return f'buffer_load_dwordx4 {V(HB + 4*(i % NHB), 4)}, v{HA+T}, s[{SH}:{SH+3}], s{sST} offen offset:{(kk-14)*1024} sc1'
    for x in poll_check('Lf_p0', sFH, 0, 0xffff0000): em(a, x if isinstance(x, list) else [x])
    LEAD = NHB - 2
    for i in range(LEAD): a(hload(i), tag=f'g{i}')
    S_.flush(Stream(sum((w2r(kk, 0) for kk in range(9, 18)), [])))
    a(f's_lshr_b32 s{T0}, s{sTH}, 1\ns_mul_i32 s{T0}, s{T0}, 158\ns_and_b32 s{T1}, s{sTH}, 1\ns_lshl_b32 s{T1}, s{T1}, 4')
    a(f's_and_b32 s{T2}, s{sW}, 1\ns_lshl_b32 s{T2}, s{T2}, 3\ns_lshr_b32 s{T3}, s{sW}, 1\ns_add_u32 s{T2}, s{T2}, s{T3}\ns_add_u32 s{T1}, s{T1}, s{T2}')
    a(f'v_lshrrev_b32 v{t}, 4, v0\nv_lshl_add_u32 v{t}, v{t}, 1, s{T1}')
    a(f'v_add_u32 v{t+1}, s{T0}, v{t}\nv_mul_u32_u24 v{t+1}, 896, v{t+1}\nv_and_b32 v{t+2}, 15, v0\nv_lshlrev_b32 v{t+2}, 3, v{t+2}')
    a(f's_lshl_b32 s{T0}, s{sCT}, 7\nv_add3_u32 v{XO}, v{t+1}, v{t+2}, s{T0}')
    for T in range(1, 5): a(f'v_add_u32 v{XO+T}, {32*896*T}, v{XO}')
    a(f'v_cmp_gt_u32 vcc, 30, v{t}\nv_mov_b32 v{t+1}, {OOB}\nv_cndmask_b32 v{XO+4}, v{t+1}, v{XO+4}, vcc')
    a(f'v_and_b32 v{t}, 15, v0\nv_lshrrev_b32 v{t+1}, 4, v0\nv_and_b32 v{t+2}, 7, v0\nv_xor_b32 v{t+1}, v{t+1}, v{t+2}')
    a(f'v_lshlrev_b32 v{t+1}, 4, v{t+1}\nv_lshl_add_u32 v{t}, v{t}, 8, v{t+1}\ns_lshl_b32 s{T0}, s{sW}, 12\nv_add_u32 v{WRA}, s{T0}, v{t}')
    for c in range(1, 4): a(f'v_xor_b32 v{WRA+c}, {64*c}, v{WRA}')
    for c in range(4): a(f'v_add_u32 v{WRA+4+c}, 0x10000, v{WRA+c}')
    a(f'v_lshrrev_b32 v{t}, 4, v0\ns_lshl_b32 s{T0}, s{sW}, 2\nv_add_u32 v{t}, s{T0}, v{t}\nv_and_b32 v{t+1}, 7, v{t}\nv_and_b32 v{t+2}, 15, v0')
    a(f'v_xor_b32 v{t+1}, v{t+1}, v{t+2}\nv_lshlrev_b32 v{t+1}, 4, v{t+1}\nv_lshl_add_u32 v{RDA}, v{t}, 8, v{t+1}\nv_add_u32 v{RDA+1}, 0x10000, v{RDA}')
    a('@wait vm=h4 lg=*'); em(a, post(7)); a(poll_issue(sFH))
    stamp(a, 11)
    pre = {}
    def guard(first_load, name, base, bit, om, issue_at):
        stp = first_load - LEAD - 1
        if issue_at is not None: pre.setdefault(issue_at, []).append(poll_issue(base))
        pre.setdefault(stp, []).extend(poll_check(name, base, bit, om))
    guard(14, 'Lf_p1', sFH, 1, 0xffff0000, None)
    guard(42, 'Lf_p2', sFH, 2, 0xffff0000, 42 - LEAD - 9)
    guard(70, 'Lf_p3', sFO, 0, 0xffffffff, 70 - LEAD - 9)
    pre.setdefault(20, []).append('s_barrier')
    xr = Stream([Item(f'buffer_load_dwordx2 {V(XR + 2*T, 2)}, v{XO+T}, s[{SX}:{SX+3}], 0 offen', tag='xr', t0=S_.t + 4*(24 + 5*T)) for T in range(5)])
    pend = Stream([])
    for i, (T, kk) in enumerate(hl):
        a(f'@wait vm=g{i}')
        if i == 70: stamp(a, 12)
        fx = Stream(([Item(hload(i + LEAD), tag=f'g{i+LEAD}')] if i + LEAD < len(hl) else []) + [Item(x) for x in pre.get(i, [])])
        for c in range(4):
            r, k = wfrag(kk, c)
            dd = V(ACC2 + 16 * T + 4 * c, 4)
            a(f'{MF} {dd}, {V(r, 4, k)}, {V(HB + 4*(i % NHB), 4)}, {dd if kk else 0}')
            S_.gap([fx, xr] + ([pend] if c == 2 else []), 2 if c < 3 else 1)
        S_.flush(fx)
        if kk == 17:
            assert pend.done()
            pend = Stream([Item(f'ds_write_b128 v{WRA + c + (4 if T == 4 else 0)}, {V(ACC2 + 16*T + 4*c, 4)} offset:{(T & 3)*16384}', tag='pw') for c in range(4)], maxper=1)
    S_.flush(pend)
    a('s_waitcnt lgkmcnt(0)\ns_barrier')
    stamp(a, 13)
    def rd(T):
        for w in range(4): a(f'ds_read_b128 {V(RD + 16*(T&1) + 4*w, 4)}, v{RDA + (T == 4)} offset:{(T & 3)*16384 + w*4096}', tag=f'p{T}')
    rd(0)
    for T in range(5):
        if T < 4: rd(T + 1)
        b = RD + 16 * (T & 1); x = XR + 2 * T; U = t
        a(f'v_lshlrev_b32 v{U}, 16, v{x}\nv_and_b32 v{U+1}, 0xffff0000, v{x}\nv_lshlrev_b32 v{U+2}, 16, v{x+1}\nv_and_b32 v{U+3}, 0xffff0000, v{x+1}')
        a(f'@wait lg=p{T}')
        for w in range(4):
            for k in (0, 2): a(f'v_pk_add_f32 {V(U+k, 2)}, {V(U+k, 2)}, {V(b+4*w+k, 2)}')
        a(f'v_cvt_pk_bf16_f32 v{x}, v{U}, v{U+1}\nv_cvt_pk_bf16_f32 v{x+1}, v{U+2}, v{U+3}')
        a(f'buffer_store_dwordx2 {V(x, 2)}, v{XO+T}, s[{SOUT}:{SOUT+3}], 0 offen')

AX0 = 0; AXS = 130 * 128; AW0 = 3 * AXS; APAR = AW0 + 4 * 24576
def attn(a):
    XV, WV, XA, XB, WA = 2, 4, 7, 9, 11
    PA, RA, CB = 15, 16, 17
    OA = 20
    MK = 28
    CV = 36
    PR = 38
    t = 54
    Q, K, V0, V1 = 64, 128, 192, 224
    BF = (0, 16); AF = (32, 56); CSA = 80
    a(f's_mul_i32 s{sR}, s{T1}, 9\ns_add_u32 s{sR}, s{sR}, s{T0}\ns_sub_u32 s{sR}, s{sR}, 23\ns_mov_b32 s{sC}, s{T2}')
    a(f's_and_b32 s{T0}, s{sW}, 1\ns_lshr_b32 s{T1}, s{sW}, 1\ns_mul_i32 s{T2}, s{sR}, 113\ns_lshl_b32 s{T3}, s{sW}, 4\ns_add_u32 s{T2}, s{T2}, s{T3}')
    a(f's_mul_i32 s{T2}, s{T2}, 896\ns_lshl_b32 s{T0}, s{T0}, 2')
    a(f'v_lshrrev_b32 v{t}, 3, v0\nv_and_b32 v{t+1}, 7, v0\nv_lshrrev_b32 v{t+2}, 4, v0\nv_xor_b32 v{t+1}, s{T0}, v{t+1}\nv_xor_b32 v{t+1}, v{t+1}, v{t+2}')
    a(f'v_mul_u32_u24 v{t}, 1792, v{t}\nv_lshl_add_u32 v{t}, v{t+1}, 4, v{t}\nv_add_u32 v{XV}, s{T2}, v{t}\nv_add_u32 v{XV+1}, {64*896 - 1024}, v{XV}')
    a(f'v_lshl_add_u32 v{t}, v{t+2}, 1, s{T1}\nv_lshlrev_b32 v{t}, 1, v{t}\nv_sub_u32 v{t+1}, v0, v{t}\nv_and_b32 v{t+1}, 15, v{t+1}\nv_min_u32 v{t+1}, 13, v{t+1}')
    a(f's_mul_i32 s{T0}, s{sW}, {4*2688}\ns_mul_i32 s{T1}, s{sC}, 224\ns_add_u32 s{T0}, s{T0}, s{T1}')
    a(f'v_mul_u32_u24 v{t+2}, 2688, v{t+2}\nv_lshl_add_u32 v{t+2}, v{t+1}, 4, v{t+2}\nv_add_u32 v{WV+2}, s{T0}, v{t+2}')
    a(f'v_add_u32 v{WV+1}, 128, v{WV+2}\nv_add_u32 v{WV}, 256, v{WV+2}')
    a(f's_lshl_b32 s{sMX}, s{sW}, 12\ns_mul_i32 s{sMW}, s{sW}, 6144\ns_add_u32 s{sMW}, s{sMW}, {AW0}\ns_mul_i32 s{sWO}, s{sJ}, 1344')
    a('s_waitcnt lgkmcnt(0)')
    stamp(a, 2)
    em(a, srd(SX, 4, 2048 * 896)); stats_load(a)
    em(a, srd(SG, 6, 448 * 2688, back=256))
    G = 24
    def xd(j, e):
        o = []
        for i in range(4):
            if i % 2 == 0: o.append(Item(f's_add_u32 m0, s{sMX}, {(j%3)*AXS + (i>>1)*(2048 - 896)}', t0=e))
            o.append(Item(f'buffer_load_dwordx4 v{XV + (i&1)}, s[{SX}:{SX+3}], s{sJ} offen offset:{(i&1)*1024 + (i>>1)*896} lds', tag=f'x{j}', t0=e, paced=True))
        return o
    def wd(h, e):
        o = []
        for i in range(2):
            o += [Item(f's_add_u32 s{sSO}, s{sWO}, {(32*(h&1) + 16*i) * 2688}', t0=e), Item(f's_add_u32 m0, s{sMW}, {(h%4)*24576 + i*3072}', t0=e)]
            o += [Item(f'buffer_load_dwordx4 v{WV+m}, s[{SG}:{SG+3}], s{sSO} offen offset:{m*1024} lds', tag=f'w{h}', t0=e, paced=True) for m in range(3)]
        return o
    d = wd(0, 0) + xd(0, 0) + wd(1, 0)
    for h in range(2, 14):
        if h % 2 == 0:
            j = h // 2
            d += [Item(x) for x in rot_next(1344)] + xd(j, 0 if j < 3 else (4 * (j - 3) + 3) * G)
        d += wd(h, 0 if h < 4 else (2 * (h - 4) + 1) * G)
        if h == 11: d.append(Item(f'buffer_load_dword v{CB}, v{CB+1}, s[{SDB}:{SDB+3}], 0 offen sc1', tag='cert', paced=True))
    d += [Item(f's_and_b32 s{T0}, s{sW}, 1', t0=21*G), Item(f's_mul_i32 s{T1}, s{sR}, 113'), Item(f's_add_u32 s{T1}, s{T1}, s{T0}'), Item(f's_lshr_b32 s{T2}, s{T1}, 1'),
          Item(f'v_add_u32 v{CB}, s{T2}, v0'), Item(f'v_min_u32 v{CB}, 1023, v{CB}'), Item(f'v_lshlrev_b32 v{CB}, 2, v{CB}'),
          Item(f's_and_b32 s{T1}, s{T1}, 1'), Item(f's_and_b32 s{T2}, s{sW}, 2'), Item(f's_add_u32 s{T1}, s{T1}, s{T2}'), Item(f's_mul_i32 s{T1}, s{T1}, {STS}'),
          Item(f's_add_u32 s{T1}, s{T1}, {STATS}'), Item(f's_lshl_b32 s{T0}, s{T0}, 9'), Item(f's_lshl_b32 s{T2}, s{T2}, 7'), Item(f's_add_u32 s{T0}, s{T0}, s{T2}'),
          Item(f's_add_u32 m0, s{T0}, {APAR}'),
          Item(f'buffer_load_dword v{CB}, s[{SH}:{SH+3}], s{T1} offen sc1 lds', tag='par', paced=True)]
    dma = Stream(d, rate=OPT['rate'])
    S_ = Sched(a)
    S_.flush(dma, 6)
    em(a, srd(SH, 22, WS_USED) + srd(SDB, 20, 256))
    a(f's_lshl_b32 s{T0}, s{sC}, 5\ns_add_u32 s{T0}, s{T0}, s{sR}\ns_lshl_b32 s{T0}, s{T0}, 2\ns_add_u32 s{T0}, s{T0}, s{sW}\ns_add_u32 s{sFL}, s{T0}, {FO}')
    x_read_addr(a, XA, XB, t, 4096)
    for st in range(3): a(f'ds_write_b128 v{t}, v[{t+2}:{t+5}] offset:{st*AXS + 129*128}')
    u = 20
    a(f'v_bfe_u32 v{u}, v0, 4, 1\nv_bfe_u32 v{u+1}, v0, 2, 2\nv_lshrrev_b32 v{u+2}, 5, v0\nv_and_b32 v{u+3}, 3, v0')
    a(f'v_lshl_add_u32 v{u+4}, v{u+1}, 1, v{u}\nv_lshl_add_u32 v{u+4}, v{u+4}, 2, v{u+3}\ns_mul_i32 s{T0}, s{sW}, 56\nv_lshl_add_u32 v{u+4}, v{u+4}, 3, s{T0}')
    a(f'v_add_u32 v{u+5}, 32, v{u+4}\nv_and_b32 v{u+4}, 0xff, v{u+4}\nv_and_b32 v{u+5}, 0xff, v{u+5}')
    a(f'v_mul_u32_u24 v{u}, 12288, v{u}\nv_mul_u32_u24 v{u+2}, 3072, v{u+2}\nv_lshl_add_u32 v{u}, v{u+1}, 8, v{u}\nv_add_u32 v{u}, v{u}, v{u+2}\nv_add_u32 v{u}, {AW0}, v{u}')
    a(f'v_add_u32 v{WA}, v{u}, v{u+4}\nv_add_u32 v{WA+1}, v{u}, v{u+5}\nv_add_u32 v{WA+2}, 49152, v{WA}\nv_add_u32 v{WA+3}, 49152, v{WA+1}')
    S_.flush(dma, 2)
    stats_do(a, True)
    S_.flush(dma, 5)

    tiles = [[7, 4, 5, 6], [0, 1, 2, 3]]
    def breads(n):
        j, ks2, grp = n >> 2, (n >> 1) & 1, n & 1
        return [f'ds_read_b128 {A(BF[grp] + 4*k, 4)}, v{(XB if T == 7 else XA) + ks2} offset:{(j%3)*AXS + (8*(T&1) + (T>>1))*1024}' for k, T in enumerate(tiles[grp])]
    def areads(h):
        o = []
        for mat in range(3):
            for ct in range(2):
                for jj in range(2):
                    off = (h % 4) * 24576 + jj * 6144 + mat * 1024
                    o.append(f'ds_read_b64_tr_b16 {A(AF[h&1] + 8*mat + 4*ct + 2*jj, 2)}, v{WA + ct + (2 if off >= 49152 else 0)} offset:{off % 49152}')
        return o
    def acc(T, c): return (Q + 8*T, Q + 8*T + 4, K + 8*T, K + 8*T + 4, V0 + 4*T, V1 + 4*T)[c]
    stamp(a, 3)
    a('@wait vm=x0,w0 lg=*\ns_barrier')
    stamp(a, 4)
    em(a, areads(0)[:4] + breads(0)[:1] + areads(0)[4:] + breads(0)[1:])
    bg = [f'v_lshlrev_b32 v{CB+1}, 2, v0', f'v_and_b32 v{t}, 15, v0', f'v_lshlrev_b32 v{PA}, 2, v{t}', f'v_add_u32 v{PA}, {APAR}, v{PA}',
          f'v_lshrrev_b32 v{t+1}, 4, v0', f'v_lshlrev_b32 v{RA}, 4, v{t+1}', f'v_add_u32 v{RA}, {APAR}, v{RA}',
          f'v_cmp_gt_u32 s[{sM1}:{sM1+1}], 48, v0',
          f'v_lshlrev_b32 v{t+1}, 2, v{t+1}', f'v_sub_u32 v{t+1}, v{t}, v{t+1}', f'v_mov_b32 v{t+3}, {hx(f2u(-1e30))}']
    for i in range(8):
        bg += [f'v_add_u32 v{t+2}, {(16 if i < 4 else 0) - (i & 3)}, v{t+1}', f'v_cmp_gt_u32 s[{sM0}:{sM0+1}], 8, v{t+2}',
               f'v_cndmask_b32 v{MK+i}, v{t+3}, 0, s[{sM0}:{sM0+1}]']
    kA, kB, kC, kD = 4, 5, 6, 7
    bg += [f's_mul_i32 s{kD}, s{sR}, 113', f's_lshl_b32 s{T3}, s{sC}, 2', f's_add_u32 s{T3}, s{T3}, s{sW}', f's_add_u32 s{T3}, s{T3}, 56', f's_lshl_b32 s{sST}, s{T3}, 10',
           [f's_cmp_eq_u32 s{sR}, 0', f's_cselect_b32 s{T3}, 0, 14'], f's_mov_b32 s{kA}, 26547', f's_mov_b32 s{kB}, {TH_BYTES}', f's_mov_b32 s{kC}, {72*1024}',
           f'v_lshrrev_b32 v{t+6}, 4, v0', f'v_lshlrev_b32 v{t+6}, 8, v{t+6}', f'v_mov_b32 v{t+7}, {OOB}']
    for T in range(8):
        bg += [f'v_lshl_add_u32 v{t+1}, v{t}, 1, {32*(T&3) + (T>>2)}' if 32*(T&3) + (T>>2) <= 64 else [f'v_lshlrev_b32 v{t+1}, 1, v{t}', f'v_add_u32 v{t+1}, {32*(T&3) + (T>>2)}, v{t+1}'],
               f'v_add_u32 v{t+2}, s{kD}, v{t+1}', f'v_mul_u32_u24 v{t+3}, s{kA}, v{t+2}', f'v_lshrrev_b32 v{t+3}, 22, v{t+3}',
               f'v_mul_u32_u24 v{t+4}, 158, v{t+3}', f'v_sub_u32 v{t+2}, v{t+2}, v{t+4}',
               f'v_bfe_u32 v{t+4}, v{t+2}, 4, 1', f'v_lshl_add_u32 v{t+3}, v{t+3}, 1, v{t+4}', f'v_mad_u32_u24 v{t+3}, v{t+3}, s{kB}, v{t+6}',
               f'v_lshrrev_b32 v{t+4}, 5, v{t+2}', f'v_mad_u32_u24 v{t+3}, v{t+4}, s{kC}, v{t+3}',
               f'v_bfe_u32 v{t+4}, v{t+2}, 1, 3', f'v_lshl_add_u32 v{t+3}, v{t+4}, 4, v{t+3}', f'v_and_b32 v{t+4}, 1, v{t+2}', f'v_lshl_add_u32 v{OA+T}, v{t+4}, 7, v{t+3}']
        if T & 3 == 0: bg += [f'v_cmp_le_u32 s[{sM0}:{sM0+1}], s{T3}, v{t+1}', f'v_cndmask_b32 v{OA+T}, v{t+7}, v{OA+T}, s[{sM0}:{sM0+1}]']
        if T == 7: bg += [f'v_cmp_gt_u32 s[{sM0}:{sM0+1}], 15, v{t}', f'v_cndmask_b32 v{OA+T}, v{t+7}, v{OA+T}, s[{sM0}:{sM0+1}]']
    bgs = Stream([Item(x) for x in bg])
    par = [Item(f'ds_read2_b32 {V(PR + 2*T, 2)}, v{PA} offset0:{128*(T>>2) + 16*(T&3)} offset1:{64 + 128*(T>>2) + 16*(T&3)}', t0=25*G) for T in range(8)]
    CQ, CK = 2, 54
    par += [Item(f'v_mov_b32_dpp v{CK+k}, v{K+56+k} row_newbcast:15 row_mask:0xf bank_mask:0xf', t0=26*G + 10) for k in range(8)]
    for c, src in enumerate((V0 + 31, V1 + 31)):
        par += [Item(f'v_mov_b32 v62, v{src}'), Item(f'v_mov_b32 v63, v{src}'), Item('v_permlane32_swap_b32 v62, v63'),
                Item(f'v_mov_b32 v{CV+c}, v63'), Item(f'v_permlane16_swap_b32 v63, v{CV+c}')]
    par += [Item(f'v_mov_b32_dpp v{CQ+k}, v{Q+56+k} row_newbcast:15 row_mask:0xf bank_mask:0xf', t0=27*G) for k in range(8)]
    pars = Stream(par)
    for n in range(28):
        h, grp = n >> 1, n & 1
        if grp:
            extra = {3: ',zs', 21: ',cert', 25: ',par'}.get(n, '')
            a(f'@wait vm=x{(n+1)>>2},w{h+1}{extra} lg=*\ns_barrier')
        else: a('s_waitcnt lgkmcnt(0)')
        if n in (3, 11, 19, 27): stamp(a, 5 + (n >> 3))
        rd = []
        if n < 27:
            rd = breads(n + 1)
            if grp == 1:
                ar = areads(h + 1); rd = ar[:4] + rd[:1] + ar[4:] + rd[1:]
        fx = [Item(x) for x in rd]
        if n == 3: fx = [Item(x) for x in cert_post(CB, 19)] + fx
        if n == 21: fx = [Item(cert_check('La_cert', CB, CB + 1))] + fx
        rds = Stream(fx, maxper=1)
        k = 0
        for q, T in enumerate(tiles[grp]):
            for c in range(6):
                dd = V(acc(T, c), 4); w_, x_ = A(AF[h&1] + 4*c, 4), A(BF[grp] + 4*q, 4)
                a(f'{MF} {dd}, {w_ if c < 4 else x_}, {x_ if c < 4 else w_}, {dd if h else 0}')
                k += 1
                S_.gap([rds, dma, pars, bgs], 2 if k < G else 1)
        assert rds.done()
        if n == 19: assert bgs.done(), bgs.left()
    assert dma.done()
    S_.flush(pars)
    a('@wait lg=*')
    stamp(a, 9)
    for T in range(8):
        P = PR + 2 * T; dd = Q + 8 * T
        for k in range(0, 8, 2): a(f'v_pk_fma_f32 {V(dd+k, 2)}, {V(CQ+k, 2)}, {V(P, 2)}, {V(dd+k, 2)} op_sel_hi:[1,0,1]')
        dk = K + 8 * T
        for k in range(0, 8, 2): a(f'v_pk_fma_f32 {V(dk+k, 2)}, {V(CK+k, 2)}, {V(P, 2)}, {V(dk+k, 2)} op_sel_hi:[1,0,1]')
        for k in range(4): a(f'v_cvt_pk_bf16_f32 v{Q+4*T+k}, v{dd+2*k}, v{dd+2*k+1}')
        for k in range(0, 8, 2): a(f'v_pk_mul_f32 {V(dk+k, 2)}, {V(dk+k, 2)}, {V(P, 2)} op_sel:[0,1] op_sel_hi:[1,1]')
        for k in (2, 3): a(f'v_cndmask_b32 v{Q+4*T+k}, 0, v{Q+4*T+k}, s[{sM1}:{sM1+1}]')
        for k in range(4): a(f'v_cvt_pk_bf16_f32 v{K+4*T+k}, v{dk+2*k}, v{dk+2*k+1}')
    def SR(T): return (Q + 32 + 8 * T) if T < 4 else (K + 32 + 8 * (T - 4))
    RB = (2, 54)
    def rread(T):
        for ar in range(2): a(f'ds_read_b128 {V(RB[T&1] + 4*ar, 4)}, v{RA} offset:{512*(T>>2) + 256*ar + 64*(T&3)}', tag=f'R{T}')
    rread(0)
    for T in range(8):
        if T & 3: a(f'{MF} {V(SR(T), 4)}, {V(K + 4*(T-1), 4)}, {V(Q + 4*T, 4)}, {V(MK, 4)}')
        a(f'{MF} {V(SR(T) + 4, 4)}, {V(K + 4*T, 4)}, {V(Q + 4*T, 4)}, {V(MK + 4, 4)}')
        a(f'v_mul_f32 v{PR + 2*T + 1}, {hx(f2u(LOG2E * 28 ** -0.5))}, v{PR + 2*T + 1}')
    for T in range(8):
        if T < 7: rread(T + 1)
        a(f'@wait lg=R{T}')
        b = RB[T & 1]
        for c, base in enumerate((V0, V1)):
            for k in (0, 2): a(f'v_pk_fma_f32 {V(base+4*T+k, 2)}, {V(b+k, 2)}, {V(CV, 2)}, {V(base+4*T+k, 2)} op_sel:[0,{c},0] op_sel_hi:[1,{c},1]')
        for c, base in enumerate((V0, V1)):
            for k in (0, 2): a(f'v_pk_mul_f32 {V(base+4*T+k, 2)}, {V(base+4*T+k, 2)}, {V(b+4+k, 2)}')
        for c, base in enumerate((V0, V1)):
            for k in range(2): a(f'v_cvt_pk_bf16_f32 v{base+2*T+k}, v{base+4*T+2*k}, v{base+4*T+2*k+1}')
    stamp(a, 10)
    MX = 2; TM = 10
    for T in range(8):
        s = SR(T)
        if T & 3: a(f'v_max3_f32 v{MX+T}, v{s}, v{s+1}, v{s+2}\nv_max3_f32 v{MX+T}, v{MX+T}, v{s+3}, v{s+4}\nv_max3_f32 v{MX+T}, v{MX+T}, v{s+5}, v{s+6}\nv_max_f32 v{MX+T}, v{MX+T}, v{s+7}')
        else: a(f'v_max3_f32 v{MX+T}, v{s+4}, v{s+5}, v{s+6}\nv_max_f32 v{MX+T}, v{MX+T}, v{s+7}')
    for b in (0, 2, 4, 6): a(f'v_permlane32_swap_b32 v{MX+b}, v{MX+b+1}')
    for b in (0, 2, 4, 6): a(f'v_max_f32 v{MX+b}, v{MX+b}, v{MX+b+1}')
    for b in (0, 4): a(f'v_permlane16_swap_b32 v{MX+b}, v{MX+b+2}')
    for b in (0, 4): a(f'v_max_f32 v{MX+b}, v{MX+b}, v{MX+b+2}')
    for b in (0, 4): a(f'v_mov_b32 v{MX+b+2}, v{MX+b}')
    for b in (0, 4): a(f'v_permlane16_swap_b32 v{MX+b}, v{MX+b+2}')
    for b in (0, 2, 4, 6): a(f'v_mov_b32 v{MX+b+1}, v{MX+b}')
    for b in (0, 2, 4, 6): a(f'v_permlane32_swap_b32 v{MX+b}, v{MX+b+1}')
    for T in range(8): a(f'v_mul_f32 v{PR + 2*T}, v{MX+T}, v{PR + 2*T + 1}')
    ONE = 54; PF = Q; OT = K
    for k in range(4): a(f'v_mov_b32 v{ONE+k}, 0x3f803f80')
    def soft(T):
        s = SR(T); P = PR + 2 * T
        lo = 0 if T & 3 else 4
        for k in range(lo, 8, 2): a(f'v_pk_fma_f32 {V(s+k, 2)}, {V(s+k, 2)}, {V(P, 2)}, {V(P, 2)} op_sel:[0,1,0] op_sel_hi:[1,1,0] neg_lo:[0,0,1] neg_hi:[0,0,1]')
        return [f'v_exp_f32 v{s+k}, v{s+k}' for k in range(lo, 8)]
    def pack(T):
        s = SR(T)
        if T & 3:
            for k in range(4): a(f'v_cvt_pk_bf16_f32 v{PF+4*T+k}, v{s+2*k}, v{s+2*k+1}')
        else:
            for k in range(2): a(f'v_cvt_pk_bf16_f32 v{PF+4*T+k}, v{s+4+2*k}, v{s+5+2*k}')
            a(f'v_mov_b32 v{PF+4*T+2}, 0\nv_mov_b32 v{PF+4*T+3}, 0')
    def OB(T): return (OT, OT + 12, V0 + 16)[T % 3]
    def pv(T):
        v = 2 * (T - 1) if T & 3 else 2 * T
        o = OB(T)
        return [f'{MF} {V(o + 8, 4)}, {V(ONE, 4)}, {V(PF + 4*T, 4)}, 0', f'{MF} {V(o, 4)}, {V(V0 + v, 4)}, {V(PF + 4*T, 4)}, 0', f'{MF} {V(o + 4, 4)}, {V(V1 + v, 4)}, {V(PF + 4*T, 4)}, 0']
    def fin(T):
        o = OB(T); R = V1 + 16 + 4 * (T & 1)
        a(f'v_rcp_f32 v{o+8}, v{o+8}')
        for k in range(0, 8, 2): a(f'v_pk_mul_f32 {V(o+k, 2)}, {V(o+k, 2)}, {V(o+8, 2)} op_sel_hi:[1,0]')
        for k in range(4): a(f'v_cvt_pk_bf16_f32 v{R+k}, v{o+2*k}, v{o+2*k+1}')
        a(f'buffer_store_dwordx4 {V(R, 4)}, v{OA+T}, s[{SH}:{SH+3}], s{sST} offen sc1', tag='o')
    for T in range(9):
        ex = soft(T) if T < 8 else []
        mm = pv(T - 1) if T else []
        for x in mm:
            a(x)
            if ex: a(ex.pop(0))
        em(a, ex)
        if T < 8: pack(T)
        if T: fin(T - 1)
    stamp(a, 11)
    a(f's_waitcnt vmcnt(0)\nv_mov_b32 v2, 1\nbuffer_store_byte v2, v1, s[{SH}:{SH+3}], s{sFL} offen sc1')

def desc(name):
    return f""".amdhsa_kernel {name}
  .amdhsa_next_free_vgpr 512
  .amdhsa_next_free_sgpr 102
  .amdhsa_accum_offset 256
  .amdhsa_group_segment_fixed_size 0
  .amdhsa_kernarg_size 80
  .amdhsa_user_sgpr_count 2
  .amdhsa_user_sgpr_kernarg_segment_ptr 1
  .amdhsa_system_sgpr_workgroup_id_x 1
  .amdhsa_float_denorm_mode_32 3
.end_amdhsa_kernel
"""

def build():
    del SLOW[:]
    hdr = open('cdna_kernels/' + NAME + '.s.ref').read().split('; Override launch')[0]
    k1 = NAME + '_kernel'
    out = hdr + '; @launch grid=(256,1,1) block=(256,1,1) lds=163840\n.amdgcn_target "amdgcn-amd-amdhsa--gfx950"\n.text\n'
    a = Asm()
    a.raw(f'.globl {k1}\n.p2align 8\n.type {k1},@function\n{k1}:')
    a('s_cmp_ge_u32 s2, 256\ns_cbranch_scc1 L_done')
    stamp(a, 0); stamp(a, 1, True)
    a('s_load_dwordx16 s[4:19], s[0:1], 0\ns_load_dwordx4 s[20:23], s[0:1], 64')
    a(f'v_lshrrev_b32 v1, 6, v0\nv_and_b32 v0, 63, v0\nv_readfirstlane_b32 s{sW}, v1')
    per = 12
    a(f's_getpc_b64 s[{sFH}:{sFH+1}]\ns_lshr_b32 s{T0}, s2, 3\ns_mul_i32 s{T1}, s{T0}, {per*128}')
    a(f'v_min_u32 v55, {per-1}, v0\nv_lshlrev_b32 v55, 7, v55\nv_add_u32 v55, s{T1}, v55')
    a(f'global_load_dword v19, v55, s[{sFH}:{sFH+1}]', tag='pf')
    stats_addr(a); rot_init(a)
    a(f's_bfe_u32 s{T1}, s2, 0x10002\ns_and_b32 s{T2}, s2, 3')
    a(f's_cmp_ge_u32 s{T0}, 23\ns_cbranch_scc1 L_attn')
    a(f's_mul_i32 s{T2}, s{T2}, 23\ns_add_u32 s{T0}, s{T0}, s{T2}\ns_cmp_ge_u32 s{T0}, 91\ns_cbranch_scc1 L_idle')
    ffn(a); dump(a)
    a.label('L_done'); a('s_endpgm')
    n1 = a.count
    a.label('L_attn'); a.vm = ['pf']; a.lg = []; a.waited = set()
    attn(a); dump(a); a('s_endpgm')
    n2 = a.count
    a.label('L_idle'); a.vm = ['pf']; a.lg = []; a.waited = set()
    a('s_waitcnt lgkmcnt(0)')
    em(a, srd(SX, 4, 2048 * 896)); stats_load(a)
    em(a, srd(SH, 22, WS_USED) + srd(SDB, 20, 256))
    stats_do(a, False)
    a('s_waitcnt vmcnt(0)\ns_barrier'); em(a, sum(cert_post(2, 3), [])); a('s_endpgm')
    for s in SLOW: a.raw(s)
    a.raw('.fill 4096, 4, 0xbf810000')
    sys.stderr.write(f'instr: ffn {n1} attn {n2-n1}; nops {a.nops}\n')
    return out + a.text() + '.section .rodata,"a"\n.p2align 6\n' + desc(k1)

if __name__ == '__main__':
    args = sys.argv[1:]
    if '-p' in args: PROF = True; args.remove('-p')
    for x in [x for x in args if '=' in x]:
        k, v = x.split('='); args.remove(x)
        OPT[k] = type(OPT[k])(v) if not isinstance(OPT[k], bool) else v == '1'
    roles = [decode_py(b) for b in range(256)]
    F = [r for r in roles if r and r[0] == 'F']; Aa = [r for r in roles if r and r[0] == 'A']
    assert sorted((r[1], r[2]) for r in F) == [(r, c) for r in range(13) for c in range(14)]
    assert sorted((r[3], r[4]) for r in F) == [(t, c) for t in range(26) for c in range(7)]
    assert sorted((r[1], r[2]) for r in Aa) == [(x, g) for x in range(18) for g in range(4)]
    assert all(((t * 26547) >> 22) == t // 158 for t in range(2200))
    assert all(((t * 4682) >> 16) == t // 14 for t in range(140))
    for r in range(13):
        lo = min(((max(158 * r, 14) - 14) * 580) >> 16, 15)
        need = {0 if tk < 127 else (tk - 14) // 113 for tk in range(158 * r, min(158 * r + 158, 2048))}
        assert need <= {lo, lo + 1, lo + 2}, (r, lo, need)
    open(args[0] if args else 'cdna_kernels/' + NAME + '.s', 'w').write(build())
```

```python
import sys, struct
from asmlib import *

NAME = "parallel_sum__sliding_local_dilated__swiglu_ffn__prompt"
LOG2E = 1.4426950408889634
def f2u(x): return struct.unpack('<I', struct.pack('<f', x))[0]
def hx(x): return f'0x{x & 0xffffffff:08x}'

OPT = dict(rot='none', rate=0.22, rot2=True, sleep=3, tc=4)

SX, SG, SU, SH, SD, SO, SOUT, SDB = 24, 28, 32, 36, 40, 44, 48, 52
sR, sC, sTH, sCT, sW = 56, 57, 58, 59, 60
T0, T1, T2, T3 = 61, 62, 63, 64
sMX, sMW, sSO, sJ, sWO, sST, sSPIN = 65, 66, 67, 68, 69, 70, 71
sPL = 72
sFH, sNO = 76, 78
sM0, sM1 = 80, 82
sRT = 4
sFL = 3

TH_BYTES = 5 * 72 * 1024
FH, STATS, WS_USED = 0x930000, 0x932000, 0x940000
OOB = 0x7ffffff0
MF = 'v_mfma_f32_16x16x32_bf16'

PROF = False
sP = 86
def stamp(a, i, real=False):
    if not PROF: return
    a.raw(f'    s_mem{"real" if real else ""}time s[84:85]\n    s_waitcnt lgkmcnt(0)\n    s_mov_b32 s{sP+i}, s84')
    a.lg = []
def dump(a):
    if not PROF: return
    a('s_waitcnt vmcnt(0)')
    stamp(a, 14); stamp(a, 15, True)
    a(f's_mov_b32 s{SH+2}, 0x2000000')
    a(f's_lshl_b32 s{T0}, s2, 2\ns_add_u32 s{T0}, s{T0}, s{sW}\ns_lshl_b32 s{T0}, s{T0}, 6\ns_add_u32 s{T0}, s{T0}, 0x1000000')
    for i in range(16): a(f'v_mov_b32 v{4+i}, s{sP+i}')
    a('v_mov_b32 v2, 0\ns_mov_b64 exec, 1')
    for i in range(4): a(f'buffer_store_dwordx4 v[{4+4*i}:{7+4*i}], v2, s[{SH}:{SH+3}], s{T0} offen offset:{16*i}')

def srd(dst, ptr, nbytes, back=0):
    if back:
        return [f's_sub_u32 s{dst}, s{ptr}, {back}', f's_subb_u32 s{dst+1}, s{ptr+1}, 0', f's_mov_b32 s{dst+2}, {nbytes+back}', f's_mov_b32 s{dst+3}, 0x20000']
    return [f's_mov_b64 s[{dst}:{dst+1}], s[{ptr}:{ptr+1}]', f's_mov_b32 s{dst+2}, {nbytes}', f's_mov_b32 s{dst+3}, 0x20000']
def em(a, l):
    for x in l: a(x)

SLOW = []
def vec_check(name, loads, regs):
    def test():
        o = [f'v_cmp_eq_u32 vcc, 0, v{regs[0]}']
        for r in regs[1:]: o += [f'v_cmp_eq_u32 s[{sM0}:{sM0+1}], 0, v{r}', 's_nop 1', f's_or_b64 vcc, vcc, s[{sM0}:{sM0+1}]']
        return o + ['s_nop 4']
    nl = '\n    '
    SLOW.append(f"""{name}:
    s_mov_b32 s{sSPIN}, 0
{name}_l:
    s_sleep 4
    {nl.join(loads)}
    s_add_u32 s{sSPIN}, s{sSPIN}, 1
    s_waitcnt vmcnt(0)
    {nl.join(test())}
    s_cbranch_vccz {name}_r
    s_cmp_lt_u32 s{sSPIN}, 0x40000
    s_cbranch_scc1 {name}_l
    s_branch {name}_r""")
    return test() + [f's_cbranch_vccnz {name}', f'{name}_r:']
def poll_issue(): return f's_load_dword s{sPL}, s[{sFH}:{sFH+1}], 0 glc'
def poll_check(name, field, want):
    t = ['s_waitcnt lgkmcnt(0)', f's_bfe_u32 s{sPL}, s{sPL}, {hx(0x80000 + 8*field)}', f's_cmp_eq_u32 s{sPL}, {want}']
    nl = '\n    '
    SLOW.append(f"""{name}:
    s_mov_b32 s{sSPIN}, 0
{name}_l:
    s_sleep {OPT['sleep']}
    {poll_issue()}
    s_add_u32 s{sSPIN}, s{sSPIN}, 1
    {nl.join(t)}
    s_cbranch_scc1 {name}_r
    s_cmp_lt_u32 s{sSPIN}, 0x40000
    s_cbranch_scc1 {name}_l
    s_branch {name}_r""")
    return t[:-1] + [[t[-1], f's_cbranch_scc0 {name}', f'{name}_r:']]

def decode_py(b):
    i, hf, q = b >> 3, (b >> 2) & 1, b & 3
    if i >= 23: return ('A', 9 * hf + i - 23, q)
    f = i + 23 * q
    if f >= 91: return None
    p = 91 * hf + f; th = (p * 9363) >> 16; ct = p - 7 * th
    l1 = 49 - 7 * hf; sec = int(f >= l1); f2 = f - (l1 if sec else 0)
    m, n = (37, 7) if (sec ^ hf) == 0 else (43, 6)
    c = (f2 * m) >> 8; r = f2 - n * c
    return ('F', r + (7 - sec) * hf, c + 7 * sec, th, ct)

ZD, ZT = 38, 46
def stats_addr(a):
    a(f's_lshr_b32 s{T3}, s2, 1\ns_lshl_b32 s{T3}, s{T3}, 2\ns_add_u32 s{T3}, s{T3}, s{sW}\ns_lshl_b32 s{T3}, s{T3}, 2\ns_and_b32 s{sSO}, s2, 1')
    a(f's_add_u32 s{T3}, s{T3}, s{sSO}\ns_mul_i32 s{T3}, s{T3}, 896')
    a(f'v_lshrrev_b32 v{ZT}, 5, v0\nv_and_b32 v{ZT+1}, 31, v0\nv_mul_u32_u24 v{ZT+2}, 1792, v{ZT}\nv_lshl_add_u32 v{ZT+2}, v{ZT+1}, 4, v{ZT+2}')
    a(f'v_cmp_gt_u32 vcc, 28, v{ZT+1}\nv_add_u32 v{ZT+2}, s{T3}, v{ZT+2}\nv_mov_b32 v{ZT+3}, {OOB}\nv_cndmask_b32 v{ZT+2}, v{ZT+3}, v{ZT+2}, vcc')
def stats_load(a):
    a(f'buffer_load_dwordx4 {V(ZD, 4)}, v{ZT+2}, s[{SX}:{SX+3}], 0 offen', tag='z')
    a(f'buffer_load_dwordx4 {V(ZD+4, 4)}, v{ZT+2}, s[{SX}:{SX+3}], 0 offen offset:448', tag='z')
ZL = 163840 - 128
def stats_do(a):
    s, q, lo, hi = ZT + 4, ZT + 5, ZT + 6, ZT + 7
    a(f'v_and_b32 v{ZT+2}, 1, v0\nv_cmp_eq_u32 s[{sM0}:{sM0+1}], 1, v{ZT+2}\nv_lshlrev_b32 v{ZT+2}, 5, v{ZT+2}\nv_lshl_add_u32 v{ZT+2}, v{ZT}, 2, v{ZT+2}')
    a(f'v_bfe_u32 v{ZT+1}, v0, 4, 1\nv_lshlrev_b32 v{ZT+1}, 6, v{ZT+1}\nv_sub_u32 v{ZT+2}, v{ZT+2}, v{ZT+1}\ns_lshl_b32 s{T0}, s{sW}, 3\ns_add_u32 s{T0}, s{T0}, {ZL + 64}')
    a(f'v_cmp_eq_u32 vcc, 0, v0\nv_add_u32 v{ZT+2}, s{T0}, v{ZT+2}\nv_mov_b32 v{ZT}, 0\nv_cndmask_b32 v1, v{ZT+3}, v{ZT}, vcc')
    a('@wait vm=z')
    for k in range(8):
        r = ZD + k
        a(f'v_lshlrev_b32 v{lo}, 16, v{r}\nv_and_b32 v{hi}, 0xffff0000, v{r}')
        if k == 0: a(f'v_add_f32 v{s}, v{lo}, v{hi}\nv_mul_f32 v{q}, v{lo}, v{lo}\nv_fmac_f32 v{q}, v{hi}, v{hi}')
        else: a(f'v_add_f32 v{s}, v{s}, v{lo}\nv_fmac_f32 v{q}, v{lo}, v{lo}\nv_add_f32 v{s}, v{s}, v{hi}\nv_fmac_f32 v{q}, v{hi}, v{hi}')
    for ctl in ('quad_perm:[1,0,3,2] row_mask:0xf', 'quad_perm:[2,3,0,1] row_mask:0xf', 'row_half_mirror row_mask:0xf', 'row_mirror row_mask:0xf', 'row_bcast:15 row_mask:0xa'):
        for r in (s, q): a(f'v_add_f32_dpp v{r}, v{r}, v{r} {ctl} bank_mask:0xf')
    a(f'v_mul_f32 v{s}, {hx(f2u(1/448))}, v{s}\nv_mul_f32 v{q}, {hx(f2u(1/448))}, v{q}\nv_fma_f32 v{q}, -v{s}, v{s}, v{q}\nv_max_f32 v{q}, 0, v{q}')
    a(f'v_cvt_pk_bf16_f32 v{s}, -v{s}, v{q}\nv_and_b32 v{q}, 0xffff0000, v{s}\nv_lshlrev_b32 v{s}, 16, v{s}')
    a(f'v_add_f32 v{q}, {hx(f2u(1e-5))}, v{q}\nv_cvt_pk_bf16_f32 v{q}, v{q}, v{q}\nv_and_b32 v{q}, 0xffff0000, v{q}\nv_sqrt_f32 v{q}, v{q}')
    a(f'v_cvt_pk_bf16_f32 v{q}, v{q}, v{q}\nv_and_b32 v{q}, 0xffff0000, v{q}\nv_rcp_f32 v{q}, v{q}')
    a(f'v_cndmask_b32 v{s}, v{s}, v{q}, s[{sM0}:{sM0+1}]\nv_or_b32 v{s}, 1, v{s}')
    a(f'ds_write_b32 v{ZT+2}, v{s}')
def cert_load(v): return f'buffer_load_dword v{v}, off, s[{SDB}:{SDB+3}], 0 sc1'
def stats_prep(vd, va):
    return [f'v_and_b32 v{va}, 3, v0', f'v_lshlrev_b32 v{va}, 4, v{va}', f'v_add_u32 v{va}, {ZL}, v{va}', f'ds_read_b128 {V(vd, 4)}, v{va}',
            f's_lshl_b32 s{T0}, s2, 6', f's_add_u32 s{T0}, s{T0}, {STATS - ZL}', [f's_cmp_eq_u32 s{sW}, 0', f's_cselect_b32 s{T0}, s{T0}, {OOB}'],
            f'v_add_u32 v{va}, s{T0}, v{va}', f'v_cmp_gt_u32 vcc, 4, v0', f'v_cndmask_b32 v{va}, v1, v{va}, vcc']
def stats_post(vd, va): return f'buffer_store_dwordx4 {V(vd, 4)}, v{va}, s[{SH}:{SH+3}], 0 offen sc1'
def sync_stream(pfx, G, src, loads, regs, writes, t_load, t_check):
    C, D = ZD + 5, ZD
    o = [Item(x) for x in stats_prep(D, D + 4)]
    o.append(Item(cert_load(C), tag='cert', t0=OPT['tc'] * G))
    o.append(Item(['@wait vm=cert'] + vec_check(pfx + '_cert', [cert_load(C)], [C]), t0=(OPT['tc'] + 4) * G))
    o.append(Item(stats_post(D, D + 4)))
    o += [Item(x) for x in src]
    o += [Item(x, tag='par', t0=t_load * G) for x in loads]
    o.append(Item(['@wait vm=par'] + vec_check(pfx + '_par', loads, regs), t0=t_check * G))
    o += [Item(x) for x in writes]
    return Stream(o)
def stats_src(vd, vt):
    return [f'v_min_u32 v{vd}, 1023, v{vd}', f'v_and_b32 v{vt}, 7, v{vd}', f'v_lshrrev_b32 v{vd}, 3, v{vd}', f'v_lshlrev_b32 v{vd}, 7, v{vd}', f'v_lshl_add_u32 v{vd}, v{vt}, 2, v{vd}']
def rot_init(a):
    r = OPT['rot']
    if r == 'none': a(f's_mov_b32 s{sJ}, 0')
    elif r == 'xcd': a(f's_and_b32 s{sJ}, s2, 7\ns_min_u32 s{sJ}, s{sJ}, 6\ns_lshl_b32 s{sJ}, s{sJ}, 7')
    elif r == 'hf': a(f's_bfe_u32 s{sJ}, s2, 0x10002\ns_mul_i32 s{sJ}, s{sJ}, {3*128}')
    elif r == 'wg': a(f's_mul_i32 s{sJ}, s2, 9363\ns_lshr_b32 s{sJ}, s{sJ}, 16\ns_mul_i32 s{sJ}, s{sJ}, 7\ns_sub_u32 s{sJ}, s2, s{sJ}\ns_lshl_b32 s{sJ}, s{sJ}, 7')
    elif r == 'i2': a(f's_bfe_u32 s{sJ}, s2, 0x10003\ns_mul_i32 s{sJ}, s{sJ}, {3*128}')
def rot_next(mul):
    return [f's_add_u32 s{sJ}, s{sJ}, 128', [f's_cmp_eq_u32 s{sJ}, 896', f's_cselect_b32 s{sJ}, 0, s{sJ}'], f's_mul_i32 s{sWO}, s{sJ}, {mul}']

def x_read_addr(a, XA, XB, t, octet_stride):
    a(f'v_and_b32 v{t}, 7, v0\nv_bfe_u32 v{t+1}, v0, 3, 1\nv_lshrrev_b32 v{t+2}, 4, v0\nv_bfe_u32 v{t+3}, v0, 1, 3')
    a(f'v_xor_b32 v{t+2}, v{t+2}, v{t+3}\nv_lshlrev_b32 v{t+2}, 4, v{t+2}\nv_lshl_add_u32 v{t+2}, v{t}, 7, v{t+2}')
    a(f'v_mul_u32_u24 v{t+1}, {octet_stride}, v{t+1}\nv_add_u32 v{XA}, v{t+1}, v{t+2}\nv_xor_b32 v{XA+1}, 64, v{XA}')
    a(f'v_and_b32 v{t+1}, 15, v0\nv_cmp_eq_u32 vcc, 15, v{t+1}\nv_mov_b32 v{t+3}, 0x100\nv_lshlrev_b32 v{t}, 4, v{t}\nv_cndmask_b32 v{t+3}, 0, v{t+3}, vcc')
    a(f'v_add_u32 v{XB}, v{XA}, v{t+3}\nv_add_u32 v{XB+1}, v{XA+1}, v{t+3}')
    for k in range(4): a(f'v_mov_b32 v{t+2+k}, 0x3f803f80')

FXS = 162 * 128; FW0 = 3 * FXS; FPAR = FW0 + 3 * 32768
assert FPAR + 2048 <= 163840
def ffn(a):
    DV, RX, RW, RH, HV, PA = 2, 6, 10, 14, 18, 19
    CB = 20
    XV, WV, XA, XB, WA = 22, 27, 28, 30, 32
    E, O = 22, 30
    CS = 38; PR = 56; t = 56
    ACC = 96
    BF = (184, 204); AF = (224, 240)
    a(f's_mul_i32 s{sTH}, s{T1}, 91\ns_add_u32 s{sTH}, s{sTH}, s{T0}')
    a(f's_mul_i32 s{T2}, s{T1}, 7\ns_sub_u32 s{T2}, 49, s{T2}')
    a(f's_cmp_ge_u32 s{T0}, s{T2}\ns_cselect_b32 s{T3}, 7, 0\ns_cselect_b32 s{T2}, s{T2}, 0\ns_cselect_b32 s{sCT}, 6, 7\ns_cselect_b32 s{sMX}, 1, 0\ns_sub_u32 s{T0}, s{T0}, s{T2}')
    a(f's_cmp_eq_u32 s{sMX}, s{T1}\ns_cselect_b32 s{sR}, 37, 43\ns_cselect_b32 s{T2}, 7, 6')
    a(f's_mul_i32 s{sC}, s{T0}, s{sR}\ns_lshr_b32 s{sC}, s{sC}, 8\ns_mul_i32 s{T2}, s{T2}, s{sC}\ns_sub_u32 s{sR}, s{T0}, s{T2}')
    a(f's_add_u32 s{sC}, s{sC}, s{T3}\ns_mul_i32 s{sCT}, s{sCT}, s{T1}\ns_add_u32 s{sR}, s{sR}, s{sCT}')
    a(f's_and_b32 s{T0}, s{sW}, 1\ns_lshr_b32 s{T1}, s{sW}, 1\ns_mul_i32 s{T2}, s{sR}, 158\ns_lshl_b32 s{T3}, s{T1}, 4\ns_add_u32 s{T2}, s{T2}, s{T3}')
    a(f's_add_u32 s{T2}, s{T2}, s{T0}\ns_mul_i32 s{T2}, s{T2}, 896\ns_lshl_b32 s{T0}, s{T0}, 2')
    a(f'v_lshrrev_b32 v{t}, 3, v0\nv_and_b32 v{t+1}, 7, v0\nv_lshrrev_b32 v{t+2}, 4, v0\nv_xor_b32 v{t+1}, s{T0}, v{t+1}\nv_xor_b32 v{t+1}, v{t+1}, v{t+2}')
    a(f'v_mul_u32_u24 v{t}, 1792, v{t}\nv_lshl_add_u32 v{t}, v{t+1}, 4, v{t}\nv_add_u32 v{XV}, s{T2}, v{t}')
    for i in range(1, 5): a(f'v_add_u32 v{XV+i}, {i*28672 - (i*1024 if i < 4 else 0)}, v{XV}')
    a(f'v_and_b32 v{t+1}, 15, v0\nv_lshl_add_u32 v{t}, v{t+2}, 1, s{T1}\nv_lshlrev_b32 v{t}, 1, v{t}\nv_xor_b32 v{t+1}, v{t+1}, v{t}')
    a(f's_mul_i32 s{T0}, s{sW}, {4*3584}\ns_lshl_b32 s{T1}, s{sC}, 8\ns_add_u32 s{T0}, s{T0}, s{T1}')
    a(f'v_mul_u32_u24 v{t+2}, 3584, v{t+2}\nv_lshl_add_u32 v{t+2}, v{t+1}, 4, v{t+2}\nv_add_u32 v{WV}, s{T0}, v{t+2}')
    a(f's_mul_i32 s{sMX}, s{sW}, 5120\ns_lshl_b32 s{sMW}, s{sW}, 13\ns_add_u32 s{sMW}, s{sMW}, {FW0}\ns_mul_i32 s{sWO}, s{sJ}, 1792')
    a('s_waitcnt lgkmcnt(0)')
    stamp(a, 2)
    em(a, srd(SX, 4, 2048 * 896)); stats_load(a)
    em(a, srd(SG, 12, 448 * 3584) + srd(SU, 14, 448 * 3584, back=1024))
    G = 20
    d = []
    def xd(j, e):
        st = j % 3; o = []
        for i in range(5):
            if i in (0, 4): o.append(Item(f's_add_u32 m0, s{sMX}, {st*FXS + i*1024}', t0=e))
            o.append(Item(f'buffer_load_dwordx4 v{XV+i}, s[{SX}:{SX+3}], s{sJ} offen offset:{(i&3)*1024} lds', tag=f'x{j}', t0=e, paced=True))
        return o
    def wd(j, i, e):
        st = j % 3; o = [Item(f's_add_u32 s{sSO}, s{sWO}, {i*57344 - (i&1)*2048}', t0=e)]
        if i % 2 == 0: o.append(Item(f's_add_u32 m0, s{sMW}, {st*32768 + (i>>1)*4096}', t0=e))
        tg = f'w{j}' + ('a' if (j == 0 and i < 2) else '')
        o.append(Item(f'buffer_load_dwordx4 v{WV}, s[{SG}:{SG+3}], s{sSO} offen offset:{(i&1)*2048} lds', tag=tg, t0=e, paced=True))
        o.append(Item(f'buffer_load_dwordx4 v{WV}, s[{SU}:{SU+3}], s{sSO} offen offset:{(i&1)*2048 + 1024} lds', tag=tg, t0=e, paced=True))
        return o
    d += wd(0, 0, 0) + wd(0, 1, 0) + xd(0, 0) + wd(0, 2, 0) + wd(0, 3, 0)
    for j in range(1, 7):
        e = 0 if j < 3 else (4 * (j - 3) + 3) * G
        d += [Item(x) for x in rot_next(1792)] + xd(j, e)
        for i in range(4): d += wd(j, i, e)
    slots = [(RW, 32768, sMW, 19), (RW, 32768 + 4096, sMW, 19), (RX, FXS, sMX, 19),
             (RH, 0, None, 23), (RH, 4096, None, 23), (RX, 2 * FXS, sMX, 23),
             (RW, 0, sMW, 27), (RW, 4096, sMW, 27), (RX, 0, sMX, 27)]
    kslot = [0, 1, 2, 3, 4, 5, 0, 1, 2, 6, 7, 8, 3, 4, 5, 0, 1, 2]
    WX = 56
    def wfrag(kk, c):
        i = 16 * kk + 4 * c
        return (i, 'a') if i < 256 else (WX + i - 256, 'v')
    def w2d(kk):
        reg, off, base, stp = slots[kslot[kk]]
        prev = [k for k in range(kk) if kslot[k] == kslot[kk]]
        o = []
        if kk < 14: o += [Item(f's_mul_i32 s{sSO}, s{sRT+kk}, 28'), Item(f's_add_u32 s{sSO}, s{sSO}, s{sWO}')]; sr = SD
        else: o += [Item(f's_add_u32 s{sSO}, s{sJ}, {28*(kk-14)*896}')]; sr = SO
        if prev: o.append(Item(f'@wait lg=t{prev[-1]}', after={f't{prev[-1]}': 3}))
        o.append(Item(f's_add_u32 m0, s{base or sMW}, {off + (65536 if base is None else 0)}'))
        for i in range(4):
            o.append(Item(f'buffer_load_dwordx4 v{55 if (kk >= 14 and i == 3) else DV+i}, s[{sr}:{sr+3}], s{sSO} offen offset:{i*1024} lds', tag=f'k{kk}', t0=stp*G, paced=True, name=f'k{kk}' if i == 3 else None))
        return o
    def w2r(kk, lag):
        reg, off, base, stp = slots[kslot[kk]]
        o = [Item(f'@wait vm=k{kk}', after={f'k{kk}': lag})]
        for c in range(4):
            r, k = wfrag(kk, c)
            for jj in range(2):
                o.append(Item(f'ds_read_b64_tr_b16 {V(r + 2*jj, 2, k)}, v{reg+c} offset:{off + jj*2048}', tag=f't{kk}', name=f't{kk}' if (c, jj) == (3, 1) else None))
        return o
    d += [Item(f's_mul_i32 s{sWO}, s{sW}, {448*896}'), Item(f's_mul_i32 s{sJ}, s{sW}, {112*896}')]
    for kk in range(18): d += w2d(kk)
    dma = Stream(d, rate=OPT['rate'])
    S_ = Sched(a)
    S_.flush(dma, 7)
    em(a, srd(SH, 22, WS_USED) + srd(SDB, 20, 256))
    a(f's_lshl_b32 s{T0}, s{sC}, 2\ns_add_u32 s{T0}, s{T0}, s{sW}\ns_mul_i32 s{T1}, s{T0}, 4682\ns_lshr_b32 s{T1}, s{T1}, 16')
    a(f's_lshl_b32 s{T0}, s{sR}, 2\ns_add_u32 s{T0}, s{T0}, s{T1}\ns_lshl_b32 s{T0}, s{T0}, 7\ns_add_u32 s{sFL}, s{T0}, {FH}')
    x_read_addr(a, XA, XB, t, 5120)
    for st in range(3): a(f'ds_write_b128 v{t}, v[{t+2}:{t+5}] offset:{st*FXS + 161*128}')
    u = t + 6
    a(f'v_bfe_u32 v{u}, v0, 4, 1\nv_bfe_u32 v{u+1}, v0, 2, 2\nv_lshrrev_b32 v{u+2}, 5, v0\nv_and_b32 v{u+3}, 3, v0')
    a(f'v_lshl_add_u32 v{u+4}, v{u+1}, 1, v{u}\ns_lshl_b32 s{T0}, s{sW}, 1\nv_xor_b32 v{u+4}, s{T0}, v{u+4}\nv_lshlrev_b32 v{u+4}, 5, v{u+4}')
    a(f'v_lshl_add_u32 v{u+4}, v{u+3}, 3, v{u+4}\nv_lshl_add_u32 v{u+4}, v{u+1}, 8, v{u+4}\nv_lshl_add_u32 v{u+4}, v{u+2}, 11, v{u+4}')
    a(f'v_lshl_add_u32 v{u+4}, v{u}, 14, v{u+4}\nv_add_u32 v{WA}, {FW0}, v{u+4}\nv_xor_b32 v{WA+1}, 32, v{WA}')
    a(f'v_add_u32 v{WA+2}, 0x10000, v{WA}\nv_add_u32 v{WA+3}, 0x10000, v{WA+1}')
    S_.flush(dma, 2)
    stats_do(a)
    S_.flush(dma, 4)

    tiles = [[(4, 1), (0, 1), (1, 1), (2, 1), (3, 1)], [(T, 0) for T in range(5)]]
    def breads(n):
        j, ks2, grp = n >> 2, (n >> 1) & 1, n & 1
        return [f'ds_read_b128 {A(BF[grp] + 4*k, 4)}, v{(XB if (T, h) == (4, 1) else XA) + ks2} offset:{(j%3)*FXS + (10*h + T)*1024}' for k, (T, h) in enumerate(tiles[grp])]
    def areads(m):
        j, ks2 = m >> 1, m & 1; o = []
        for mat in range(2):
            for uu in range(2):
                for jj in range(2):
                    off = (j % 3) * 32768 + jj * 8192 + ks2 * 4096 + mat * 1024
                    o.append(f'ds_read_b64_tr_b16 {A(AF[m&1] + 8*mat + 4*uu + 2*jj, 2)}, v{WA + uu + (2 if off >= 65536 else 0)} offset:{off & 0xffff}')
        return o
    acc = lambda T, h: ACC + 16 * (2 * T + h)
    stamp(a, 3)
    a('@wait vm=x0,w0a lg=*\ns_barrier')
    stamp(a, 4)
    em(a, areads(0)[:4] + breads(0)[:1] + areads(0)[4:] + breads(0)[1:])
    bg = srd(SD, 16, 1792 * 896) + srd(SO, 8, 448 * 896) + srd(SOUT, 18, 2048 * 896)
    bg += [f's_mul_i32 s{T3}, s{sTH}, 9363', f's_lshr_b32 s{T3}, s{T3}, 16', f's_mul_i32 s{sCT}, s{T3}, 7', f's_sub_u32 s{sCT}, s{sTH}, s{sCT}', f's_mov_b32 s{sTH}, s{T3}']
    if OPT['rot2']:
        bg += [f's_mul_i32 s{T3}, s{sTH}, 5', f's_lshl_b32 s{sRT}, s{sCT}, 1', f's_add_u32 s{T3}, s{T3}, s{sRT}', f's_mul_i32 s{sRT}, s{T3}, 4682', f's_lshr_b32 s{sRT}, s{sRT}, 16',
               f's_mul_i32 s{sRT}, s{sRT}, 14', f's_sub_u32 s{sRT}, s{T3}, s{sRT}', f's_lshl_b32 s{sRT}, s{sRT}, 10']
    else:
        bg += [f's_mov_b32 s{sRT}, 0']
    for k in range(1, 14):
        bg += [f's_add_u32 s{sRT+k}, s{sRT+k-1}, 1024', [f's_cmp_eq_u32 s{sRT+k}, {14*1024}', f's_cselect_b32 s{sRT+k}, 0, s{sRT+k}']]
    bg += [f'v_lshrrev_b32 v{t}, 3, v0', f'v_and_b32 v{t+1}, 7, v0', f'v_lshrrev_b32 v{t+2}, 4, v0', f'v_lshlrev_b32 v{t+2}, 1, v{t+2}',
           f'v_xor_b32 v{t+1}, v{t+1}, v{t+2}', f'v_lshlrev_b32 v{t+1}, 4, v{t+1}', f'v_mul_u32_u24 v{t}, 896, v{t}',
           f's_lshl_b32 s{T3}, s{sCT}, 7', f'v_add3_u32 v{DV}, v{t}, v{t+1}, s{T3}']
    bg += [f'v_add_u32 v{DV+i}, {6144*i}, v{DV}' for i in range(1, 4)]
    bg += [f'v_cmp_gt_u32 s[{sM0}:{sM0+1}], 32, v0', f'v_mov_b32 v55, {OOB}', f'v_cndmask_b32 v55, v55, v{DV+3}, s[{sM0}:{sM0+1}]']
    bg += [f'v_bfe_u32 v{t}, v0, 2, 3', f'v_lshrrev_b32 v{t+1}, 5, v0', f'v_and_b32 v{t+2}, 3, v0', f'v_bfe_u32 v{t+3}, v0, 3, 2',
           f'v_lshlrev_b32 v{t}, 7, v{t}', f'v_lshl_add_u32 v{t}, v{t+1}, 10, v{t}', f'v_lshl_add_u32 v{t}, v{t+2}, 3, v{t}', f'v_lshl_add_u32 v{t}, v{t+3}, 5, v{t}',
           f'v_add_u32 v{RX}, s{sMX}, v{t}', f'v_add_u32 v{RW}, s{sMW}, v{t}']
    for c in range(1, 4): bg += [f'v_xor_b32 v{RX+c}, {32*c}, v{RX}', f'v_xor_b32 v{RW+c}, {32*c}, v{RW}']
    bg += [f'v_add_u32 v{RH+c}, 0x10000, v{RW+c}' for c in range(4)]
    bg += [f'v_lshlrev_b32 v{HV}, 4, v0',
           f'v_and_b32 v{PA}, 7, v0', f'v_bfe_u32 v{t}, v0, 3, 1', f'v_lshlrev_b32 v{PA}, 2, v{PA}', f'v_lshl_add_u32 v{PA}, v{t}, 10, v{PA}', f'v_add_u32 v{PA}, {FPAR}, v{PA}',
           f's_lshl_b32 s{T3}, s{sC}, 2', f's_add_u32 s{T3}, s{T3}, s{sW}', f's_lshl_b32 s{T3}, s{T3}, 10', f's_mul_i32 s{sST}, s{sR}, {2*TH_BYTES}', f's_add_u32 s{sST}, s{sST}, s{T3}',
           f's_lshr_b32 s{T3}, s{sTH}, 1', f's_lshl_b32 s{sFH}, s{T3}, 2', f's_add_u32 s{sFH}, s{sFH}, s{sW}', f's_lshl_b32 s{sFH}, s{sFH}, 7', f's_add_u32 s{sFH}, s{sFH}, {FH}',
           [f's_add_u32 s{sFH}, s22, s{sFH}', f's_addc_u32 s{sFH+1}, s23, 0'],
           f's_mul_i32 s{T3}, s{T3}, 158', f's_add_u32 s{sNO}, s{T3}, {157-14}', f's_min_u32 s{sNO}, s{sNO}, {2047-14}', f's_mul_i32 s{sNO}, s{sNO}, 580', f's_lshr_b32 s{sNO}, s{sNO}, 16',
           f's_max_u32 s{T3}, s{T3}, 14', f's_sub_u32 s{T3}, s{T3}, 14', f's_mul_i32 s{T3}, s{T3}, 580', f's_lshr_b32 s{T3}, s{T3}, 16',
           f's_sub_u32 s{sNO}, s{sNO}, s{T3}', f's_add_u32 s{sNO}, s{sNO}, 1', f's_lshl_b32 s{sNO}, s{sNO}, 2']
    z = ZD + 6
    src = [f's_mul_i32 s{T0}, s{sR}, 79', f'v_add_u32 v{z}, s{T0}, v0', f'v_min_u32 v{z+1}, 15, v0', f'v_add3_u32 v{z+1}, v{z+1}, s{T0}, 64']
    src += stats_src(z, z + 2) + stats_src(z + 1, z + 2)
    src += [f's_and_b32 s{T0}, s{sW}, 1', f's_lshr_b32 s{T2}, s{sW}, 1', f's_lshl_b32 s{T0}, s{T0}, 1', f's_add_u32 s{T0}, s{T0}, s{T2}', f's_lshl_b32 s{T1}, s{T0}, 5',
            f's_add_u32 s{T1}, s{T1}, {STATS}', f's_lshl_b32 s{T0}, s{T0}, 9', f's_add_u32 s{T0}, s{T0}, {FPAR}', f'v_lshl_add_u32 v{z+2}, v0, 2, s{T0}']
    sy = sync_stream('Lf', G, src, [f'buffer_load_dword v{z+3+i}, v{z+i}, s[{SH}:{SH+3}], s{T1} offen sc1' for i in range(2)], [z + 3, z + 4],
                     [f'ds_write_b32 v{z+2}, v{z+3+i} offset:{256*i}' for i in range(2)], 18, 22)
    bgs = Stream([Item(x) for x in bg])
    late = []
    NT_SHADOW = 6
    for kk in range(NT_SHADOW): late += w2r(kk, 40)
    trs = Stream(late)
    par = []
    for T in range(5):
        for h in (1, 0):
            P = PR + 4 * (2 * T + h)
            par.append(Item(f'ds_read2_b32 {V(P, 2)}, v{PA} offset0:{16*T + 8*h} offset1:{128 + 16*T + 8*h}', t0=23*G, tag='pr'))
    par.append(Item('@wait lg=pr', t0=25*G))
    for T in range(5):
        for h in (1, 0):
            P = PR + 4 * (2 * T + h)
            par += [Item(f'v_mul_f32 v{P+2}, {hx(f2u(-LOG2E))}, v{P+1}', t0=25*G), Item(f'v_mul_f32 v{P+1}, v{P+1}, v{P+1}'), Item(f'v_rcp_f32 v{P+1}, v{P+1}')]
    par += [Item(f'v_mov_b32_dpp v{CS+k}, v{acc(4, 1)+k} row_newbcast:15 row_mask:0xf bank_mask:0xf', t0=26*G + 8) for k in range(16)]
    pars = Stream(par)
    for n in range(28):
        j, m, grp = n >> 2, n >> 1, n & 1
        if n == 1: a('@wait vm=w0 lg=*\ns_barrier')
        elif n & 3 == 3:
            if n == 23: assert sy.done()
            a(f'@wait vm=x{j+1},w{j+1} lg=*\ns_barrier')
        else: a('s_waitcnt lgkmcnt(0)')
        if n in (3, 11, 19, 27): stamp(a, 5 + (n >> 3))
        rd = []
        if n < 27:
            rd = breads(n + 1)
            if grp == 1:
                ar = areads(m + 1); rd = ar[:4] + rd[:1] + ar[4:] + rd[1:]
        fx = [Item(x) for x in rd]
        rds = Stream(fx, maxper=1)
        k = 0
        for q, (T, h) in enumerate(tiles[grp]):
            for c in range(4):
                dd = V(acc(T, h) + 4 * c, 4)
                a(f'{MF} {dd}, {A(AF[m&1] + 4*c, 4)}, {A(BF[grp] + 4*q, 4)}, {dd if m else 0}')
                k += 1
                S_.gap([rds, dma, sy, pars, trs, bgs], 2 if k < G else 1)
        assert rds.done()
        if n == 13: assert bgs.done(), bgs.left()
    S_.flush(pars)
    stamp(a, 9)
    trs2 = Stream(trs.items[trs.i:] + sum((w2r(kk, 40) for kk in range(NT_SHADOW, 9)), []))
    dma.rate = 0.2
    FV = CB
    def post(f): return [f'v_mov_b32 v{FV}, {1 << 8*f}', f'buffer_atomic_add v{FV}, v1, s[{SH}:{SH+3}], s{sFL} offen sc1']
    for T in range(5):
        if T == 3:
            a('@wait vm=h0'); em(a, post(0))
        for h in (1, 0):
            P = PR + 4 * (2 * T + h); dd = acc(T, h); OO = O + 4 * h
            ops = []
            for k in range(0, 16, 2): ops.append(f'v_pk_fma_f32 {V(dd+k, 2)}, {V(CS+k, 2)}, {V(P, 2)}, {V(dd+k, 2)} op_sel_hi:[1,0,1]')
            for k in range(0, 8, 2): ops.append(f'v_pk_mul_f32 {V(E+k, 2)}, {V(dd+k, 2)}, {V(P+2, 2)} op_sel_hi:[1,0]')
            for k in range(8): ops.append(f'v_exp_f32 v{E+k}, v{E+k}')
            for k in range(0, 8, 2): ops.append(f'v_pk_mul_f32 {V(dd+k, 2)}, {V(dd+k, 2)}, {V(dd+8+k, 2)}')
            for k in range(0, 8, 2): ops.append(f'v_pk_fma_f32 {V(E+k, 2)}, {V(E+k, 2)}, {V(P, 2)}, {V(P, 2)} op_sel:[0,1,1] op_sel_hi:[1,1,1]')
            for k in range(8): ops.append(f'v_rcp_f32 v{E+k}, v{E+k}')
            for k in range(0, 8, 2): ops.append(f'v_pk_mul_f32 {V(dd+k, 2)}, {V(dd+k, 2)}, {V(E+k, 2)}')
            for k in range(4): ops.append(f'v_cvt_pk_bf16_f32 v{OO+k}, v{dd+2*k}, v{dd+2*k+1}')
            acc_c = 0
            for x in ops:
                a(x); acc_c += cost(x)
                if acc_c >= 4:
                    acc_c -= 4; S_.gap([dma, trs2], 1)
            a(f's_add_u32 s{T3}, s{sST}, {h*TH_BYTES + T*72*1024}')
            a(f'buffer_store_dwordx4 {V(OO, 4)}, v{HV}, s[{SH}:{SH+3}], s{T3} offen sc1', tag=f'h{T}')
            if (T, h) == (4, 1):
                S_.flush(trs2); a('s_waitcnt lgkmcnt(0)'); a(poll_issue())
    stamp(a, 10)
    print('after epilogue: dma left', dma.left(), file=sys.stderr)
    a('@wait vm=h2'); em(a, post(1))
    S_.flush(dma)
    ACC2, HB, NHB, RD = 96, 176, 12, 224
    XO, XR, WRA, RDA, t = 22, 28, 38, 46, 48
    hl = [(T, kk) for T in range(5) for kk in range(14)] + [(T, kk) for T in range(5) for kk in range(14, 18)]
    HA = 88
    a(f's_mul_i32 s{T0}, s{sTH}, {TH_BYTES}\ns_mul_i32 s{T1}, s{sW}, {14*1024}\ns_add_u32 s{T0}, s{T0}, s{T1}\nv_add_u32 v{HA}, s{T0}, v{HV}')
    for T in range(1, 5): a(f'v_add_u32 v{HA+T}, {T*72*1024}, v{HA}')
    a(f's_mul_i32 s{T1}, s{sW}, {10*1024}\ns_sub_u32 s{sST}, {56*1024}, s{T1}')
    def hload(i):
        T, kk = hl[i]
        if kk < 14: return f'buffer_load_dwordx4 {V(HB + 4*(i % NHB), 4)}, v{HA+T}, s[{SH}:{SH+3}], s{sRT+kk} offen sc1'
        return f'buffer_load_dwordx4 {V(HB + 4*(i % NHB), 4)}, v{HA+T}, s[{SH}:{SH+3}], s{sST} offen offset:{(kk-14)*1024} sc1'
    for x in poll_check('Lf_p0', 0, 14): em(a, x if isinstance(x, list) else [x])
    LEAD = NHB - 2
    for i in range(LEAD): a(hload(i), tag=f'g{i}')
    S_.flush(Stream(sum((w2r(kk, 0) for kk in range(9, 18)), [])))
    a(f's_lshr_b32 s{T0}, s{sTH}, 1\ns_mul_i32 s{T0}, s{T0}, 158\ns_and_b32 s{T1}, s{sTH}, 1\ns_lshl_b32 s{T1}, s{T1}, 4')
    a(f's_and_b32 s{T2}, s{sW}, 1\ns_lshl_b32 s{T2}, s{T2}, 3\ns_lshr_b32 s{T3}, s{sW}, 1\ns_add_u32 s{T2}, s{T2}, s{T3}\ns_add_u32 s{T1}, s{T1}, s{T2}')
    a(f'v_lshrrev_b32 v{t}, 4, v0\nv_lshl_add_u32 v{t}, v{t}, 1, s{T1}')
    a(f'v_add_u32 v{t+1}, s{T0}, v{t}\nv_mul_u32_u24 v{t+1}, 896, v{t+1}\nv_and_b32 v{t+2}, 15, v0\nv_lshlrev_b32 v{t+2}, 3, v{t+2}')
    a(f's_lshl_b32 s{T0}, s{sCT}, 7\nv_add3_u32 v{XO}, v{t+1}, v{t+2}, s{T0}')
    for T in range(1, 5): a(f'v_add_u32 v{XO+T}, {32*896*T}, v{XO}')
    a(f'v_cmp_gt_u32 vcc, 30, v{t}\nv_mov_b32 v{t+1}, {OOB}\nv_cndmask_b32 v{XO+4}, v{t+1}, v{XO+4}, vcc')
    a(f'v_and_b32 v{t}, 15, v0\nv_lshrrev_b32 v{t+1}, 4, v0\nv_and_b32 v{t+2}, 7, v0\nv_xor_b32 v{t+1}, v{t+1}, v{t+2}')
    a(f'v_lshlrev_b32 v{t+1}, 4, v{t+1}\nv_lshl_add_u32 v{t}, v{t}, 8, v{t+1}\ns_lshl_b32 s{T0}, s{sW}, 12\nv_add_u32 v{WRA}, s{T0}, v{t}')
    for c in range(1, 4): a(f'v_xor_b32 v{WRA+c}, {64*c}, v{WRA}')
    for c in range(4): a(f'v_add_u32 v{WRA+4+c}, 0x10000, v{WRA+c}')
    a(f'v_lshrrev_b32 v{t}, 4, v0\ns_lshl_b32 s{T0}, s{sW}, 2\nv_add_u32 v{t}, s{T0}, v{t}\nv_and_b32 v{t+1}, 7, v{t}\nv_and_b32 v{t+2}, 15, v0')
    a(f'v_xor_b32 v{t+1}, v{t+1}, v{t+2}\nv_lshlrev_b32 v{t+1}, 4, v{t+1}\nv_lshl_add_u32 v{RDA}, v{t}, 8, v{t+1}\nv_add_u32 v{RDA+1}, 0x10000, v{RDA}')
    a('@wait vm=h4 lg=*'); em(a, post(2)); a(poll_issue())
    stamp(a, 11)
    pre = {}
    def guard(first_load, name, field, want, issue_at):
        stp = first_load - LEAD - 1
        if issue_at is not None: pre.setdefault(issue_at, []).append(poll_issue())
        pre.setdefault(stp, []).extend(poll_check(name, field, want))
    guard(14, 'Lf_p1', 1, 14, None)
    guard(42, 'Lf_p2', 2, 14, 42 - LEAD - 9)
    guard(70, 'Lf_p3', 3, f's{sNO}', 70 - LEAD - 9)
    pre.setdefault(20, []).append('s_barrier')
    xr = Stream([Item(f'buffer_load_dwordx2 {V(XR + 2*T, 2)}, v{XO+T}, s[{SX}:{SX+3}], 0 offen', tag='xr', t0=S_.t + 4*(24 + 5*T)) for T in range(5)])
    pend = Stream([])
    for i, (T, kk) in enumerate(hl):
        a(f'@wait vm=g{i}')
        if i == 70: stamp(a, 12)
        fx = Stream(([Item(hload(i + LEAD), tag=f'g{i+LEAD}')] if i + LEAD < len(hl) else []) + [Item(x) for x in pre.get(i, [])])
        for c in range(4):
            r, k = wfrag(kk, c)
            dd = V(ACC2 + 16 * T + 4 * c, 4)
            a(f'{MF} {dd}, {V(r, 4, k)}, {V(HB + 4*(i % NHB), 4)}, {dd if kk else 0}')
            S_.gap([fx, xr] + ([pend] if c == 2 else []), 2 if c < 3 else 1)
        S_.flush(fx)
        if kk == 17:
            assert pend.done()
            pend = Stream([Item(f'ds_write_b128 v{WRA + c + (4 if T == 4 else 0)}, {V(ACC2 + 16*T + 4*c, 4)} offset:{(T & 3)*16384}', tag='pw') for c in range(4)], maxper=1)
    S_.flush(pend)
    a('s_waitcnt lgkmcnt(0)\ns_barrier')
    stamp(a, 13)
    def rd(T):
        for w in range(4): a(f'ds_read_b128 {V(RD + 16*(T&1) + 4*w, 4)}, v{RDA + (T == 4)} offset:{(T & 3)*16384 + w*4096}', tag=f'p{T}')
    rd(0)
    for T in range(5):
        if T < 4: rd(T + 1)
        b = RD + 16 * (T & 1); x = XR + 2 * T; U = t
        a(f'v_lshlrev_b32 v{U}, 16, v{x}\nv_and_b32 v{U+1}, 0xffff0000, v{x}\nv_lshlrev_b32 v{U+2}, 16, v{x+1}\nv_and_b32 v{U+3}, 0xffff0000, v{x+1}')
        a(f'@wait lg=p{T}')
        for w in range(4):
            for k in (0, 2): a(f'v_pk_add_f32 {V(U+k, 2)}, {V(U+k, 2)}, {V(b+4*w+k, 2)}')
        a(f'v_cvt_pk_bf16_f32 v{x}, v{U}, v{U+1}\nv_cvt_pk_bf16_f32 v{x+1}, v{U+2}, v{U+3}')
        a(f'buffer_store_dwordx2 {V(x, 2)}, v{XO+T}, s[{SOUT}:{SOUT+3}], 0 offen')

AX0 = 0; AXS = 130 * 128; AW0 = 3 * AXS; APAR = AW0 + 4 * 24576
def attn(a):
    XV, WV, XA, XB, WA = 2, 4, 7, 9, 11
    PA, RA, CB = 15, 16, 17
    OA = 20
    MK = 28
    CV = 36
    PR = 38
    t = 54
    Q, K, V0, V1 = 64, 128, 192, 224
    BF = (0, 16); AF = (32, 56); CSA = 80
    a(f's_mul_i32 s{sR}, s{T1}, 9\ns_add_u32 s{sR}, s{sR}, s{T0}\ns_sub_u32 s{sR}, s{sR}, 23\ns_mov_b32 s{sC}, s{T2}')
    a(f's_and_b32 s{T0}, s{sW}, 1\ns_lshr_b32 s{T1}, s{sW}, 1\ns_mul_i32 s{T2}, s{sR}, 113\ns_lshl_b32 s{T3}, s{sW}, 4\ns_add_u32 s{T2}, s{T2}, s{T3}')
    a(f's_mul_i32 s{T2}, s{T2}, 896\ns_lshl_b32 s{T0}, s{T0}, 2')
    a(f'v_lshrrev_b32 v{t}, 3, v0\nv_and_b32 v{t+1}, 7, v0\nv_lshrrev_b32 v{t+2}, 4, v0\nv_xor_b32 v{t+1}, s{T0}, v{t+1}\nv_xor_b32 v{t+1}, v{t+1}, v{t+2}')
    a(f'v_mul_u32_u24 v{t}, 1792, v{t}\nv_lshl_add_u32 v{t}, v{t+1}, 4, v{t}\nv_add_u32 v{XV}, s{T2}, v{t}\nv_add_u32 v{XV+1}, {64*896 - 1024}, v{XV}')
    a(f'v_lshl_add_u32 v{t}, v{t+2}, 1, s{T1}\nv_lshlrev_b32 v{t}, 1, v{t}\nv_sub_u32 v{t+1}, v0, v{t}\nv_and_b32 v{t+1}, 15, v{t+1}\nv_min_u32 v{t+1}, 13, v{t+1}')
    a(f's_mul_i32 s{T0}, s{sW}, {4*2688}\ns_mul_i32 s{T1}, s{sC}, 224\ns_add_u32 s{T0}, s{T0}, s{T1}')
    a(f'v_mul_u32_u24 v{t+2}, 2688, v{t+2}\nv_lshl_add_u32 v{t+2}, v{t+1}, 4, v{t+2}\nv_add_u32 v{WV+2}, s{T0}, v{t+2}')
    a(f'v_add_u32 v{WV+1}, 128, v{WV+2}\nv_add_u32 v{WV}, 256, v{WV+2}')
    a(f's_lshl_b32 s{sMX}, s{sW}, 12\ns_mul_i32 s{sMW}, s{sW}, 6144\ns_add_u32 s{sMW}, s{sMW}, {AW0}\ns_mul_i32 s{sWO}, s{sJ}, 1344')
    a('s_waitcnt lgkmcnt(0)')
    stamp(a, 2)
    em(a, srd(SX, 4, 2048 * 896)); stats_load(a)
    em(a, srd(SG, 6, 448 * 2688, back=256))
    G = 24
    def xd(j, e):
        o = []
        for i in range(4):
            if i % 2 == 0: o.append(Item(f's_add_u32 m0, s{sMX}, {(j%3)*AXS + (i>>1)*(2048 - 896)}', t0=e))
            o.append(Item(f'buffer_load_dwordx4 v{XV + (i&1)}, s[{SX}:{SX+3}], s{sJ} offen offset:{(i&1)*1024 + (i>>1)*896} lds', tag=f'x{j}', t0=e, paced=True))
        return o
    def wd(h, e):
        o = []
        for i in range(2):
            o += [Item(f's_add_u32 s{sSO}, s{sWO}, {(32*(h&1) + 16*i) * 2688}', t0=e), Item(f's_add_u32 m0, s{sMW}, {(h%4)*24576 + i*3072}', t0=e)]
            o += [Item(f'buffer_load_dwordx4 v{WV+m}, s[{SG}:{SG+3}], s{sSO} offen offset:{m*1024} lds', tag=f'w{h}', t0=e, paced=True) for m in range(3)]
        return o
    d = wd(0, 0) + xd(0, 0) + wd(1, 0)
    for h in range(2, 14):
        if h % 2 == 0:
            j = h // 2
            d += [Item(x) for x in rot_next(1344)] + xd(j, 0 if j < 3 else (4 * (j - 3) + 3) * G)
        d += wd(h, 0 if h < 4 else (2 * (h - 4) + 1) * G)
    dma = Stream(d, rate=OPT['rate'])
    S_ = Sched(a)
    S_.flush(dma, 6)
    em(a, srd(SH, 22, WS_USED) + srd(SDB, 20, 256))
    x_read_addr(a, XA, XB, t, 4096)
    for st in range(3): a(f'ds_write_b128 v{t}, v[{t+2}:{t+5}] offset:{st*AXS + 129*128}')
    u = 20
    a(f'v_bfe_u32 v{u}, v0, 4, 1\nv_bfe_u32 v{u+1}, v0, 2, 2\nv_lshrrev_b32 v{u+2}, 5, v0\nv_and_b32 v{u+3}, 3, v0')
    a(f'v_lshl_add_u32 v{u+4}, v{u+1}, 1, v{u}\nv_lshl_add_u32 v{u+4}, v{u+4}, 2, v{u+3}\ns_mul_i32 s{T0}, s{sW}, 56\nv_lshl_add_u32 v{u+4}, v{u+4}, 3, s{T0}')
    a(f'v_add_u32 v{u+5}, 32, v{u+4}\nv_and_b32 v{u+4}, 0xff, v{u+4}\nv_and_b32 v{u+5}, 0xff, v{u+5}')
    a(f'v_mul_u32_u24 v{u}, 12288, v{u}\nv_mul_u32_u24 v{u+2}, 3072, v{u+2}\nv_lshl_add_u32 v{u}, v{u+1}, 8, v{u}\nv_add_u32 v{u}, v{u}, v{u+2}\nv_add_u32 v{u}, {AW0}, v{u}')
    a(f'v_add_u32 v{WA}, v{u}, v{u+4}\nv_add_u32 v{WA+1}, v{u}, v{u+5}\nv_add_u32 v{WA+2}, 49152, v{WA}\nv_add_u32 v{WA+3}, 49152, v{WA+1}')
    S_.flush(dma, 2)
    stats_do(a)
    S_.flush(dma, 5)

    tiles = [[7, 4, 5, 6], [0, 1, 2, 3]]
    def breads(n):
        j, ks2, grp = n >> 2, (n >> 1) & 1, n & 1
        return [f'ds_read_b128 {A(BF[grp] + 4*k, 4)}, v{(XB if T == 7 else XA) + ks2} offset:{(j%3)*AXS + (8*(T&1) + (T>>1))*1024}' for k, T in enumerate(tiles[grp])]
    def areads(h):
        o = []
        for mat in range(3):
            for ct in range(2):
                for jj in range(2):
                    off = (h % 4) * 24576 + jj * 6144 + mat * 1024
                    o.append(f'ds_read_b64_tr_b16 {A(AF[h&1] + 8*mat + 4*ct + 2*jj, 2)}, v{WA + ct + (2 if off >= 49152 else 0)} offset:{off % 49152}')
        return o
    def acc(T, c): return (Q + 8*T, Q + 8*T + 4, K + 8*T, K + 8*T + 4, V0 + 4*T, V1 + 4*T)[c]
    stamp(a, 3)
    a('@wait vm=x0,w0 lg=*\ns_barrier')
    stamp(a, 4)
    em(a, areads(0)[:4] + breads(0)[:1] + areads(0)[4:] + breads(0)[1:])
    bg = [f'v_and_b32 v{t}, 15, v0', f'v_lshlrev_b32 v{PA}, 2, v{t}', f'v_add_u32 v{PA}, {APAR}, v{PA}',
          f'v_lshrrev_b32 v{t+1}, 4, v0', f'v_lshlrev_b32 v{RA}, 4, v{t+1}', f'v_add_u32 v{RA}, {APAR}, v{RA}',
          f'v_cmp_gt_u32 s[{sM1}:{sM1+1}], 48, v0',
          f'v_lshlrev_b32 v{t+1}, 2, v{t+1}', f'v_sub_u32 v{t+1}, v{t}, v{t+1}', f'v_mov_b32 v{t+3}, {hx(f2u(-1e30))}']
    for i in range(8):
        bg += [f'v_add_u32 v{t+2}, {(16 if i < 4 else 0) - (i & 3)}, v{t+1}', f'v_cmp_gt_u32 s[{sM0}:{sM0+1}], 8, v{t+2}',
               f'v_cndmask_b32 v{MK+i}, v{t+3}, 0, s[{sM0}:{sM0+1}]']
    kA, kB, kC, kD = 4, 5, 6, 7
    bg += [f's_mul_i32 s{kD}, s{sR}, 113', f's_lshl_b32 s{T3}, s{sC}, 2', f's_add_u32 s{T3}, s{T3}, s{sW}', f's_add_u32 s{T3}, s{T3}, 56', f's_lshl_b32 s{sST}, s{T3}, 10',
           [f's_cmp_eq_u32 s{sR}, 0', f's_cselect_b32 s{T3}, 0, 14'], f's_mov_b32 s{kA}, 26547', f's_mov_b32 s{kB}, {TH_BYTES}', f's_mov_b32 s{kC}, {72*1024}',
           f'v_lshrrev_b32 v{t+6}, 4, v0', f'v_lshlrev_b32 v{t+6}, 8, v{t+6}', f'v_mov_b32 v{t+7}, {OOB}']
    for T in range(8):
        bg += [f'v_lshl_add_u32 v{t+1}, v{t}, 1, {32*(T&3) + (T>>2)}' if 32*(T&3) + (T>>2) <= 64 else [f'v_lshlrev_b32 v{t+1}, 1, v{t}', f'v_add_u32 v{t+1}, {32*(T&3) + (T>>2)}, v{t+1}'],
               f'v_add_u32 v{t+2}, s{kD}, v{t+1}', f'v_mul_u32_u24 v{t+3}, s{kA}, v{t+2}', f'v_lshrrev_b32 v{t+3}, 22, v{t+3}',
               f'v_mul_u32_u24 v{t+4}, 158, v{t+3}', f'v_sub_u32 v{t+2}, v{t+2}, v{t+4}',
               f'v_bfe_u32 v{t+4}, v{t+2}, 4, 1', f'v_lshl_add_u32 v{t+3}, v{t+3}, 1, v{t+4}', f'v_mad_u32_u24 v{t+3}, v{t+3}, s{kB}, v{t+6}',
               f'v_lshrrev_b32 v{t+4}, 5, v{t+2}', f'v_mad_u32_u24 v{t+3}, v{t+4}, s{kC}, v{t+3}',
               f'v_bfe_u32 v{t+4}, v{t+2}, 1, 3', f'v_lshl_add_u32 v{t+3}, v{t+4}, 4, v{t+3}', f'v_and_b32 v{t+4}, 1, v{t+2}', f'v_lshl_add_u32 v{OA+T}, v{t+4}, 7, v{t+3}']
        if T & 3 == 0: bg += [f'v_cmp_le_u32 s[{sM0}:{sM0+1}], s{T3}, v{t+1}', f'v_cndmask_b32 v{OA+T}, v{t+7}, v{OA+T}, s[{sM0}:{sM0+1}]']
        if T == 7: bg += [f'v_cmp_gt_u32 s[{sM0}:{sM0+1}], 15, v{t}', f'v_cndmask_b32 v{OA+T}, v{t+7}, v{OA+T}, s[{sM0}:{sM0+1}]']
    bg += [f's_add_u32 s{T3}, s{T3}, s{kD}', f's_mul_i32 s{T3}, s{T3}, 26547', f's_lshr_b32 s{T3}, s{T3}, 22', f's_add_u32 s{kD}, s{kD}, 126', f's_mul_i32 s{kD}, s{kD}, 26547',
           f's_lshr_b32 s{kD}, s{kD}, 22', f's_sub_u32 s{kD}, s{kD}, s{T3}', f'v_cmp_ge_u32 s[{sM0}:{sM0+1}], s{kD}, v0', f'v_lshlrev_b32 v{CB}, 9, v0',
           f's_lshl_b32 s{T3}, s{T3}, 2', f's_add_u32 s{T3}, s{T3}, s{sC}', f's_lshl_b32 s{T3}, s{T3}, 7', f's_add_u32 s{sFL}, s{T3}, {FH}',
           f'v_cndmask_b32 v{CB}, v{t+7}, v{CB}, s[{sM0}:{sM0+1}]']
    bgs = Stream([Item(x) for x in bg])
    z = ZD + 6
    src = [f's_and_b32 s{T0}, s{sW}, 1', f's_mul_i32 s{T1}, s{sR}, 113', f's_add_u32 s{T1}, s{T1}, s{T0}', f's_lshr_b32 s{T2}, s{T1}, 1', f'v_add_u32 v{z}, s{T2}, v0']
    src += stats_src(z, z + 1)
    src += [f's_and_b32 s{T1}, s{T1}, 1', f's_lshl_b32 s{T1}, s{T1}, 1', f's_lshr_b32 s{T2}, s{sW}, 1', f's_add_u32 s{T1}, s{T1}, s{T2}', f's_lshl_b32 s{T1}, s{T1}, 5',
            f's_add_u32 s{T1}, s{T1}, {STATS}', f's_lshl_b32 s{T0}, s{T0}, 1', f's_add_u32 s{T0}, s{T0}, s{T2}', f's_lshl_b32 s{T0}, s{T0}, 8', f's_add_u32 s{T0}, s{T0}, {APAR}',
            f'v_lshl_add_u32 v{z+1}, v0, 2, s{T0}']
    sy = sync_stream('La', G, src, [f'buffer_load_dword v{z+2}, v{z}, s[{SH}:{SH+3}], s{T1} offen sc1'], [z + 2], [f'ds_write_b32 v{z+1}, v{z+2}'], 20, 24)
    par = [Item(f'ds_read2_b32 {V(PR + 2*T, 2)}, v{PA} offset0:{128*(T>>2) + 16*(T&3)} offset1:{64 + 128*(T>>2) + 16*(T&3)}', t0=25*G) for T in range(8)]
    CQ, CK = 2, 54
    par += [Item(f'v_mov_b32_dpp v{CK+k}, v{K+56+k} row_newbcast:15 row_mask:0xf bank_mask:0xf', t0=26*G + 10) for k in range(8)]
    for c, src in enumerate((V0 + 31, V1 + 31)):
        par += [Item(f'v_mov_b32 v62, v{src}'), Item(f'v_mov_b32 v63, v{src}'), Item('v_permlane32_swap_b32 v62, v63'),
                Item(f'v_mov_b32 v{CV+c}, v63'), Item(f'v_permlane16_swap_b32 v63, v{CV+c}')]
    par += [Item(f'v_mov_b32_dpp v{CQ+k}, v{Q+56+k} row_newbcast:15 row_mask:0xf bank_mask:0xf', t0=27*G) for k in range(8)]
    pars = Stream(par)
    for n in range(28):
        h, grp = n >> 1, n & 1
        if grp:
            if n == 25: assert sy.done()
            a(f'@wait vm=x{(n+1)>>2},w{h+1} lg=*\ns_barrier')
        else: a('s_waitcnt lgkmcnt(0)')
        if n in (3, 11, 19, 27): stamp(a, 5 + (n >> 3))
        rd = []
        if n < 27:
            rd = breads(n + 1)
            if grp == 1:
                ar = areads(h + 1); rd = ar[:4] + rd[:1] + ar[4:] + rd[1:]
        fx = [Item(x) for x in rd]
        rds = Stream(fx, maxper=1)
        k = 0
        for q, T in enumerate(tiles[grp]):
            for c in range(6):
                dd = V(acc(T, c), 4); w_, x_ = A(AF[h&1] + 4*c, 4), A(BF[grp] + 4*q, 4)
                a(f'{MF} {dd}, {w_ if c < 4 else x_}, {x_ if c < 4 else w_}, {dd if h else 0}')
                k += 1
                S_.gap([rds, dma, sy, pars, bgs], 2 if k < G else 1)
        assert rds.done()
        if n == 19: assert bgs.done(), bgs.left()
    assert dma.done()
    S_.flush(pars)
    a('@wait lg=*')
    stamp(a, 9)
    for T in range(8):
        P = PR + 2 * T; dd = Q + 8 * T
        for k in range(0, 8, 2): a(f'v_pk_fma_f32 {V(dd+k, 2)}, {V(CQ+k, 2)}, {V(P, 2)}, {V(dd+k, 2)} op_sel_hi:[1,0,1]')
        dk = K + 8 * T
        for k in range(0, 8, 2): a(f'v_pk_fma_f32 {V(dk+k, 2)}, {V(CK+k, 2)}, {V(P, 2)}, {V(dk+k, 2)} op_sel_hi:[1,0,1]')
        for k in range(4): a(f'v_cvt_pk_bf16_f32 v{Q+4*T+k}, v{dd+2*k}, v{dd+2*k+1}')
        for k in range(0, 8, 2): a(f'v_pk_mul_f32 {V(dk+k, 2)}, {V(dk+k, 2)}, {V(P, 2)} op_sel:[0,1] op_sel_hi:[1,1]')
        for k in (2, 3): a(f'v_cndmask_b32 v{Q+4*T+k}, 0, v{Q+4*T+k}, s[{sM1}:{sM1+1}]')
        for k in range(4): a(f'v_cvt_pk_bf16_f32 v{K+4*T+k}, v{dk+2*k}, v{dk+2*k+1}')
    def SR(T): return (Q + 32 + 8 * T) if T < 4 else (K + 32 + 8 * (T - 4))
    RB = (2, 54)
    def rread(T):
        for ar in range(2): a(f'ds_read_b128 {V(RB[T&1] + 4*ar, 4)}, v{RA} offset:{512*(T>>2) + 256*ar + 64*(T&3)}', tag=f'R{T}')
    rread(0)
    for T in range(8):
        if T & 3: a(f'{MF} {V(SR(T), 4)}, {V(K + 4*(T-1), 4)}, {V(Q + 4*T, 4)}, {V(MK, 4)}')
        a(f'{MF} {V(SR(T) + 4, 4)}, {V(K + 4*T, 4)}, {V(Q + 4*T, 4)}, {V(MK + 4, 4)}')
        a(f'v_mul_f32 v{PR + 2*T + 1}, {hx(f2u(LOG2E * 28 ** -0.5))}, v{PR + 2*T + 1}')
    for T in range(8):
        if T < 7: rread(T + 1)
        a(f'@wait lg=R{T}')
        b = RB[T & 1]
        for c, base in enumerate((V0, V1)):
            for k in (0, 2): a(f'v_pk_fma_f32 {V(base+4*T+k, 2)}, {V(b+k, 2)}, {V(CV, 2)}, {V(base+4*T+k, 2)} op_sel:[0,{c},0] op_sel_hi:[1,{c},1]')
        for c, base in enumerate((V0, V1)):
            for k in (0, 2): a(f'v_pk_mul_f32 {V(base+4*T+k, 2)}, {V(base+4*T+k, 2)}, {V(b+4+k, 2)}')
        for c, base in enumerate((V0, V1)):
            for k in range(2): a(f'v_cvt_pk_bf16_f32 v{base+2*T+k}, v{base+4*T+2*k}, v{base+4*T+2*k+1}')
    stamp(a, 10)
    MX = 2; TM = 10
    for T in range(8):
        s = SR(T)
        if T & 3: a(f'v_max3_f32 v{MX+T}, v{s}, v{s+1}, v{s+2}\nv_max3_f32 v{MX+T}, v{MX+T}, v{s+3}, v{s+4}\nv_max3_f32 v{MX+T}, v{MX+T}, v{s+5}, v{s+6}\nv_max_f32 v{MX+T}, v{MX+T}, v{s+7}')
        else: a(f'v_max3_f32 v{MX+T}, v{s+4}, v{s+5}, v{s+6}\nv_max_f32 v{MX+T}, v{MX+T}, v{s+7}')
    for b in (0, 2, 4, 6): a(f'v_permlane32_swap_b32 v{MX+b}, v{MX+b+1}')
    for b in (0, 2, 4, 6): a(f'v_max_f32 v{MX+b}, v{MX+b}, v{MX+b+1}')
    for b in (0, 4): a(f'v_permlane16_swap_b32 v{MX+b}, v{MX+b+2}')
    for b in (0, 4): a(f'v_max_f32 v{MX+b}, v{MX+b}, v{MX+b+2}')
    for b in (0, 4): a(f'v_mov_b32 v{MX+b+2}, v{MX+b}')
    for b in (0, 4): a(f'v_permlane16_swap_b32 v{MX+b}, v{MX+b+2}')
    for b in (0, 2, 4, 6): a(f'v_mov_b32 v{MX+b+1}, v{MX+b}')
    for b in (0, 2, 4, 6): a(f'v_permlane32_swap_b32 v{MX+b}, v{MX+b+1}')
    for T in range(8): a(f'v_mul_f32 v{PR + 2*T}, v{MX+T}, v{PR + 2*T + 1}')
    ONE = 54; PF = Q; OT = K
    for k in range(4): a(f'v_mov_b32 v{ONE+k}, 0x3f803f80')
    def soft(T):
        s = SR(T); P = PR + 2 * T
        lo = 0 if T & 3 else 4
        for k in range(lo, 8, 2): a(f'v_pk_fma_f32 {V(s+k, 2)}, {V(s+k, 2)}, {V(P, 2)}, {V(P, 2)} op_sel:[0,1,0] op_sel_hi:[1,1,0] neg_lo:[0,0,1] neg_hi:[0,0,1]')
        return [f'v_exp_f32 v{s+k}, v{s+k}' for k in range(lo, 8)]
    def pack(T):
        s = SR(T)
        if T & 3:
            for k in range(4): a(f'v_cvt_pk_bf16_f32 v{PF+4*T+k}, v{s+2*k}, v{s+2*k+1}')
        else:
            for k in range(2): a(f'v_cvt_pk_bf16_f32 v{PF+4*T+k}, v{s+4+2*k}, v{s+5+2*k}')
            a(f'v_mov_b32 v{PF+4*T+2}, 0\nv_mov_b32 v{PF+4*T+3}, 0')
    def OB(T): return (OT, OT + 12, V0 + 16)[T % 3]
    def pv(T):
        v = 2 * (T - 1) if T & 3 else 2 * T
        o = OB(T)
        return [f'{MF} {V(o + 8, 4)}, {V(ONE, 4)}, {V(PF + 4*T, 4)}, 0', f'{MF} {V(o, 4)}, {V(V0 + v, 4)}, {V(PF + 4*T, 4)}, 0', f'{MF} {V(o + 4, 4)}, {V(V1 + v, 4)}, {V(PF + 4*T, 4)}, 0']
    def fin(T):
        o = OB(T); R = V1 + 16 + 4 * (T & 1)
        a(f'v_rcp_f32 v{o+8}, v{o+8}')
        for k in range(0, 8, 2): a(f'v_pk_mul_f32 {V(o+k, 2)}, {V(o+k, 2)}, {V(o+8, 2)} op_sel_hi:[1,0]')
        for k in range(4): a(f'v_cvt_pk_bf16_f32 v{R+k}, v{o+2*k}, v{o+2*k+1}')
        a(f'buffer_store_dwordx4 {V(R, 4)}, v{OA+T}, s[{SH}:{SH+3}], s{sST} offen sc1', tag='o')
    for T in range(9):
        ex = soft(T) if T < 8 else []
        mm = pv(T - 1) if T else []
        for x in mm:
            a(x)
            if ex: a(ex.pop(0))
        em(a, ex)
        if T < 8: pack(T)
        if T: fin(T - 1)
    stamp(a, 11)
    a(f'v_mov_b32 v2, {1 << 24}\ns_waitcnt vmcnt(0)\nbuffer_atomic_add v2, v{CB}, s[{SH}:{SH+3}], s{sFL} offen sc1')

def desc(name):
    return f""".amdhsa_kernel {name}
  .amdhsa_next_free_vgpr 512
  .amdhsa_next_free_sgpr 102
  .amdhsa_accum_offset 256
  .amdhsa_group_segment_fixed_size 0
  .amdhsa_kernarg_size 80
  .amdhsa_user_sgpr_count 2
  .amdhsa_user_sgpr_kernarg_segment_ptr 1
  .amdhsa_system_sgpr_workgroup_id_x 1
  .amdhsa_float_denorm_mode_32 3
.end_amdhsa_kernel
"""

def build():
    del SLOW[:]
    hdr = open('cdna_kernels/' + NAME + '.s.ref').read().split('; Override launch')[0]
    k1 = NAME + '_kernel'
    out = hdr + '; @launch grid=(256,1,1) block=(256,1,1) lds=163840\n.amdgcn_target "amdgcn-amd-amdhsa--gfx950"\n.text\n'
    a = Asm()
    a.raw(f'.globl {k1}\n.p2align 8\n.type {k1},@function\n{k1}:')
    a('s_cmp_ge_u32 s2, 256\ns_cbranch_scc1 L_done')
    stamp(a, 0); stamp(a, 1, True)
    a('s_load_dwordx16 s[4:19], s[0:1], 0\ns_load_dwordx4 s[20:23], s[0:1], 64')
    a(f'v_lshrrev_b32 v1, 6, v0\nv_and_b32 v0, 63, v0\nv_readfirstlane_b32 s{sW}, v1')
    per = 12
    a(f's_getpc_b64 s[{sFH}:{sFH+1}]\ns_lshr_b32 s{T0}, s2, 3\ns_mul_i32 s{T1}, s{T0}, {per*128}')
    a(f'v_min_u32 v55, {per-1}, v0\nv_lshlrev_b32 v55, 7, v55\nv_add_u32 v55, s{T1}, v55')
    a(f'global_load_dword v19, v55, s[{sFH}:{sFH+1}]', tag='pf')
    stats_addr(a); rot_init(a)
    a(f's_bfe_u32 s{T1}, s2, 0x10002\ns_and_b32 s{T2}, s2, 3')
    a(f's_cmp_ge_u32 s{T0}, 23\ns_cbranch_scc1 L_attn')
    a(f's_mul_i32 s{T2}, s{T2}, 23\ns_add_u32 s{T0}, s{T0}, s{T2}\ns_cmp_ge_u32 s{T0}, 91\ns_cbranch_scc1 L_idle')
    ffn(a); dump(a)
    a.label('L_done'); a('s_endpgm')
    n1 = a.count
    a.label('L_attn'); a.vm = ['pf']; a.lg = []; a.waited = set()
    attn(a); dump(a); a('s_endpgm')
    n2 = a.count
    a.label('L_idle'); a.vm = ['pf']; a.lg = []; a.waited = set()
    a(f's_cmp_eq_u32 s{T1}, 0\ns_cselect_b32 s{T1}, 0, {OOB}\ns_mul_i32 s{T0}, s{sW}, 6144\ns_add_u32 s{T0}, s{T0}, {FH}')
    a(f'v_lshl_add_u32 v2, v0, 4, s{T1}\nv_add_u32 v3, 4096, v2\nv_mov_b32 v4, 0\nv_mov_b32 v5, 0\nv_mov_b32 v6, 0\nv_mov_b32 v7, 0')
    a('s_waitcnt lgkmcnt(0)')
    em(a, srd(SH, 22, WS_USED))
    for i in range(6): a(f'buffer_store_dwordx4 v[4:7], v{2 + (i >> 2)}, s[{SH}:{SH+3}], s{T0} offen offset:{(i & 3)*1024} sc1')
    em(a, srd(SDB, 20, 256) + srd(SX, 4, 2048 * 896))
    a(f's_cmp_eq_u32 s{sW}, 0\ns_cselect_b32 s{T1}, s{T1}, {OOB}\nv_mov_b32 v8, 1\nv_lshl_add_u32 v9, v0, 8, s{T1}')
    a(f's_waitcnt vmcnt(0)\ns_barrier\nbuffer_store_dword v8, v9, s[{SDB}:{SDB+3}], 0 offen sc1')
    stats_load(a); stats_do(a)
    a('s_waitcnt lgkmcnt(0)\ns_barrier')
    for x in stats_prep(ZD, ZD + 4): em(a, x if isinstance(x, list) else [x])
    a(cert_load(ZD + 5)); a('s_waitcnt vmcnt(0) lgkmcnt(0)')
    em(a, vec_check('Li_cert', [cert_load(ZD + 5)], [ZD + 5])); a(stats_post(ZD, ZD + 4)); a('s_endpgm')
    for s in SLOW: a.raw(s)
    a.raw('.fill 4096, 4, 0xbf810000')
    sys.stderr.write(f'instr: ffn {n1} attn {n2-n1}; nops {a.nops}\n')
    return out + a.text() + '.section .rodata,"a"\n.p2align 6\n' + desc(k1)

if __name__ == '__main__':
    args = sys.argv[1:]
    if '-p' in args: PROF = True; args.remove('-p')
    for x in [x for x in args if '=' in x]:
        k, v = x.split('='); args.remove(x)
        OPT[k] = type(OPT[k])(v) if not isinstance(OPT[k], bool) else v == '1'
    roles = [decode_py(b) for b in range(256)]
    F = [r for r in roles if r and r[0] == 'F']; Aa = [r for r in roles if r and r[0] == 'A']
    assert sorted((r[1], r[2]) for r in F) == [(r, c) for r in range(13) for c in range(14)]
    assert sorted((r[3], r[4]) for r in F) == [(t, c) for t in range(26) for c in range(7)]
    assert sorted((r[1], r[2]) for r in Aa) == [(x, g) for x in range(18) for g in range(4)]
    assert all(((t * 26547) >> 22) == t // 158 for t in range(2200))
    assert all(((t * 4682) >> 16) == t // 14 for t in range(140))
    for r in range(13):
        need = {0 if tk < 127 else (tk - 14) // 113 for tk in range(158 * r, min(158 * r + 158, 2048))}
        assert len(need) == ((min(158 * r + 143, 2033) * 580) >> 16) - (((max(158 * r, 14) - 14) * 580) >> 16) + 1
        assert need == {x for x in range(18) if ((113 * x + (14 if x else 0)) // 158) <= r <= (113 * x + 126) // 158}
    open(args[0] if args else 'cdna_kernels/' + NAME + '.s', 'w').write(build())
```

```python
import sys, struct
from asmlib import *

NAME = "parallel_sum__sliding_local_dilated__swiglu_ffn__prompt"
LOG2E = 1.4426950408889634
def f2u(x): return struct.unpack('<I', struct.pack('<f', x))[0]
def hx(x): return f'0x{x & 0xffffffff:08x}'

OPT = dict(rate=0.25, arate=0.25, erate=0.2, w2at='4,5,6,7,8,9', npro=17, anpro=16, rot2=True, sleep=3, tc=4, lag=60, touch='', tn=2, tpos=10, tstep=2.0, nt=0)

SX, SG, SU, SH, SD, SO, SOUT, SDB = 24, 28, 32, 36, 40, 44, 48, 52
sR, sC, sTH, sCT, sW = 56, 57, 58, 59, 60
T0, T1, T2, T3 = 61, 62, 63, 64
sMX, sMW, sSO, sJ, sWO, sST, sSPIN = 65, 66, 67, 68, 69, 70, 71
sPL = 72
sFH, sNO = 76, 78
sM0, sM1 = 80, 82
sRT = 4
sFL = 3

TH_BYTES = 5 * 72 * 1024
FH, STATS, WS_USED = 0x930000, 0x932000, 0x940000
OOB = 0x7ffffff0
MF = 'v_mfma_f32_16x16x32_bf16'

PROF = False
sP = 86
STAMPS = []
ENC = None
def stamp(a, i, real=False):
    if ENC:
        if i == 0 or i == ENC[0]:
            a.raw(f'    s_memrealtime s[84:85]\n    s_waitcnt lgkmcnt(0)\n    s_mov_b32 s{86 + (i != 0)}, s84'); a.lg = []
        return
    if not PROF: return
    if isinstance(i, str):
        if i not in STAMPS: return
        i = 2 + STAMPS.index(i)
    real = real or 'real' in STAMPS
    a.raw(f'    s_mem{"real" if real else ""}time s[84:85]\n    s_waitcnt lgkmcnt(0)\n    s_mov_b32 s{sP+i}, s84')
    a.lg = []
def dump(a):
    if ENC:
        l = f'Lenc{a.count}'
        stamp(a, 'end')
        a.raw(f'    s_cmp_eq_u32 s2, {ENC[1]}\n    s_cbranch_scc0 {l}_e\n    s_sub_u32 s87, s87, s86\n    s_min_u32 s87, s87, 5000\n    s_mul_i32 s87, s87, 10\n    s_memrealtime s[88:89]\n{l}:\n    s_memrealtime s[84:85]\n    s_waitcnt lgkmcnt(0)\n    s_sub_u32 s84, s84, s88\n    s_cmp_lt_u32 s84, s87\n    s_cbranch_scc1 {l}\n{l}_e:')
        return
    if not PROF: return
    a('s_waitcnt vmcnt(0)')
    stamp(a, 14); stamp(a, 15, True)
    a(f's_mov_b32 s{SH+2}, 0x2000000')
    a(f's_lshl_b32 s{T0}, s2, 2\ns_add_u32 s{T0}, s{T0}, s{sW}\ns_lshl_b32 s{T0}, s{T0}, 6\ns_add_u32 s{T0}, s{T0}, 0x1000000')
    for i in range(16): a(f'v_mov_b32 v{4+i}, s{sP+i}')
    a('v_mov_b32 v2, 0\ns_mov_b64 exec, 1')
    for i in range(4): a(f'buffer_store_dwordx4 v[{4+4*i}:{7+4*i}], v2, s[{SH}:{SH+3}], s{T0} offen offset:{16*i}')

def srd(dst, ptr, nbytes, back=0):
    if back:
        return [f's_sub_u32 s{dst}, s{ptr}, {back}', f's_subb_u32 s{dst+1}, s{ptr+1}, 0', f's_mov_b32 s{dst+2}, {nbytes+back}', f's_mov_b32 s{dst+3}, 0x20000']
    return [f's_mov_b64 s[{dst}:{dst+1}], s[{ptr}:{ptr+1}]', f's_mov_b32 s{dst+2}, {nbytes}', f's_mov_b32 s{dst+3}, 0x20000']
def em(a, l):
    for x in l: a(x)

SLOW = []
def vec_check(name, loads, regs):
    def test():
        o = [f'v_cmp_eq_u32 vcc, 0, v{regs[0]}']
        for r in regs[1:]: o += [f'v_cmp_eq_u32 s[{sM0}:{sM0+1}], 0, v{r}', 's_nop 1', f's_or_b64 vcc, vcc, s[{sM0}:{sM0+1}]']
        return o + ['s_nop 4']
    nl = '\n    '
    SLOW.append(f"""{name}:
    s_mov_b32 s{sSPIN}, 0
{name}_l:
    s_sleep 4
    {nl.join(loads)}
    s_add_u32 s{sSPIN}, s{sSPIN}, 1
    s_waitcnt vmcnt(0)
    {nl.join(test())}
    s_cbranch_vccz {name}_r
    s_cmp_lt_u32 s{sSPIN}, 0x40000
    s_cbranch_scc1 {name}_l
    s_branch {name}_r""")
    return test() + [f's_cbranch_vccnz {name}', f'{name}_r:']
def poll_issue(): return f's_load_dword s{sPL}, s[{sFH}:{sFH+1}], 0 glc'
def poll_check(name, field, want):
    t = ['s_waitcnt lgkmcnt(0)', f's_bfe_u32 s{sPL}, s{sPL}, {hx(0x80000 + 8*field)}', f's_cmp_eq_u32 s{sPL}, {want}']
    nl = '\n    '
    SLOW.append(f"""{name}:
    s_mov_b32 s{sSPIN}, 0
{name}_l:
    s_sleep {OPT['sleep']}
    {poll_issue()}
    s_add_u32 s{sSPIN}, s{sSPIN}, 1
    {nl.join(t)}
    s_cbranch_scc1 {name}_r
    s_cmp_lt_u32 s{sSPIN}, 0x40000
    s_cbranch_scc1 {name}_l
    s_branch {name}_r""")
    return t[:-1] + [[t[-1], f's_cbranch_scc0 {name}', f'{name}_r:']]

def decode_py(b):
    i, hf, q = b >> 3, (b >> 2) & 1, b & 3
    if i >= 23: return ('A', 9 * hf + i - 23, q)
    f = i + 23 * q
    if f >= 91: return None
    p = 91 * hf + f; th = (p * 9363) >> 16; ct = p - 7 * th
    l1 = 49 - 7 * hf; sec = int(f >= l1); f2 = f - (l1 if sec else 0)
    m, n = (37, 7) if (sec ^ hf) == 0 else (43, 6)
    c = (f2 * m) >> 8; r = f2 - n * c
    return ('F', r + (7 - sec) * hf, c + 7 * sec, th, ct)

ZD, ZT = 38, 46
def stats_addr(a):
    a(f's_lshr_b32 s{T3}, s2, 1\ns_lshl_b32 s{T3}, s{T3}, 2\ns_add_u32 s{T3}, s{T3}, s{sW}\ns_lshl_b32 s{T3}, s{T3}, 2\ns_and_b32 s{sSO}, s2, 1')
    a(f's_add_u32 s{T3}, s{T3}, s{sSO}\ns_mul_i32 s{T3}, s{T3}, 896')
    a(f'v_lshrrev_b32 v{ZT}, 5, v0\nv_and_b32 v{ZT+1}, 31, v0\nv_mul_u32_u24 v{ZT+2}, 1792, v{ZT}\nv_lshl_add_u32 v{ZT+2}, v{ZT+1}, 4, v{ZT+2}')
    a(f'v_cmp_gt_u32 vcc, 28, v{ZT+1}\nv_add_u32 v{ZT+2}, s{T3}, v{ZT+2}\nv_mov_b32 v{ZT+3}, {OOB}\nv_cndmask_b32 v{ZT+2}, v{ZT+3}, v{ZT+2}, vcc')
def stats_load(a):
    a(f'buffer_load_dwordx4 {V(ZD, 4)}, v{ZT+2}, s[{SX}:{SX+3}], 0 offen', tag='z')
    a(f'buffer_load_dwordx4 {V(ZD+4, 4)}, v{ZT+2}, s[{SX}:{SX+3}], 0 offen offset:448', tag='z')
ZL = 163840 - 128
def stats_do(a):
    s, q, lo, hi = ZT + 4, ZT + 5, ZT + 6, ZT + 7
    a(f'v_and_b32 v{ZT+2}, 1, v0\nv_cmp_eq_u32 s[{sM0}:{sM0+1}], 1, v{ZT+2}\nv_lshlrev_b32 v{ZT+2}, 5, v{ZT+2}\nv_lshl_add_u32 v{ZT+2}, v{ZT}, 2, v{ZT+2}')
    a(f'v_bfe_u32 v{ZT+1}, v0, 4, 1\nv_lshlrev_b32 v{ZT+1}, 6, v{ZT+1}\nv_sub_u32 v{ZT+2}, v{ZT+2}, v{ZT+1}\ns_lshl_b32 s{T0}, s{sW}, 3\ns_add_u32 s{T0}, s{T0}, {ZL + 64}')
    a(f'v_cmp_eq_u32 vcc, 0, v0\nv_add_u32 v{ZT+2}, s{T0}, v{ZT+2}\nv_mov_b32 v{ZT}, 0\nv_cndmask_b32 v1, v{ZT+3}, v{ZT}, vcc')
    stamp(a, 'z0')
    a('@wait vm=z')
    stamp(a, 'z1')
    for k in range(8):
        r = ZD + k
        a(f'v_lshlrev_b32 v{lo}, 16, v{r}\nv_and_b32 v{hi}, 0xffff0000, v{r}')
        if k == 0: a(f'v_add_f32 v{s}, v{lo}, v{hi}\nv_mul_f32 v{q}, v{lo}, v{lo}\nv_fmac_f32 v{q}, v{hi}, v{hi}')
        else: a(f'v_add_f32 v{s}, v{s}, v{lo}\nv_fmac_f32 v{q}, v{lo}, v{lo}\nv_add_f32 v{s}, v{s}, v{hi}\nv_fmac_f32 v{q}, v{hi}, v{hi}')
    for ctl in ('quad_perm:[1,0,3,2] row_mask:0xf', 'quad_perm:[2,3,0,1] row_mask:0xf', 'row_half_mirror row_mask:0xf', 'row_mirror row_mask:0xf', 'row_bcast:15 row_mask:0xa'):
        for r in (s, q): a(f'v_add_f32_dpp v{r}, v{r}, v{r} {ctl} bank_mask:0xf')
    a(f'v_mul_f32 v{s}, {hx(f2u(1/448))}, v{s}\nv_mul_f32 v{q}, {hx(f2u(1/448))}, v{q}\nv_fma_f32 v{q}, -v{s}, v{s}, v{q}\nv_max_f32 v{q}, 0, v{q}')
    a(f'v_cvt_pk_bf16_f32 v{s}, -v{s}, v{q}\nv_and_b32 v{q}, 0xffff0000, v{s}\nv_lshlrev_b32 v{s}, 16, v{s}')
    a(f'v_add_f32 v{q}, {hx(f2u(1e-5))}, v{q}\nv_cvt_pk_bf16_f32 v{q}, v{q}, v{q}\nv_and_b32 v{q}, 0xffff0000, v{q}\nv_sqrt_f32 v{q}, v{q}')
    a(f'v_cvt_pk_bf16_f32 v{q}, v{q}, v{q}\nv_and_b32 v{q}, 0xffff0000, v{q}\nv_rcp_f32 v{q}, v{q}')
    a(f'v_cndmask_b32 v{s}, v{s}, v{q}, s[{sM0}:{sM0+1}]\nv_or_b32 v{s}, 1, v{s}')
    a(f'ds_write_b32 v{ZT+2}, v{s}')
    stamp(a, 'z2')
def cert_load(v): return f'buffer_load_dword v{v}, off, s[{SDB}:{SDB+3}], 0 sc1'
def stats_prep(vd, va):
    return [f'v_and_b32 v{va}, 3, v0', f'v_lshlrev_b32 v{va}, 4, v{va}', f'v_add_u32 v{va}, {ZL}, v{va}', f'ds_read_b128 {V(vd, 4)}, v{va}',
            f's_lshl_b32 s{T0}, s2, 6', f's_add_u32 s{T0}, s{T0}, {STATS - ZL}', [f's_cmp_eq_u32 s{sW}, 0', f's_cselect_b32 s{T0}, s{T0}, {OOB}'],
            f'v_add_u32 v{va}, s{T0}, v{va}', f'v_cmp_gt_u32 vcc, 4, v0', f'v_cndmask_b32 v{va}, v1, v{va}, vcc']
def stats_post(vd, va): return f'buffer_store_dwordx4 {V(vd, 4)}, v{va}, s[{SH}:{SH+3}], 0 offen sc1'
def sync_stream(pfx, G, src, loads, regs, writes, t_load, t_check):
    C, D = ZD + 5, ZD
    o = [Item(x) for x in stats_prep(D, D + 4)]
    o.append(Item(cert_load(C), tag='cert', t0=OPT['tc'] * G))
    o.append(Item(['@wait vm=cert'] + vec_check(pfx + '_cert', [cert_load(C)], [C]), t0=(OPT['tc'] + 4) * G))
    o.append(Item(stats_post(D, D + 4)))
    o += [Item(x) for x in src]
    o += [Item(x, tag='par', t0=t_load * G) for x in loads]
    o.append(Item(['@wait vm=par'] + vec_check(pfx + '_par', loads, regs), t0=t_check * G))
    o += [Item(x) for x in writes]
    return Stream(o)
def stats_src(vd, vt):
    return [f'v_min_u32 v{vd}, 1023, v{vd}', f'v_and_b32 v{vt}, 7, v{vd}', f'v_lshrrev_b32 v{vd}, 3, v{vd}', f'v_lshlrev_b32 v{vd}, 7, v{vd}', f'v_lshl_add_u32 v{vd}, v{vt}, 2, v{vd}']
def add_touches(d, vb, vt, vdump):
    mats = dict(g=([12, 14], 28), q=([6], 21), d=([16], 7), o=([8], 7))
    n = OPT['tn']; pieces = []
    for sp in [x for x in OPT['touch'].split(',') if x]:
        m, r0, r1 = sp.split(':')
        ptrs, lpr = mats[m]; l0 = int(r0) * lpr; l1 = int(r1) * lpr
        for l in range(l0, l1, 1024 * n):
            o = [f'v_add_u32 v{vt}, {l*128}, v{vb}'] + ([f'v_min_u32 v{vt}, {(l1-1)*128}, v{vt}'] if l + 1024 * n > l1 else [])
            for p in ptrs:
                pieces.append([Item(x) for x in o] + [Item(f'global_load_dword v{vdump}, v{vt}, s[{p}:{p+1}]', tag='touch')]); o = []
    ins = {}
    for k, p in enumerate(pieces): ins.setdefault(int(OPT['tpos'] + k * OPT['tstep']), []).extend(p)
    if pieces:
        ins[OPT['tpos']][:0] = [Item(x) for x in (f's_lshl_b32 s79, s2, 2', f's_add_u32 s79, s79, s{sW}', f's_mul_i32 s79, s79, {n}',
                                                  f'v_min_u32 v{vb}, {n-1}, v0', f'v_add_lshl_u32 v{vb}, v{vb}, s79, 7')]
        print('touch pieces', len(pieces), 'last at', max(ins), file=sys.stderr)
    out = []; k = 0
    for it in d:
        out.append(it)
        if it.paced:
            k += 1; out += ins.pop(k, [])
            if not ins and not any(x.name == 'touched' for x in out): out.append(Item('s_nop 0', name='touched'))
    return out

def x_read_addr(a, XA, XB, t, octet_stride):
    a(f'v_and_b32 v{t}, 7, v0\nv_bfe_u32 v{t+1}, v0, 3, 1\nv_lshrrev_b32 v{t+2}, 4, v0\nv_bfe_u32 v{t+3}, v0, 1, 3')
    a(f'v_xor_b32 v{t+2}, v{t+2}, v{t+3}\nv_lshlrev_b32 v{t+2}, 4, v{t+2}\nv_lshl_add_u32 v{t+2}, v{t}, 7, v{t+2}')
    a(f'v_mul_u32_u24 v{t+1}, {octet_stride}, v{t+1}\nv_add_u32 v{XA}, v{t+1}, v{t+2}\nv_xor_b32 v{XA+1}, 64, v{XA}')
    a(f'v_and_b32 v{t+1}, 15, v0\nv_cmp_eq_u32 vcc, 15, v{t+1}\nv_mov_b32 v{t+3}, 0x100\nv_lshlrev_b32 v{t}, 4, v{t}\nv_cndmask_b32 v{t+3}, 0, v{t+3}, vcc')
    a(f'v_add_u32 v{XB}, v{XA}, v{t+3}\nv_add_u32 v{XB+1}, v{XA+1}, v{t+3}')
    for k in range(4): a(f'v_mov_b32 v{t+2+k}, 0x3f803f80')

FXS = 162 * 128; FW0 = 2 * FXS; FPAR = FW0 + 7 * 16384
assert FPAR + 2048 <= 163840
def ffn(a):
    DV, RX, RW, RH, HV, PA = 2, 6, 10, 14, 18, 19
    CB = 20
    XV, WV, XA, XB, WA = 22, 27, 28, 30, 32
    E, O = 22, 30
    CS = 38; PR = 56; t = 56
    ACC = 96
    BF = (184, 204); AF = (224, 240)
    a(f's_mul_i32 s{sTH}, s{T1}, 91\ns_add_u32 s{sTH}, s{sTH}, s{T0}')
    a(f's_mul_i32 s{T2}, s{T1}, 7\ns_sub_u32 s{T2}, 49, s{T2}')
    a(f's_cmp_ge_u32 s{T0}, s{T2}\ns_cselect_b32 s{T3}, 7, 0\ns_cselect_b32 s{T2}, s{T2}, 0\ns_cselect_b32 s{sCT}, 6, 7\ns_cselect_b32 s{sMX}, 1, 0\ns_sub_u32 s{T0}, s{T0}, s{T2}')
    a(f's_cmp_eq_u32 s{sMX}, s{T1}\ns_cselect_b32 s{sR}, 37, 43\ns_cselect_b32 s{T2}, 7, 6')
    a(f's_mul_i32 s{sC}, s{T0}, s{sR}\ns_lshr_b32 s{sC}, s{sC}, 8\ns_mul_i32 s{T2}, s{T2}, s{sC}\ns_sub_u32 s{sR}, s{T0}, s{T2}')
    a(f's_add_u32 s{sC}, s{sC}, s{T3}\ns_mul_i32 s{sCT}, s{sCT}, s{T1}\ns_add_u32 s{sR}, s{sR}, s{sCT}')
    a(f's_and_b32 s{T0}, s{sW}, 1\ns_lshr_b32 s{T1}, s{sW}, 1\ns_mul_i32 s{T2}, s{sR}, 158\ns_lshl_b32 s{T3}, s{T1}, 4\ns_add_u32 s{T2}, s{T2}, s{T3}')
    a(f's_add_u32 s{T2}, s{T2}, s{T0}\ns_mul_i32 s{T2}, s{T2}, 896\ns_lshl_b32 s{T0}, s{T0}, 2')
    a(f'v_lshrrev_b32 v{t}, 3, v0\nv_and_b32 v{t+1}, 7, v0\nv_lshrrev_b32 v{t+2}, 4, v0\nv_xor_b32 v{t+1}, s{T0}, v{t+1}\nv_xor_b32 v{t+1}, v{t+1}, v{t+2}')
    a(f'v_mul_u32_u24 v{t}, 1792, v{t}\nv_lshl_add_u32 v{t}, v{t+1}, 4, v{t}\nv_add_u32 v{XV}, s{T2}, v{t}')
    for i in range(1, 5): a(f'v_add_u32 v{XV+i}, {i*28672 - (i*1024 if i < 4 else 0)}, v{XV}')
    a(f'v_and_b32 v{t+1}, 15, v0\nv_lshl_add_u32 v{t}, v{t+2}, 1, s{T1}\nv_lshlrev_b32 v{t}, 1, v{t}\nv_xor_b32 v{t+1}, v{t+1}, v{t}')
    a(f's_mul_i32 s{T0}, s{sW}, {4*3584}\ns_lshl_b32 s{T1}, s{sC}, 8\ns_add_u32 s{T0}, s{T0}, s{T1}')
    a(f'v_mul_u32_u24 v{t+2}, 3584, v{t+2}\nv_lshl_add_u32 v{t+2}, v{t+1}, 4, v{t+2}\nv_add_u32 v{WV}, s{T0}, v{t+2}')
    a(f's_mul_i32 s{sMX}, s{sW}, 5120\ns_lshl_b32 s{sMW}, s{sW}, 12\ns_add_u32 s{sMW}, s{sMW}, {FW0}')
    if PROF and 'k0' in STAMPS: a.raw(f'    s_memtime s[72:73]')
    a('s_waitcnt lgkmcnt(0)')
    if PROF and 'k0' in STAMPS: a.raw(f'    s_mov_b32 s{sP + 2 + STAMPS.index("k0")}, s72')
    stamp(a, 'ka')
    em(a, srd(SX, 4, 2048 * 896)); stats_load(a)
    em(a, srd(SG, 12, 448 * 3584) + srd(SU, 14, 448 * 3584, back=1024))
    G = 20
    B = lambda m: (2 * m + 1) * G if m >= 0 else 0
    def xd(j):
        e = B(2 * j - 3); o = [Item(f's_movk_i32 s{sSO}, {128*j}')]
        for i in range(5):
            if i in (0, 4): o.append(Item(f's_add_u32 m0, s{sMX}, {(j&1)*FXS + i*1024}'))
            o.append(Item(f'buffer_load_dwordx4 v{XV+i}, s[{SX}:{SX+3}], s{sSO} offen offset:{(i&3)*1024} lds', tag=f'x{j}', t0=e, paced=True))
        return o
    def wd(m):
        e = B(m - 4); o = []
        for i in range(2):
            o.append(Item(f's_mov_b32 s{sSO}, {(32*m + 16*i)*3584 - i*2048}'))
            if i == 0: o.append(Item(f's_add_u32 m0, s{sMW}, {(m&3)*16384}'))
            o.append(Item(f'buffer_load_dwordx4 v{WV}, s[{SG}:{SG+3}], s{sSO} offen offset:{i*2048}{" nt" if m < OPT["nt"] else ""} lds', tag=f'w{m}', t0=e, paced=True))
            o.append(Item(f'buffer_load_dwordx4 v{WV}, s[{SU}:{SU+3}], s{sSO} offen offset:{i*2048 + 1024}{" nt" if m < OPT["nt"] else ""} lds', tag=f'w{m}', t0=e, paced=True))
        return o
    def wslot(k, free): return (RW if k < 4 else RH, (k & 3) * 16384, sMW, k * 16384, free)
    slots = [wslot(4, 0), wslot(5, 0), wslot(6, 0), wslot(2, B(10)), wslot(3, B(11)), (RX, FXS, sMX, FXS, B(11)), wslot(0, B(12)), wslot(1, B(13)), (RX, 0, sMX, 0, B(13))]
    w2at = [int(x) for x in OPT['w2at'].split(',') if x]
    NE = len(w2at)
    kslot = [k % 3 for k in range(NE)]
    rest = [(NE + k) % 3 for k in range(3)]
    order = [3, rest[0], 4, 5, rest[1], 6, rest[2], 7, 8]
    while len(kslot) < 18: kslot.append(order[(len(kslot) - NE) % 9])
    WX = 56
    def wfrag(kk, c):
        i = 16 * kk + 4 * c
        return (i, 'a') if i < 256 else (WX + i - 256, 'v')
    def w2d(kk):
        reg, off, base, moff, free = slots[kslot[kk]]
        prev = [k for k in range(kk) if kslot[k] == kslot[kk]]
        o = []
        if kk < 14: o += [Item(f's_mul_i32 s{sSO}, s{sRT+kk}, 28', after={'bg': 0}), Item(f's_add_u32 s{sSO}, s{sSO}, s{sWO}')]; sr = SD
        else: o += [Item(f's_add_u32 s{sSO}, s{sJ}, {28*(kk-14)*896}')]; sr = SO
        if prev: o.append(Item(f'@wait lg=t{prev[-1]}', after={f't{prev[-1]}': 4}))
        o.append(Item(f's_add_u32 m0, s{base}, {moff}'))
        for i in range(4):
            o.append(Item(f'buffer_load_dwordx4 v{55 if (kk >= 14 and i == 3) else DV+i}, s[{sr}:{sr+3}], s{sSO} offen offset:{i*1024} lds', tag=f'k{kk}', t0=free, paced=True, name=f'k{kk}' if i == 3 else None))
        return o
    def w2r(kk, lag):
        reg, off, base, moff, free = slots[kslot[kk]]
        o = [Item(f'@wait vm=k{kk}', after={f'k{kk}': lag})]
        for c in range(4):
            r, k = wfrag(kk, c)
            for jj in range(2):
                o.append(Item(f'ds_read_b64_tr_b16 {V(r + 2*jj, 2, k)}, v{reg+c} offset:{off + jj*2048}', tag=f't{kk}', name=f't{kk}' if (c, jj) == (3, 1) else None))
        return o
    d = wd(0) + xd(0) + wd(1) + xd(1) + wd(2) + wd(3)
    nk = 0
    for m in range(10):
        if m & 1: d += xd((m + 3) // 2)
        d += wd(m + 4)
        for _ in range(w2at.count(m)): d += w2d(nk); nk += 1
    for kk in range(nk, 18): d += w2d(kk)
    dma = Stream(add_touches(d, 35, 36, 37), rate=OPT['rate'])
    S_ = Sched(a)
    S_.flush(dma, 7)
    stamp(a, 'i7')
    em(a, srd(SH, 22, WS_USED) + srd(SDB, 20, 256))
    a(f's_lshl_b32 s{T0}, s{sC}, 2\ns_add_u32 s{T0}, s{T0}, s{sW}\ns_mul_i32 s{T1}, s{T0}, 4682\ns_lshr_b32 s{T1}, s{T1}, 16')
    a(f's_lshl_b32 s{T0}, s{sR}, 2\ns_add_u32 s{T0}, s{T0}, s{T1}\ns_lshl_b32 s{T0}, s{T0}, 7\ns_add_u32 s{sFL}, s{T0}, {FH}')
    x_read_addr(a, XA, XB, t, 5120)
    for st in range(2): a(f'ds_write_b128 v{t}, v[{t+2}:{t+5}] offset:{st*FXS + 161*128}')
    u = t + 6
    a(f'v_bfe_u32 v{u}, v0, 4, 1\nv_bfe_u32 v{u+1}, v0, 2, 2\nv_lshrrev_b32 v{u+2}, 5, v0\nv_and_b32 v{u+3}, 3, v0')
    a(f'v_lshl_add_u32 v{u+4}, v{u+1}, 1, v{u}\ns_lshl_b32 s{T0}, s{sW}, 1\nv_xor_b32 v{u+4}, s{T0}, v{u+4}\nv_lshlrev_b32 v{u+4}, 5, v{u+4}')
    a(f'v_lshl_add_u32 v{u+4}, v{u+3}, 3, v{u+4}\nv_lshl_add_u32 v{u+4}, v{u+1}, 8, v{u+4}\nv_lshl_add_u32 v{u+4}, v{u+2}, 11, v{u+4}')
    a(f'v_lshl_add_u32 v{u+4}, v{u}, 13, v{u+4}\nv_add_u32 v{WA}, {FW0}, v{u+4}\nv_xor_b32 v{WA+1}, 32, v{WA}')
    S_.flush(dma, 2)
    stats_do(a)
    S_.flush(dma, OPT['npro'] - 9)

    tiles = [[(4, 1), (0, 1), (1, 1), (2, 1), (3, 1)], [(T, 0) for T in range(5)]]
    def breads(n):
        j, ks2, grp = n >> 2, (n >> 1) & 1, n & 1
        return [f'ds_read_b128 {A(BF[grp] + 4*k, 4)}, v{(XB if (T, h) == (4, 1) else XA) + ks2} offset:{(j&1)*FXS + (10*h + T)*1024}' for k, (T, h) in enumerate(tiles[grp])]
    def areads(m):
        j, ks2 = m >> 1, m & 1; o = []
        for mat in range(2):
            for uu in range(2):
                for jj in range(2):
                    o.append(f'ds_read_b64_tr_b16 {A(AF[m&1] + 8*mat + 4*uu + 2*jj, 2)}, v{WA + uu} offset:{(m&3)*16384 + jj*4096 + mat*1024}')
        return o
    acc = lambda T, h: ACC + 16 * (2 * T + h)
    stamp(a, 'pre')
    a('@wait vm=x0,w0 lg=*\ns_barrier')
    stamp(a, 'b0')
    em(a, areads(0)[:4] + breads(0)[:1] + areads(0)[4:] + breads(0)[1:])
    bg = srd(SD, 16, 1792 * 896) + srd(SO, 8, 448 * 896) + srd(SOUT, 18, 2048 * 896)
    bg += [f's_mul_i32 s{T3}, s{sTH}, 9363', f's_lshr_b32 s{T3}, s{T3}, 16', f's_mul_i32 s{sCT}, s{T3}, 7', f's_sub_u32 s{sCT}, s{sTH}, s{sCT}', f's_mov_b32 s{sTH}, s{T3}']
    if OPT['rot2']:
        bg += [f's_mul_i32 s{T3}, s{sTH}, 5', f's_lshl_b32 s{sRT}, s{sCT}, 1', f's_add_u32 s{T3}, s{T3}, s{sRT}', f's_mul_i32 s{sRT}, s{T3}, 4682', f's_lshr_b32 s{sRT}, s{sRT}, 16',
               f's_mul_i32 s{sRT}, s{sRT}, 14', f's_sub_u32 s{sRT}, s{T3}, s{sRT}', f's_lshl_b32 s{sRT}, s{sRT}, 10']
    else:
        bg += [f's_mov_b32 s{sRT}, 0']
    for k in range(1, 14):
        bg += [f's_add_u32 s{sRT+k}, s{sRT+k-1}, 1024', [f's_cmp_eq_u32 s{sRT+k}, {14*1024}', f's_cselect_b32 s{sRT+k}, 0, s{sRT+k}']]
    bg += [f'v_lshrrev_b32 v{t}, 3, v0', f'v_and_b32 v{t+1}, 7, v0', f'v_lshrrev_b32 v{t+2}, 4, v0', f'v_lshlrev_b32 v{t+2}, 1, v{t+2}',
           f'v_xor_b32 v{t+1}, v{t+1}, v{t+2}', f'v_lshlrev_b32 v{t+1}, 4, v{t+1}', f'v_mul_u32_u24 v{t}, 896, v{t}',
           f's_lshl_b32 s{T3}, s{sCT}, 7', f'v_add3_u32 v{DV}, v{t}, v{t+1}, s{T3}']
    bg += [f'v_add_u32 v{DV+i}, {6144*i}, v{DV}' for i in range(1, 4)]
    bg += [f'v_cmp_gt_u32 s[{sM0}:{sM0+1}], 32, v0', f'v_mov_b32 v55, {OOB}', f'v_cndmask_b32 v55, v55, v{DV+3}, s[{sM0}:{sM0+1}]']
    bg += [f'v_bfe_u32 v{t}, v0, 2, 3', f'v_lshrrev_b32 v{t+1}, 5, v0', f'v_and_b32 v{t+2}, 3, v0', f'v_bfe_u32 v{t+3}, v0, 3, 2',
           f'v_lshlrev_b32 v{t}, 7, v{t}', f'v_lshl_add_u32 v{t}, v{t+1}, 10, v{t}', f'v_lshl_add_u32 v{t}, v{t+2}, 3, v{t}', f'v_lshl_add_u32 v{t}, v{t+3}, 5, v{t}',
           f'v_add_u32 v{RX}, s{sMX}, v{t}', f'v_add_u32 v{RW}, s{sMW}, v{t}']
    for c in range(1, 4): bg += [f'v_xor_b32 v{RX+c}, {32*c}, v{RX}', f'v_xor_b32 v{RW+c}, {32*c}, v{RW}']
    bg += [f'v_add_u32 v{RH+c}, 0x10000, v{RW+c}' for c in range(4)]
    bg += [f's_mul_i32 s{sWO}, s{sW}, {448*896}', f's_mul_i32 s{sJ}, s{sW}, {112*896}']
    nbg = len(bg)
    bg += [f'v_lshlrev_b32 v{HV}, 4, v0',
           f'v_and_b32 v{PA}, 7, v0', f'v_bfe_u32 v{t}, v0, 3, 1', f'v_lshlrev_b32 v{PA}, 2, v{PA}', f'v_lshl_add_u32 v{PA}, v{t}, 10, v{PA}', f'v_add_u32 v{PA}, {FPAR}, v{PA}',
           f's_lshl_b32 s{T3}, s{sC}, 2', f's_add_u32 s{T3}, s{T3}, s{sW}', f's_lshl_b32 s{T3}, s{T3}, 10', f's_mul_i32 s{sST}, s{sR}, {2*TH_BYTES}', f's_add_u32 s{sST}, s{sST}, s{T3}',
           f's_lshr_b32 s{T3}, s{sTH}, 1', f's_lshl_b32 s{sFH}, s{T3}, 2', f's_add_u32 s{sFH}, s{sFH}, s{sW}', f's_lshl_b32 s{sFH}, s{sFH}, 7', f's_add_u32 s{sFH}, s{sFH}, {FH}',
           [f's_add_u32 s{sFH}, s22, s{sFH}', f's_addc_u32 s{sFH+1}, s23, 0'],
           f's_mul_i32 s{T3}, s{T3}, 158', f's_add_u32 s{sNO}, s{T3}, {157-14}', f's_min_u32 s{sNO}, s{sNO}, {2047-14}', f's_mul_i32 s{sNO}, s{sNO}, 580', f's_lshr_b32 s{sNO}, s{sNO}, 16',
           f's_max_u32 s{T3}, s{T3}, 14', f's_sub_u32 s{T3}, s{T3}, 14', f's_mul_i32 s{T3}, s{T3}, 580', f's_lshr_b32 s{T3}, s{T3}, 16',
           f's_sub_u32 s{sNO}, s{sNO}, s{T3}', f's_add_u32 s{sNO}, s{sNO}, 1', f's_lshl_b32 s{sNO}, s{sNO}, 2']
    z = ZD + 6
    src = [f's_mul_i32 s{T0}, s{sR}, 79', f'v_add_u32 v{z}, s{T0}, v0', f'v_min_u32 v{z+1}, 15, v0', f'v_add3_u32 v{z+1}, v{z+1}, s{T0}, 64']
    src += stats_src(z, z + 2) + stats_src(z + 1, z + 2)
    src += [f's_and_b32 s{T0}, s{sW}, 1', f's_lshr_b32 s{T2}, s{sW}, 1', f's_lshl_b32 s{T0}, s{T0}, 1', f's_add_u32 s{T0}, s{T0}, s{T2}', f's_lshl_b32 s{T1}, s{T0}, 5',
            f's_add_u32 s{T1}, s{T1}, {STATS}', f's_lshl_b32 s{T0}, s{T0}, 9', f's_add_u32 s{T0}, s{T0}, {FPAR}', f'v_lshl_add_u32 v{z+2}, v0, 2, s{T0}']
    sy = sync_stream('Lf', G, src, [f'buffer_load_dword v{z+3+i}, v{z+i}, s[{SH}:{SH+3}], s{T1} offen sc1' for i in range(2)], [z + 3, z + 4],
                     [f'ds_write_b32 v{z+2}, v{z+3+i} offset:{256*i}' for i in range(2)], 18, 22)
    bgs = Stream([Item(x, after={'touched': 0} if re.match(r's_\w+ s(4|5|6|7),', x if isinstance(x, str) else x[0]) else None) for x in bg])
    bgs.items[nbg - 1].name = 'bg'
    NT = max(9, min(11, NE + 3))
    trs = Stream(sum((w2r(kk, OPT['lag']) for kk in range(NT)), []))
    par = []
    for T in range(5):
        for h in (1, 0):
            P = PR + 4 * (2 * T + h)
            par.append(Item(f'ds_read2_b32 {V(P, 2)}, v{PA} offset0:{16*T + 8*h} offset1:{128 + 16*T + 8*h}', t0=23*G, tag='pr'))
    par.append(Item('@wait lg=pr', t0=25*G))
    for T in range(5):
        for h in (1, 0):
            P = PR + 4 * (2 * T + h)
            par += [Item(f'v_mul_f32 v{P+2}, {hx(f2u(-LOG2E))}, v{P+1}', t0=25*G), Item(f'v_mul_f32 v{P+1}, v{P+1}, v{P+1}'), Item(f'v_rcp_f32 v{P+1}, v{P+1}')]
    par += [Item(f'v_mov_b32_dpp v{CS+k}, v{acc(4, 1)+k} row_newbcast:15 row_mask:0xf bank_mask:0xf', t0=26*G + 8) for k in range(16)]
    pars = Stream(par)
    for n in range(28):
        j, m, grp = n >> 2, n >> 1, n & 1
        if grp:
            if n == 23: assert sy.done()
            a(f'@wait vm=x{(n+1)>>2},w{m+1} lg=*\ns_barrier')
        else: a('s_waitcnt lgkmcnt(0)')
        stamp(a, f's{n}')
        rd = []
        if n < 27:
            rd = breads(n + 1)
            if grp == 1:
                ar = areads(m + 1); rd = ar[:4] + rd[:1] + ar[4:] + rd[1:]
        fx = [Item(x) for x in rd]
        rds = Stream(fx, maxper=1)
        k = 0
        for q, (T, h) in enumerate(tiles[grp]):
            for c in range(4):
                dd = V(acc(T, h) + 4 * c, 4)
                a(f'{MF} {dd}, {A(AF[m&1] + 4*c, 4)}, {A(BF[grp] + 4*q, 4)}, {dd if m else 0}')
                k += 1
                S_.gap([rds, dma, sy, pars, trs, bgs], 2 if k < G else 1)
        assert rds.done()
        if n == 14: assert bgs.done(), bgs.left()
    S_.flush(pars)
    stamp(a, 'g1')
    print('end of gemm: dma left', sum(x.paced for x in dma.items[dma.i:]), 'tr left', trs.left(), file=sys.stderr)
    trs2 = trs
    dma.rate = OPT['erate']
    FV = CB
    def post(f): return [f'v_mov_b32 v{FV}, {1 << 8*f}', f'buffer_atomic_add v{FV}, v1, s[{SH}:{SH+3}], s{sFL} offen sc1']
    for T in range(5):
        stamp(a, f'T{T}')
        if T == 3:
            a('@wait vm=h0'); em(a, post(0)); stamp(a, 'T3b')
        for h in (1, 0):
            P = PR + 4 * (2 * T + h); dd = acc(T, h); OO = O + 4 * h
            ops = []
            for k in range(0, 16, 2): ops.append(f'v_pk_fma_f32 {V(dd+k, 2)}, {V(CS+k, 2)}, {V(P, 2)}, {V(dd+k, 2)} op_sel_hi:[1,0,1]')
            for k in range(0, 8, 2): ops.append(f'v_pk_mul_f32 {V(E+k, 2)}, {V(dd+k, 2)}, {V(P+2, 2)} op_sel_hi:[1,0]')
            for k in range(8): ops.append(f'v_exp_f32 v{E+k}, v{E+k}')
            for k in range(0, 8, 2): ops.append(f'v_pk_mul_f32 {V(dd+k, 2)}, {V(dd+k, 2)}, {V(dd+8+k, 2)}')
            for k in range(0, 8, 2): ops.append(f'v_pk_fma_f32 {V(E+k, 2)}, {V(E+k, 2)}, {V(P, 2)}, {V(P, 2)} op_sel:[0,1,1] op_sel_hi:[1,1,1]')
            for k in range(8): ops.append(f'v_rcp_f32 v{E+k}, v{E+k}')
            for k in range(0, 8, 2): ops.append(f'v_pk_mul_f32 {V(dd+k, 2)}, {V(dd+k, 2)}, {V(E+k, 2)}')
            for k in range(4): ops.append(f'v_cvt_pk_bf16_f32 v{OO+k}, v{dd+2*k}, v{dd+2*k+1}')
            acc_c = 0
            for x in ops:
                a(x); acc_c += cost(x)
                if acc_c >= 4:
                    acc_c -= 4; S_.gap([dma, trs2], 1)
            a(f's_add_u32 s{T3}, s{sST}, {h*TH_BYTES + T*72*1024}')
            a(f'buffer_store_dwordx4 {V(OO, 4)}, v{HV}, s[{SH}:{SH+3}], s{T3} offen sc1', tag=f'h{T}')
            if (T, h) == (4, 1):
                S_.flush(trs2); a('s_waitcnt lgkmcnt(0)'); a(poll_issue())
    stamp(a, 'e1')
    print('after epilogue: dma left', sum(x.paced for x in dma.items[dma.i:]), file=sys.stderr)
    a('@wait vm=h2'); em(a, post(1))
    stamp(a, 'f2')
    S_.flush(dma)
    stamp(a, 'dm')
    ACC2, HB, NHB, RD = 96, 176, 12, 224
    XO, XR, WRA, RDA, t = 22, 28, 38, 46, 48
    hl = [(T, kk) for T in range(5) for kk in range(14)] + [(T, kk) for T in range(5) for kk in range(14, 18)]
    HA = 88
    a(f's_mul_i32 s{T0}, s{sTH}, {TH_BYTES}\ns_mul_i32 s{T1}, s{sW}, {14*1024}\ns_add_u32 s{T0}, s{T0}, s{T1}\nv_add_u32 v{HA}, s{T0}, v{HV}')
    for T in range(1, 5): a(f'v_add_u32 v{HA+T}, {T*72*1024}, v{HA}')
    a(f's_mul_i32 s{T1}, s{sW}, {10*1024}\ns_sub_u32 s{sST}, {56*1024}, s{T1}')
    def hload(i):
        T, kk = hl[i]
        if kk < 14: return f'buffer_load_dwordx4 {V(HB + 4*(i % NHB), 4)}, v{HA+T}, s[{SH}:{SH+3}], s{sRT+kk} offen sc1'
        return f'buffer_load_dwordx4 {V(HB + 4*(i % NHB), 4)}, v{HA+T}, s[{SH}:{SH+3}], s{sST} offen offset:{(kk-14)*1024} sc1'
    for x in poll_check('Lf_p0', 0, 14): em(a, x if isinstance(x, list) else [x])
    stamp(a, 'p0')
    LEAD = NHB - 2
    for i in range(LEAD): a(hload(i), tag=f'g{i}')
    S_.flush(Stream(sum((w2r(kk, 0) for kk in range(NT, 18)), [])))
    stamp(a, 'tr')
    a(f's_lshr_b32 s{T0}, s{sTH}, 1\ns_mul_i32 s{T0}, s{T0}, 158\ns_and_b32 s{T1}, s{sTH}, 1\ns_lshl_b32 s{T1}, s{T1}, 4')
    a(f's_and_b32 s{T2}, s{sW}, 1\ns_lshl_b32 s{T2}, s{T2}, 3\ns_lshr_b32 s{T3}, s{sW}, 1\ns_add_u32 s{T2}, s{T2}, s{T3}\ns_add_u32 s{T1}, s{T1}, s{T2}')
    a(f'v_lshrrev_b32 v{t}, 4, v0\nv_lshl_add_u32 v{t}, v{t}, 1, s{T1}')
    a(f'v_add_u32 v{t+1}, s{T0}, v{t}\nv_mul_u32_u24 v{t+1}, 896, v{t+1}\nv_and_b32 v{t+2}, 15, v0\nv_lshlrev_b32 v{t+2}, 3, v{t+2}')
    a(f's_lshl_b32 s{T0}, s{sCT}, 7\nv_add3_u32 v{XO}, v{t+1}, v{t+2}, s{T0}')
    for T in range(1, 5): a(f'v_add_u32 v{XO+T}, {32*896*T}, v{XO}')
    a(f'v_cmp_gt_u32 vcc, 30, v{t}\nv_mov_b32 v{t+1}, {OOB}\nv_cndmask_b32 v{XO+4}, v{t+1}, v{XO+4}, vcc')
    a(f'v_and_b32 v{t}, 15, v0\nv_lshrrev_b32 v{t+1}, 4, v0\nv_and_b32 v{t+2}, 7, v0\nv_xor_b32 v{t+1}, v{t+1}, v{t+2}')
    a(f'v_lshlrev_b32 v{t+1}, 4, v{t+1}\nv_lshl_add_u32 v{t}, v{t}, 8, v{t+1}\ns_lshl_b32 s{T0}, s{sW}, 12\nv_add_u32 v{WRA}, s{T0}, v{t}')
    for c in range(1, 4): a(f'v_xor_b32 v{WRA+c}, {64*c}, v{WRA}')
    for c in range(4): a(f'v_add_u32 v{WRA+4+c}, 0x10000, v{WRA+c}')
    a(f'v_lshrrev_b32 v{t}, 4, v0\ns_lshl_b32 s{T0}, s{sW}, 2\nv_add_u32 v{t}, s{T0}, v{t}\nv_and_b32 v{t+1}, 7, v{t}\nv_and_b32 v{t+2}, 15, v0')
    a(f'v_xor_b32 v{t+1}, v{t+1}, v{t+2}\nv_lshlrev_b32 v{t+1}, 4, v{t+1}\nv_lshl_add_u32 v{RDA}, v{t}, 8, v{t+1}\nv_add_u32 v{RDA+1}, 0x10000, v{RDA}')
    a('@wait vm=h4 lg=*'); em(a, post(2)); a(poll_issue())
    stamp(a, 'e2')
    pre = {}
    def guard(first_load, name, field, want, issue_at):
        stp = first_load - LEAD - 1
        if issue_at is not None: pre.setdefault(issue_at, []).append(poll_issue())
        pre.setdefault(stp, []).extend(poll_check(name, field, want))
    guard(14, 'Lf_p1', 1, 14, None)
    guard(42, 'Lf_p2', 2, 14, 42 - LEAD - 9)
    guard(70, 'Lf_p3', 3, f's{sNO}', 70 - LEAD - 9)
    pre.setdefault(20, []).append('s_barrier')
    xr = Stream([Item(f'buffer_load_dwordx2 {V(XR + 2*T, 2)}, v{XO+T}, s[{SX}:{SX+3}], 0 offen', tag='xr', t0=S_.t + 4*(24 + 5*T)) for T in range(5)])
    pend = Stream([])
    for i, (T, kk) in enumerate(hl):
        a(f'@wait vm=g{i}')
        stamp(a, f'h{i}')
        fx = Stream(([Item(hload(i + LEAD), tag=f'g{i+LEAD}')] if i + LEAD < len(hl) else []) + [Item(x) for x in pre.get(i, [])])
        for c in range(4):
            r, k = wfrag(kk, c)
            dd = V(ACC2 + 16 * T + 4 * c, 4)
            a(f'{MF} {dd}, {V(r, 4, k)}, {V(HB + 4*(i % NHB), 4)}, {dd if kk else 0}')
            S_.gap([fx, xr] + ([pend] if c == 2 else []), 2 if c < 3 else 1)
        S_.flush(fx)
        if kk == 17:
            assert pend.done()
            pend = Stream([Item(f'ds_write_b128 v{WRA + c + (4 if T == 4 else 0)}, {V(ACC2 + 16*T + 4*c, 4)} offset:{(T & 3)*16384}', tag='pw') for c in range(4)], maxper=1)
    S_.flush(pend)
    a('s_waitcnt lgkmcnt(0)\ns_barrier')
    stamp(a, 'red')
    def rd(T):
        for w in range(4): a(f'ds_read_b128 {V(RD + 16*(T&1) + 4*w, 4)}, v{RDA + (T == 4)} offset:{(T & 3)*16384 + w*4096}', tag=f'p{T}')
    rd(0)
    for T in range(5):
        if T < 4: rd(T + 1)
        b = RD + 16 * (T & 1); x = XR + 2 * T; U = t
        a(f'v_lshlrev_b32 v{U}, 16, v{x}\nv_and_b32 v{U+1}, 0xffff0000, v{x}\nv_lshlrev_b32 v{U+2}, 16, v{x+1}\nv_and_b32 v{U+3}, 0xffff0000, v{x+1}')
        a(f'@wait lg=p{T}')
        for w in range(4):
            for k in (0, 2): a(f'v_pk_add_f32 {V(U+k, 2)}, {V(U+k, 2)}, {V(b+4*w+k, 2)}')
        a(f'v_cvt_pk_bf16_f32 v{x}, v{U}, v{U+1}\nv_cvt_pk_bf16_f32 v{x+1}, v{U+2}, v{U+3}')
        a(f'buffer_store_dwordx2 {V(x, 2)}, v{XO+T}, s[{SOUT}:{SOUT+3}], 0 offen')

AX0 = 0; AXS = 130 * 128; AW0 = 3 * AXS; APAR = AW0 + 4 * 24576
def attn(a):
    XV, WV, XA, XB, WA = 2, 4, 7, 9, 11
    PA, RA, CB = 15, 16, 17
    OA = 20
    MK = 28
    CV = 36
    PR = 38
    t = 54
    Q, K, V0, V1 = 64, 128, 192, 224
    BF = (0, 16); AF = (32, 56); CSA = 80
    a(f's_mul_i32 s{sR}, s{T1}, 9\ns_add_u32 s{sR}, s{sR}, s{T0}\ns_sub_u32 s{sR}, s{sR}, 23\ns_mov_b32 s{sC}, s{T2}')
    a(f's_and_b32 s{T0}, s{sW}, 1\ns_lshr_b32 s{T1}, s{sW}, 1\ns_mul_i32 s{T2}, s{sR}, 113\ns_lshl_b32 s{T3}, s{sW}, 4\ns_add_u32 s{T2}, s{T2}, s{T3}')
    a(f's_mul_i32 s{T2}, s{T2}, 896\ns_lshl_b32 s{T0}, s{T0}, 2')
    a(f'v_lshrrev_b32 v{t}, 3, v0\nv_and_b32 v{t+1}, 7, v0\nv_lshrrev_b32 v{t+2}, 4, v0\nv_xor_b32 v{t+1}, s{T0}, v{t+1}\nv_xor_b32 v{t+1}, v{t+1}, v{t+2}')
    a(f'v_mul_u32_u24 v{t}, 1792, v{t}\nv_lshl_add_u32 v{t}, v{t+1}, 4, v{t}\nv_add_u32 v{XV}, s{T2}, v{t}\nv_add_u32 v{XV+1}, {64*896 - 1024}, v{XV}')
    a(f'v_lshl_add_u32 v{t}, v{t+2}, 1, s{T1}\nv_lshlrev_b32 v{t}, 1, v{t}\nv_sub_u32 v{t+1}, v0, v{t}\nv_and_b32 v{t+1}, 15, v{t+1}\nv_min_u32 v{t+1}, 13, v{t+1}')
    a(f's_mul_i32 s{T0}, s{sW}, {4*2688}\ns_mul_i32 s{T1}, s{sC}, 224\ns_add_u32 s{T0}, s{T0}, s{T1}')
    a(f'v_mul_u32_u24 v{t+2}, 2688, v{t+2}\nv_lshl_add_u32 v{t+2}, v{t+1}, 4, v{t+2}\nv_add_u32 v{WV+2}, s{T0}, v{t+2}')
    a(f'v_add_u32 v{WV+1}, 128, v{WV+2}\nv_add_u32 v{WV}, 256, v{WV+2}')
    a(f's_lshl_b32 s{sMX}, s{sW}, 12\ns_mul_i32 s{sMW}, s{sW}, 6144\ns_add_u32 s{sMW}, s{sMW}, {AW0}')
    if PROF and 'k0' in STAMPS: a.raw(f'    s_memtime s[72:73]')
    a('s_waitcnt lgkmcnt(0)')
    if PROF and 'k0' in STAMPS: a.raw(f'    s_mov_b32 s{sP + 2 + STAMPS.index("k0")}, s72')
    stamp(a, 'ka')
    em(a, srd(SX, 4, 2048 * 896)); stats_load(a)
    em(a, srd(SG, 6, 448 * 2688, back=256))
    G = 24
    def xd(j, e):
        o = [Item(f's_movk_i32 s{sSO}, {128*j}')]
        for i in range(4):
            if i % 2 == 0: o.append(Item(f's_add_u32 m0, s{sMX}, {(j%3)*AXS + (i>>1)*(2048 - 896)}'))
            o.append(Item(f'buffer_load_dwordx4 v{XV + (i&1)}, s[{SX}:{SX+3}], s{sSO} offen offset:{(i&1)*1024 + (i>>1)*896} lds', tag=f'x{j}', t0=e, paced=True))
        return o
    def wd(h, e):
        o = []
        for i in range(2):
            o += [Item(f's_mov_b32 s{sSO}, {(32*h + 16*i) * 2688}'), Item(f's_add_u32 m0, s{sMW}, {(h%4)*24576 + i*3072}')]
            o += [Item(f'buffer_load_dwordx4 v{WV+m}, s[{SG}:{SG+3}], s{sSO} offen offset:{m*1024}{" nt" if h < OPT["nt"] else ""} lds', tag=f'w{h}', t0=e, paced=True) for m in range(3)]
        return o
    d = wd(0, 0) + xd(0, 0) + wd(1, 0)
    for h in range(2, 14):
        if h % 2 == 0:
            j = h // 2
            d += xd(j, 0 if j < 3 else (4 * (j - 3) + 3) * G)
        d += wd(h, 0 if h < 4 else (2 * (h - 4) + 1) * G)
    dma = Stream(add_touches(d, 36, 18, 19), rate=OPT['arate'])
    S_ = Sched(a)
    S_.flush(dma, 6)
    stamp(a, 'i7')
    em(a, srd(SH, 22, WS_USED) + srd(SDB, 20, 256))
    x_read_addr(a, XA, XB, t, 4096)
    for st in range(3): a(f'ds_write_b128 v{t}, v[{t+2}:{t+5}] offset:{st*AXS + 129*128}')
    u = 20
    a(f'v_bfe_u32 v{u}, v0, 4, 1\nv_bfe_u32 v{u+1}, v0, 2, 2\nv_lshrrev_b32 v{u+2}, 5, v0\nv_and_b32 v{u+3}, 3, v0')
    a(f'v_lshl_add_u32 v{u+4}, v{u+1}, 1, v{u}\nv_lshl_add_u32 v{u+4}, v{u+4}, 2, v{u+3}\ns_mul_i32 s{T0}, s{sW}, 56\nv_lshl_add_u32 v{u+4}, v{u+4}, 3, s{T0}')
    a(f'v_add_u32 v{u+5}, 32, v{u+4}\nv_and_b32 v{u+4}, 0xff, v{u+4}\nv_and_b32 v{u+5}, 0xff, v{u+5}')
    a(f'v_mul_u32_u24 v{u}, 12288, v{u}\nv_mul_u32_u24 v{u+2}, 3072, v{u+2}\nv_lshl_add_u32 v{u}, v{u+1}, 8, v{u}\nv_add_u32 v{u}, v{u}, v{u+2}\nv_add_u32 v{u}, {AW0}, v{u}')
    a(f'v_add_u32 v{WA}, v{u}, v{u+4}\nv_add_u32 v{WA+1}, v{u}, v{u+5}\nv_add_u32 v{WA+2}, 49152, v{WA}\nv_add_u32 v{WA+3}, 49152, v{WA+1}')
    S_.flush(dma, 2)
    stats_do(a)
    S_.flush(dma, OPT['anpro'] - 8)

    tiles = [[7, 4, 5, 6], [0, 1, 2, 3]]
    def breads(n):
        j, ks2, grp = n >> 2, (n >> 1) & 1, n & 1
        return [f'ds_read_b128 {A(BF[grp] + 4*k, 4)}, v{(XB if T == 7 else XA) + ks2} offset:{(j%3)*AXS + (8*(T&1) + (T>>1))*1024}' for k, T in enumerate(tiles[grp])]
    def areads(h):
        o = []
        for mat in range(3):
            for ct in range(2):
                for jj in range(2):
                    off = (h % 4) * 24576 + jj * 6144 + mat * 1024
                    o.append(f'ds_read_b64_tr_b16 {A(AF[h&1] + 8*mat + 4*ct + 2*jj, 2)}, v{WA + ct + (2 if off >= 49152 else 0)} offset:{off % 49152}')
        return o
    def acc(T, c): return (Q + 8*T, Q + 8*T + 4, K + 8*T, K + 8*T + 4, V0 + 4*T, V1 + 4*T)[c]
    stamp(a, 'pre')
    a('@wait vm=x0,w0 lg=*\ns_barrier')
    stamp(a, 'b0')
    em(a, areads(0)[:4] + breads(0)[:1] + areads(0)[4:] + breads(0)[1:])
    bg = [f'v_and_b32 v{t}, 15, v0', f'v_lshlrev_b32 v{PA}, 2, v{t}', f'v_add_u32 v{PA}, {APAR}, v{PA}',
          f'v_lshrrev_b32 v{t+1}, 4, v0', f'v_lshlrev_b32 v{RA}, 4, v{t+1}', f'v_add_u32 v{RA}, {APAR}, v{RA}',
          f'v_cmp_gt_u32 s[{sM1}:{sM1+1}], 48, v0',
          f'v_lshlrev_b32 v{t+1}, 2, v{t+1}', f'v_sub_u32 v{t+1}, v{t}, v{t+1}', f'v_mov_b32 v{t+3}, {hx(f2u(-1e30))}']
    for i in range(8):
        bg += [f'v_add_u32 v{t+2}, {(16 if i < 4 else 0) - (i & 3)}, v{t+1}', f'v_cmp_gt_u32 s[{sM0}:{sM0+1}], 8, v{t+2}',
               f'v_cndmask_b32 v{MK+i}, v{t+3}, 0, s[{sM0}:{sM0+1}]']
    kA, kB, kC, kD = 4, 5, 6, 7
    bg += [f's_mul_i32 s{kD}, s{sR}, 113', f's_lshl_b32 s{T3}, s{sC}, 2', f's_add_u32 s{T3}, s{T3}, s{sW}', f's_add_u32 s{T3}, s{T3}, 56', f's_lshl_b32 s{sST}, s{T3}, 10',
           [f's_cmp_eq_u32 s{sR}, 0', f's_cselect_b32 s{T3}, 0, 14'], f's_mov_b32 s{kA}, 26547', f's_mov_b32 s{kB}, {TH_BYTES}', f's_mov_b32 s{kC}, {72*1024}',
           f'v_lshrrev_b32 v{t+6}, 4, v0', f'v_lshlrev_b32 v{t+6}, 8, v{t+6}', f'v_mov_b32 v{t+7}, {OOB}']
    for T in range(8):
        bg += [f'v_lshl_add_u32 v{t+1}, v{t}, 1, {32*(T&3) + (T>>2)}' if 32*(T&3) + (T>>2) <= 64 else [f'v_lshlrev_b32 v{t+1}, 1, v{t}', f'v_add_u32 v{t+1}, {32*(T&3) + (T>>2)}, v{t+1}'],
               f'v_add_u32 v{t+2}, s{kD}, v{t+1}', f'v_mul_u32_u24 v{t+3}, s{kA}, v{t+2}', f'v_lshrrev_b32 v{t+3}, 22, v{t+3}',
               f'v_mul_u32_u24 v{t+4}, 158, v{t+3}', f'v_sub_u32 v{t+2}, v{t+2}, v{t+4}',
               f'v_bfe_u32 v{t+4}, v{t+2}, 4, 1', f'v_lshl_add_u32 v{t+3}, v{t+3}, 1, v{t+4}', f'v_mad_u32_u24 v{t+3}, v{t+3}, s{kB}, v{t+6}',
               f'v_lshrrev_b32 v{t+4}, 5, v{t+2}', f'v_mad_u32_u24 v{t+3}, v{t+4}, s{kC}, v{t+3}',
               f'v_bfe_u32 v{t+4}, v{t+2}, 1, 3', f'v_lshl_add_u32 v{t+3}, v{t+4}, 4, v{t+3}', f'v_and_b32 v{t+4}, 1, v{t+2}', f'v_lshl_add_u32 v{OA+T}, v{t+4}, 7, v{t+3}']
        if T & 3 == 0: bg += [f'v_cmp_le_u32 s[{sM0}:{sM0+1}], s{T3}, v{t+1}', f'v_cndmask_b32 v{OA+T}, v{t+7}, v{OA+T}, s[{sM0}:{sM0+1}]']
        if T == 7: bg += [f'v_cmp_gt_u32 s[{sM0}:{sM0+1}], 15, v{t}', f'v_cndmask_b32 v{OA+T}, v{t+7}, v{OA+T}, s[{sM0}:{sM0+1}]']
    bg += [f's_add_u32 s{T3}, s{T3}, s{kD}', f's_mul_i32 s{T3}, s{T3}, 26547', f's_lshr_b32 s{T3}, s{T3}, 22', f's_add_u32 s{kD}, s{kD}, 126', f's_mul_i32 s{kD}, s{kD}, 26547',
           f's_lshr_b32 s{kD}, s{kD}, 22', f's_sub_u32 s{kD}, s{kD}, s{T3}', f'v_cmp_ge_u32 s[{sM0}:{sM0+1}], s{kD}, v0', f'v_lshlrev_b32 v{CB}, 9, v0',
           f's_lshl_b32 s{T3}, s{T3}, 2', f's_add_u32 s{T3}, s{T3}, s{sC}', f's_lshl_b32 s{T3}, s{T3}, 7', f's_add_u32 s{sFL}, s{T3}, {FH}',
           f'v_cndmask_b32 v{CB}, v{t+7}, v{CB}, s[{sM0}:{sM0+1}]']
    bgs = Stream([Item(x, after={'touched': 0} if re.match(r's_\w+ s(4|5|6|7),', x if isinstance(x, str) else x[0]) else None) for x in bg])
    z = ZD + 6
    src = [f's_and_b32 s{T0}, s{sW}, 1', f's_mul_i32 s{T1}, s{sR}, 113', f's_add_u32 s{T1}, s{T1}, s{T0}', f's_lshr_b32 s{T2}, s{T1}, 1', f'v_add_u32 v{z}, s{T2}, v0']
    src += stats_src(z, z + 1)
    src += [f's_and_b32 s{T1}, s{T1}, 1', f's_lshl_b32 s{T1}, s{T1}, 1', f's_lshr_b32 s{T2}, s{sW}, 1', f's_add_u32 s{T1}, s{T1}, s{T2}', f's_lshl_b32 s{T1}, s{T1}, 5',
            f's_add_u32 s{T1}, s{T1}, {STATS}', f's_lshl_b32 s{T0}, s{T0}, 1', f's_add_u32 s{T0}, s{T0}, s{T2}', f's_lshl_b32 s{T0}, s{T0}, 8', f's_add_u32 s{T0}, s{T0}, {APAR}',
            f'v_lshl_add_u32 v{z+1}, v0, 2, s{T0}']
    sy = sync_stream('La', G, src, [f'buffer_load_dword v{z+2}, v{z}, s[{SH}:{SH+3}], s{T1} offen sc1'], [z + 2], [f'ds_write_b32 v{z+1}, v{z+2}'], 20, 24)
    par = [Item(f'ds_read2_b32 {V(PR + 2*T, 2)}, v{PA} offset0:{128*(T>>2) + 16*(T&3)} offset1:{64 + 128*(T>>2) + 16*(T&3)}', t0=25*G) for T in range(8)]
    CQ, CK = 2, 54
    par += [Item(f'v_mov_b32_dpp v{CK+k}, v{K+56+k} row_newbcast:15 row_mask:0xf bank_mask:0xf', t0=26*G + 10) for k in range(8)]
    for c, src in enumerate((V0 + 31, V1 + 31)):
        par += [Item(f'v_mov_b32 v62, v{src}'), Item(f'v_mov_b32 v63, v{src}'), Item('v_permlane32_swap_b32 v62, v63'),
                Item(f'v_mov_b32 v{CV+c}, v63'), Item(f'v_permlane16_swap_b32 v63, v{CV+c}')]
    par += [Item(f'v_mov_b32_dpp v{CQ+k}, v{Q+56+k} row_newbcast:15 row_mask:0xf bank_mask:0xf', t0=27*G) for k in range(8)]
    pars = Stream(par)
    for n in range(28):
        h, grp = n >> 1, n & 1
        if grp:
            if n == 25: assert sy.done()
            a(f'@wait vm=x{(n+1)>>2},w{h+1} lg=*\ns_barrier')
        else: a('s_waitcnt lgkmcnt(0)')
        stamp(a, f's{n}')
        rd = []
        if n < 27:
            rd = breads(n + 1)
            if grp == 1:
                ar = areads(h + 1); rd = ar[:4] + rd[:1] + ar[4:] + rd[1:]
        fx = [Item(x) for x in rd]
        rds = Stream(fx, maxper=1)
        k = 0
        for q, T in enumerate(tiles[grp]):
            for c in range(6):
                dd = V(acc(T, c), 4); w_, x_ = A(AF[h&1] + 4*c, 4), A(BF[grp] + 4*q, 4)
                a(f'{MF} {dd}, {w_ if c < 4 else x_}, {x_ if c < 4 else w_}, {dd if h else 0}')
                k += 1
                S_.gap([rds, dma, sy, pars, bgs], 2 if k < G else 1)
        assert rds.done()
        if n == 19: assert bgs.done(), bgs.left()
    assert dma.done()
    S_.flush(pars)
    a('@wait lg=*')
    stamp(a, 'g1')
    for T in range(8):
        P = PR + 2 * T; dd = Q + 8 * T
        for k in range(0, 8, 2): a(f'v_pk_fma_f32 {V(dd+k, 2)}, {V(CQ+k, 2)}, {V(P, 2)}, {V(dd+k, 2)} op_sel_hi:[1,0,1]')
        dk = K + 8 * T
        for k in range(0, 8, 2): a(f'v_pk_fma_f32 {V(dk+k, 2)}, {V(CK+k, 2)}, {V(P, 2)}, {V(dk+k, 2)} op_sel_hi:[1,0,1]')
        for k in range(4): a(f'v_cvt_pk_bf16_f32 v{Q+4*T+k}, v{dd+2*k}, v{dd+2*k+1}')
        for k in range(0, 8, 2): a(f'v_pk_mul_f32 {V(dk+k, 2)}, {V(dk+k, 2)}, {V(P, 2)} op_sel:[0,1] op_sel_hi:[1,1]')
        for k in (2, 3): a(f'v_cndmask_b32 v{Q+4*T+k}, 0, v{Q+4*T+k}, s[{sM1}:{sM1+1}]')
        for k in range(4): a(f'v_cvt_pk_bf16_f32 v{K+4*T+k}, v{dk+2*k}, v{dk+2*k+1}')
    def SR(T): return (Q + 32 + 8 * T) if T < 4 else (K + 32 + 8 * (T - 4))
    RB = (2, 54)
    def rread(T):
        for ar in range(2): a(f'ds_read_b128 {V(RB[T&1] + 4*ar, 4)}, v{RA} offset:{512*(T>>2) + 256*ar + 64*(T&3)}', tag=f'R{T}')
    rread(0)
    for T in range(8):
        if T & 3: a(f'{MF} {V(SR(T), 4)}, {V(K + 4*(T-1), 4)}, {V(Q + 4*T, 4)}, {V(MK, 4)}')
        a(f'{MF} {V(SR(T) + 4, 4)}, {V(K + 4*T, 4)}, {V(Q + 4*T, 4)}, {V(MK + 4, 4)}')
        a(f'v_mul_f32 v{PR + 2*T + 1}, {hx(f2u(LOG2E * 28 ** -0.5))}, v{PR + 2*T + 1}')
    for T in range(8):
        if T < 7: rread(T + 1)
        a(f'@wait lg=R{T}')
        b = RB[T & 1]
        for c, base in enumerate((V0, V1)):
            for k in (0, 2): a(f'v_pk_fma_f32 {V(base+4*T+k, 2)}, {V(b+k, 2)}, {V(CV, 2)}, {V(base+4*T+k, 2)} op_sel:[0,{c},0] op_sel_hi:[1,{c},1]')
        for c, base in enumerate((V0, V1)):
            for k in (0, 2): a(f'v_pk_mul_f32 {V(base+4*T+k, 2)}, {V(base+4*T+k, 2)}, {V(b+4+k, 2)}')
        for c, base in enumerate((V0, V1)):
            for k in range(2): a(f'v_cvt_pk_bf16_f32 v{base+2*T+k}, v{base+4*T+2*k}, v{base+4*T+2*k+1}')
    stamp(a, 'e1')
    MX = 2; TM = 10
    for T in range(8):
        s = SR(T)
        if T & 3: a(f'v_max3_f32 v{MX+T}, v{s}, v{s+1}, v{s+2}\nv_max3_f32 v{MX+T}, v{MX+T}, v{s+3}, v{s+4}\nv_max3_f32 v{MX+T}, v{MX+T}, v{s+5}, v{s+6}\nv_max_f32 v{MX+T}, v{MX+T}, v{s+7}')
        else: a(f'v_max3_f32 v{MX+T}, v{s+4}, v{s+5}, v{s+6}\nv_max_f32 v{MX+T}, v{MX+T}, v{s+7}')
    for b in (0, 2, 4, 6): a(f'v_permlane32_swap_b32 v{MX+b}, v{MX+b+1}')
    for b in (0, 2, 4, 6): a(f'v_max_f32 v{MX+b}, v{MX+b}, v{MX+b+1}')
    for b in (0, 4): a(f'v_permlane16_swap_b32 v{MX+b}, v{MX+b+2}')
    for b in (0, 4): a(f'v_max_f32 v{MX+b}, v{MX+b}, v{MX+b+2}')
    for b in (0, 4): a(f'v_mov_b32 v{MX+b+2}, v{MX+b}')
    for b in (0, 4): a(f'v_permlane16_swap_b32 v{MX+b}, v{MX+b+2}')
    for b in (0, 2, 4, 6): a(f'v_mov_b32 v{MX+b+1}, v{MX+b}')
    for b in (0, 2, 4, 6): a(f'v_permlane32_swap_b32 v{MX+b}, v{MX+b+1}')
    for T in range(8): a(f'v_mul_f32 v{PR + 2*T}, v{MX+T}, v{PR + 2*T + 1}')
    ONE = 54; PF = Q; OT = K
    for k in range(4): a(f'v_mov_b32 v{ONE+k}, 0x3f803f80')
    def soft(T):
        s = SR(T); P = PR + 2 * T
        lo = 0 if T & 3 else 4
        for k in range(lo, 8, 2): a(f'v_pk_fma_f32 {V(s+k, 2)}, {V(s+k, 2)}, {V(P, 2)}, {V(P, 2)} op_sel:[0,1,0] op_sel_hi:[1,1,0] neg_lo:[0,0,1] neg_hi:[0,0,1]')
        return [f'v_exp_f32 v{s+k}, v{s+k}' for k in range(lo, 8)]
    def pack(T):
        s = SR(T)
        if T & 3:
            for k in range(4): a(f'v_cvt_pk_bf16_f32 v{PF+4*T+k}, v{s+2*k}, v{s+2*k+1}')
        else:
            for k in range(2): a(f'v_cvt_pk_bf16_f32 v{PF+4*T+k}, v{s+4+2*k}, v{s+5+2*k}')
            a(f'v_mov_b32 v{PF+4*T+2}, 0\nv_mov_b32 v{PF+4*T+3}, 0')
    def OB(T): return (OT, OT + 12, V0 + 16)[T % 3]
    def pv(T):
        v = 2 * (T - 1) if T & 3 else 2 * T
        o = OB(T)
        return [f'{MF} {V(o + 8, 4)}, {V(ONE, 4)}, {V(PF + 4*T, 4)}, 0', f'{MF} {V(o, 4)}, {V(V0 + v, 4)}, {V(PF + 4*T, 4)}, 0', f'{MF} {V(o + 4, 4)}, {V(V1 + v, 4)}, {V(PF + 4*T, 4)}, 0']
    def fin(T):
        o = OB(T); R = V1 + 16 + 4 * (T & 1)
        a(f'v_rcp_f32 v{o+8}, v{o+8}')
        for k in range(0, 8, 2): a(f'v_pk_mul_f32 {V(o+k, 2)}, {V(o+k, 2)}, {V(o+8, 2)} op_sel_hi:[1,0]')
        for k in range(4): a(f'v_cvt_pk_bf16_f32 v{R+k}, v{o+2*k}, v{o+2*k+1}')
        a(f'buffer_store_dwordx4 {V(R, 4)}, v{OA+T}, s[{SH}:{SH+3}], s{sST} offen sc1', tag='o')
    for T in range(9):
        ex = soft(T) if T < 8 else []
        mm = pv(T - 1) if T else []
        for x in mm:
            a(x)
            if ex: a(ex.pop(0))
        em(a, ex)
        if T < 8: pack(T)
        if T: fin(T - 1)
    stamp(a, 'e2')
    a(f'v_mov_b32 v2, {1 << 24}\ns_waitcnt vmcnt(0)\nbuffer_atomic_add v2, v{CB}, s[{SH}:{SH+3}], s{sFL} offen sc1')

def desc(name):
    return f""".amdhsa_kernel {name}
  .amdhsa_next_free_vgpr 512
  .amdhsa_next_free_sgpr 102
  .amdhsa_accum_offset 256
  .amdhsa_group_segment_fixed_size 0
  .amdhsa_kernarg_size 80
  .amdhsa_user_sgpr_count 2
  .amdhsa_user_sgpr_kernarg_segment_ptr 1
  .amdhsa_system_sgpr_workgroup_id_x 1
  .amdhsa_float_denorm_mode_32 3
.end_amdhsa_kernel
"""

def build():
    del SLOW[:]
    hdr = open('cdna_kernels/' + NAME + '.s.ref').read().split('; Override launch')[0]
    k1 = NAME + '_kernel'
    out = hdr + '; @launch grid=(256,1,1) block=(256,1,1) lds=163840\n.amdgcn_target "amdgcn-amd-amdhsa--gfx950"\n.text\n'
    a = Asm()
    a.raw(f'.globl {k1}\n.p2align 8\n.type {k1},@function\n{k1}:')
    a('s_cmp_ge_u32 s2, 256\ns_cbranch_scc1 L_done')
    stamp(a, 0); stamp(a, 1, True)
    a('s_load_dwordx16 s[4:19], s[0:1], 0\ns_load_dwordx4 s[20:23], s[0:1], 64')
    a(f'v_lshrrev_b32 v1, 6, v0\nv_and_b32 v0, 63, v0\nv_readfirstlane_b32 s{sW}, v1')
    per = 12
    a(f's_getpc_b64 s[{sFH}:{sFH+1}]\ns_lshr_b32 s{T0}, s2, 3\ns_mul_i32 s{T1}, s{T0}, {per*128}')
    a(f'v_min_u32 v55, {per-1}, v0\nv_lshlrev_b32 v55, 7, v55\nv_add_u32 v55, s{T1}, v55')
    a(f'global_load_dword v19, v55, s[{sFH}:{sFH+1}]', tag='pf')
    stats_addr(a)
    a(f's_bfe_u32 s{T1}, s2, 0x10002\ns_and_b32 s{T2}, s2, 3')
    a(f's_cmp_ge_u32 s{T0}, 23\ns_cbranch_scc1 L_attn')
    a(f's_mul_i32 s{T2}, s{T2}, 23\ns_add_u32 s{T0}, s{T0}, s{T2}\ns_cmp_ge_u32 s{T0}, 91\ns_cbranch_scc1 L_idle')
    ffn(a); dump(a)
    a.label('L_done'); a('s_endpgm')
    n1 = a.count
    a.label('L_attn'); a.vm = ['pf']; a.lg = []; a.waited = set()
    attn(a); dump(a); a('s_endpgm')
    n2 = a.count
    a.label('L_idle'); a.vm = ['pf']; a.lg = []; a.waited = set()
    a(f's_cmp_eq_u32 s{T1}, 0\ns_cselect_b32 s{T1}, 0, {OOB}\ns_mul_i32 s{T0}, s{sW}, 6144\ns_add_u32 s{T0}, s{T0}, {FH}')
    a(f'v_lshl_add_u32 v2, v0, 4, s{T1}\nv_add_u32 v3, 4096, v2\nv_mov_b32 v4, 0\nv_mov_b32 v5, 0\nv_mov_b32 v6, 0\nv_mov_b32 v7, 0')
    a('s_waitcnt lgkmcnt(0)')
    em(a, srd(SH, 22, WS_USED))
    for i in range(6): a(f'buffer_store_dwordx4 v[4:7], v{2 + (i >> 2)}, s[{SH}:{SH+3}], s{T0} offen offset:{(i & 3)*1024} sc1')
    em(a, srd(SDB, 20, 256) + srd(SX, 4, 2048 * 896))
    a(f's_cmp_eq_u32 s{sW}, 0\ns_cselect_b32 s{T1}, s{T1}, {OOB}\nv_mov_b32 v8, 1\nv_lshl_add_u32 v9, v0, 8, s{T1}')
    a(f's_waitcnt vmcnt(0)\ns_barrier\nbuffer_store_dword v8, v9, s[{SDB}:{SDB+3}], 0 offen sc1')
    stats_load(a); stats_do(a)
    a('s_waitcnt lgkmcnt(0)\ns_barrier')
    for x in stats_prep(ZD, ZD + 4): em(a, x if isinstance(x, list) else [x])
    a(cert_load(ZD + 5)); a('s_waitcnt vmcnt(0) lgkmcnt(0)')
    em(a, vec_check('Li_cert', [cert_load(ZD + 5)], [ZD + 5])); a(stats_post(ZD, ZD + 4)); a('s_endpgm')
    for s in SLOW: a.raw(s)
    a.raw('.fill 4096, 4, 0xbf810000')
    sys.stderr.write(f'instr: ffn {n1} attn {n2-n1}; nops {a.nops}\n')
    return out + a.text() + '.section .rodata,"a"\n.p2align 6\n' + desc(k1)

if __name__ == '__main__':
    args = sys.argv[1:]
    if '-p' in args:
        PROF = True; args.remove('-p'); STAMPS[:] = 'ka pre b0 s3 s11 s19 s27 g1 e1 e2 h70 red'.split()
    for x in [x for x in args if x.startswith('enc:')]:
        args.remove(x); ENC = (x.split(':')[1], int(x.split(':')[2]))
    for x in [x for x in args if x.startswith('st:')]:
        PROF = True; args.remove(x); STAMPS[:] = x[3:].split(',')
    for x in [x for x in args if '=' in x]:
        k, v = x.split('='); args.remove(x)
        OPT[k] = type(OPT[k])(v) if not isinstance(OPT[k], bool) else v == '1'
    roles = [decode_py(b) for b in range(256)]
    F = [r for r in roles if r and r[0] == 'F']; Aa = [r for r in roles if r and r[0] == 'A']
    assert sorted((r[1], r[2]) for r in F) == [(r, c) for r in range(13) for c in range(14)]
    assert sorted((r[3], r[4]) for r in F) == [(t, c) for t in range(26) for c in range(7)]
    assert sorted((r[1], r[2]) for r in Aa) == [(x, g) for x in range(18) for g in range(4)]
    assert all(((t * 26547) >> 22) == t // 158 for t in range(2200))
    assert all(((t * 4682) >> 16) == t // 14 for t in range(140))
    for r in range(13):
        need = {0 if tk < 127 else (tk - 14) // 113 for tk in range(158 * r, min(158 * r + 158, 2048))}
        assert len(need) == ((min(158 * r + 143, 2033) * 580) >> 16) - (((max(158 * r, 14) - 14) * 580) >> 16) + 1
        assert need == {x for x in range(18) if ((113 * x + (14 if x else 0)) // 158) <= r <= (113 * x + 126) // 158}
    open(args[0] if args else 'cdna_kernels/' + NAME + '.s', 'w').write(build())
```

```python
import re

REG_RE = re.compile(r'(?<![\w.])([vas])(?:\[(\d+):(\d+)\]|(\d+))(?![\w])')
TRANS = ('v_exp_f32', 'v_log_f32', 'v_rcp_f32', 'v_rsq_f32', 'v_sqrt_f32', 'v_sin_f32', 'v_cos_f32')

def regs_of(tok):
    out = []
    for m in REG_RE.finditer(tok):
        k = m.group(1)
        if m.group(2) is not None:
            out += [(k, i) for i in range(int(m.group(2)), int(m.group(3)) + 1)]
        else:
            out.append((k, int(m.group(4))))
    if re.search(r'\bvcc\b', tok): out += [('s', 106), ('s', 107)]
    if re.search(r'\bm0\b', tok): out.append(('s', 124))
    if re.search(r'\bexec(_lo|_hi)?\b', tok): out += [('s', 126), ('s', 127)]
    return out

def split_ops(rest):
    ops, depth, cur = [], 0, ''
    for ch in rest:
        if ch == '[': depth += 1
        if ch == ']': depth -= 1
        if ch == ',' and depth == 0:
            ops.append(cur.strip()); cur = ''
        else:
            cur += ch
    if cur.strip(): ops.append(cur.strip())
    return ops

class Ins:
    __slots__ = ('text', 'op', 'w', 'r', 'kind', 'passes', 'a', 'b', 'c', 'states', 'tag')
    def __init__(self, text):
        self.text = text
        t = text.split(';')[0].strip()
        parts = t.split(None, 1)
        self.op = op = parts[0]
        ops = split_ops(parts[1]) if len(parts) > 1 else []
        self.w, self.r = [], []
        self.passes = 0; self.a = self.b = self.c = []
        self.states = 1
        self.tag = None
        if op.startswith('v_mfma'):
            self.kind = 'mfma'
            self.passes = 8 if '32x32x16' in op else 4
            self.w = regs_of(ops[0]); self.a = regs_of(ops[1]); self.b = regs_of(ops[2]); self.c = regs_of(ops[3])
            self.r = self.a + self.b + self.c
        elif op.startswith('v_'):
            self.kind = 'valu'
            if op.startswith('v_cmp'):
                self.w = regs_of(ops[0]); self.r = [x for o in ops[1:] for x in regs_of(o)]
            elif op.startswith('v_permlane') and 'swap' in op:
                self.w = regs_of(ops[0]) + regs_of(ops[1]); self.r = list(self.w)
            elif op.startswith(('v_add_co', 'v_addc_co', 'v_sub_co')):
                self.w = regs_of(ops[0]) + regs_of(ops[1]); self.r = [x for o in ops[2:] for x in regs_of(o)]
            else:
                self.w = regs_of(ops[0]); self.r = [x for o in ops[1:] for x in regs_of(o)]
                if op.startswith(('v_fmac', 'v_writelane')) or 'dpp' in op: self.r += self.w
        elif op.startswith('ds_'):
            self.kind = 'ds'
            if op.startswith(('ds_read', 'ds_bpermute', 'ds_swizzle')):
                self.w = regs_of(ops[0]); self.r = [x for o in ops[1:] for x in regs_of(o)]
            else:
                self.r = [x for o in ops for x in regs_of(o)]
        elif op.startswith(('buffer_', 'global_')):
            self.kind = 'vmem'
            lds = bool(re.search(r'\blds\b', t)) or 'load_lds' in op
            if 'load' in op and not lds:
                self.w = regs_of(ops[0]); self.r = [x for o in ops[1:] for x in regs_of(o)]
            else:
                self.r = [x for o in ops for x in regs_of(o)]
                if lds: self.r.append(('s', 124))
                if 'atomic' in op and 'sc0' in t: self.w = regs_of(ops[0])
        elif op == 's_nop':
            self.kind = 'nop'; self.states = int(ops[0], 0) + 1
        elif op.startswith('s_'):
            self.kind = 'salu'
            if op.startswith(('s_cmp', 's_waitcnt', 's_barrier', 's_cbranch', 's_branch', 's_endpgm', 's_sleep', 's_setprio', 's_bitcmp', 's_atomic')):
                self.r = [x for o in ops for x in regs_of(o)]
            elif ops:
                self.w = regs_of(ops[0]); self.r = [x for o in ops[1:] for x in regs_of(o)]
                if 'saveexec' in op: self.w += [('s', 126), ('s', 127)]
        else:
            self.kind = 'other'; self.states = 0

def need(p, c):
    n = 0
    pw, cr, cw = set(p.w), set(c.r), set(c.w)
    if p.kind == 'valu':
        vw = {x for x in pw if x[0] in 'va'}
        sw = {x for x in pw if x[0] == 's'}
        if c.kind == 'mfma' and vw & cr: n = max(n, 2)
        if c.kind == 'valu':
            if p.op.startswith(TRANS) and vw & cr: n = max(n, 1)
            if (c.op.startswith('v_permlane') or 'dpp' in c.op) and vw & cr: n = max(n, 2)
            if c.op.startswith(('v_readlane', 'v_readfirstlane')) and vw & cr: n = max(n, 1)
            if sw & cr: n = max(n, 4 if c.op.startswith(('v_readlane', 'v_writelane')) else 2)
            if 'sdwa' in p.op and vw & (cr | cw): n = max(n, 1)
        if c.kind == 'vmem' and sw & cr: n = max(n, 5)
        if c.kind == 'salu' and sw & cr: n = max(n, 1)
    elif p.kind == 'mfma':
        big = p.passes == 8
        if c.kind == 'mfma':
            if pw & set(c.c):
                if not (p.w == c.c and p.passes == c.passes): n = max(n, 10 if big else 6)
            if pw & (set(c.a) | set(c.b)): n = max(n, 12 if big else 8)
            if pw & cw and not (pw & set(c.c)): n = max(n, 10 if big else 6)
        elif c.kind in ('valu', 'ds', 'vmem'):
            if pw & (cr | cw): n = max(n, 12 if big else 8)
            if c.kind == 'valu' and set(p.c) & cw: n = max(n, 7 if big else 3)
    elif p.kind == 'salu':
        if ('s', 124) in pw and c.kind in ('vmem', 'ds') and ('s', 124) in cr: n = max(n, 1)
    elif p.kind == 'vmem':
        if ('store' in p.op) and ('x3' in p.op or 'x4' in p.op) and c.kind in ('valu', 'mfma', 'ds', 'vmem'):
            data = set(regs_of(split_ops(p.text.split(';')[0].strip().split(None, 1)[1])[0 if p.op.startswith('buffer') else 1]))
            if data & cw: n = max(n, 2)
    return n

class Asm:
    def __init__(self):
        self.lines = []
        self.hist = []
        self.vm = []
        self.lg = []
        self.nops = 0
        self.count = 0
        self.waited = set()
    def raw(self, text):
        self.lines.append(text)
    def label(self, name):
        self.lines.append(name + ':'); self.hist = []
    def label_keep(self, name):
        self.lines.append(name + ':')
    def __call__(self, text, tag=None):
        for t in text.split('\n'):
            t = t.strip()
            if t: self.emit(t, tag)
    def emit(self, text, tag=None):
        if text.startswith('@'):
            return self.pseudo(text)
        if text.endswith(':'):
            return self.label_keep(text[:-1])
        ins = Ins(text)
        dist, req = 0, 0
        for p in reversed(self.hist):
            k = need(p, ins)
            if k - dist > req: req = k - dist
            dist += p.states
            if dist >= 20: break
        while req > 0:
            k = min(req, 16)
            nop = Ins(f's_nop {k-1}')
            self.lines.append('    ' + nop.text); self.hist.append(nop); self.nops += k; req -= k
        self.lines.append('    ' + text)
        self.hist.append(ins); self.hist = self.hist[-24:]
        self.count += 1
        if ins.kind in ('vmem', 'ds') and tag is not None: assert tag not in self.waited, ('issued after its wait', tag, text)
        if ins.kind == 'vmem' and not ins.op.startswith(('buffer_wbl2', 'buffer_inv')): self.vm.append(tag)
        if ins.kind == 'ds': self.lg.append(tag)
        if ins.op == 's_waitcnt':
            m = re.search(r'vmcnt\((\d+)\)', text)
            if m:
                n = int(m.group(1)); self.vm = self.vm[len(self.vm) - n:] if n < len(self.vm) and n else ([] if n == 0 else self.vm)
            m = re.search(r'lgkmcnt\((\d+)\)', text)
            if m:
                n = int(m.group(1)); self.lg = self.lg[len(self.lg) - n:] if n < len(self.lg) and n else ([] if n == 0 else self.lg)
    def pseudo(self, text):
        assert text.startswith('@wait')
        vm = re.search(r'vm=(\S+)', text); lg = re.search(r'lg=(\S+)', text)
        self.wait(vm.group(1).split(',') if vm else (), lg.group(1).split(',') if lg else ())
    def wait(self, vm=(), lg=()):
        self.waited |= set(vm) | set(lg)
        parts = []
        for q, tags, name, mx in ((self.vm, vm, 'vmcnt', 63), (self.lg, lg, 'lgkmcnt', 15)):
            last = -1
            for i, t in enumerate(q):
                if t in tags or '*' in tags: last = i
            if last >= 0:
                n = len(q) - 1 - last
                parts.append(f'{name}({min(n, mx)})')
        if parts: self.emit('s_waitcnt ' + ' '.join(parts))
    def text(self):
        return '\n'.join(self.lines) + '\n'

def cost(t):
    t = t[0] if isinstance(t, tuple) else t
    if t.endswith(':'): return 0
    if t.startswith('s_nop'): return 1 + int(t.split()[1])
    return 2 if t.startswith(TRANS + ('buffer_', 'global_')) else 1

def V(b, n=1, k='v'):
    return f'{k}{b}' if n == 1 else f'{k}[{b}:{b+n-1}]'
def A(b, n=1): return V(b, n, 'a')
def S(b, n=1): return V(b, n, 's')

class Item:
    def __init__(self, body, tag=None, t0=0, after=None, name=None, paced=False, brk=False):
        self.body = [body] if isinstance(body, str) else list(body)
        self.tag = tag; self.t0 = t0; self.after = after or {}; self.name = name
        self.paced = paced; self.brk = brk or any(' m0,' in x for x in self.body[-1:])
        self.cost = sum(cost(x) for x in self.body)
        self.ds = any(x.startswith('ds_') for x in self.body)

class Stream:
    def __init__(self, items, rate=1e9, burst=1.0, maxper=99):
        self.items = list(items); self.i = 0; self.rate = rate; self.burst = burst; self.budget = 1.0; self.maxper = maxper
    def done(self): return self.i >= len(self.items)
    def left(self): return len(self.items) - self.i

class Sched:
    def __init__(self, a):
        self.a = a; self.t = 0; self.when = {}
    def ready(self, s, it):
        if it.t0 > self.t: return False
        if it.paced and s.budget < 1.0: return False
        return all(k in self.when and self.t >= self.when[k] + d for k, d in it.after.items())
    def put(self, s, it):
        for x in it.body: self.a(x, tag=it.tag)
        if it.name: self.when[it.name] = self.t
        s.i += 1
    def gap(self, streams, cap, dt=1, ds=1):
        used = 0
        for s in streams:
            s.budget = min(s.budget + s.rate * dt, s.burst + 1.0)
            n = 0
            while n < s.maxper:
                if s.done() and hasattr(s, 'refill'): s.refill()
                if s.done(): break
                it = s.items[s.i]
                if not self.ready(s, it): break
                if used + it.cost > cap and not (used == 0 and cap >= 2): break
                if it.ds:
                    if ds == 0: break
                    ds -= 1
                self.put(s, it); used += it.cost; n += 1
                if it.paced: s.budget -= 1.0
                if it.brk: break
        self.t += dt
    def flush(self, s, npaced=None):
        while npaced is None or npaced > 0:
            if s.done() and hasattr(s, 'refill'): s.refill(True)
            if s.done(): break
            it = s.items[s.i]
            assert all(k in self.when for k in it.after), (it.body, it.after)
            self.put(s, it)
            if it.paced and npaced is not None: npaced -= 1

def align_pass(lines, start_label, end_label, from_label):
    import subprocess, os, sys
    flat = []
    for l in lines: flat += l.split('\n')
    i0 = flat.index(start_label + ':'); i1 = flat.index(end_label + ':')
    src = '.amdgcn_target "amdgcn-amd-amdhsa--gfx950"\n.text\n' + '\n'.join(flat[i0:i1 + 1]) + '\n'
    p = f'al_{os.getpid()}'
    open(p + '.s', 'w').write(src)
    subprocess.run(['clang', '-x', 'assembler', '-target', 'amdgcn-amd-amdhsa', '-mcpu=gfx950', '-c', p + '.s', '-o', p + '.o'], check=True)
    dis = subprocess.run(['llvm-objdump', '-d', '--mcpu=gfx950', p + '.o'], capture_output=True, text=True).stdout
    os.remove(p + '.s'); os.remove(p + '.o')
    sizes = [4 * len(m.group(1).split()) for m in re.finditer(r'// [0-9A-F]{12}: ((?:[0-9A-F]{8} ?)+)', dis)]
    idx = [i for i in range(i0, i1) if flat[i].strip() and not flat[i].strip().endswith(':')]
    assert len(idx) == len(sizes), (len(idx), len(sizes))
    def widenable(t):
        op = t.split()[0]
        return op.startswith('v_') and not op.startswith(('v_readfirstlane', 'v_nop')) and not op.endswith(('_e64', '_dpp', '_sdwa'))
    phase = 0; nw = nn = miss = 0; k = 0; add = {}
    while k < len(idx):
        if sizes[k] == 4:
            j = k
            while j < len(idx) and sizes[j] == 4: j += 1
            run = range(k, j)
            phase = (phase + 4 * (j - k)) & 7
            if phase and j < len(idx) and idx[k] > flat.index(from_label + ':'):
                w = [q for q in run if widenable(flat[idx[q]].strip())]
                e = j
                while e < len(idx) and sizes[e] != 4: e += 1
                if w:
                    q = w[0] if (phase - 4 * (j - k)) & 7 == 0 else w[-1]
                    t = flat[idx[q]].strip().split(None, 1)
                    flat[idx[q]] = f'    {t[0]}_e64 {t[1]}'; phase = 0; nw += 1
                else:
                    txt = [flat[idx[q]].strip() for q in range(j, e)]
                    mf = any(x.startswith('v_mfma') for x in txt[:3])
                    prev = flat[idx[k - 1]].strip() if k else ''
                    last = flat[idx[j - 1]].strip()
                    room = mf and prev.startswith('v_mfma') and txt[0].startswith('v_mfma') and j - k <= 1
                    if ((not mf and e - j >= 6) or (room and e - j >= 4)) and not last.startswith(('s_branch', 's_endpgm')):
                        add[idx[j - 1]] = '    s_nop 0'; phase = 0; nn += 1
            k = j
        else:
            if phase: miss += 1
            phase = (phase + sizes[k]) & 7
            k += 1
    out = []
    for i, l in enumerate(flat):
        out.append(l)
        if i in add: out.append(add[i])
    sys.stderr.write(f'align: widened {nw}, nops {nn}, still misaligned {miss} of {sum(s != 4 for s in sizes)}\n')
    return out
```

```python
import sys, struct
from asmlib import *

NAME = "parallel_sum__sliding_local_dilated__swiglu_ffn__prompt"
LOG2E = 1.4426950408889634
def f2u(x): return struct.unpack('<I', struct.pack('<f', x))[0]
def hx(x): return f'0x{x & 0xffffffff:08x}'

OPT = dict(rotf='', rota='1.0.0.7.1', rate=0.25, arate=0.25, erate=0.3, w2s=19, w2g=40, npro=17, anpro=16, rot2=2, sleep=3,
           tc=2, atl=15, tl=15, nhb=12, pi=8, early=0, lag=90, touch='o:0:448', tn=4, tpos=20, tstep=4.0, nO=5, pad=256, otr=1, lt=0, ltr=128, zpos=0, align=1, of='', x='', ap=0, tk=5, elag=40)

SX, SG, SU, SH, SD, SO, SOUT, SDB = 24, 28, 32, 36, 40, 44, 48, 52
sR, sC, sTH, sCT, sW = 56, 57, 58, 59, 60
T0, T1, T2, T3 = 61, 62, 63, 64
sMX, sMW, sSO, sJ, sWO, sST, sSPIN = 65, 66, 67, 68, 69, 70, 71
sPL, sONE, sXJ, sWJ = 72, 73, 74, 75
sFH, sNO = 76, 78
sM0, sM1 = 80, 82
sRT = 4
sFL = 3

TH_BYTES = 5 * 72 * 1024
FH, FST, STATS, WS_USED = 0x930000, 8192, 0x93a000, 0x940000
OOB = 0x7ffffff0
MF = 'v_mfma_f32_16x16x32_bf16'

PROF = False; STAMPS = []; ENC = None; sP = 86
def stamp(a, i, real=False):
    if ENC:
        if i == 0 or i == ENC[0]:
            a.raw(f'    s_memrealtime s[84:85]\n    s_waitcnt lgkmcnt(0)\n    s_mov_b32 s{86 + (i != 0)}, s84'); a.lg = []
        return
    if not PROF: return
    if isinstance(i, str):
        if i not in STAMPS: return
        i = 2 + STAMPS.index(i)
    real = real or 'real' in STAMPS
    a.raw(f'    s_mem{"real" if real else ""}time s[84:85]\n    s_waitcnt lgkmcnt(0)\n    s_mov_b32 s{sP+i}, s84')
    a.lg = []
def dump(a):
    if ENC:
        l = f'Lenc{a.count}'
        stamp(a, 'end')
        a.raw(f'    s_cmp_eq_u32 s2, {ENC[1]}\n    s_cbranch_scc0 {l}_e\n    s_sub_u32 s87, s87, s86\n    s_min_u32 s87, s87, 5000\n    s_mul_i32 s87, s87, 10\n    s_memrealtime s[88:89]\n{l}:\n    s_memrealtime s[84:85]\n    s_waitcnt lgkmcnt(0)\n    s_sub_u32 s84, s84, s88\n    s_cmp_lt_u32 s84, s87\n    s_cbranch_scc1 {l}\n{l}_e:')
        return
    if not PROF: return
    a('s_waitcnt vmcnt(0)')
    stamp(a, 14); stamp(a, 15, True)
    a(f's_mov_b32 s{SH+2}, 0x2000000')
    a(f's_lshl_b32 s{T0}, s2, 2\ns_add_u32 s{T0}, s{T0}, s{sW}\ns_lshl_b32 s{T0}, s{T0}, 6\ns_add_u32 s{T0}, s{T0}, 0x1000000')
    for i in range(16): a(f'v_mov_b32 v{4+i}, s{sP+i}')
    a('v_mov_b32 v2, 0\ns_mov_b64 exec, 1')
    for i in range(4): a(f'buffer_store_dwordx4 v[{4+4*i}:{7+4*i}], v2, s[{SH}:{SH+3}], s{T0} offen offset:{16*i}')

def srd_c(dst, nbytes): return [f's_mov_b32 s{dst+2}, {nbytes}', f's_mov_b32 s{dst+3}, 0x20000']
def srd_p(dst, ptr, back=0):
    if back: return [[f's_sub_u32 s{dst}, s{ptr}, {back}', f's_subb_u32 s{dst+1}, s{ptr+1}, 0']]
    return [f's_mov_b64 s[{dst}:{dst+1}], s[{ptr}:{ptr+1}]']
def srd(dst, ptr, nbytes): return srd_p(dst, ptr) + srd_c(dst, nbytes)
def em(a, l, tag=None):
    for x in l:
        for y in ([x] if isinstance(x, str) else x): a(y, tag=tag)
def items(l, **k): return [Item(x, **k) for x in l]

SLOW = []
NL = '\n    '
def vec_check(name, loads, regs):
    t = [f'v_cmp_eq_u32 vcc, 0, v{regs[0]}']
    for r in regs[1:]: t += [f'v_cmp_eq_u32 s[{sM0}:{sM0+1}], 0, v{r}', 's_nop 1', f's_or_b64 vcc, vcc, s[{sM0}:{sM0+1}]']
    SLOW.append(f"""{name}:
    s_mov_b32 s{sSPIN}, 0
{name}_l:
    s_sleep 4
    {NL.join(loads)}
    s_add_u32 s{sSPIN}, s{sSPIN}, 1
    s_waitcnt vmcnt(0)
    {NL.join(t)}
    s_nop 4
    s_cbranch_vccz {name}_r
    s_cmp_lt_u32 s{sSPIN}, 0x40000
    s_cbranch_scc1 {name}_l
    s_branch {name}_r""")
    return t + ['s_nop 4', f's_cbranch_vccnz {name}', f'{name}_r:']
def preg(f): return 79 if f & 1 else sPL
def poll_issue(f): return f's_load_dword s{preg(f)}, s[{sFH}:{sFH+1}], {f*FST} glc'
def poll_check(name, f, want, first=()):
    SLOW.append(f"""{name}:
    {NL.join(list(first) + [f's_mov_b32 s{sSPIN}, 0'])}
{name}_l:
    {poll_issue(f)}
    s_add_u32 s{sSPIN}, s{sSPIN}, 1
    s_waitcnt lgkmcnt(0)
    s_cmp_eq_u32 s{preg(f)}, {want}
    s_cbranch_scc1 {name}_r
    s_sleep {OPT['sleep']}
    s_cmp_lt_u32 s{sSPIN}, 0x40000
    s_cbranch_scc1 {name}_l
    s_branch {name}_r""")
    return ['s_waitcnt lgkmcnt(0)', [f's_cmp_eq_u32 s{preg(f)}, {want}', f's_cbranch_scc0 {name}', f'{name}_r:']]

def decode_py(b):
    i, hf, q = b >> 3, (b >> 2) & 1, b & 3
    if i >= 23: return ('A', 9 * hf + i - 23, q)
    f = i + 23 * q
    if f >= 91: return None
    p = 91 * hf + f; th = (p * 9363) >> 16; ct = p - 7 * th
    l1 = 49 - 7 * hf; sec = int(f >= l1); f2 = f - (l1 if sec else 0)
    m, n = (37, 7) if (sec ^ hf) == 0 else (43, 6)
    c = (f2 * m) >> 8; r = f2 - n * c
    return ('F', r + (7 - sec) * hf, c + 7 * sec, th, ct)

ZD, ZT = 38, 46
ZL = 163840 - 128
def stats_addr(a):
    a(f's_and_b32 s{T3}, s2, 0xfe\ns_lshl1_add_u32 s{T3}, s{T3}, s{sW}\ns_and_b32 s{sSO}, s2, 1\ns_lshl2_add_u32 s{T3}, s{T3}, s{sSO}\ns_mul_i32 s{sST}, s{T3}, 896')
    a(f'v_lshrrev_b32 v{ZT}, 5, v0\nv_and_b32 v{ZT+1}, 31, v0\nv_mul_u32_u24 v{ZT+2}, 1792, v{ZT}\nv_cmp_gt_u32 vcc, 28, v{ZT+1}')
    a(f'v_lshl_add_u32 v{ZT+2}, v{ZT+1}, 4, v{ZT+2}\nv_mov_b32 v{ZT+3}, {OOB}\nv_cndmask_b32 v{ZT+2}, v{ZT+3}, v{ZT+2}, vcc')
def stats_load(a):
    a(f'buffer_load_dwordx4 {V(ZD, 4)}, v{ZT+2}, s[{SX}:{SX+3}], s{sST} offen', tag='z')
    a(f'buffer_load_dwordx4 {V(ZD+4, 4)}, v{ZT+2}, s[{SX}:{SX+3}], s{sST} offen offset:448', tag='z')
def stats_do(a):
    s, q, lo, hi = ZT + 4, ZT + 5, ZT + 6, ZT + 7
    a(f'v_and_b32 v{ZT+2}, 1, v0\nv_cmp_eq_u32 s[{sM0}:{sM0+1}], 1, v{ZT+2}\nv_lshlrev_b32 v{ZT+2}, 5, v{ZT+2}\nv_lshl_add_u32 v{ZT+2}, v{ZT}, 2, v{ZT+2}')
    a(f'v_bfe_u32 v{ZT+1}, v0, 4, 1\nv_lshlrev_b32 v{ZT+1}, 6, v{ZT+1}\nv_sub_u32 v{ZT+2}, v{ZT+2}, v{ZT+1}\ns_lshl3_add_u32 s{T0}, s{sW}, {ZL + 64}')
    a(f'v_cmp_eq_u32 vcc, 0, v0\nv_add_u32 v{ZT+2}, s{T0}, v{ZT+2}\nv_mov_b32 v{ZT}, 0\nv_cndmask_b32 v1, v{ZT+3}, v{ZT}, vcc')
    stamp(a, 'z0')
    a('@wait vm=z')
    stamp(a, 'z1')
    for k in range(8):
        r = ZD + k
        a(f'v_lshlrev_b32 v{lo}, 16, v{r}\nv_and_b32 v{hi}, 0xffff0000, v{r}')
        if k == 0: a(f'v_pk_add_f32 {V(ZT, 2)}, {V(lo, 2)}, 0\nv_pk_mul_f32 {V(s, 2)}, {V(lo, 2)}, {V(lo, 2)}')
        else: a(f'v_pk_add_f32 {V(ZT, 2)}, {V(ZT, 2)}, {V(lo, 2)}\nv_pk_fma_f32 {V(s, 2)}, {V(lo, 2)}, {V(lo, 2)}, {V(s, 2)}')
    a(f'v_add_f32 v{q}, v{s}, v{q}\nv_add_f32 v{s}, v{ZT}, v{ZT+1}')
    for ctl in ('quad_perm:[1,0,3,2] row_mask:0xf', 'quad_perm:[2,3,0,1] row_mask:0xf', 'row_half_mirror row_mask:0xf', 'row_mirror row_mask:0xf', 'row_bcast:15 row_mask:0xa'):
        for r in (q, s): a(f'v_add_f32_dpp v{r}, v{r}, v{r} {ctl} bank_mask:0xf')
    a(f'v_mul_f32 v{s}, {hx(f2u(1/448))}, v{s}\nv_mul_f32 v{q}, {hx(f2u(1/448))}, v{q}\nv_fma_f32 v{q}, -v{s}, v{s}, v{q}\nv_max_f32 v{q}, 0, v{q}')
    a(f'v_cvt_pk_bf16_f32 v{s}, -v{s}, v{q}\nv_and_b32 v{q}, 0xffff0000, v{s}\nv_lshlrev_b32 v{s}, 16, v{s}')
    a(f'v_add_f32 v{q}, {hx(f2u(1e-5))}, v{q}\nv_cvt_pk_bf16_f32 v{q}, v{q}, v{q}\nv_and_b32 v{q}, 0xffff0000, v{q}\nv_sqrt_f32 v{q}, v{q}')
    a(f'v_cvt_pk_bf16_f32 v{q}, v{q}, v{q}\nv_and_b32 v{q}, 0xffff0000, v{q}\nv_rcp_f32 v{q}, v{q}')
    a(f'v_cndmask_b32 v{s}, v{s}, v{q}, s[{sM0}:{sM0+1}]\nv_or_b32 v{s}, 1, v{s}')
    a(f'ds_write_b32 v{ZT+2}, v{s}')
    stamp(a, 'z2')
def cert_load(v): return f'buffer_load_dword v{v}, off, s[{SDB}:{SDB+3}], 0 sc1'
def stats_prep(vd, va):
    return [f'v_and_b32 v{va}, 3, v0', f'v_lshlrev_b32 v{va}, 4, v{va}', f'v_add_u32 v{va}, {ZL}, v{va}', f'ds_read_b128 {V(vd, 4)}, v{va}',
            f's_lshl_b32 s{T0}, s2, 6', f's_add_u32 s{T0}, s{T0}, {STATS - ZL}', [f's_cmp_eq_u32 s{sW}, 0', f's_cselect_b32 s{T0}, s{T0}, {OOB}'],
            f'v_add_u32 v{va}, s{T0}, v{va}', f'v_cmp_gt_u32 vcc, 4, v0', f'v_cndmask_b32 v{va}, v1, v{va}, vcc']
def stats_post(vd, va): return f'buffer_store_dwordx4 {V(vd, 4)}, v{va}, s[{SH}:{SH+3}], 0 offen sc1'
def stats_src(vd, vt):
    return [f'v_min_u32 v{vd}, 1023, v{vd}', f'v_and_b32 v{vt}, 7, v{vd}', f'v_lshrrev_b32 v{vd}, 3, v{vd}', f'v_lshlrev_b32 v{vd}, 7, v{vd}', f'v_lshl_add_u32 v{vd}, v{vt}, 2, v{vd}']
def sync_stream(pfx, G, src, loads, regs, writes, t_load, t_check):
    C, D = ZD + 5, ZD
    o = items(stats_prep(D, D + 4), tag='zg')
    o.append(Item(cert_load(C), tag='cert', t0=OPT['tc'] * G))
    o.append(Item(['@wait vm=cert lg=zg'] + vec_check(pfx + '_cert', [cert_load(C)], [C]), t0=(OPT['tc'] + OPT['tk']) * G + 2))
    o.append(Item(stats_post(D, D + 4)))
    o += items(src) + items(loads, tag='par', t0=t_load * G)
    o.append(Item(['@wait vm=par'] + vec_check(pfx + '_par', loads, regs), t0=t_check * G))
    return Stream(o + items(writes, tag='sw'))

def rot_init(a, spec, rowbytes):
    if not spec: return
    p, q, s, m, k = map(int, spec.split('.'))
    terms = [(c, r) for c, r in ((p, sR), (q, sC), (s, T1)) if c]
    src = terms[0][1]
    if terms[0][0] != 1 or len(terms) > 1:
        a(f's_mul_i32 s{sXJ}, s{src}, {terms[0][0]}'); src = sXJ
        for c, r in terms[1:]: a(f's_mul_i32 s{sWJ}, s{r}, {c}\ns_add_u32 s{sXJ}, s{sXJ}, s{sWJ}')
    a(f's_mul_i32 s{sWJ}, s{src}, {65536 // m + 1}\ns_lshr_b32 s{sWJ}, s{sWJ}, 16\ns_mul_i32 s{sWJ}, s{sWJ}, {m}\ns_sub_u32 s{sXJ}, s{src}, s{sWJ}')
    a(f's_mul_i32 s{sWJ}, s{sXJ}, {64*k*rowbytes}\ns_mul_i32 s{sXJ}, s{sXJ}, {128*k}')
def x_off(spec, j):
    if not spec: return [f's_movk_i32 s{sXJ}, {128*j}']
    return [f's_add_u32 s{sXJ}, s{sXJ}, 128', [f's_cmp_eq_u32 s{sXJ}, 896', f's_cselect_b32 s{sXJ}, 0, s{sXJ}']] if j else []
def w_off(spec, m, i, rowbytes, comp):
    if not spec: return [f's_mov_b32 s{sSO}, {(32*m + 16*i)*rowbytes - comp}']
    o = []
    if i == 0 and m and m % 2 == 0: o = [f's_add_u32 s{sWJ}, s{sWJ}, {64*rowbytes}', [f's_cmp_eq_u32 s{sWJ}, {448*rowbytes}', f's_cselect_b32 s{sWJ}, 0, s{sWJ}']]
    return o + [f's_add_u32 s{sSO}, s{sWJ}, {(32*(m&1) + 16*i)*rowbytes - comp}']

def add_touches(d, vb, vt, vdump):
    mats = dict(d=([0], 7), o=([18], 7))
    n = OPT['tn']; pieces = []
    for sp in [x for x in OPT['touch'].split(',') if x]:
        m, r0, r1 = sp.split(':')
        ptrs, lpr = mats[m]; l0 = int(r0) * lpr; l1 = int(r1) * lpr
        for l in range(l0, l1, 1024 * n):
            o = [f'v_add_u32 v{vt}, {l*128}, v{vb}'] + ([f'v_min_u32 v{vt}, {(l1-1)*128}, v{vt}'] if l + 1024 * n > l1 else [])
            for p in ptrs:
                pieces.append(items(o) + [Item(f'global_load_dword v{vdump}, v{vt}, s[{p}:{p+1}]', tag='touch')]); o = []
    ins = {}
    for k, p in enumerate(pieces): ins.setdefault(int(OPT['tpos'] + k * OPT['tstep']), []).extend(p)
    if pieces:
        ins[OPT['tpos']][:0] = items([f's_lshl2_add_u32 s79, s2, s{sW}', f's_mul_i32 s79, s79, {n}', f'v_min_u32 v{vb}, {n-1}, v0', f'v_add_lshl_u32 v{vb}, v{vb}, s79, 7'])
    out = []; k = 0; done = False
    for it in d:
        out.append(it)
        if it.paced:
            k += 1; out += ins.pop(k, [])
    return out
def keep_ptrs(a): a('s_mov_b64 s[0:1], s[16:17]\ns_mov_b64 s[18:19], s[8:9]')

XL = 54
def x_read_addr(a, XA, XB, t, octet_stride):
    a(f'v_and_b32 v{t}, 7, v0\nv_bfe_u32 v{t+1}, v0, 3, 1\nv_lshrrev_b32 v{t+2}, 4, v0\nv_bfe_u32 v{t+3}, v0, 1, 3')
    a(f'v_xor_b32 v{t+2}, v{t+2}, v{t+3}\nv_lshlrev_b32 v{t+2}, 4, v{t+2}\nv_lshl_add_u32 v{t+2}, v{t}, 7, v{t+2}')
    a(f'v_mul_u32_u24 v{t+1}, {octet_stride}, v{t+1}\nv_add_u32 v{XA}, v{t+1}, v{t+2}\nv_xor_b32 v{XA+1}, 64, v{XA}')
    a(f'v_and_b32 v{t+1}, 15, v0\nv_cmp_eq_u32 vcc, 15, v{t+1}\nv_mov_b32 v{t+3}, 0x100\nv_lshlrev_b32 v{t}, 4, v{t}\nv_cndmask_b32 v{t+3}, 0, v{t+3}, vcc')
    a(f'v_add_u32 v{XB}, v{XA}, v{t+3}\nv_add_u32 v{XB+1}, v{XA+1}, v{t+3}')
    for k in range(4): a(f'v_mov_b32 v{t+2+k}, 0x3f803f80')

def gemm1(a, S_, G, nt, nc, areads, breads, mfma, dma, others, checks):
    def rd(n):
        b = [Item(x, tag=f'b{n}_{q}') for q, x in enumerate(breads(n))]
        if n & 1: return b
        ar = items(areads(n >> 1), tag=f'b{n}_0')
        return ar[:4] + b[:1] + ar[4:] + b[1:]
    S_.flush(Stream(rd(0)))
    for n in range(28):
        grp = n & 1
        if n in checks: checks[n]()
        a(f'@wait lg=b{n}_{nt-1},sw' if n in checks else f'@wait lg=b{n}_{nt-1 if grp else 0}')
        stamp(a, f's{n}')
        rds = Stream(rd(n + 1) if n < 27 else [])
        for k in range(G):
            q, c = divmod(k, nc)
            a(mfma(n, q, c))
            if grp and k == 0:
                a(f'@wait vm=x{(n+1)>>2},w{(n>>1)+1}\ns_barrier'); S_.gap([], 0)
                continue
            wait = (c == nc - 1) and (k == G - 1 or not grp)
            urgent = rds.left() >= G - k - (2 if grp else 7)
            S_.gap(([rds, dma] if urgent else [dma, rds]) + others, 1 if wait else 2)
            if wait and k < G - 1: a(f'@wait lg=b{n}_{q+1}')
        assert rds.done(), (n, rds.left())

FXS = 162 * 128; FW0 = 2 * FXS; FPAR = FW0 + 7 * 16384
assert FPAR + 2048 <= ZL
def ffn(a):
    DV, RX, RW, RH, HV, PA, FV, DZ = 2, 6, 10, 14, 18, 19, 20, 21
    XV, WV, XA, XB, WA = 22, 27, 28, 30, 32
    E, O = 22, 30
    CS = 38; PR = 56; t = 56
    ACC = 96
    BF = (184, 204); AF = (224, 240)
    a(f's_mul_i32 s{sTH}, s{T1}, 91\ns_add_u32 s{sTH}, s{sTH}, s{T0}\ns_mul_i32 s{T2}, s{T1}, 7\ns_sub_u32 s{T2}, 49, s{T2}')
    a(f's_cmp_ge_u32 s{T0}, s{T2}\ns_cselect_b32 s{T3}, 7, 0\ns_cselect_b32 s{T2}, s{T2}, 0\ns_cselect_b32 s{sCT}, 6, 7\ns_cselect_b32 s{sMX}, 1, 0\ns_sub_u32 s{T0}, s{T0}, s{T2}')
    a(f's_cmp_eq_u32 s{sMX}, s{T1}\ns_cselect_b32 s{sR}, 37, 43\ns_cselect_b32 s{T2}, 7, 6')
    a(f's_mul_i32 s{sC}, s{T0}, s{sR}\ns_lshr_b32 s{sC}, s{sC}, 8\ns_mul_i32 s{T2}, s{T2}, s{sC}\ns_sub_u32 s{sR}, s{T0}, s{T2}')
    a(f's_add_u32 s{sC}, s{sC}, s{T3}\ns_mul_i32 s{sCT}, s{sCT}, s{T1}\ns_add_u32 s{sR}, s{sR}, s{sCT}')
    rot_init(a, OPT['rotf'], 3584)
    a(f'v_and_b32 v{t+1}, 15, v0\nv_lshl_add_u32 v{t}, v{XL+1}, 1, s{sWO}\nv_lshlrev_b32 v{t}, 1, v{t}\nv_xor_b32 v{t+1}, v{t+1}, v{t}')
    a(f's_mul_i32 s{T0}, s{sW}, 56\ns_add_u32 s{T0}, s{T0}, s{sC}\ns_lshl_b32 s{T0}, s{T0}, 8')
    a(f'v_mul_u32_u24 v{t+2}, 224, v{XL+1}\nv_add_lshl_u32 v{t+2}, v{t+1}, v{t+2}, 4\nv_add_u32 v{WV}, s{T0}, v{t+2}')
    a(f's_mul_i32 s{T2}, s{sR}, 158\ns_lshl4_add_u32 s{T2}, s{sWO}, s{T2}\ns_add_u32 s{T2}, s{T2}, s{sJ}\ns_mul_i32 s{T2}, s{T2}, 896\nv_add_u32 v{XV}, s{T2}, v{XL}')
    for i in range(1, 5): a(f'v_add_u32 v{XV+i}, {i*28672 - (i*1024 if i < 4 else 0)}, v{XV}')
    a(f's_mul_i32 s{sMX}, s{sW}, 5120\ns_lshl_b32 s{sMW}, s{sW}, 12\ns_add_u32 s{sMW}, s{sMW}, {FW0}')
    em(a, srd_c(SG, 448 * 3584) + srd_c(SU, 448 * 3584 + 1024))
    a('s_waitcnt lgkmcnt(0)')
    stamp(a, 'ka')
    em(a, srd_p(SX, 4))
    if not OPT['zpos']: stats_load(a)
    em(a, srd_p(SG, 12) + srd_p(SU, 14, back=1024))
    G = 20
    B = lambda m: (2 * m + 1) * G + 1 if m >= 0 else 0
    def xd(j):
        e = B(2 * j - 3); o = items(x_off(OPT['rotf'], j))
        for i in range(5):
            if i in (0, 4): o.append(Item(f's_add_u32 m0, s{sMX}, {(j&1)*FXS + i*1024}'))
            o.append(Item(f'buffer_load_dwordx4 v{XV+i}, s[{SX}:{SX+3}], s{sXJ} offen offset:{(i&3)*1024} lds', tag=f'x{j}', t0=e, paced=True))
        return o
    def wd(m):
        e = B(m - 4); o = [Item(f's_add_u32 m0, s{sMW}, {(m&3)*16384}', brk=False)]
        o[0].brk = False
        for i in range(2):
            o += items(w_off(OPT['rotf'], m, i, 3584, i*2048))
            o.append(Item(f'buffer_load_dwordx4 v{WV}, s[{SG}:{SG+3}], s{sSO} offen offset:{i*2048} lds', tag=f'w{m}', t0=e, paced=True))
            o.append(Item(f'buffer_load_dwordx4 v{WV}, s[{SU}:{SU+3}], s{sSO} offen offset:{i*2048 + 1024} lds', tag=f'w{m}', t0=e, paced=True))
        return o
    def wslot(k, free): return (RW if k < 4 else RH, (k & 3) * 16384, sMW, k * 16384, free)
    slots = [wslot(4, 0), wslot(5, 0), wslot(6, 0), wslot(2, B(10)), wslot(3, B(11)), (RX, FXS, sMX, FXS, B(11)), wslot(0, B(12)), wslot(1, B(13)), (RX, 0, sMX, 0, B(13))]
    kslot = []
    WX = 56
    def wfrag(kk, c):
        i = 16 * kk + 4 * c
        return (i, 'a') if i < 256 else (WX + i - 256, 'v')
    def w2d(kk):
        reg, off, base, moff, free = slots[kslot[kk]]
        prev = [k for k in range(kk) if kslot[k] == kslot[kk]]
        o = [Item(f's_add_u32 m0, s{base}, {moff}')]; o[0].brk = False
        if kk < 14: o += [Item(f's_mul_i32 s{sSO}, s{sRT+kk}, 28')]; sr = SD
        else: o += [Item(f's_mov_b32 s{sSO}, {28*(kk-14)*896}')]; sr = SO
        if prev: o.append(Item(f'@wait lg=t{prev[-1]}'))
        for i in range(4):
            o.append(Item(f'buffer_load_dwordx4 v{DZ if (kk >= 14 and i == 3) else DV+i}, s[{sr}:{sr+3}], s{sSO} offen offset:{i*1024} lds', tag=f'k{kk}', t0=free, paced=True, name=f'k{kk}' if i == 3 else None))
        return o
    def w2r(kk, lag):
        reg, off, base, moff, free = slots[kslot[kk]]
        o = [Item(f'@wait vm=k{kk}', after={f'k{kk}': lag})]
        for c in range(4):
            r, k = wfrag(kk, c)
            for jj in range(2):
                o.append(Item(f'ds_read_b64_tr_b16 {V(r + 2*jj, 2, k)}, v{reg+c} offset:{off + jj*2048}', tag=f't{kk}', name=f't{kk}' if (c, jj) == (3, 1) else None))
        return o
    d = add_touches(wd(0) + xd(0) + wd(1) + xd(1) + wd(2) + wd(3), 35, 36, 37)
    p1 = []
    for m in range(10):
        if m & 1: p1.append(xd((m + 3) // 2))
        p1.append(wd(m + 4))
    dma = Stream(d, rate=OPT['rate'])
    trs = Stream([])
    S_ = Sched(a)
    NT = 11
    st8 = dict(last=-999, lag=OPT['lag'])
    def refill(force=False):
        if p1 and p1[0][-1].t0 <= S_.t + 3:
            dma.items += p1.pop(0); return
        kk = len(kslot)
        if kk == 18 or S_.t < OPT['w2s'] * G or (p1 and S_.t < st8['last'] + OPT['w2g']): return
        for k, sl in enumerate(slots):
            prev = [q for q in range(kk) if kslot[q] == k]
            if sl[4] <= S_.t and (not prev or S_.when.get(f't{prev[-1]}', 1e9) + (0 if force else 5) <= S_.t):
                kslot.append(k); st8['last'] = S_.t
                dma.items += w2d(kk)
                if kk < NT: trs.items += w2r(kk, st8['lag'])
                return
    dma.refill = refill
    S_.flush(dma, 7)
    a.raw('L_f7:')
    stamp(a, 'i7')
    x_read_addr(a, XA, XB, t, 5120)
    for st in range(2): a(f'ds_write_b128 v{t}, v[{t+2}:{t+5}] offset:{st*FXS + 161*128}')
    u = t + 6
    a(f'v_bfe_u32 v{u}, v0, 4, 1\nv_bfe_u32 v{u+1}, v0, 2, 2\nv_lshrrev_b32 v{u+2}, 5, v0\nv_and_b32 v{u+3}, 3, v0')
    a(f'v_lshl_add_u32 v{u+4}, v{u+1}, 1, v{u}\ns_lshl_b32 s{T0}, s{sW}, 1\nv_xor_b32 v{u+4}, s{T0}, v{u+4}\nv_lshlrev_b32 v{u+4}, 5, v{u+4}')
    a(f'v_lshl_add_u32 v{u+4}, v{u+3}, 3, v{u+4}\nv_lshl_add_u32 v{u+4}, v{u+1}, 8, v{u+4}\nv_lshl_add_u32 v{u+4}, v{u+2}, 11, v{u+4}')
    a(f'v_lshl_add_u32 v{u+4}, v{u}, 13, v{u+4}\nv_add_u32 v{WA}, {FW0}, v{u+4}\nv_xor_b32 v{WA+1}, 32, v{WA}')
    S_.flush(dma, 2)
    if OPT['zpos']: stats_load(a)
    em(a, srd(SH, 22, WS_USED) + srd(SDB, 20, 256) + srd(SOUT, 18, 2048 * 896))
    a(f's_mul_i32 s{T0}, s{sW}, {448*896}\ns_add_u32 s{SD}, s16, s{T0}\ns_addc_u32 s{SD+1}, s17, 0')
    a(f's_mul_i32 s{T0}, s{sW}, {112*896}\ns_add_u32 s{SO}, s8, s{T0}\ns_addc_u32 s{SO+1}, s9, 0')
    em(a, srd_c(SD, 448 * 896) + srd_c(SO, 112 * 896))
    a(f's_mul_i32 s{T3}, s{sTH}, 9363\ns_lshr_b32 s{T3}, s{T3}, 16\ns_mul_i32 s{sCT}, s{T3}, 7\ns_sub_u32 s{sCT}, s{sTH}, s{sCT}\ns_mov_b32 s{sTH}, s{T3}')
    a(f'v_lshrrev_b32 v{u}, 3, v0\nv_and_b32 v{u+1}, 7, v0\nv_lshlrev_b32 v{u+2}, 1, v{XL+1}\nv_xor_b32 v{u+1}, v{u+1}, v{u+2}\nv_lshlrev_b32 v{u+1}, 4, v{u+1}')
    a(f'v_mul_u32_u24 v{u}, 896, v{u}\ns_lshl_b32 s{T3}, s{sCT}, 7\nv_add3_u32 v{DV}, v{u}, v{u+1}, s{T3}')
    for i in range(1, 4): a(f'v_add_u32 v{DV+i}, {6144*i}, v{DV}')
    a(f'v_cmp_gt_u32 vcc, 32, v0\nv_bfe_u32 v{u}, v0, 2, 3\nv_lshrrev_b32 v{u+1}, 5, v0\nv_cndmask_b32 v{DZ}, v{ZT+3}, v{DV+3}, vcc')
    a(f'v_and_b32 v{u+2}, 3, v0\nv_bfe_u32 v{u+3}, v0, 3, 2\nv_lshlrev_b32 v{u}, 7, v{u}\nv_lshl_add_u32 v{u}, v{u+1}, 10, v{u}')
    a(f'v_lshl_add_u32 v{u}, v{u+2}, 3, v{u}\nv_lshl_add_u32 v{u}, v{u+3}, 5, v{u}\nv_add_u32 v{RX}, s{sMX}, v{u}\nv_add_u32 v{RW}, s{sMW}, v{u}')
    for c in range(1, 4): a(f'v_xor_b32 v{RX+c}, {32*c}, v{RX}\nv_xor_b32 v{RW+c}, {32*c}, v{RW}')
    for c in range(4): a(f'v_add_u32 v{RH+c}, 0x10000, v{RW+c}')
    bg = []
    if OPT['rot2'] == 2:
        bg += [f's_and_b32 s{T3}, s2, 7', f's_mul_i32 s{T3}, s{T3}, 7', f's_lshr_b32 s{T3}, s{T3}, 2', f's_lshl_b32 s{sRT}, s{T3}, 10']
    elif OPT['rot2']:
        bg += [f's_mul_i32 s{T3}, s{sTH}, 5', f's_lshl1_add_u32 s{T3}, s{sCT}, s{T3}', f's_mul_i32 s{sRT}, s{T3}, 4682', f's_lshr_b32 s{sRT}, s{sRT}, 16',
               f's_mul_i32 s{sRT}, s{sRT}, 14', f's_sub_u32 s{sRT}, s{T3}, s{sRT}', f's_lshl_b32 s{sRT}, s{sRT}, 10']
    else:
        bg += [f's_mov_b32 s{sRT}, 0']
    for k in range(1, 14):
        bg += [f's_add_u32 s{sRT+k}, s{sRT+k-1}, 1024', [f's_cmp_eq_u32 s{sRT+k}, {14*1024}', f's_cselect_b32 s{sRT+k}, 0, s{sRT+k}']]
    bg += [f'v_lshlrev_b32 v{HV}, 4, v0', f'v_mov_b32 v{FV}, 1', f's_mov_b32 s{sONE}, 1',
           f'v_and_b32 v{PA}, 7, v0', f'v_bfe_u32 v{u}, v0, 3, 1', f'v_lshlrev_b32 v{PA}, 2, v{PA}', f'v_lshl_add_u32 v{PA}, v{u}, 10, v{PA}', f'v_add_u32 v{PA}, {FPAR}, v{PA}',
           f's_lshl2_add_u32 s{T3}, s{sC}, s{sW}', f's_mul_i32 s{sFL}, s{T3}, 4682', f's_lshr_b32 s{sFL}, s{sFL}, 16', f's_lshl2_add_u32 s{sFL}, s{sR}, s{sFL}',
           f's_lshl_b32 s{sFL}, s{sFL}, 7', f's_add_u32 s{sFL}, s{sFL}, {FH}', [f's_add_u32 s{sM1}, s22, s{sFL}', f's_addc_u32 s{sM1+1}, s23, 0'],
           f's_lshl_b32 s{T3}, s{T3}, 10', f's_mul_i32 s{sST}, s{sR}, {2*TH_BYTES}', f's_add_u32 s{sST}, s{sST}, s{T3}',
           f's_lshr_b32 s{T3}, s{sTH}, 1', f's_lshl2_add_u32 s{sFH}, s{T3}, s{sW}', f's_lshl_b32 s{sFH}, s{sFH}, 7', f's_add_u32 s{sFH}, s{sFH}, {FH}',
           [f's_add_u32 s{sFH}, s22, s{sFH}', f's_addc_u32 s{sFH+1}, s23, 0'],
           f's_mul_i32 s{T3}, s{T3}, 158', f's_add_u32 s{sNO}, s{T3}, {157-14}', f's_min_u32 s{sNO}, s{sNO}, {2047-14}', f's_mul_i32 s{sNO}, s{sNO}, 580', f's_lshr_b32 s{sNO}, s{sNO}, 16',
           f's_max_u32 s{T3}, s{T3}, 14', f's_sub_u32 s{T3}, s{T3}, 14', f's_mul_i32 s{T3}, s{T3}, 580', f's_lshr_b32 s{T3}, s{T3}, 16',
           f's_sub_u32 s{sNO}, s{sNO}, s{T3}', f's_lshl2_add_u32 s{sNO}, s{sNO}, 4',
           f's_mul_i32 s{sJ}, s{sTH}, {TH_BYTES}', f's_mul_i32 s{T3}, s{sW}, {14*1024}', f's_add_u32 s{sJ}, s{sJ}, s{T3}',
           f's_mul_i32 s{T3}, s{sW}, {10*1024}', f's_sub_u32 s{sWO}, {56*1024}, s{T3}']
    keep_ptrs(a); em(a, bg)
    if OPT['zpos']: S_.flush(dma, OPT['npro'] - 9)
    stats_do(a)
    if not OPT['zpos']: S_.flush(dma, OPT['npro'] - 9)

    tiles = [[(4, 1), (0, 1), (1, 1), (2, 1), (3, 1)], [(T, 0) for T in range(5)]]
    def breads(n):
        j, ks2, grp = n >> 2, (n >> 1) & 1, n & 1
        return [f'ds_read_b128 {A(BF[grp] + 4*k, 4)}, v{(XB if (T, h) == (4, 1) else XA) + ks2} offset:{(j&1)*FXS + (10*h + T)*1024}' for k, (T, h) in enumerate(tiles[grp])]
    def areads(m):
        return [f'ds_read_b64_tr_b16 {A(AF[m&1] + 8*mat + 4*uu + 2*jj, 2)}, v{WA + uu} offset:{(m&3)*16384 + jj*4096 + mat*1024}'
                for mat in range(2) for uu in range(2) for jj in range(2)]
    acc = lambda T, h: ACC + 16 * (2 * T + h)
    def mfma(n, q, c):
        dd = V(acc(*tiles[n&1][q]) + 4 * c, 4)
        return f'{MF} {dd}, {A(AF[(n>>1)&1] + 4*c, 4)}, {A(BF[n&1] + 4*q, 4)}, {dd if n > 1 else 0}'
    stamp(a, 'pre')
    a('@wait vm=x0,w0 lg=*\ns_barrier')
    stamp(a, 'b0')
    z = ZD + 6
    src = [f's_mul_i32 s{T0}, s{sR}, 79', f'v_add_u32 v{z}, s{T0}, v0', f'v_min_u32 v{z+1}, 15, v0', f'v_add3_u32 v{z+1}, v{z+1}, s{T0}, 64']
    src += stats_src(z, z + 2) + stats_src(z + 1, z + 2)
    src += [f's_and_b32 s{T0}, s{sW}, 1', f's_lshr_b32 s{T2}, s{sW}, 1', f's_lshl1_add_u32 s{T0}, s{T0}, s{T2}', f's_lshl_b32 s{T1}, s{T0}, 5',
            f's_add_u32 s{T1}, s{T1}, {STATS}', f's_lshl_b32 s{T0}, s{T0}, 9', f's_add_u32 s{T0}, s{T0}, {FPAR}', f'v_lshl_add_u32 v{z+2}, v0, 2, s{T0}']
    sy = sync_stream('Lf', G, src, [f'buffer_load_dword v{z+3+i}, v{z+i}, s[{SH}:{SH+3}], s{T1} offen sc1' for i in range(2)], [z + 3, z + 4],
                     [f'ds_write_b32 v{z+2}, v{z+3+i} offset:{256*i}' for i in range(2)], OPT['tl'], OPT['tl'] + OPT['tk'])
    pb = (OPT['tl'] + OPT['tk'] + 1) // 2
    par = []
    for T in range(5):
        for h in (1, 0):
            par.append(Item(f'ds_read2_b32 {V(PR + 4*(2*T + h), 2)}, v{PA} offset0:{16*T + 8*h} offset1:{128 + 16*T + 8*h}', t0=B(pb), tag='pr', name='pr' if (T, h) == (4, 0) else None))
    par.append(Item('@wait lg=pr', after={'pr': 6}))
    for T in range(5):
        for h in (1, 0):
            P = PR + 4 * (2 * T + h)
            par += items([f'v_mul_f32 v{P+2}, {hx(f2u(-LOG2E))}, v{P+1}', f'v_mul_f32 v{P+1}, v{P+1}, v{P+1}', f'v_rcp_f32 v{P+1}, v{P+1}'])
    par += [Item(f'v_mov_b32_dpp v{CS+k}, v{acc(4, 1)+k} row_newbcast:15 row_mask:0xf bank_mask:0xf', t0=26*G + 8) for k in range(16)]
    pars = Stream(par)
    def ck23(): assert sy.done()
    gemm1(a, S_, G, 5, 4, areads, breads, mfma, dma, [sy, pars, trs], {2*pb + 1: ck23})
    assert not p1
    ntr = sum(f't{k}' in S_.when for k in range(18))
    print('end of gemm: par left', pars.left(), 'groups', len(kslot), 'left in group', sum(x.paced for x in dma.items[dma.i:]), 'read', ntr, [S_.when.get(f'k{k}', 0) // G for k in range(18)], file=sys.stderr)
    NT = max(9, ntr + (trs.i % 9 > 0)); trs.items = trs.items[:9 * NT]; st8['lag'] = OPT['elag']
    S_.flush(pars)
    stamp(a, 'g1')
    l0 = len(a.lines)
    dma.rate = OPT['erate']
    for it in trs.items[trs.i:]:
        for k in it.after: it.after[k] = OPT['elag']
    def post(f): return [f'@wait vm=h{f}', f's_add_u32 s{T3}, s{sFL}, {f*FST}', f'buffer_atomic_add v{FV}, v1, s[{SH}:{SH+3}], s{T3} offen sc1']
    ACC2, HB, NHB = 176, 96, OPT['nhb']
    XO, XR, WRA, RDA, t = 22, 28, 38, 46, 48
    LEAD = NHB - 2
    nO = OPT['nO']
    hl = [(T, kk) for T in range(nO) for kk in range(14)] + [(T, kk) for T in range(nO) for kk in range(14, 18)] + [(T, kk) for T in range(nO, 5) for kk in range(18)]
    HA = 88
    def hload(i, ha=HA):
        T, kk = hl[i]
        if kk < 14: return f'buffer_load_dwordx4 {V(HB + 4*(i % NHB), 4)}, v{ha+T}, s[{SH}:{SH+3}], s{sRT+kk} offen sc1'
        return f'buffer_load_dwordx4 {V(HB + 4*(i % NHB), 4)}, v{ha+T}, s[{SH}:{SH+3}], s{sWO} offen offset:{(kk-14)*1024} sc1'
    for T in range(5):
        stamp(a, f'T{T}')
        for h in (1, 0):
            P = PR + 4 * (2 * T + h); dd = acc(T, h); OO = O + 4 * h
            ops = []
            for k in range(0, 16, 2): ops.append(f'v_pk_fma_f32 {V(dd+k, 2)}, {V(CS+k, 2)}, {V(P, 2)}, {V(dd+k, 2)} op_sel_hi:[1,0,1]')
            for k in range(0, 8, 2): ops.append(f'v_pk_mul_f32 {V(E+k, 2)}, {V(dd+k, 2)}, {V(P+2, 2)} op_sel_hi:[1,0]')
            for k in range(8): ops.append(f'v_exp_f32 v{E+k}, v{E+k}')
            for k in range(0, 8, 2): ops.append(f'v_pk_mul_f32 {V(dd+k, 2)}, {V(dd+k, 2)}, {V(dd+8+k, 2)}')
            for k in range(0, 8, 2): ops.append(f'v_pk_fma_f32 {V(E+k, 2)}, {V(E+k, 2)}, {V(P, 2)}, {V(P, 2)} op_sel:[0,1,1] op_sel_hi:[1,1,1]')
            for k in range(8): ops.append(f'v_rcp_f32 v{E+k}, v{E+k}')
            for k in range(0, 8, 2): ops.append(f'v_pk_mul_f32 {V(dd+k, 2)}, {V(dd+k, 2)}, {V(E+k, 2)}')
            ops.append(f's_add_u32 s{T2}, s{sST}, {h*TH_BYTES + T*72*1024}')
            for k in range(4): ops.append(f'v_cvt_pk_bf16_f32 v{OO+k}, v{dd+2*k}, v{dd+2*k+1}')
            n2 = 2 * T + 1 - h
            if n2 == OPT['pi']:
                while len(kslot) < 18 or not trs.done():
                    S_.flush(dma); S_.flush(trs)
                a('@wait lg=*'); a(poll_issue(0))
            acc_c = 0
            for x in ops:
                a(x)
                if x.startswith(TRANS): S_.gap([dma, trs], 2)
            if n2 == 9: S_.flush(dma)
            a(f'buffer_store_dwordx4 {V(OO, 4)}, v{HV}, s[{SH}:{SH+3}], s{T2} offen sc1', tag=f'h{T}')
            if n2 in (4, 6, 8): em(a, post(n2 // 2 - 2)); stamp(a, f'F{n2//2-2}')
    if OPT['x']:
        pats = dict(s='buffer_store', t='ds_read_b64_tr', d='buffer_load', v='v_')
        a.lines[l0:] = [l for l in a.lines[l0:] if not any(l.strip().startswith(pats[c]) for c in OPT['x'])]
    stamp(a, 'e1')
    fin = f's_atomic_add s{sONE}, s[{sM1}:{sM1+1}], {3*FST}'
    early = ['s_waitcnt vmcnt(0)', fin, 's_waitcnt lgkmcnt(0)', f's_mov_b32 s{sONE}, 0'] if OPT['early'] else []
    a(f'v_add_u32 v{HA}, s{sJ}, v{HV}')
    em(a, poll_check('Lf_p0', 0, 14, early))
    stamp(a, 'p0')
    a(poll_issue(1))
    rest = Stream(sum((w2r(kk, 0) for kk in range(NT, 18)), []))
    for i in range(LEAD):
        a(hload(i), tag=f'g{i}'); S_.gap([rest], 4, ds=4)
    S_.flush(rest)
    stamp(a, 'tr')
    bg2 = [f'v_add_u32 v{HA+T}, {T*72*1024}, v{HA}' for T in range(1, 5)]
    bg2 += f"""s_lshr_b32 s{T0}, s{sTH}, 1
s_mul_i32 s{T0}, s{T0}, 158
s_and_b32 s{T1}, s{sTH}, 1
s_and_b32 s{T2}, s{sW}, 1
s_lshl1_add_u32 s{T1}, s{T1}, s{T2}
s_lshr_b32 s{T3}, s{sW}, 1
s_lshl3_add_u32 s{T1}, s{T1}, s{T3}
v_lshl_add_u32 v{t}, v{XL+1}, 1, s{T1}
v_add_u32 v{t+1}, s{T0}, v{t}
v_mul_u32_u24 v{t+1}, 896, v{t+1}
v_and_b32 v{t+3}, 15, v0
v_lshlrev_b32 v{t+2}, 3, v{t+3}
s_lshl_b32 s{T0}, s{sCT}, 7
v_add3_u32 v{XO}, v{t+1}, v{t+2}, s{T0}""".split('\n')
    bg2 += [f'v_add_u32 v{XO+T}, {32*896*T}, v{XO}' for T in range(1, 5)]
    bg2 += f"""v_cmp_gt_u32 vcc, 30, v{t}
v_mov_b32 v{t+1}, {OOB}
v_and_b32 v{t+2}, 7, v0
v_cndmask_b32 v{XO+4}, v{t+1}, v{XO+4}, vcc
v_xor_b32 v{t+1}, v{XL+1}, v{t+2}
v_lshlrev_b32 v{t+1}, 4, v{t+1}
v_lshl_add_u32 v{t}, v{t+3}, 8, v{t+1}
s_lshl_b32 s{T0}, s{sW}, 12
v_add_u32 v{WRA}, s{T0}, v{t}""".split('\n')
    bg2 += [f'v_xor_b32 v{WRA+c}, {64*c}, v{WRA}' for c in range(1, 4)] + [f'v_add_u32 v{WRA+4+c}, 0x10000, v{WRA+c}' for c in range(4)]
    bg2 += f"""s_lshl_b32 s{T0}, s{sW}, 2
v_add_u32 v{t}, s{T0}, v{XL+1}
v_and_b32 v{t+1}, 7, v{t}
v_xor_b32 v{t+1}, v{t+1}, v{t+3}
v_lshlrev_b32 v{t+1}, 4, v{t+1}
v_lshl_add_u32 v{RDA}, v{t}, 8, v{t+1}
v_add_u32 v{RDA+1}, 0x10000, v{RDA}""".split('\n')
    em(a, bg2[:1]); bg2s = Stream(items(bg2[1:])); bg2s.items[-1].name = 'bg2'
    em(a, poll_check('Lf_p1', 1, 14, early))
    stamp(a, 'p1')
    a('@wait vm=h4')
    stamp(a, 'e2')
    a(fin)
    pre = {}
    def guard(name, f, want, first):
        stp = first - LEAD - 1
        pre.setdefault(stp - 8, []).append(poll_issue(f)); pre.setdefault(stp, []).extend(poll_check(name, f, want))
        return stp
    guard('Lf_p2', 2, 14, hl.index((2, 0)))
    i3, iO = hl.index((3, 0)), hl.index((0, 14))
    if i3 > iO: i3 = iO - 9
    lastg = max(guard('Lf_p3', 3, 14, i3), guard('Lf_p4', 4, f's{sNO}', iO))
    first_done = hl.index((0, 17))
    assert lastg < first_done
    pre.setdefault(first_done, []).append('s_barrier')
    t_base = S_.t
    xr = Stream([Item(f'buffer_load_dwordx2 {V(XR + 2*T, 2)}, v{XO+T}, s[{SX}:{SX+3}], 0 offen', tag=f'xr{T}', t0=t_base + 4*(24 + 3*T), after={'bg2': 0}) for T in range(5)])
    RD = (144, 160); U = 48
    def wr(T): return [Item(f'ds_write_b128 v{WRA + c + (4 if T == 4 else 0)}, {V(ACC2 + 16*T + 4*c, 4)} offset:{(T & 3)*16384}', tag=f'pw{T}', paced=True, name=f'pw{T}' if c == 3 else None) for c in range(4)]
    def rdp(T): return [Item(f'ds_read_b128 {V(RD[T&1] + 4*w, 4)}, v{RDA + (T == 4)} offset:{(T & 3)*16384 + w*4096}', tag=f'p{T}', name=f'p{T}' if w == 3 else None) for w in range(4)]
    def unp(T):
        x = XR + 2 * T
        return [f'@wait vm=xr{T}', f'v_lshlrev_b32 v{U}, 16, v{x}', f'v_and_b32 v{U+1}, 0xffff0000, v{x}', f'v_lshlrev_b32 v{U+2}, 16, v{x+1}', f'v_and_b32 v{U+3}, 0xffff0000, v{x+1}']
    def fin2(T, pk):
        x = XR + 2 * T; b = RD[T & 1]
        if pk: o = [f'v_pk_add_f32 {V(U+k, 2)}, {V(U+k, 2)}, {V(b+4*w+k, 2)}' for w in range(4) for k in (0, 2)]
        else: o = [f'v_add_f32 v{U+k}, v{U+k}, v{b+4*w+k}' for w in range(4) for k in range(4)]
        return o + [f'v_cvt_pk_bf16_f32 v{x}, v{U}, v{U+1}', f'v_cvt_pk_bf16_f32 v{x+1}, v{U+2}, v{U+3}', f'buffer_store_dwordx2 {V(x, 2)}, v{XO+T}, s[{SOUT}:{SOUT+3}], 0 offen {OPT["of"].replace("+", " ")}']
    assert NHB <= 12
    wrs = Stream([], rate=0.27, burst=0.1); red = Stream([])
    shadow = [T for T in range(5) if len(hl) - hl.index((T, 17)) > 16]
    for i, (T, kk) in enumerate(hl):
        a(f'@wait vm=g{i}')
        stamp(a, f'h{i}')
        fx = Stream(([Item(hload(i + LEAD), tag=f'g{i+LEAD}')] if i + LEAD < len(hl) else []) + items(pre.get(i, [])))
        for c in range(4):
            r, k = wfrag(kk, c)
            dd = V(ACC2 + 16 * T + 4 * c, 4)
            a(f'{MF} {dd}, {V(r, 4, k)}, {V(HB + 4*(i % NHB), 4)}, {dd if kk else 0}')
            S_.gap([fx, wrs, xr, bg2s, red], 2 if c < 3 else 1)
        S_.flush(fx)
        if kk == 17:
            w_ = wr(T); w_[0].t0 = S_.t + 1
            wrs.items += w_
            if T in shadow:
                red.items += [Item([f'@wait lg=pw{T}', 's_barrier'], after={f'pw{T}': 6}, t0=S_.t + 18)] + rdp(T) + items(unp(T)) + [Item(f'@wait lg=p{T}', after={f'p{T}': 5})] + items(fin2(T, False))
    S_.flush(wrs); S_.flush(red)
    todo = [T for T in range(5) if T not in shadow]
    em(a, unp(todo[0]))
    a('s_waitcnt lgkmcnt(0)\ns_barrier')
    stamp(a, 'red')
    S_.flush(Stream(rdp(todo[0])))
    for k, T in enumerate(todo):
        if k + 1 < len(todo): S_.flush(Stream(rdp(todo[k + 1])))
        if k: em(a, unp(T))
        a(f'@wait lg=p{T}')
        em(a, fin2(T, True))

AXS = 130 * 128; AW0 = 3 * AXS; APAR = AW0 + 4 * 24576
def attn(a, split):
    XV, WV, XA, XB, WA = 2, 4, 7, 9, 11
    PA, RA, CB = 15, 16, 17
    OA = 20
    MK = 28
    CV = 36
    PR = 38
    t = 56
    Q, K, V0, V1 = 64, 128, 192, 224
    BF = (0, 16); AF = (32, 56)
    a(f's_mul_i32 s{sR}, s{T1}, 9\ns_add_u32 s{sR}, s{sR}, s{T0}\ns_sub_u32 s{sR}, s{sR}, 23')
    rot_init(a, OPT['rota'], 2688)
    a(f'v_lshl_add_u32 v{t}, v{XL+1}, 1, s{sWO}\nv_lshlrev_b32 v{t}, 1, v{t}\nv_sub_u32 v{t+1}, v0, v{t}\nv_and_b32 v{t+1}, 15, v{t+1}\nv_min_u32 v{t+1}, 13, v{t+1}')
    a(f's_mul_i32 s{T0}, s{sW}, 48\ns_add_u32 s{T0}, s{T0}, s{sC}\ns_mul_i32 s{T0}, s{T0}, 224')
    a(f'v_mul_u32_u24 v{t+2}, 168, v{XL+1}\nv_add_lshl_u32 v{t+2}, v{t+1}, v{t+2}, 4\nv_add_u32 v{WV+2}, s{T0}, v{t+2}')
    a(f'v_add_u32 v{WV+1}, 128, v{WV+2}\nv_add_u32 v{WV}, 256, v{WV+2}')
    a(f's_mul_i32 s{sMW}, s{sW}, 6144\ns_add_u32 s{sMW}, s{sMW}, {AW0}')
    em(a, srd_c(SG, 448 * 2688 + 256))
    a('s_waitcnt lgkmcnt(0)')
    stamp(a, 'ka')
    em(a, srd_p(SX, 4)); stats_load(a)
    em(a, srd_p(SG, 6, back=256))
    G = 24
    B = lambda m: (2 * m + 1) * G + 1 if m >= 0 else 0
    def xd(j):
        o = items(x_off(OPT['rota'], j))
        for i in range(4):
            if i % 2 == 0: o.append(Item(f's_add_u32 m0, s{sMX}, {(j%3)*AXS + (i>>1)*(2048 - 896)}'))
            o.append(Item(f'buffer_load_dwordx4 v{XV + (i&1)}, s[{SX}:{SX+3}], s{sXJ} offen offset:{(i&1)*1024 + (i>>1)*896} lds', tag=f'x{j}', t0=B(2*j - 5), paced=True))
        return o
    def wd(h):
        o = []
        for i in range(2):
            o.append(Item(f's_add_u32 m0, s{sMW}, {(h%4)*24576 + i*3072}')); o[-1].brk = False
            o += items(w_off(OPT['rota'], h, i, 2688, 0))
            o += [Item(f'buffer_load_dwordx4 v{WV+m}, s[{SG}:{SG+3}], s{sSO} offen offset:{m*1024} lds', tag=f'w{h}', t0=B(h - 4), paced=True) for m in range(3)]
        return o
    d = wd(0) + xd(0) + wd(1)
    for h in range(2, 14):
        if h % 2 == 0: d += xd(h // 2)
        d += wd(h)
    d = add_touches(d, 36, 18, 19)
    if OPT['ap']:
        k0 = OPT['ap']; n = (14 - k0) * 224; per = -(-n // 9)
        d += items([f's_and_b32 s79, s2, 7', f's_mul_i32 s79, s79, 7', f's_lshr_b32 s79, s79, 2', f's_add_u32 s79, s79, {k0}', f's_mul_i32 s79, s79, 224',
                    f's_lshr_b32 s{sPL}, s2, 3', f's_sub_u32 s{sPL}, s{sPL}, 23', f's_mul_i32 s{sSPIN}, s{sPL}, {per}', f's_add_u32 s79, s79, s{sSPIN}', f's_mul_i32 s{sSPIN}, s{sW}, 3136'])
        for k in range(0, per, 64):
            d += items([f'v_min_u32 v18, {min(63, per - 1 - k)}, v0', f'v_add_u32 v18, s79, v18', f'v_subrev_u32 v36, 3136, v18', 'v_min_u32 v18, v18, v36', f'v_subrev_u32 v36, 3136, v18', 'v_min_u32 v18, v18, v36',
                        f'v_add_lshl_u32 v18, v18, s{sSPIN}, 7', 's_add_u32 s79, s79, 64']) + [Item('global_load_dword v19, v18, s[0:1]', paced=True)]
        d += items([f's_mul_i32 s79, s{sPL}, 88', f's_mul_i32 s{sSPIN}, s{sW}, 784'])
        for k in (0, 44):
            d += items([f'v_min_u32 v18, 43, v0', f'v_add3_u32 v18, v18, s79, {k}', 'v_min_u32 v18, 783, v18', f'v_add_lshl_u32 v18, v18, s{sSPIN}, 7']) + [Item('global_load_dword v19, v18, s[18:19]', paced=True, name='apd')]
    dma = Stream(d, rate=OPT['arate'])
    S_ = Sched(a)
    S_.flush(dma, 6)
    split()
    stamp(a, 'i7')
    a(f's_mul_i32 s{T2}, s{sR}, 113\ns_lshl4_add_u32 s{T2}, s{sW}, s{T2}\ns_mul_i32 s{T2}, s{T2}, 896\ns_lshl_b32 s{sMX}, s{sW}, 12')
    a(f'v_add_u32 v{XV}, s{T2}, v{XL}\nv_add_u32 v{XV+1}, {64*896 - 1024}, v{XV}')
    S_.flush(dma, 2)
    em(a, srd(SH, 22, WS_USED) + srd(SDB, 20, 256)); keep_ptrs(a)
    x_read_addr(a, XA, XB, t, 4096)
    for st in range(3): a(f'ds_write_b128 v{t}, v[{t+2}:{t+5}] offset:{st*AXS + 129*128}')
    u = 20
    a(f'v_bfe_u32 v{u}, v0, 4, 1\nv_bfe_u32 v{u+1}, v0, 2, 2\nv_lshrrev_b32 v{u+2}, 5, v0\nv_and_b32 v{u+3}, 3, v0')
    a(f'v_lshl_add_u32 v{u+4}, v{u+1}, 1, v{u}\nv_lshl_add_u32 v{u+4}, v{u+4}, 2, v{u+3}\ns_mul_i32 s{T0}, s{sW}, 56\nv_lshl_add_u32 v{u+4}, v{u+4}, 3, s{T0}')
    a(f'v_add_u32 v{u+5}, 32, v{u+4}\nv_and_b32 v{u+4}, 0xff, v{u+4}\nv_and_b32 v{u+5}, 0xff, v{u+5}')
    a(f'v_mul_u32_u24 v{u}, 12288, v{u}\nv_mul_u32_u24 v{u+2}, 3072, v{u+2}\nv_lshl_add_u32 v{u}, v{u+1}, 8, v{u}\nv_add_u32 v{u}, v{u}, v{u+2}\nv_add_u32 v{u}, {AW0}, v{u}')
    a(f'v_add_u32 v{WA}, v{u}, v{u+4}\nv_add_u32 v{WA+1}, v{u}, v{u+5}\nv_add_u32 v{WA+2}, 49152, v{WA}\nv_add_u32 v{WA+3}, 49152, v{WA+1}')
    stats_do(a)
    S_.flush(dma, OPT['anpro'] - 8)

    tiles = [[7, 4, 5, 6], [0, 1, 2, 3]]
    def breads(n):
        j, ks2, grp = n >> 2, (n >> 1) & 1, n & 1
        return [f'ds_read_b128 {A(BF[grp] + 4*k, 4)}, v{(XB if T == 7 else XA) + ks2} offset:{(j%3)*AXS + (8*(T&1) + (T>>1))*1024}' for k, T in enumerate(tiles[grp])]
    def areads(h):
        o = []
        for mat in range(3):
            for ct in range(2):
                for jj in range(2):
                    off = (h % 4) * 24576 + jj * 6144 + mat * 1024
                    o.append(f'ds_read_b64_tr_b16 {A(AF[h&1] + 8*mat + 4*ct + 2*jj, 2)}, v{WA + ct + (2 if off >= 49152 else 0)} offset:{off % 49152}')
        return o
    def acc(T, c): return (Q + 8*T, Q + 8*T + 4, K + 8*T, K + 8*T + 4, V0 + 4*T, V1 + 4*T)[c]
    def mfma(n, q, c):
        dd = V(acc(tiles[n&1][q], c), 4); w_, x_ = A(AF[(n>>1)&1] + 4*c, 4), A(BF[n&1] + 4*q, 4)
        return f'{MF} {dd}, {w_ if c < 4 else x_}, {x_ if c < 4 else w_}, {dd if n > 1 else 0}'
    stamp(a, 'pre')
    a('@wait vm=x0,w0 lg=*\ns_barrier')
    stamp(a, 'b0')
    bg = [f'v_and_b32 v{t}, 15, v0', f'v_lshlrev_b32 v{PA}, 2, v{t}', f'v_add_u32 v{PA}, {APAR}, v{PA}',
          f'v_lshlrev_b32 v{RA}, 4, v{XL+1}', f'v_add_u32 v{RA}, {APAR}, v{RA}', f'v_cmp_gt_u32 s[{sM1}:{sM1+1}], 48, v0',
          f'v_lshlrev_b32 v{t+1}, 2, v{XL+1}', f'v_sub_u32 v{t+1}, v{t}, v{t+1}', f'v_mov_b32 v{t+3}, {hx(f2u(-1e30))}']
    for i in range(8):
        bg += [f'v_add_u32 v{t+2}, {(16 if i < 4 else 0) - (i & 3)}, v{t+1}', f'v_cmp_gt_u32 s[{sM0}:{sM0+1}], 8, v{t+2}',
               f'v_cndmask_b32 v{MK+i}, v{t+3}, 0, s[{sM0}:{sM0+1}]']
    kA, kB, kC, kD = sTH, sCT, sJ, sWO
    bg += [f's_mul_i32 s{kD}, s{sR}, 113', f's_lshl2_add_u32 s{T3}, s{sC}, s{sW}', f's_add_u32 s{T3}, s{T3}, 56', f's_lshl_b32 s{sST}, s{T3}, 10',
           [f's_cmp_eq_u32 s{sR}, 0', f's_cselect_b32 s{T3}, 0, 14'], f's_mov_b32 s{kA}, 26547', f's_mov_b32 s{kB}, {TH_BYTES}', f's_mov_b32 s{kC}, {72*1024}',
           f'v_mov_b32 v{t+7}, {OOB}']
    for p in range(2):
        bg += [f'v_lshl_add_u32 v{t+1}, v0, 1, {p}', f'v_add_u32 v{t+2}, s{kD}, v{t+1}', f'v_mul_u32_u24 v{t+3}, s{kA}, v{t+2}', f'v_lshrrev_b32 v{t+3}, 22, v{t+3}',
               f'v_mul_u32_u24 v{t+4}, 158, v{t+3}', f'v_sub_u32 v{t+2}, v{t+2}, v{t+4}',
               f'v_bfe_u32 v{t+4}, v{t+2}, 4, 1', f'v_lshl_add_u32 v{t+3}, v{t+3}, 1, v{t+4}', f'v_mul_u32_u24 v{t+3}, s{kB}, v{t+3}',
               f'v_lshrrev_b32 v{t+4}, 5, v{t+2}', f'v_mad_u32_u24 v{t+3}, v{t+4}, s{kC}, v{t+3}',
               f'v_bfe_u32 v{t+4}, v{t+2}, 1, 3', f'v_lshl_add_u32 v{t+3}, v{t+4}, 4, v{t+3}', f'v_and_b32 v{t+4}, 1, v{t+2}', f'v_lshl_add_u32 v{OA+p}, v{t+4}, 7, v{t+3}',
               f'v_cmp_le_u32 s[{sM0}:{sM0+1}], s{T3}, v{t+1}', f'v_cndmask_b32 v{OA+p}, v{t+7}, v{OA+p}, s[{sM0}:{sM0+1}]']
    bg += [f'v_cmp_gt_u32 s[{sM0}:{sM0+1}], 63, v0', f'v_cndmask_b32 v{OA+1}, v{t+7}, v{OA+1}, s[{sM0}:{sM0+1}]']
    bg += [f's_add_u32 s{T3}, s{T3}, s{kD}', f's_mul_i32 s{T3}, s{T3}, 26547', f's_lshr_b32 s{T3}, s{T3}, 22', f's_add_u32 s{kD}, s{kD}, 126', f's_mul_i32 s{kD}, s{kD}, 26547',
           f's_lshr_b32 s{kD}, s{kD}, 22', f's_sub_u32 s{kD}, s{kD}, s{T3}', f'v_cmp_ge_u32 s[{sM0}:{sM0+1}], s{kD}, v0', f'v_lshlrev_b32 v{CB}, 9, v0',
           f's_lshl2_add_u32 s{T3}, s{T3}, s{sC}', f's_lshl_b32 s{T3}, s{T3}, 7', f's_add_u32 s{sFL}, s{T3}, {FH + 4*FST}',
           f'v_cndmask_b32 v{CB}, v{t+7}, v{CB}, s[{sM0}:{sM0+1}]']
    bgs = Stream(items(bg))
    z = ZD + 6
    src = [f's_and_b32 s{T0}, s{sW}, 1', f's_mul_i32 s{T1}, s{sR}, 113', f's_add_u32 s{T1}, s{T1}, s{T0}', f's_lshr_b32 s{T2}, s{T1}, 1', f'v_add_u32 v{z}, s{T2}, v0']
    src += stats_src(z, z + 1)
    src += [f's_and_b32 s{T1}, s{T1}, 1', f's_lshr_b32 s{T2}, s{sW}, 1', f's_lshl1_add_u32 s{T1}, s{T1}, s{T2}', f's_lshl_b32 s{T1}, s{T1}, 5',
            f's_add_u32 s{T1}, s{T1}, {STATS}', f's_lshl1_add_u32 s{T0}, s{T0}, s{T2}', f's_lshl_b32 s{T0}, s{T0}, 8', f's_add_u32 s{T0}, s{T0}, {APAR}',
            f'v_lshl_add_u32 v{z+1}, v0, 2, s{T0}']
    sy = sync_stream('La', G, src, [f'buffer_load_dword v{z+2}, v{z}, s[{SH}:{SH+3}], s{T1} offen sc1'], [z + 2], [f'ds_write_b32 v{z+1}, v{z+2}'], OPT['atl'], OPT['atl'] + 5)
    par = [Item(f'ds_read2_b32 {V(PR + 2*T, 2)}, v{PA} offset0:{128*(T>>2) + 16*(T&3)} offset1:{64 + 128*(T>>2) + 16*(T&3)}', t0=B(12)) for T in range(8)]
    CQ, CK = 2, 54
    par += [Item(f'v_mov_b32_dpp v{CK+k}, v{K+56+k} row_newbcast:15 row_mask:0xf bank_mask:0xf', t0=26*G + 10) for k in range(8)]
    for c, sv in enumerate((V0 + 31, V1 + 31)):
        par += items([f'v_mov_b32 v62, v{sv}', f'v_mov_b32 v63, v{sv}', 'v_permlane32_swap_b32 v62, v63', f'v_mov_b32 v{CV+c}, v63', f'v_permlane16_swap_b32 v63, v{CV+c}'])
    par += [Item(f'v_mov_b32_dpp v{CQ+k}, v{Q+56+k} row_newbcast:15 row_mask:0xf bank_mask:0xf', t0=27*G) for k in range(8)]
    pars = Stream(par)
    def ck25(): assert sy.done() and bgs.done() and dma.done()
    gemm1(a, S_, G, 4, 6, areads, breads, mfma, dma, [sy, pars, bgs], {25: ck25})
    assert dma.done()
    S_.flush(pars)
    a('@wait lg=*')
    stamp(a, 'g1')
    for T in range(8):
        P = PR + 2 * T; dd = Q + 8 * T
        for k in range(0, 8, 2): a(f'v_pk_fma_f32 {V(dd+k, 2)}, {V(CQ+k, 2)}, {V(P, 2)}, {V(dd+k, 2)} op_sel_hi:[1,0,1]')
        dk = K + 8 * T
        for k in range(0, 8, 2): a(f'v_pk_fma_f32 {V(dk+k, 2)}, {V(CK+k, 2)}, {V(P, 2)}, {V(dk+k, 2)} op_sel_hi:[1,0,1]')
        for k in range(4): a(f'v_cvt_pk_bf16_f32 v{Q+4*T+k}, v{dd+2*k}, v{dd+2*k+1}')
        for k in range(0, 8, 2): a(f'v_pk_mul_f32 {V(dk+k, 2)}, {V(dk+k, 2)}, {V(P, 2)} op_sel:[0,1] op_sel_hi:[1,1]')
        for k in (2, 3): a(f'v_cndmask_b32 v{Q+4*T+k}, 0, v{Q+4*T+k}, s[{sM1}:{sM1+1}]')
        for k in range(4): a(f'v_cvt_pk_bf16_f32 v{K+4*T+k}, v{dk+2*k}, v{dk+2*k+1}')
    def SR(T): return (Q + 32 + 8 * T) if T < 4 else (K + 32 + 8 * (T - 4))
    RB = (2, 54)
    def rread(T):
        for ar in range(2): a(f'ds_read_b128 {V(RB[T&1] + 4*ar, 4)}, v{RA} offset:{512*(T>>2) + 256*ar + 64*(T&3)}', tag=f'R{T}')
    rread(0); rread(1)
    for T in range(8):
        if T & 3: a(f'{MF} {V(SR(T), 4)}, {V(K + 4*(T-1), 4)}, {V(Q + 4*T, 4)}, {V(MK, 4)}')
        a(f'{MF} {V(SR(T) + 4, 4)}, {V(K + 4*T, 4)}, {V(Q + 4*T, 4)}, {V(MK + 4, 4)}')
        a(f'v_mul_f32 v{PR + 2*T + 1}, {hx(f2u(LOG2E * 28 ** -0.5))}, v{PR + 2*T + 1}')
    MX = 10
    mx = [10, 11, 12, 13, 22, 23, 24, 25]
    for T in range(8):
        a(f'@wait lg=R{T}')
        b = RB[T & 1]
        for c, base in enumerate((V0, V1)):
            for k in (0, 2): a(f'v_pk_fma_f32 {V(base+4*T+k, 2)}, {V(b+k, 2)}, {V(CV, 2)}, {V(base+4*T+k, 2)} op_sel:[0,{c},0] op_sel_hi:[1,{c},1]')
        for c, base in enumerate((V0, V1)):
            for k in (0, 2): a(f'v_pk_mul_f32 {V(base+4*T+k, 2)}, {V(base+4*T+k, 2)}, {V(b+4+k, 2)}')
        if T < 6: rread(T + 2)
        for c, base in enumerate((V0, V1)):
            for k in range(2): a(f'v_cvt_pk_bf16_f32 v{base+2*T+k}, v{base+4*T+2*k}, v{base+4*T+2*k+1}')
        s = SR(T); m = mx[T]
        if T & 3: a(f'v_max3_f32 v{m}, v{s}, v{s+1}, v{s+2}\nv_max3_f32 v{m}, v{m}, v{s+3}, v{s+4}\nv_max3_f32 v{m}, v{m}, v{s+5}, v{s+6}\nv_max_f32 v{m}, v{m}, v{s+7}')
        else: a(f'v_max3_f32 v{m}, v{s+4}, v{s+5}, v{s+6}\nv_max_f32 v{m}, v{m}, v{s+7}')
    stamp(a, 'e1')
    for b in (0, 2, 4, 6): a(f'v_permlane32_swap_b32 v{mx[b]}, v{mx[b+1]}')
    for b in (0, 2, 4, 6): a(f'v_max_f32 v{mx[b]}, v{mx[b]}, v{mx[b+1]}')
    for b in (0, 4): a(f'v_permlane16_swap_b32 v{mx[b]}, v{mx[b+2]}')
    for b in (0, 4): a(f'v_max_f32 v{mx[b]}, v{mx[b]}, v{mx[b+2]}')
    for b in (0, 4): a(f'v_mov_b32 v{mx[b+2]}, v{mx[b]}')
    ONE = 54; PF = 56; OT = K
    for k in range(2): a(f'v_mov_b32 v{2+k}, 0x3f803f80')
    for b in (0, 4): a(f'v_permlane16_swap_b32 v{mx[b]}, v{mx[b+2]}')
    for b in (0, 2, 4, 6): a(f'v_mov_b32 v{mx[b+1]}, v{mx[b]}')
    for k in range(2, 4): a(f'v_mov_b32 v{2+k}, 0x3f803f80')
    ONE = 2
    for b in (0, 2, 4, 6): a(f'v_permlane32_swap_b32 v{mx[b]}, v{mx[b+1]}')
    for T in range(8): a(f'v_mul_f32 v{PR + 2*T}, v{mx[T]}, v{PR + 2*T + 1}')
    def pf(T): return PF + 4 * (T & 1)
    def soft(T):
        s = SR(T); P = PR + 2 * T
        lo = 0 if T & 3 else 4
        for k in range(lo, 8, 2): a(f'v_pk_fma_f32 {V(s+k, 2)}, {V(s+k, 2)}, {V(P, 2)}, {V(P, 2)} op_sel:[0,1,0] op_sel_hi:[1,1,0] neg_lo:[0,0,1] neg_hi:[0,0,1]')
        return [f'v_exp_f32 v{s+k}, v{s+k}' for k in range(lo, 8)]
    def pack(T):
        s = SR(T)
        if T & 3:
            for k in range(4): a(f'v_cvt_pk_bf16_f32 v{pf(T)+k}, v{s+2*k}, v{s+2*k+1}')
        else:
            for k in range(2): a(f'v_cvt_pk_bf16_f32 v{pf(T)+k}, v{s+4+2*k}, v{s+5+2*k}')
            a(f'v_mov_b32 v{pf(T)+2}, 0\nv_mov_b32 v{pf(T)+3}, 0')
    def OB(T): return OT + 12 * (T & 1)
    def pv(T):
        v = 2 * (T - 1) if T & 3 else 2 * T
        o = OB(T)
        return [f'{MF} {V(o + 8, 4)}, {V(ONE, 4)}, {V(pf(T), 4)}, 0', f'{MF} {V(o, 4)}, {V(V0 + v, 4)}, {V(pf(T), 4)}, 0', f'{MF} {V(o + 4, 4)}, {V(V1 + v, 4)}, {V(pf(T), 4)}, 0']
    def fin(T):
        o = OB(T); R = Q + 4 * T
        a(f'v_rcp_f32 v{o+8}, v{o+8}')
        for k in range(0, 8, 2): a(f'v_pk_mul_f32 {V(o+k, 2)}, {V(o+k, 2)}, {V(o+8, 2)} op_sel_hi:[1,0]')
        for k in range(4): a(f'v_cvt_pk_bf16_f32 v{R+k}, v{o+2*k}, v{o+2*k+1}')
        if T & 3 == 3:
            R0 = R - 12
            for k in range(4):
                for q in (0, 1): a(f'v_permlane32_swap_b32 v{R0+4*q+k}, v{R0+4*(q+2)+k}')
            for q in (0, 2):
                for k in range(4): a(f'v_permlane16_swap_b32 v{R0+4*q+k}, v{R0+4*(q+1)+k}')
                for g in (q, q + 1): a(f'buffer_store_dwordx4 {V(R0+4*g, 4)}, v{OA + (T>>2)}, s[{SH}:{SH+3}], s{sST} offen offset:{256*g} sc1', tag='o')
    for T in range(9):
        ex = soft(T) if T < 8 else []
        mm = pv(T - 1) if T else []
        for x in mm:
            a(x)
            if ex: a(ex.pop(0))
        em(a, ex)
        if T < 8: pack(T)
        if T: fin(T - 1)
    stamp(a, 'e2')
    a(f'v_mov_b32 v2, 1\ns_waitcnt vmcnt(0)\nbuffer_atomic_add v2, v{CB}, s[{SH}:{SH+3}], s{sFL} offen sc1')

def desc(name):
    return f""".amdhsa_kernel {name}
  .amdhsa_next_free_vgpr 512
  .amdhsa_next_free_sgpr 102
  .amdhsa_accum_offset 256
  .amdhsa_group_segment_fixed_size 0
  .amdhsa_kernarg_size 80
  .amdhsa_user_sgpr_count 2
  .amdhsa_user_sgpr_kernarg_segment_ptr 1
  .amdhsa_system_sgpr_workgroup_id_x 1
  .amdhsa_float_denorm_mode_32 3
.end_amdhsa_kernel
"""

def build():
    del SLOW[:]
    hdr = open('cdna_kernels/' + NAME + '.s.ref').read().split('; Override launch')[0]
    k1 = NAME + '_kernel'
    out = hdr + '; @launch grid=(256,1,1) block=(256,1,1) lds=163840\n.amdgcn_target "amdgcn-amd-amdhsa--gfx950"\n.text\n'
    c = Asm()
    c.raw(f'.globl {k1}\n.type {k1},@function\n.p2align 10\n.fill {OPT["pad"] // 4}, 4, 0xbf810000\n.p2align 8\n{k1}:')
    c('s_cmp_ge_u32 s2, 256\ns_cbranch_scc1 L_done')
    if PROF: c.raw(f'    s_mem{"real" if "real" in STAMPS else ""}time s[86:87]\n    s_memrealtime s[84:85]\n    s_waitcnt lgkmcnt(0)\n    s_mov_b32 s87, s84')
    else: stamp(c, 0)
    c('s_load_dwordx16 s[4:19], s[0:1], 0\ns_load_dwordx4 s[20:23], s[0:1], 64')
    per = 11
    c(f's_getpc_b64 s[{sFH}:{sFH+1}]\nv_lshrrev_b32 v1, 6, v0\nv_and_b32 v0, 63, v0\ns_lshr_b32 s{T0}, s2, 3\ns_mul_i32 s{T1}, s{T0}, {per}')
    c(f'v_min_u32 v{XL}, {per-1}, v0\nv_readfirstlane_b32 s{sW}, v1\nv_add_lshl_u32 v{XL}, v{XL}, s{T1}, 7')
    c(f'global_load_dword v37, v{XL}, s[{sFH}:{sFH+1}] offset:896', tag='pf')
    stats_addr(c); em(c, srd_c(SX, 2048 * 896))
    c(f's_and_b32 s{sJ}, s{sW}, 1\ns_lshr_b32 s{sWO}, s{sW}, 1\ns_lshl_b32 s{T2}, s{sJ}, 2')
    c(f'v_lshrrev_b32 v{XL}, 3, v0\nv_and_b32 v1, 7, v0\nv_lshrrev_b32 v{XL+1}, 4, v0\nv_mul_u32_u24 v{XL}, 112, v{XL}\nv_xor_b32 v1, s{T2}, v1')
    c(f's_bfe_u32 s{T1}, s2, 0x10002\ns_and_b32 s{sC}, s2, 3\nv_xor_b32 v1, v1, v{XL+1}\ns_cmp_lt_u32 s{T0}, 23\nv_add_lshl_u32 v{XL}, v{XL}, v1, 4\ns_cbranch_scc1 L_ffn')
    aa = Asm(); aa.vm = ['pf']
    cut = []
    def split():
        aa('s_branch L_attn'); cut.append(len(aa.lines)); aa.label('L_attn')
    attn(aa, split); dump(aa); aa('s_endpgm')
    f = Asm(); f.vm = ['pf']
    f.label('L_ffn')
    f(f's_mul_i32 s{T2}, s{sC}, 23\ns_add_u32 s{T0}, s{T0}, s{T2}\ns_cmp_ge_u32 s{T0}, 91\ns_cbranch_scc1 L_idle')
    ffn(f); dump(f)
    f.label('L_done'); f('s_endpgm')
    a = Asm(); a.vm = ['pf']
    a.label('L_idle')
    a(f's_cmp_eq_u32 s{T1}, 0\ns_cselect_b32 s{T1}, 0, {OOB}\ns_lshl_b32 s{T0}, s{sW}, 12\ns_add_u32 s{T0}, s{T0}, {STATS}\ns_mul_i32 s{T2}, s{sW}, {FST}\ns_add_u32 s{T2}, s{T2}, {FH}')
    a(f's_cmp_eq_u32 s{sW}, 0\ns_cselect_b32 s{T3}, s{T1}, {OOB}\ns_mov_b32 s{sMX}, {FH + 4*FST}')
    a(f'v_lshl_add_u32 v2, v0, 4, s{T1}\nv_lshl_add_u32 v3, v0, 7, s{T1}\nv_lshl_add_u32 v9, v0, 7, s{T3}\nv_mov_b32 v4, 0\nv_mov_b32 v5, 0\nv_mov_b32 v6, 0\nv_mov_b32 v7, 0')
    a('s_waitcnt lgkmcnt(0)')
    em(a, srd(SH, 22, WS_USED))
    a(f'buffer_store_dword v4, v3, s[{SH}:{SH+3}], s{T2} offen sc1\nbuffer_store_dword v4, v9, s[{SH}:{SH+3}], s{sMX} offen sc1')
    for i in range(4): a(f'buffer_store_dwordx4 v[4:7], v2, s[{SH}:{SH+3}], s{T0} offen offset:{i*1024} sc1')
    em(a, srd(SDB, 20, 256) + srd_p(SX, 4))
    a(f'v_mov_b32 v8, 1\nv_lshl_add_u32 v9, v0, 8, s{T3}')
    a(f's_waitcnt vmcnt(0)\ns_barrier\nbuffer_store_dword v8, v9, s[{SDB}:{SDB+3}], 0 offen sc1')
    stats_load(a); stats_do(a)
    a('s_waitcnt lgkmcnt(0)\ns_barrier')
    em(a, stats_prep(ZD, ZD + 4))
    a(cert_load(ZD + 5)); a('s_waitcnt vmcnt(0) lgkmcnt(0)')
    em(a, vec_check('Li_cert', [cert_load(ZD + 5)], [ZD + 5])); a(stats_post(ZD, ZD + 4)); a('s_endpgm')
    for s in SLOW: a.raw(s)
    a.raw('L_end:\n.fill 3072, 4, 0xbf810000')
    sys.stderr.write(f'instr: ffn {f.count} attn {aa.count}; nops {f.nops} {aa.nops}\n')
    lines = c.lines + aa.lines[:cut[0]] + f.lines + aa.lines[cut[0]:] + a.lines
    if OPT['align']: lines = align_pass(lines, k1, 'L_end')
    text = '\n'.join(lines) + '\n'
    return out + text + '.section .rodata,"a"\n.p2align 6\n' + desc(k1)

if __name__ == '__main__':
    args = sys.argv[1:]
    for x in [x for x in args if x.startswith('enc:')]:
        args.remove(x); ENC = (x.split(':')[1], int(x.split(':')[2]))
    for x in [x for x in args if x.startswith('st:')]:
        PROF = True; args.remove(x); STAMPS[:] = x[3:].split(',')
    for x in [x for x in args if '=' in x]:
        k, v = x.split('='); args.remove(x)
        OPT[k] = type(OPT[k])(v) if not isinstance(OPT[k], bool) else v == '1'
    roles = [decode_py(b) for b in range(256)]
    F = [r for r in roles if r and r[0] == 'F']; Aa = [r for r in roles if r and r[0] == 'A']
    assert sorted((r[1], r[2]) for r in F) == [(r, c) for r in range(13) for c in range(14)]
    assert sorted((r[3], r[4]) for r in F) == [(t, c) for t in range(26) for c in range(7)]
    assert sorted((r[1], r[2]) for r in Aa) == [(x, g) for x in range(18) for g in range(4)]
    assert all(((t * 26547) >> 22) == t // 158 for t in range(2200))
    assert all(((t * 4682) >> 16) == t // 14 for t in range(140))
    for r in range(13):
        need = {0 if tk < 127 else (tk - 14) // 113 for tk in range(158 * r, min(158 * r + 158, 2048))}
        assert len(need) == ((min(158 * r + 143, 2033) * 580) >> 16) - (((max(158 * r, 14) - 14) * 580) >> 16) + 1
        assert need == {x for x in range(18) if ((113 * x + (14 if x else 0)) // 158) <= r <= (113 * x + 126) // 158}
    open(args[0] if args else 'cdna_kernels/' + NAME + '.s', 'w').write(build())
```

```python
import sys, struct
from asmlib import *

NAME = "parallel_sum__sliding_local_dilated__swiglu_ffn__prompt"
LOG2E = 1.4426950408889634
def f2u(x): return struct.unpack('<I', struct.pack('<f', x))[0]
def hx(x): return f'0x{x & 0xffffffff:08x}'

OPT = dict(rotf='', rota='1.0.0.7.1', rate=0.25, rate2=0.18, rate3=0.25, rs=4, arate=0.2, erate=0.25, w2s=19, w2g=40, npro=17, anpro=16, rot2=2, sleep=3,
           tc=4, atc=1, atl=15, tl=15, nhb=12, pi=8, early=0, lag=90, touch='o:0:448', tn=4, tpos=20, tstep=4.0, nO=4, pad=256, otr=1, lt=0, ltr=128, zpos=0, align=1, lead=8, fm=2, am=2, arate0=0.3, fd=3, ad_=2, chain=1, zpad=1, of='sc1', xo=0, sf='sc1', wso=0, diag=0, roto=0, aw=96, ad=0, awp=0, ol=0, nochk=0, x='', ap=0, tk=5, elag=40)

SX, SG, SU, SH, SD, SO, SOUT, SDB = 24, 28, 32, 36, 40, 44, 48, 52
sR, sC, sTH, sCT, sW = 56, 57, 58, 59, 60
T0, T1, T2, T3 = 61, 62, 63, 64
sMX, sMW, sSO, sJ, sWO, sST, sSPIN = 65, 66, 67, 68, 69, 70, 71
sPL, sONE, sXJ, sWJ = 72, 73, 74, 75
sFH, sNO = 76, 78
sM0, sM1 = 80, 82
sRT = 4
sFL = 3

TH_BYTES = 5 * 72 * 1024
FH, FST, STATS, WS_USED = 0x930000, 8192, 0x93a000, 0x940000
OOB = 0x7ffffff0
MF = 'v_mfma_f32_16x16x32_bf16'

PROF = False; STAMPS = []; ENC = None; sP = 86
def stamp(a, i, real=False):
    if ENC:
        if i == 0 or i == ENC[0]:
            a.raw(f'    s_memrealtime s[84:85]\n    s_waitcnt lgkmcnt(0)\n    s_mov_b32 s{86 + (i != 0)}, s84'); a.lg = []
        return
    if not PROF: return
    if isinstance(i, str):
        if i not in STAMPS: return
        i = 2 + STAMPS.index(i)
    real = real or 'real' in STAMPS
    a.raw(f'    s_mem{"real" if real else ""}time s[84:85]\n    s_waitcnt lgkmcnt(0)\n    s_mov_b32 s{sP+i}, s84')
    a.lg = []
def dump(a):
    if ENC:
        l = f'Lenc{a.count}'
        stamp(a, 'end')
        a.raw(f'    s_cmp_eq_u32 s2, {ENC[1]}\n    s_cbranch_scc0 {l}_e\n    s_sub_u32 s87, s87, s86\n    s_min_u32 s87, s87, 5000\n    s_mul_i32 s87, s87, 10\n    s_memrealtime s[88:89]\n{l}:\n    s_memrealtime s[84:85]\n    s_waitcnt lgkmcnt(0)\n    s_sub_u32 s84, s84, s88\n    s_cmp_lt_u32 s84, s87\n    s_cbranch_scc1 {l}\n{l}_e:')
        return
    if not PROF: return
    a('s_waitcnt vmcnt(0)')
    stamp(a, 14); stamp(a, 15, True)
    a(f's_mov_b32 s{SH+2}, 0x2000000')
    a(f's_lshl_b32 s{T0}, s2, 2\ns_add_u32 s{T0}, s{T0}, s{sW}\ns_lshl_b32 s{T0}, s{T0}, 6\ns_add_u32 s{T0}, s{T0}, 0x1000000')
    for i in range(16): a(f'v_mov_b32 v{4+i}, s{sP+i}')
    a('v_mov_b32 v2, 0\ns_mov_b64 exec, 1')
    for i in range(4): a(f'buffer_store_dwordx4 v[{4+4*i}:{7+4*i}], v2, s[{SH}:{SH+3}], s{T0} offen offset:{16*i}')

def srd_c(dst, nbytes): return [f's_mov_b32 s{dst+2}, {nbytes}', f's_mov_b32 s{dst+3}, 0x20000']
def srd_p(dst, ptr, back=0):
    if back: return [[f's_sub_u32 s{dst}, s{ptr}, {back}', f's_subb_u32 s{dst+1}, s{ptr+1}, 0']]
    return [f's_mov_b64 s[{dst}:{dst+1}], s[{ptr}:{ptr+1}]']
def srd(dst, ptr, nbytes): return srd_p(dst, ptr) + srd_c(dst, nbytes)
def em(a, l, tag=None):
    for x in l:
        for y in ([x] if isinstance(x, str) else x): a(y, tag=tag)
def items(l, **k): return [Item(x, **k) for x in l]

SLOW = []
NL = '\n    '
def mark(): return f'{NL}s_bitset1_b32 s99, {len(SLOW)}' if PROF and len(STAMPS) < 12 else ''
def vec_check(name, loads, regs):
    t = [f'v_cmp_eq_u32 vcc, 0, v{regs[0]}']
    for r in regs[1:]: t += [f'v_cmp_eq_u32 s[{sM0}:{sM0+1}], 0, v{r}', 's_nop 1', f's_or_b64 vcc, vcc, s[{sM0}:{sM0+1}]']
    SLOW.append(f"""{name}:{mark()}
    s_mov_b32 s{sSPIN}, 0
{name}_l:
    s_sleep 4
    {NL.join(loads)}
    s_add_u32 s{sSPIN}, s{sSPIN}, 1
    s_waitcnt vmcnt(0)
    {NL.join(t)}
    s_nop 4
    s_cbranch_vccz {name}_r
    s_cmp_lt_u32 s{sSPIN}, 0x40000
    s_cbranch_scc1 {name}_l
    s_branch {name}_r""")
    return t + ['s_nop 4', f's_cbranch_vccnz {name}', f'{name}_r:']
def preg(f): return 79 if f & 1 else sPL
def poll_issue(f): return f's_load_dword s{preg(f)}, s[{sFH}:{sFH+1}], {f*FST} glc'
def poll_check(name, f, want, first=()):
    SLOW.append(f"""{name}:{mark()}
    {NL.join(list(first) + [f's_mov_b32 s{sSPIN}, 0'])}
{name}_l:
    {poll_issue(f)}
    s_add_u32 s{sSPIN}, s{sSPIN}, 1
    s_waitcnt lgkmcnt(0)
    s_cmp_eq_u32 s{preg(f)}, {want}
    s_cbranch_scc1 {name}_r
    s_sleep {OPT['sleep']}
    s_cmp_lt_u32 s{sSPIN}, 0x40000
    s_cbranch_scc1 {name}_l
    s_branch {name}_r""")
    return ['s_waitcnt lgkmcnt(0)', [f's_cmp_eq_u32 s{preg(f)}, {want}', f's_cbranch_scc0 {name}', f'{name}_r:']]

def decode_py(b):
    i, hf, q = b >> 3, (b >> 2) & 1, b & 3
    if i >= 23: return ('A', 9 * hf + i - 23, q)
    f = i + 23 * q
    if f >= 91: return None
    p = 91 * hf + f; th = (p * 9363) >> 16; ct = p - 7 * th
    l1 = 49 - 7 * hf; sec = int(f >= l1); f2 = f - (l1 if sec else 0)
    m, n = (37, 7) if (sec ^ hf) == 0 else (43, 6)
    c = (f2 * m) >> 8; r = f2 - n * c
    return ('F', r + (7 - sec) * hf, c + 7 * sec, th, ct)

ZD, ZT = 38, 46
ZL = 163840 - 128
def stats_addr(a):
    a(f's_and_b32 s{T3}, s2, 0xfe\ns_lshl1_add_u32 s{T3}, s{T3}, s{sW}\ns_and_b32 s{sSO}, s2, 1\ns_lshl2_add_u32 s{T3}, s{T3}, s{sSO}\ns_mul_i32 s{sST}, s{T3}, 896')
    a(f'v_lshrrev_b32 v{ZT}, 5, v0\nv_and_b32 v{ZT+1}, 31, v0\nv_mul_u32_u24 v{ZT+2}, 1792, v{ZT}\nv_cmp_gt_u32 vcc, 28, v{ZT+1}')
    a(f'v_lshl_add_u32 v{ZT+2}, v{ZT+1}, 4, v{ZT+2}\nv_mov_b32 v{ZT+3}, {OOB}\nv_cndmask_b32 v{ZT+2}, v{ZT+3}, v{ZT+2}, vcc')
def stats_load(a):
    a(f'buffer_load_dwordx4 {V(ZD, 4)}, v{ZT+2}, s[{SX}:{SX+3}], s{sST} offen', tag='z')
    a(f'buffer_load_dwordx4 {V(ZD+4, 4)}, v{ZT+2}, s[{SX}:{SX+3}], s{sST} offen offset:448', tag='z')
def stats_do(a):
    s, q, lo, hi = ZT + 4, ZT + 5, ZT + 6, ZT + 7
    a(f'v_and_b32 v{ZT+2}, 1, v0\nv_cmp_eq_u32 s[{sM0}:{sM0+1}], 1, v{ZT+2}\nv_lshlrev_b32 v{ZT+2}, 5, v{ZT+2}\nv_lshl_add_u32 v{ZT+2}, v{ZT}, 2, v{ZT+2}')
    a(f'v_bfe_u32 v{ZT+1}, v0, 4, 1\nv_lshlrev_b32 v{ZT+1}, 6, v{ZT+1}\nv_sub_u32 v{ZT+2}, v{ZT+2}, v{ZT+1}\ns_lshl3_add_u32 s{T0}, s{sW}, {ZL + 64}')
    a(f'v_cmp_eq_u32 vcc, 0, v0\nv_add_u32 v{ZT+2}, s{T0}, v{ZT+2}\nv_mov_b32 v{ZT}, 0\nv_cndmask_b32 v1, v{ZT+3}, v{ZT}, vcc')
    stamp(a, 'z0')
    a('@wait vm=z')
    stamp(a, 'z1')
    for k in range(8):
        r = ZD + k
        a(f'v_lshlrev_b32 v{lo}, 16, v{r}\nv_and_b32 v{hi}, 0xffff0000, v{r}')
        if k == 0: a(f'v_pk_add_f32 {V(ZT, 2)}, {V(lo, 2)}, 0\nv_pk_mul_f32 {V(s, 2)}, {V(lo, 2)}, {V(lo, 2)}')
        else: a(f'v_pk_add_f32 {V(ZT, 2)}, {V(ZT, 2)}, {V(lo, 2)}\nv_pk_fma_f32 {V(s, 2)}, {V(lo, 2)}, {V(lo, 2)}, {V(s, 2)}')
    a(f'v_add_f32 v{q}, v{s}, v{q}\nv_add_f32 v{s}, v{ZT}, v{ZT+1}')
    for ctl in ('quad_perm:[1,0,3,2] row_mask:0xf', 'quad_perm:[2,3,0,1] row_mask:0xf', 'row_half_mirror row_mask:0xf', 'row_mirror row_mask:0xf', 'row_bcast:15 row_mask:0xa'):
        for r in (q, s): a(f'v_add_f32_dpp v{r}, v{r}, v{r} {ctl} bank_mask:0xf')
    a(f'v_mul_f32 v{s}, {hx(f2u(1/448))}, v{s}\nv_mul_f32 v{q}, {hx(f2u(1/448))}, v{q}\nv_fma_f32 v{q}, -v{s}, v{s}, v{q}\nv_max_f32 v{q}, 0, v{q}')
    a(f'v_cvt_pk_bf16_f32 v{s}, -v{s}, v{q}\nv_and_b32 v{q}, 0xffff0000, v{s}\nv_lshlrev_b32 v{s}, 16, v{s}')
    a(f'v_add_f32 v{q}, {hx(f2u(1e-5))}, v{q}\nv_cvt_pk_bf16_f32 v{q}, v{q}, v{q}\nv_and_b32 v{q}, 0xffff0000, v{q}\nv_sqrt_f32 v{q}, v{q}')
    a(f'v_cvt_pk_bf16_f32 v{q}, v{q}, v{q}\nv_and_b32 v{q}, 0xffff0000, v{q}\nv_rcp_f32 v{q}, v{q}')
    a(f'v_cndmask_b32 v{s}, v{s}, v{q}, s[{sM0}:{sM0+1}]\nv_or_b32 v{s}, 1, v{s}')
    a(f'ds_write_b32 v{ZT+2}, v{s}')
    stamp(a, 'z2')
def cert_load(v): return f'buffer_load_dword v{v}, off, s[{SDB}:{SDB+3}], 0 sc1'
def stats_prep(vd, va):
    return [f'v_and_b32 v{va}, 3, v0', f'v_lshlrev_b32 v{va}, 4, v{va}', f'v_add_u32 v{va}, {ZL}, v{va}', f'ds_read_b128 {V(vd, 4)}, v{va}',
            f's_lshl_b32 s{T0}, s2, 6', f's_add_u32 s{T0}, s{T0}, {STATS - ZL}', [f's_cmp_eq_u32 s{sW}, 0', f's_cselect_b32 s{T0}, s{T0}, {OOB}'],
            f'v_add_u32 v{va}, s{T0}, v{va}', f'v_cmp_gt_u32 vcc, 4, v0', f'v_cndmask_b32 v{va}, v1, v{va}, vcc']
def stats_post(vd, va): return f'buffer_store_dwordx4 {V(vd, 4)}, v{va}, s[{SH}:{SH+3}], 0 offen sc1'
def stats_src(vd, vt):
    return [f'v_min_u32 v{vd}, 1023, v{vd}', f'v_and_b32 v{vt}, 7, v{vd}', f'v_lshrrev_b32 v{vd}, 3, v{vd}', f'v_lshlrev_b32 v{vd}, 7, v{vd}', f'v_lshl_add_u32 v{vd}, v{vt}, 2, v{vd}']
def sync_stream(pfx, G, tc, src, loads, regs, writes, t_load, t_check):
    C, D = ZD + 5, ZD
    o = items(stats_prep(D, D + 4), tag='zg')
    o.append(Item(cert_load(C), tag='cert', t0=tc * G))
    o.append(Item(['@wait vm=cert lg=zg'] + vec_check(pfx + '_cert', [cert_load(C)], [C]), t0=(tc + OPT['tk']) * G + 2))
    if OPT['diag']:
        o.append(Item(['s_waitcnt vmcnt(0)', 's_memrealtime s[84:85]', 's_waitcnt lgkmcnt(0)', 's_mov_b32 s88, s84', stats_post(D, D + 4), 's_waitcnt vmcnt(0)', 's_memrealtime s[84:85]', 's_waitcnt lgkmcnt(0)', 's_mov_b32 s89, s84']))
    else: o.append(Item(stats_post(D, D + 4)))
    o += items(src) + items(loads, tag='par', t0=t_load * G)
    o.append(Item(['@wait vm=par'] + vec_check(pfx + '_par', loads, regs), t0=t_check * G))
    return Stream(o + items(writes, tag='sw'))

def rot_init(a, spec, rowbytes):
    if not spec: return
    if spec == 'x':
        a(f's_and_b32 s{sXJ}, s2, 7\ns_cmp_eq_u32 s{sXJ}, 7\ns_cselect_b32 s{sXJ}, 0, s{sXJ}\ns_mul_i32 s{sWJ}, s{sXJ}, {64*rowbytes}\ns_lshl_b32 s{sXJ}, s{sXJ}, 7')
        return
    if spec[0] == 'h':
        a(f's_mul_i32 s{sWJ}, s{T1}, {64*rowbytes*int(spec[1])}\ns_mul_i32 s{sXJ}, s{T1}, {128*int(spec[1])}')
        return
    p, q, s, m, k = map(int, spec.split('.'))
    terms = [(c, r) for c, r in ((p, sR), (q, sC), (s, T1)) if c]
    src = terms[0][1]
    if terms[0][0] != 1 or len(terms) > 1:
        a(f's_mul_i32 s{sXJ}, s{src}, {terms[0][0]}'); src = sXJ
        for c, r in terms[1:]: a(f's_mul_i32 s{sWJ}, s{r}, {c}\ns_add_u32 s{sXJ}, s{sXJ}, s{sWJ}')
    a(f's_mul_i32 s{sWJ}, s{src}, {65536 // m + 1}\ns_lshr_b32 s{sWJ}, s{sWJ}, 16\ns_mul_i32 s{sWJ}, s{sWJ}, {m}\ns_sub_u32 s{sXJ}, s{src}, s{sWJ}')
    a(f's_mul_i32 s{sWJ}, s{sXJ}, {64*k*rowbytes}\ns_mul_i32 s{sXJ}, s{sXJ}, {128*k}')
def x_off(spec, j):
    if not spec: return [f's_movk_i32 s{sXJ}, {128*j}']
    return [f's_add_u32 s{sXJ}, s{sXJ}, 128', [f's_cmp_eq_u32 s{sXJ}, 896', f's_cselect_b32 s{sXJ}, 0, s{sXJ}']] if j else []
def w_off(spec, m, i, rowbytes, comp):
    if not spec: return [f's_mov_b32 s{sSO}, {(32*m + 16*i)*rowbytes - comp}']
    o = []
    if i == 0 and m and m % 2 == 0: o = [f's_add_u32 s{sWJ}, s{sWJ}, {64*rowbytes}', [f's_cmp_eq_u32 s{sWJ}, {448*rowbytes}', f's_cselect_b32 s{sWJ}, 0, s{sWJ}']]
    return o + [f's_add_u32 s{sSO}, s{sWJ}, {(32*(m&1) + 16*i)*rowbytes - comp}']

def add_touches(d, vb, vt, vdump):
    mats = dict(d=([0], 7), o=([18], 7))
    n = OPT['tn']; pieces = []
    for sp in [x for x in OPT['touch'].split(',') if x]:
        m, r0, r1 = sp.split(':')
        ptrs, lpr = mats[m]; l0 = int(r0) * lpr; l1 = int(r1) * lpr
        for l in range(l0, l1, 1024 * n):
            o = [f'v_add_u32 v{vt}, {l*128}, v{vb}'] + ([f'v_min_u32 v{vt}, {(l1-1)*128}, v{vt}'] if l + 1024 * n > l1 else [])
            for p in ptrs:
                pieces.append(items(o) + [Item(f'global_load_dword v{vdump}, v{vt}, s[{p}:{p+1}]', tag='touch')]); o = []
    ins = {}
    for k, p in enumerate(pieces): ins.setdefault(int(OPT['tpos'] + k * OPT['tstep']), []).extend(p)
    if pieces:
        ins[OPT['tpos']][:0] = items([f's_lshl2_add_u32 s79, s2, s{sW}', f's_mul_i32 s79, s79, {n}', f'v_min_u32 v{vb}, {n-1}, v0', f'v_add_lshl_u32 v{vb}, v{vb}, s79, 7'])
    out = []; k = 0; done = False
    for it in d:
        out.append(it)
        if it.paced:
            k += 1; out += ins.pop(k, [])
    return out
def keep_ptrs(a): a('s_mov_b64 s[0:1], s[16:17]\ns_mov_b64 s[18:19], s[8:9]')

XL = 54
def x_read_addr(a, XA, XB, t, octet_stride):
    a(f'v_and_b32 v{t}, 7, v0\nv_bfe_u32 v{t+1}, v0, 3, 1\nv_lshrrev_b32 v{t+2}, 4, v0\nv_bfe_u32 v{t+3}, v0, 1, 3')
    a(f'v_xor_b32 v{t+2}, v{t+2}, v{t+3}\nv_lshlrev_b32 v{t+2}, 4, v{t+2}\nv_lshl_add_u32 v{t+2}, v{t}, 7, v{t+2}')
    a(f'v_mul_u32_u24 v{t+1}, {octet_stride}, v{t+1}\nv_add_u32 v{XA}, v{t+1}, v{t+2}\nv_xor_b32 v{XA+1}, 64, v{XA}')
    a(f'v_and_b32 v{t+1}, 15, v0\nv_cmp_eq_u32 vcc, 15, v{t+1}\nv_mov_b32 v{t+3}, 0x100\nv_lshlrev_b32 v{t}, 4, v{t}\nv_cndmask_b32 v{t+3}, 0, v{t+3}, vcc')
    a(f'v_add_u32 v{XB}, v{XA}, v{t+3}\nv_add_u32 v{XB+1}, v{XA+1}, v{t+3}')
    for k in range(4): a(f'v_mov_b32 v{t+2+k}, 0x3f803f80')

def bar_gap(G, nt, nc, dist, M, m):
    if m < 0: return 0
    if m < M: return (2 * m + 1) * G + 1
    if m == M: return 2 * M * G + nc + 1
    if m == 14: return 27 * G + (nt - 1) * nc + 1
    return (2 * m - 1) * G + (nt - dist) * 2 * nc + 1
def x_bar(M, j):
    return -1 if j < 3 else (2 * j - 4 if 2 * j - 5 < M else 2 * j - 3)
def gemm1(a, S_, G, nt, nc, dist, M, areads, bread, mfma, dma, others, checks, hooks={}, last_bar=False):
    segs = []
    for k in range(M): segs += [(0, [k], None, None), (1, [k], k, 0)]
    segs.append((0, [M], M, 1))
    segs += [(m & 1, [m - 1, m], m, nt - dist) for m in range(M + 1, 14)]
    segs.append((0, [13], 14, nt - 1 if last_bar else None))
    units = [(g, q, ks, bm if q == bq else None) for g, ks, bm, bq in segs for q in range(nt)]
    def brd(u):
        if u >= len(units): return []
        g, q, ks, _ = units[u]
        return [Item(bread(g, q, k, u & 3, n), tag=f'b{u}') for n, k in enumerate(ks)]
    S_.flush(Stream(items(areads(0), tag='a0') + sum((brd(u) for u in range(dist)), [])))
    rds = Stream([]); forced = []
    for u, (g, q, ks, m) in enumerate(units):
        while any(x.tag in (f'b{u}', f'a{ks[-1]}') for x in rds.items[rds.i:]): S_.put(rds, rds.items[rds.i])
        bar = m is not None
        if bar and m in checks: checks[m]()
        a(f'@wait lg=b{u}' + (f',a{ks[-1]}' if q == 0 else '') + (',sw' if bar and m in checks else ''))
        if S_.t % G == 0 or S_.t % G + len(ks) * nc > G:
            n = -(-S_.t // G)
            if n in hooks: hooks[n]()
            stamp(a, f's{n}')
        nb = brd(u + dist)
        if not bar: rds.items += nb
        seq = [(c, n ^ (c & 1) if len(ks) == 2 else n) for c in (range(nc) if u % 2 == 0 or len(ks) == 2 else range(nc - 1, -1, -1)) for n in range(len(ks))]
        seen = set()
        for p, (c, n) in enumerate(seq):
            a(mfma(g, q, c, ks[n], u & 3, n, ks[0] == 0 and c not in seen)); seen.add(c)
            if bar and p == 0:
                assert S_.t + 1 == bar_gap(G, nt, nc, dist, M, m)
                need = (f'x{(m+1)>>1}', f'w{m+1}')
                while True:
                    if dma.done() and hasattr(dma, 'refill'): dma.refill()
                    young = len(a.vm) - 1 - max([k for k, tg in enumerate(a.vm) if tg in need], default=-99)
                    nxp = next((x for x in dma.items[dma.i:] if x.paced), None)
                    if nxp is None or nxp.t0 > S_.t or not (young < OPT['lead'] or any(x.tag in need for x in dma.items[dma.i:])): break
                    S_.flush(dma, 1); forced.append(m)
                a(f'@wait vm={need[0]},{need[1]}\ns_barrier'); S_.gap([], 0)
                rds.items += nb + (items(areads(m + 1), tag=f'a{m+1}') if m < 13 else [])
                continue
            left = (nt - q) * len(seq) - p - 1
            pend = [x.tag for x in rds.items[rds.i:]]
            na = max([k + 1 for k, tg in enumerate(pend) if tg[0] == 'a'], default=0)
            urgent = na >= left - 7 or f'b{u+1}' in pend or (f'b{u+2}' in pend and p >= len(seq) - 4)
            S_.gap(([rds, dma] if urgent else [dma, rds]) + others, 1 if p == len(seq) - 1 else 2)
    print('forced', forced, file=sys.stderr)

FXS = 162 * 128; FW0 = 3 * FXS; FPAR = FW0 + 6 * 16384
assert FPAR + 2048 <= ZL
def ffn(a):
    DV, RX, RW, RH, HV, PA, FV, DZ = 2, 6, 10, 14, 18, 19, 20, 21
    XV, WV, XA, XB, WA = 22, 27, 28, 30, 32
    E, O = 22, 30
    CS = 38; PR = 56; t = 56
    ACC = 96
    BF = 176; AF = 208
    a(f's_mul_i32 s{sTH}, s{T1}, 91\ns_add_u32 s{sTH}, s{sTH}, s{T0}\ns_mul_i32 s{T2}, s{T1}, 7\ns_sub_u32 s{T2}, 49, s{T2}')
    a(f's_cmp_ge_u32 s{T0}, s{T2}\ns_cselect_b32 s{T3}, 7, 0\ns_cselect_b32 s{T2}, s{T2}, 0\ns_cselect_b32 s{sCT}, 6, 7\ns_cselect_b32 s{sMX}, 1, 0\ns_sub_u32 s{T0}, s{T0}, s{T2}')
    a(f's_cmp_eq_u32 s{sMX}, s{T1}\ns_cselect_b32 s{sR}, 37, 43\ns_cselect_b32 s{T2}, 7, 6')
    a(f's_mul_i32 s{sC}, s{T0}, s{sR}\ns_lshr_b32 s{sC}, s{sC}, 8\ns_mul_i32 s{T2}, s{T2}, s{sC}\ns_sub_u32 s{sR}, s{T0}, s{T2}')
    a(f's_add_u32 s{sC}, s{sC}, s{T3}\ns_mul_i32 s{sCT}, s{sCT}, s{T1}\ns_add_u32 s{sR}, s{sR}, s{sCT}')
    rot_init(a, OPT['rotf'], 3584)
    a(f'v_and_b32 v{t+1}, 15, v0\nv_lshl_add_u32 v{t}, v{XL+1}, 1, s{sWO}\nv_lshlrev_b32 v{t}, 1, v{t}\nv_xor_b32 v{t+1}, v{t+1}, v{t}')
    a(f's_mul_i32 s{T0}, s{sW}, 56\ns_add_u32 s{T0}, s{T0}, s{sC}\ns_lshl_b32 s{T0}, s{T0}, 8')
    a(f'v_mul_u32_u24 v{t+2}, 224, v{XL+1}\nv_add_lshl_u32 v{t+2}, v{t+1}, v{t+2}, 4\nv_add_u32 v{WV}, s{T0}, v{t+2}')
    a(f's_mul_i32 s{T2}, s{sR}, 158\ns_lshl4_add_u32 s{T2}, s{sWO}, s{T2}\ns_add_u32 s{T2}, s{T2}, s{sJ}\ns_mul_i32 s{T2}, s{T2}, 896\nv_add_u32 v{XV}, s{T2}, v{XL}')
    for i in range(1, 5): a(f'v_add_u32 v{XV+i}, {i*28672 - (i*1024 if i < 4 else 0)}, v{XV}')
    a(f's_mul_i32 s{sMX}, s{sW}, 5120\ns_lshl_b32 s{sMW}, s{sW}, 12\ns_add_u32 s{sMW}, s{sMW}, {FW0}')
    em(a, srd_c(SG, 448 * 3584) + srd_c(SU, 448 * 3584 + 1024))
    a('s_waitcnt lgkmcnt(0)')
    stamp(a, 'ka')
    em(a, srd_p(SX, 4))
    if not OPT['zpos']: stats_load(a)
    em(a, srd_p(SG, 12) + srd_p(SU, 14, back=1024))
    G = 20
    B = lambda m: bar_gap(G, 5, 4, OPT['fd'], OPT['fm'], m)
    def xd(j):
        e = B(x_bar(OPT['fm'], j)); o = items(x_off(OPT['rotf'], j))
        for i in range(5):
            if i in (0, 4): o.append(Item(f's_add_u32 m0, s{sMX}, {(j%3)*FXS + i*1024}'))
            o.append(Item(f'buffer_load_dwordx4 v{XV+i}, s[{SX}:{SX+3}], s{sXJ} offen offset:{(i&3)*1024} lds', tag=f'x{j}', t0=e, paced=True))
        return o
    def wd(m):
        e = B(m - 4); o = [Item(f's_add_u32 m0, s{sMW}, {(m&3)*16384}', brk=False)]
        o[0].brk = False
        for i in range(2):
            o += items(w_off(OPT['rotf'], m, i, 3584, i*2048))
            o.append(Item(f'buffer_load_dwordx4 v{WV}, s[{SG}:{SG+3}], s{sSO} offen offset:{i*2048} lds', tag=f'w{m}', t0=e, paced=True))
            o.append(Item(f'buffer_load_dwordx4 v{WV}, s[{SU}:{SU+3}], s{sSO} offen offset:{i*2048 + 1024} lds', tag=f'w{m}', t0=e, paced=True))
        return o
    def wslot(k, free): return (RW if k < 4 else RH, (k & 3) * 16384, sMW, k * 16384, free)
    slots = [wslot(4, 0), wslot(5, 0), wslot(2, B(10)), wslot(3, B(11)), (RX, FXS, sMX, FXS, B(11)), wslot(0, B(12)), wslot(1, B(13)), (RX, 2*FXS, sMX, 2*FXS, B(13)), (RX, 0, sMX, 0, B(14))]
    kslot = []
    NG = 14 if OPT['xo'] else 18
    WX = 56
    def wfrag(kk, c):
        i = 16 * kk + 4 * c
        return (i, 'a') if i < 256 else (WX + i - 256, 'v')
    def w2d(kk):
        reg, off, base, moff, free = slots[kslot[kk]]
        prev = [k for k in range(kk) if kslot[k] == kslot[kk]]
        o = [Item(f's_add_u32 m0, s{base}, {moff}')]; o[0].brk = False
        if kk < 14: o += [Item(f's_mul_i32 s{sSO}, s{sRT+kk}, 28')]; sr = SD
        elif OPT['roto']: o += items([f's_add_u32 s{sSO}, s2, {kk-14}', f's_and_b32 s{sSO}, s{sSO}, 3', f's_mul_i32 s{sSO}, s{sSO}, {28*896}']); sr = SO
        else: o += [Item(f's_mov_b32 s{sSO}, {28*(kk-14)*896}')]; sr = SO
        if prev: o.append(Item(f'@wait lg=t{prev[-1]}'))
        for i in range(4):
            o.append(Item(f'buffer_load_dwordx4 v{DZ if (kk >= 14 and i == 3) else DV+i}, s[{sr}:{sr+3}], s{sSO} offen offset:{i*1024} lds', tag=f'k{kk}', t0=free, paced=True, name=f'k{kk}' if i == 3 else None))
        return o
    def w2r(kk, lag):
        reg, off, base, moff, free = slots[kslot[kk]]
        o = [Item(f'@wait vm=k{kk}', after={f'k{kk}': lag})]
        for c in range(4):
            r, k = wfrag(kk, c)
            for jj in range(2):
                o.append(Item(f'ds_read_b64_tr_b16 {V(r + 2*jj, 2, k)}, v{reg+c} offset:{off + jj*2048}', tag=f't{kk}', name=f't{kk}' if (c, jj) == (3, 1) else None))
        return o
    d = add_touches(wd(0) + xd(0) + wd(1) + xd(1) + wd(2) + wd(3), 35, 36, 37)
    p1 = []
    for m in range(10):
        p1 += [xd(j) for j in range(2, 7) if max(0, x_bar(OPT['fm'], j)) == m]
        p1.append(wd(m + 4))
    dma = Stream(d, rate=OPT['rate'])
    trs = Stream([])
    S_ = Sched(a)
    NT = 11
    st8 = dict(last=-999, lag=OPT['lag'])
    def refill(force=False):
        if p1 and p1[0][-1].t0 <= S_.t + 3:
            dma.items += p1.pop(0); return
        kk = len(kslot)
        if kk == NG or S_.t < OPT['w2s'] * G or (p1 and S_.t < st8['last'] + OPT['w2g']): return
        for k, sl in enumerate(slots):
            prev = [q for q in range(kk) if kslot[q] == k]
            if sl[4] <= S_.t and (not prev or S_.when.get(f't{prev[-1]}', 1e9) + (0 if force else 5) <= S_.t):
                kslot.append(k); st8['last'] = S_.t
                dma.items += w2d(kk)
                if kk < NT: trs.items += w2r(kk, st8['lag'])
                return
    dma.refill = refill
    def steady(): dma.rate = OPT['rate2']
    def late(): dma.rate = OPT['rate3']
    S_.flush(dma, 7)
    a.raw('L_f7:')
    stamp(a, 'i7')
    x_read_addr(a, XA, XB, t, 5120)
    for st in range(3): a(f'ds_write_b128 v{t}, v[{t+2}:{t+5}] offset:{st*FXS + 161*128}')
    u = t + 6
    a(f'v_bfe_u32 v{u}, v0, 4, 1\nv_bfe_u32 v{u+1}, v0, 2, 2\nv_lshrrev_b32 v{u+2}, 5, v0\nv_and_b32 v{u+3}, 3, v0')
    a(f'v_lshl_add_u32 v{u+4}, v{u+1}, 1, v{u}\ns_lshl_b32 s{T0}, s{sW}, 1\nv_xor_b32 v{u+4}, s{T0}, v{u+4}\nv_lshlrev_b32 v{u+4}, 5, v{u+4}')
    a(f'v_lshl_add_u32 v{u+4}, v{u+3}, 3, v{u+4}\nv_lshl_add_u32 v{u+4}, v{u+1}, 8, v{u+4}\nv_lshl_add_u32 v{u+4}, v{u+2}, 11, v{u+4}')
    a(f'v_lshl_add_u32 v{u+4}, v{u}, 13, v{u+4}\nv_add_u32 v{WA}, {FW0}, v{u+4}\nv_xor_b32 v{WA+1}, 32, v{WA}')
    S_.flush(dma, 2)
    if OPT['zpos']: stats_load(a)
    em(a, srd(SH, 22, WS_USED) + srd(SDB, 20, 256) + srd(SOUT, 18, 2048 * 896))
    a(f's_mul_i32 s{T0}, s{sW}, {448*896}\ns_add_u32 s{SD}, s16, s{T0}\ns_addc_u32 s{SD+1}, s17, 0')
    a(f's_mul_i32 s{T0}, s{sW}, {112*896}\ns_add_u32 s{SO}, s8, s{T0}\ns_addc_u32 s{SO+1}, s9, 0')
    em(a, srd_c(SD, 448 * 896) + srd_c(SO, 112 * 896))
    a(f's_mul_i32 s{T3}, s{sTH}, 9363\ns_lshr_b32 s{T3}, s{T3}, 16\ns_mul_i32 s{sCT}, s{T3}, 7\ns_sub_u32 s{sCT}, s{sTH}, s{sCT}\ns_mov_b32 s{sTH}, s{T3}')
    a(f'v_lshrrev_b32 v{u}, 3, v0\nv_and_b32 v{u+1}, 7, v0\nv_lshlrev_b32 v{u+2}, 1, v{XL+1}\nv_xor_b32 v{u+1}, v{u+1}, v{u+2}\nv_lshlrev_b32 v{u+1}, 4, v{u+1}')
    a(f'v_mul_u32_u24 v{u}, 896, v{u}\ns_lshl_b32 s{T3}, s{sCT}, 7\nv_add3_u32 v{DV}, v{u}, v{u+1}, s{T3}')
    for i in range(1, 4): a(f'v_add_u32 v{DV+i}, {6144*i}, v{DV}')
    a(f'v_cmp_gt_u32 vcc, 32, v0\nv_bfe_u32 v{u}, v0, 2, 3\nv_lshrrev_b32 v{u+1}, 5, v0\nv_cndmask_b32 v{DZ}, v{ZT+3}, v{DV+3}, vcc')
    a(f'v_and_b32 v{u+2}, 3, v0\nv_bfe_u32 v{u+3}, v0, 3, 2\nv_lshlrev_b32 v{u}, 7, v{u}\nv_lshl_add_u32 v{u}, v{u+1}, 10, v{u}')
    a(f'v_lshl_add_u32 v{u}, v{u+2}, 3, v{u}\nv_lshl_add_u32 v{u}, v{u+3}, 5, v{u}\nv_add_u32 v{RX}, s{sMX}, v{u}\nv_add_u32 v{RW}, s{sMW}, v{u}')
    for c in range(1, 4): a(f'v_xor_b32 v{RX+c}, {32*c}, v{RX}\nv_xor_b32 v{RW+c}, {32*c}, v{RW}')
    for c in range(4): a(f'v_add_u32 v{RH+c}, 0x10000, v{RW+c}')
    bg = []
    if OPT['rot2'] == 2:
        bg += [f's_and_b32 s{T3}, s2, 7', f's_mul_i32 s{T3}, s{T3}, 7', f's_lshr_b32 s{T3}, s{T3}, 2', f's_lshl_b32 s{sRT}, s{T3}, 10']
    elif OPT['rot2']:
        bg += [f's_mul_i32 s{T3}, s{sTH}, 5', f's_lshl1_add_u32 s{T3}, s{sCT}, s{T3}', f's_mul_i32 s{sRT}, s{T3}, 4682', f's_lshr_b32 s{sRT}, s{sRT}, 16',
               f's_mul_i32 s{sRT}, s{sRT}, 14', f's_sub_u32 s{sRT}, s{T3}, s{sRT}', f's_lshl_b32 s{sRT}, s{sRT}, 10']
    else:
        bg += [f's_mov_b32 s{sRT}, 0']
    for k in range(1, 14):
        bg += [f's_add_u32 s{sRT+k}, s{sRT+k-1}, 1024', [f's_cmp_eq_u32 s{sRT+k}, {14*1024}', f's_cselect_b32 s{sRT+k}, 0, s{sRT+k}']]
    bg += [f'v_lshlrev_b32 v{HV}, 4, v0', f'v_mov_b32 v{FV}, 1', f's_mov_b32 s{sONE}, 1',
           f'v_and_b32 v{PA}, 7, v0', f'v_bfe_u32 v{u}, v0, 3, 1', f'v_lshlrev_b32 v{PA}, 2, v{PA}', f'v_lshl_add_u32 v{PA}, v{u}, 10, v{PA}', f'v_add_u32 v{PA}, {FPAR}, v{PA}',
           f's_lshl2_add_u32 s{T3}, s{sC}, s{sW}', f's_mul_i32 s{sFL}, s{T3}, 4682', f's_lshr_b32 s{sFL}, s{sFL}, 16', f's_lshl2_add_u32 s{sFL}, s{sR}, s{sFL}',
           f's_lshl_b32 s{sFL}, s{sFL}, 7', f's_add_u32 s{sFL}, s{sFL}, {FH}', [f's_add_u32 s{sM1}, s22, s{sFL}', f's_addc_u32 s{sM1+1}, s23, 0'],
           f's_lshl_b32 s{T3}, s{T3}, 10', f's_mul_i32 s{sST}, s{sR}, {2*TH_BYTES}', f's_add_u32 s{sST}, s{sST}, s{T3}',
           f's_lshr_b32 s{T3}, s{sTH}, 1', f's_lshl2_add_u32 s{sFH}, s{T3}, s{sW}', f's_lshl_b32 s{sFH}, s{sFH}, 7', f's_add_u32 s{sFH}, s{sFH}, {FH}',
           [f's_add_u32 s{sFH}, s22, s{sFH}', f's_addc_u32 s{sFH+1}, s23, 0'],
           f's_mul_i32 s{T3}, s{T3}, 158', f's_add_u32 s{sNO}, s{T3}, {157-14}', f's_min_u32 s{sNO}, s{sNO}, {2047-14}', f's_mul_i32 s{sNO}, s{sNO}, 580', f's_lshr_b32 s{sNO}, s{sNO}, 16',
           f's_max_u32 s{T3}, s{T3}, 14', f's_sub_u32 s{T3}, s{T3}, 14', f's_mul_i32 s{T3}, s{T3}, 580', f's_lshr_b32 s{T3}, s{T3}, 16',
           f's_sub_u32 s{sNO}, s{sNO}, s{T3}', f's_lshl2_add_u32 s{sNO}, s{sNO}, 4',
           f's_mul_i32 s{sJ}, s{sTH}, {TH_BYTES}', f's_mul_i32 s{T3}, s{sW}, {14*1024}', f's_add_u32 s{sJ}, s{sJ}, s{T3}',
           f's_mul_i32 s{T3}, s{sW}, {10*1024}', f's_sub_u32 s{sWO}, {56*1024}, s{T3}']
    keep_ptrs(a); em(a, bg)
    if OPT['zpos']: S_.flush(dma, OPT['npro'] - 9)
    stats_do(a)
    if not OPT['zpos']: S_.flush(dma, OPT['npro'] - 9)

    tiles = [[(T, 0) for T in range(5)], [(4, 1), (0, 1), (1, 1), (2, 1), (3, 1)]]
    def bread(g, q, k, sl, n):
        T, h = tiles[g][q]
        return f'ds_read_b128 {A(BF + 8*sl + 4*n, 4)}, v{(XB if (T, h) == (4, 1) else XA) + (k & 1)} offset:{((k>>1)%3)*FXS + (10*h + T)*1024}'
    def areads(m):
        return [f'ds_read_b64_tr_b16 {A(AF + 16*(m%3) + 8*mat + 4*uu + 2*jj, 2)}, v{WA + uu} offset:{(m&3)*16384 + jj*4096 + mat*1024}'
                for mat in range(2) for uu in range(2) for jj in range(2)]
    acc = lambda T, h: ACC + 16 * (2 * T + h)
    def mfma(g, q, c, k, sl, n, first):
        dd = V(acc(*tiles[g][q]) + 4 * c, 4)
        return f'{MF} {dd}, {A(AF + 16*(k%3) + 4*c, 4)}, {A(BF + 8*sl + 4*n, 4)}, {0 if first else dd}'
    stamp(a, 'pre')
    a('@wait vm=x0,w0 lg=*\ns_barrier')
    stamp(a, 'b0')
    z = ZD + 6
    src = [f's_mul_i32 s{T0}, s{sR}, 79', f'v_add_u32 v{z}, s{T0}, v0', f'v_min_u32 v{z+1}, 15, v0', f'v_add3_u32 v{z+1}, v{z+1}, s{T0}, 64']
    src += stats_src(z, z + 2) + stats_src(z + 1, z + 2)
    src += [f's_and_b32 s{T0}, s{sW}, 1', f's_lshr_b32 s{T2}, s{sW}, 1', f's_lshl1_add_u32 s{T0}, s{T0}, s{T2}', f's_lshl_b32 s{T1}, s{T0}, 5',
            f's_add_u32 s{T1}, s{T1}, {STATS}', f's_lshl_b32 s{T0}, s{T0}, 9', f's_add_u32 s{T0}, s{T0}, {FPAR}', f'v_lshl_add_u32 v{z+2}, v0, 2, s{T0}']
    sy = sync_stream('Lf', G, OPT['tc'], src, [f'buffer_load_dword v{z+3+i}, v{z+i}, s[{SH}:{SH+3}], s{T1} offen sc1' for i in range(2)], [z + 3, z + 4],
                     [f'ds_write_b32 v{z+2}, v{z+3+i} offset:{256*i}' for i in range(2)], OPT['tl'], OPT['tl'] + OPT['tk'])
    pb = (OPT['tl'] + OPT['tk'] + 2) // 2
    par = []
    for T in range(5):
        for h in (1, 0):
            par.append(Item(f'ds_read2_b32 {V(PR + 4*(2*T + h), 2)}, v{PA} offset0:{16*T + 8*h} offset1:{128 + 16*T + 8*h}', t0=B(pb), tag='pr', name='pr' if (T, h) == (4, 0) else None))
    par.append(Item('@wait lg=pr', after={'pr': 6}))
    for T in range(5):
        for h in (1, 0):
            P = PR + 4 * (2 * T + h)
            par += items([f'v_mul_f32 v{P+2}, {hx(f2u(-LOG2E))}, v{P+1}', f'v_mul_f32 v{P+1}, v{P+1}, v{P+1}', f'v_rcp_f32 v{P+1}, v{P+1}'])
    par += [Item(f'v_mov_b32_dpp v{CS+k}, v{acc(4, 1)+k} row_newbcast:15 row_mask:0xf bank_mask:0xf', t0=25*G + 12) for k in range(16)]
    pars = Stream(par)
    def ck23(): assert sy.done()
    gemm1(a, S_, G, 5, 4, OPT['fd'], OPT['fm'], areads, bread, mfma, dma, [sy, pars, trs], {pb: ck23}, {OPT['rs']: steady, 19: late}, True)
    assert not p1
    ntr = sum(f't{k}' in S_.when for k in range(18))
    print('end of gemm: par left', pars.left(), 'groups', len(kslot), 'left in group', sum(x.paced for x in dma.items[dma.i:]), 'read', ntr, [S_.when.get(f'k{k}', 0) // G for k in range(18)], file=sys.stderr)
    NT = max(NG - 9, ntr + (trs.i % 9 > 0)); trs.items = trs.items[:9 * NT]; st8['lag'] = OPT['elag']
    S_.flush(pars)
    stamp(a, 'g1')
    l0 = len(a.lines)
    dma.rate = OPT['erate']
    for it in trs.items[trs.i:]:
        for k in it.after: it.after[k] = OPT['elag']
    def post(f): return [f'@wait vm=h{f}', f's_add_u32 s{T3}, s{sFL}, {f*FST}', f'buffer_atomic_add v{FV}, v1, s[{SH}:{SH+3}], s{T3} offen sc1']
    ACC2, HB, NHB = 176, 96, OPT['nhb']
    XO, XR, WRA, RDA, t = 22, 28, 38, 46, 48
    LEAD = NHB - 2
    nO = OPT['nO']
    hl = [(T, kk) for T in range(nO) for kk in range(14)] + [(T, kk) for T in range(nO) for kk in range(14, 18)] + [(T, kk) for T in range(nO, 5) for kk in range(18)]
    if OPT['xo']: hl = [x for x in hl if x[1] not in (15, 16)]
    HA = 88
    def hload(i, ha=HA):
        T, kk = hl[i]
        if kk < 14: return f'buffer_load_dwordx4 {V(HB + 4*(i % NHB), 4)}, v{ha+T}, s[{SH}:{SH+3}], s{sRT+kk} offen sc1'
        if OPT['roto']: return f'buffer_load_dwordx4 {V(HB + 4*(i % NHB), 4)}, v{ha+T}, s[{SH}:{SH+3}], s{SG+kk-14} offen sc1'
        return f'buffer_load_dwordx4 {V(HB + 4*(i % NHB), 4)}, v{ha+T}, s[{SH}:{SH+3}], s{sWO} offen offset:{(kk-14)*1024} sc1'
    for T in range(5):
        stamp(a, f'T{T}')
        for h in (1, 0):
            P = PR + 4 * (2 * T + h); dd = acc(T, h); OO = O + 4 * h
            ops = []
            for k in range(0, 16, 2): ops.append(f'v_pk_fma_f32 {V(dd+k, 2)}, {V(CS+k, 2)}, {V(P, 2)}, {V(dd+k, 2)} op_sel_hi:[1,0,1]')
            for k in range(0, 8, 2): ops.append(f'v_pk_mul_f32 {V(E+k, 2)}, {V(dd+k, 2)}, {V(P+2, 2)} op_sel_hi:[1,0]')
            for k in range(8): ops.append(f'v_exp_f32 v{E+k}, v{E+k}')
            for k in range(0, 8, 2): ops.append(f'v_pk_mul_f32 {V(dd+k, 2)}, {V(dd+k, 2)}, {V(dd+8+k, 2)}')
            for k in range(0, 8, 2): ops.append(f'v_pk_fma_f32 {V(E+k, 2)}, {V(E+k, 2)}, {V(P, 2)}, {V(P, 2)} op_sel:[0,1,1] op_sel_hi:[1,1,1]')
            for k in range(8): ops.append(f'v_rcp_f32 v{E+k}, v{E+k}')
            for k in range(0, 8, 2): ops.append(f'v_pk_mul_f32 {V(dd+k, 2)}, {V(dd+k, 2)}, {V(E+k, 2)}')
            ops.append(f's_add_u32 s{T2}, s{sST}, {h*TH_BYTES + T*72*1024}')
            for k in range(4): ops.append(f'v_cvt_pk_bf16_f32 v{OO+k}, v{dd+2*k}, v{dd+2*k+1}')
            n2 = 2 * T + 1 - h
            if n2 == OPT['pi']:
                while len(kslot) < NG or not trs.done():
                    S_.flush(dma); S_.flush(trs)
                a('@wait lg=*'); a(poll_issue(0))
            acc_c = 0
            for x in ops:
                a(x)
                if x.startswith(TRANS): S_.gap([dma, trs], 2)
            if n2 == 9: S_.flush(dma)
            a(f'buffer_store_dwordx4 {V(OO, 4)}, v{HV}, s[{SH}:{SH+3}], s{T2} offen sc1', tag=f'h{T}')
            if n2 in (4, 6, 8): em(a, post(n2 // 2 - 2)); stamp(a, f'F{n2//2-2}')
    if OPT['x']:
        pats = dict(s='buffer_store', t='ds_read_b64_tr', d='buffer_load', v='v_')
        a.lines[l0:] = [l for l in a.lines[l0:] if not any(l.strip().startswith(pats[c]) for c in OPT['x'])]
    stamp(a, 'e1')
    fin = f's_atomic_add s{sONE}, s[{sM1}:{sM1+1}], {3*FST}'
    early = ['s_waitcnt vmcnt(0)', fin, 's_waitcnt lgkmcnt(0)', f's_mov_b32 s{sONE}, 0'] if OPT['early'] else []
    a(f'v_add_u32 v{HA}, s{sJ}, v{HV}')
    em(a, poll_check('Lf_p0', 0, 14, early))
    stamp(a, 'p0')
    a(poll_issue(1))
    rest = Stream(sum((w2r(kk, 0) for kk in range(NT, NG)), []))
    for i in range(LEAD):
        a(hload(i), tag=f'g{i}'); S_.gap([rest], 4, ds=4)
    S_.flush(rest)
    stamp(a, 'tr')
    bg2 = [f'v_add_u32 v{HA+T}, {T*72*1024}, v{HA}' for T in range(1, 5)]
    bg2 += f"""s_lshr_b32 s{T0}, s{sTH}, 1
s_mul_i32 s{T0}, s{T0}, 158
s_and_b32 s{T1}, s{sTH}, 1
s_and_b32 s{T2}, s{sW}, 1
s_lshl1_add_u32 s{T1}, s{T1}, s{T2}
s_lshr_b32 s{T3}, s{sW}, 1
s_lshl3_add_u32 s{T1}, s{T1}, s{T3}
v_lshl_add_u32 v{t}, v{XL+1}, 1, s{T1}
v_add_u32 v{t+1}, s{T0}, v{t}
v_mul_u32_u24 v{t+1}, 896, v{t+1}
v_and_b32 v{t+3}, 15, v0
v_lshlrev_b32 v{t+2}, 3, v{t+3}
s_lshl_b32 s{T0}, s{sCT}, 7
v_add3_u32 v{XO}, v{t+1}, v{t+2}, s{T0}""".split('\n')
    bg2 += [f'v_add_u32 v{XO+T}, {32*896*T}, v{XO}' for T in range(1, 5)]
    bg2 += f"""v_cmp_gt_u32 vcc, 30, v{t}
v_mov_b32 v{t+1}, {OOB}
v_and_b32 v{t+2}, 7, v0
v_cndmask_b32 v{XO+4}, v{t+1}, v{XO+4}, vcc
v_xor_b32 v{t+1}, v{XL+1}, v{t+2}
v_lshlrev_b32 v{t+1}, 4, v{t+1}
v_lshl_add_u32 v{t}, v{t+3}, 8, v{t+1}
s_lshl_b32 s{T0}, s{sW}, 12
v_add_u32 v{WRA}, s{T0}, v{t}""".split('\n')
    bg2 += [f'v_xor_b32 v{WRA+c}, {64*c}, v{WRA}' for c in range(1, 4)] + [f'v_add_u32 v{WRA+4+c}, 0x10000, v{WRA+c}' for c in range(4)]
    bg2 += f"""s_lshl_b32 s{T0}, s{sW}, 2
v_add_u32 v{t}, s{T0}, v{XL+1}
v_and_b32 v{t+1}, 7, v{t}
v_xor_b32 v{t+1}, v{t+1}, v{t+3}
v_lshlrev_b32 v{t+1}, 4, v{t+1}
v_lshl_add_u32 v{RDA}, v{t}, 8, v{t+1}
v_add_u32 v{RDA+1}, 0x10000, v{RDA}""".split('\n')
    if OPT['roto']:
        for k in range(4): bg2 += [f's_add_u32 s{T0}, s2, {k}', f's_and_b32 s{T0}, s{T0}, 3', f's_lshl_b32 s{T0}, s{T0}, 10', f's_add_u32 s{SG+k}, s{T0}, s{sWO}']
    em(a, bg2[:1]); bg2s = Stream(items(bg2[1:])); bg2s.items[-1].name = 'bg2'
    em(a, poll_check('Lf_p1', 1, 14, early))
    stamp(a, 'p1')
    a('@wait vm=h4')
    stamp(a, 'e2')
    a(fin)
    pre = {}
    def guard(name, f, want, first):
        stp = first - LEAD - 1
        pre.setdefault(stp - 8, []).append(poll_issue(f)); pre.setdefault(stp, []).extend(poll_check(name, f, want))
        return stp
    guard('Lf_p2', 2, 14, hl.index((2, 0)))
    i3, iO = hl.index((3, 0)), hl.index((0, 14))
    if i3 > iO: i3 = iO - 9
    lastg = max(guard('Lf_p3', 3, 14, i3), 0 if OPT['nochk'] else guard('Lf_p4', 4, f's{sNO}', iO + OPT['ol']))
    first_done = hl.index((0, 17))
    assert lastg < first_done
    pre.setdefault(first_done, []).append('s_barrier')
    t_base = S_.t
    xr = Stream([Item(f'buffer_load_dwordx2 {V(XR + 2*T, 2)}, v{XO+T}, s[{SX}:{SX+3}], 0 offen', tag=f'xr{T}', t0=t_base + 4*(24 + 3*T), after={'bg2': 0}) for T in range(5)])
    RD = (144, 160); U = 48
    def wr(T): return [Item(f'ds_write_b128 v{WRA + c + (4 if T == 4 else 0)}, {V(ACC2 + 16*T + 4*c, 4)} offset:{(T & 3)*16384}', tag=f'pw{T}', paced=True, name=f'pw{T}' if c == 3 else None) for c in range(4)]
    def rdp(T): return [Item(f'ds_read_b128 {V(RD[T&1] + 4*w, 4)}, v{RDA + (T == 4)} offset:{(T & 3)*16384 + w*4096}', tag=f'p{T}', name=f'p{T}' if w == 3 else None) for w in range(4)]
    def unp(T):
        x = XR + 2 * T
        return [f'@wait vm=xr{T}', f'v_lshlrev_b32 v{U}, 16, v{x}', f'v_and_b32 v{U+1}, 0xffff0000, v{x}', f'v_lshlrev_b32 v{U+2}, 16, v{x+1}', f'v_and_b32 v{U+3}, 0xffff0000, v{x+1}']
    def fin2(T, pk):
        x = XR + 2 * T; b = RD[T & 1]
        if pk: o = [f'v_pk_add_f32 {V(U+k, 2)}, {V(U+k, 2)}, {V(b+4*w+k, 2)}' for w in range(4) for k in (0, 2)]
        else: o = [f'v_add_f32 v{U+k}, v{U+k}, v{b+4*w+k}' for w in range(4) for k in range(4)]
        return o + [f'v_cvt_pk_bf16_f32 v{x}, v{U}, v{U+1}', f'v_cvt_pk_bf16_f32 v{x+1}, v{U+2}, v{U+3}', f'buffer_store_dwordx2 {V(x, 2)}, v{XO+T}, s[{SOUT}:{SOUT+3}], 0 offen {OPT["of"].replace("+", " ")}']
    assert NHB <= 12
    wrs = Stream([], rate=0.27, burst=0.1); red = Stream([])
    shadow = [T for T in range(5) if len(hl) - hl.index((T, 17)) > 14]
    CH = 2 if OPT['chain'] else 1
    nxt = [LEAD]
    for i in range(CH - 1, len(hl), CH):
        T, kk = hl[i]
        a(f'@wait vm=g{i}')
        for q in range(i - CH + 1, i + 1): stamp(a, f'h{q}')
        fx = []
        for q in range(i - CH + 1, i + 1):
            due = [x for x in range(nxt[0], min(q + LEAD + 1, len(hl))) if x < iO or q + LEAD >= iO + OPT['ol']][:2]
            fx += [Item(hload(x), tag=f'g{x}', t0=S_.t + 4 * (q - i + CH - 1) + 2 * n_) for n_, x in enumerate(due)]
            nxt[0] += len(due)
            fx += items(pre.get(q, []))
        fx = Stream(fx)
        for c in range(4):
            for q in (range(i - CH + 1, i + 1) if c % 2 == 0 or kk < 2 else range(i, i - CH, -1)):
                r, k = wfrag(hl[q][1], c)
                if OPT['xo'] and hl[q][1] >= 14 and (c >> 1) != (q & 1): continue
                dd = V(ACC2 + 16 * T + 4 * c, 4)
                a(f'{MF} {dd}, {V(r, 4, k)}, {V(HB + 4*(q % NHB), 4)}, {dd if hl[q][1] else 0}')
                S_.gap([fx, wrs, xr, bg2s, red], 1 if (c, q) == (3, i if kk < 2 else i - CH + 1) else 2)
        S_.flush(fx)
        if i + LEAD + 2 >= iO: assert bg2s.done()
        if kk == 17:
            w_ = wr(T); w_[0].t0 = S_.t + 1
            wrs.items += w_
            if T in shadow:
                red.items += [Item([f'@wait lg=pw{T}', 's_barrier'], after={f'pw{T}': 6}, t0=S_.t + 18)] + rdp(T) + items(unp(T)) + [Item(f'@wait lg=p{T}', after={f'p{T}': 5})] + items(fin2(T, False))
    S_.flush(wrs); S_.flush(red)
    todo = [T for T in range(5) if T not in shadow]
    em(a, unp(todo[0]))
    a('s_waitcnt lgkmcnt(0)\ns_barrier')
    stamp(a, 'red')
    S_.flush(Stream(rdp(todo[0])))
    for k, T in enumerate(todo):
        if k + 1 < len(todo): S_.flush(Stream(rdp(todo[k + 1])))
        if k: em(a, unp(T))
        a(f'@wait lg=p{T}')
        em(a, fin2(T, True))

AXS = 130 * 128; AW0 = 3 * AXS; APAR = AW0 + 4 * 24576
def attn(a, split):
    XV, WV, XA, XB, WA = 2, 4, 7, 9, 11
    PA, RA, CB = 15, 16, 17
    OA = 20
    MK = 28
    CV = 36
    PR = 38
    t = 56
    Q, K, V0, V1 = 64, 128, 192, 224
    BF = 0; AF = 32
    a(f's_mul_i32 s{sR}, s{T1}, 9\ns_add_u32 s{sR}, s{sR}, s{T0}\ns_sub_u32 s{sR}, s{sR}, 23')
    rot_init(a, OPT['rota'], 2688)
    a(f'v_lshl_add_u32 v{t}, v{XL+1}, 1, s{sWO}\nv_lshlrev_b32 v{t}, 1, v{t}\nv_sub_u32 v{t+1}, v0, v{t}\nv_and_b32 v{t+1}, 15, v{t+1}')
    a(f'v_cmp_gt_u32 vcc, 14, v{t+1}' if OPT['zpad'] else f'v_min_u32 v{t+1}, 13, v{t+1}')
    a(f's_mul_i32 s{T0}, s{sW}, 48\ns_add_u32 s{T0}, s{T0}, s{sC}\ns_mul_i32 s{T0}, s{T0}, 224')
    a(f'v_mul_u32_u24 v{t+2}, 168, v{XL+1}\nv_add_lshl_u32 v{t+2}, v{t+1}, v{t+2}, 4\nv_add_u32 v{WV+2}, s{T0}, v{t+2}')
    if OPT['zpad']: a(f'v_cndmask_b32 v{WV+2}, v{ZT+3}, v{WV+2}, vcc')
    a(f'v_add_u32 v{WV+1}, 128, v{WV+2}\nv_add_u32 v{WV}, 256, v{WV+2}')
    a(f's_mul_i32 s{sMW}, s{sW}, 6144\ns_add_u32 s{sMW}, s{sMW}, {AW0}')
    em(a, srd_c(SG, 448 * 2688 + 256))
    a('s_waitcnt lgkmcnt(0)')
    stamp(a, 'ka')
    em(a, srd_p(SX, 4)); stats_load(a)
    def help_w():
        r0 = OPT['aw']
        a(f's_lshr_b32 s{T0}, s2, 3\ns_sub_u32 s{T0}, s{T0}, 23\ns_lshl1_add_u32 s{T0}, s{T0}, s{sWO}\ns_lshl1_add_u32 s{T0}, s{T0}, s{T1}\ns_add_u32 s{T0}, s{T0}, {r0}')
        a(f'v_mul_u32_u24 v18, 37, v0\nv_lshrrev_b32 v18, 8, v18\nv_mul_u32_u24 v36, 7, v18\nv_sub_u32 v36, v0, v36\nv_mad_u32_u24 v18, v18, 36, s{T0}')
        a(f's_mul_i32 s{T0}, s{sC}, 7\nv_min_u32 v18, 447, v18\nv_mad_u32_u24 v18, v18, 28, v36\ns_cmp_eq_u32 s{sJ}, 0\ns_cselect_b64 s[{sM1}:{sM1+1}], s[12:13], s[14:15]')
        a(f'v_add_lshl_u32 v18, v18, s{T0}, 7\nglobal_load_dword v19, v18, s[{sM1}:{sM1+1}]')
    def help_d():
        a(f's_sub_u32 s{T0}, s2, 184\ns_lshl2_add_u32 s{T0}, s{T0}, s{sW}\ns_mul_i32 s{T2}, s{T0}, 44\ns_mul_i32 s{T0}, s{T0}, 11')
        a(f'v_min_u32 v18, 43, v0\nv_add_u32 v18, s{T2}, v18\nv_min_u32 v18, 12543, v18\nv_lshlrev_b32 v18, 7, v18\nglobal_load_dword v19, v18, s[16:17]')
        a(f'v_min_u32 v18, 10, v0\nv_add_u32 v18, s{T0}, v18\nv_min_u32 v18, 3135, v18\nv_lshlrev_b32 v18, 7, v18\nglobal_load_dword v19, v18, s[8:9]')
    if OPT['aw'] and not OPT['awp']: split(); help_w()
    if OPT['ad'] == 1: help_d()
    em(a, srd_p(SG, 6, back=256))
    G = 24
    B = lambda m: bar_gap(G, 4, 6, OPT['ad_'], OPT['am'], m)
    def xd(j):
        o = items(x_off(OPT['rota'], j))
        for i in range(4):
            if i % 2 == 0: o.append(Item(f's_add_u32 m0, s{sMX}, {(j%3)*AXS + (i>>1)*(2048 - 896)}'))
            o.append(Item(f'buffer_load_dwordx4 v{XV + (i&1)}, s[{SX}:{SX+3}], s{sXJ} offen offset:{(i&1)*1024 + (i>>1)*896} lds', tag=f'x{j}', t0=B(x_bar(OPT['am'], j)), paced=True))
        return o
    def wd(h):
        o = []
        for i in range(2):
            o.append(Item(f's_add_u32 m0, s{sMW}, {(h%4)*24576 + i*3072}')); o[-1].brk = False
            o += items(w_off(OPT['rota'], h, i, 2688, 0))
            o += [Item(f'buffer_load_dwordx4 v{WV+m}, s[{SG}:{SG+3}], s{sSO} offen offset:{m*1024} lds', tag=f'w{h}', t0=B(h - 4), paced=True) for m in range(3)]
        return o
    d = wd(0) + xd(0) + wd(1)
    for h in range(2, 14):
        if h in (2, 4): d += xd(h // 2)
        for j in range(3, 7):
            if x_bar(OPT['am'], j) == h - 4: d += xd(j)
        d += wd(h)
    d = add_touches(d, 36, 18, 19)
    if OPT['ap']:
        k0 = OPT['ap']; n = (14 - k0) * 224; per = -(-n // 9)
        d += items([f's_and_b32 s79, s2, 7', f's_mul_i32 s79, s79, 7', f's_lshr_b32 s79, s79, 2', f's_add_u32 s79, s79, {k0}', f's_mul_i32 s79, s79, 224',
                    f's_lshr_b32 s{sPL}, s2, 3', f's_sub_u32 s{sPL}, s{sPL}, 23', f's_mul_i32 s{sSPIN}, s{sPL}, {per}', f's_add_u32 s79, s79, s{sSPIN}', f's_mul_i32 s{sSPIN}, s{sW}, 3136'])
        for k in range(0, per, 64):
            d += items([f'v_min_u32 v18, {min(63, per - 1 - k)}, v0', f'v_add_u32 v18, s79, v18', f'v_subrev_u32 v36, 3136, v18', 'v_min_u32 v18, v18, v36', f'v_subrev_u32 v36, 3136, v18', 'v_min_u32 v18, v18, v36',
                        f'v_add_lshl_u32 v18, v18, s{sSPIN}, 7', 's_add_u32 s79, s79, 64']) + [Item('global_load_dword v19, v18, s[0:1]', paced=True)]
        d += items([f's_mul_i32 s79, s{sPL}, 88', f's_mul_i32 s{sSPIN}, s{sW}, 784'])
        for k in (0, 44):
            d += items([f'v_min_u32 v18, 43, v0', f'v_add3_u32 v18, v18, s79, {k}', 'v_min_u32 v18, 783, v18', f'v_add_lshl_u32 v18, v18, s{sSPIN}, 7']) + [Item('global_load_dword v19, v18, s[18:19]', paced=True, name='apd')]
    dma = Stream(d, rate=OPT['arate0'])
    def steady(): dma.rate = OPT['arate']
    S_ = Sched(a)
    S_.flush(dma, 6)
    if not OPT['aw'] or OPT['awp']: split()
    stamp(a, 'i7')
    a(f's_mul_i32 s{T2}, s{sR}, 113\ns_lshl4_add_u32 s{T2}, s{sW}, s{T2}\ns_mul_i32 s{T2}, s{T2}, 896\ns_lshl_b32 s{sMX}, s{sW}, 12')
    a(f'v_add_u32 v{XV}, s{T2}, v{XL}\nv_add_u32 v{XV+1}, {64*896 - 1024}, v{XV}')
    S_.flush(dma, 2)
    em(a, srd(SH, 22, WS_USED) + srd(SDB, 20, 256)); keep_ptrs(a)
    x_read_addr(a, XA, XB, t, 4096)
    for st in range(3): a(f'ds_write_b128 v{t}, v[{t+2}:{t+5}] offset:{st*AXS + 129*128}')
    u = 20
    a(f'v_bfe_u32 v{u}, v0, 4, 1\nv_bfe_u32 v{u+1}, v0, 2, 2\nv_lshrrev_b32 v{u+2}, 5, v0\nv_and_b32 v{u+3}, 3, v0')
    a(f'v_lshl_add_u32 v{u+4}, v{u+1}, 1, v{u}\nv_lshl_add_u32 v{u+4}, v{u+4}, 2, v{u+3}\ns_mul_i32 s{T0}, s{sW}, 56\nv_lshl_add_u32 v{u+4}, v{u+4}, 3, s{T0}')
    a(f'v_add_u32 v{u+5}, 32, v{u+4}')
    if OPT['zpad']: a(f's_sub_u32 s{T0}, 168, s{T0}\nv_cmp_eq_u32 vcc, 3, v{u+3}\nv_add_u32 v{u+6}, s{T0}, v{u+5}\nv_cndmask_b32 v{u+5}, v{u+5}, v{u+6}, vcc')
    a(f'v_and_b32 v{u+4}, 0xff, v{u+4}\nv_and_b32 v{u+5}, 0xff, v{u+5}')
    a(f'v_mul_u32_u24 v{u}, 12288, v{u}\nv_mul_u32_u24 v{u+2}, 3072, v{u+2}\nv_lshl_add_u32 v{u}, v{u+1}, 8, v{u}\nv_add_u32 v{u}, v{u}, v{u+2}\nv_add_u32 v{u}, {AW0}, v{u}')
    a(f'v_add_u32 v{WA}, v{u}, v{u+4}\nv_add_u32 v{WA+1}, v{u}, v{u+5}\nv_add_u32 v{WA+2}, 49152, v{WA}\nv_add_u32 v{WA+3}, 49152, v{WA+1}')
    stats_do(a)
    if OPT['awp']:
        S_.flush(dma, OPT['awp'] - 8); help_w(); S_.flush(dma, max(0, OPT['anpro'] - OPT['awp']))
    else: S_.flush(dma, OPT['anpro'] - 8)
    if OPT['ad'] == 2: help_d()
    if OPT['ad'] > 2:
        rec = []; a_ = a; a = lambda t: rec.extend(t.split('\n')); help_d(); a = a_
        k = [i for i, x in enumerate(dma.items) if x.paced][OPT['ad'] - 1] + 1
        dma.items[k:k] = items([x.replace(f's{T0}', 's79').replace(f's{T2}', f's{sPL}') for x in rec])

    tiles = [[0, 1, 2, 3], [7, 4, 5, 6]]
    def bread(g, q, k, sl, n):
        T = tiles[g][q]
        return f'ds_read_b128 {A(BF + 8*sl + 4*n, 4)}, v{(XB if T == 7 else XA) + (k & 1)} offset:{((k>>1)%3)*AXS + (8*(T&1) + (T>>1))*1024}'
    def areads(h):
        o = []
        for mat in range(3):
            for ct in range(2):
                for jj in range(2):
                    off = (h % 4) * 24576 + jj * 6144 + mat * 1024
                    o.append(f'ds_read_b64_tr_b16 {A(AF + 24*(h%3) + 8*mat + 4*ct + 2*jj, 2)}, v{WA + ct + (2 if off >= 49152 else 0)} offset:{off % 49152}')
        return o
    def acc(T, c): return (Q + 8*T, Q + 8*T + 4, K + 8*T, K + 8*T + 4, V0 + 4*T, V1 + 4*T)[c]
    def mfma(g, q, c, k, sl, n, first):
        dd = V(acc(tiles[g][q], c), 4); w_, x_ = A(AF + 24*(k%3) + 4*c, 4), A(BF + 8*sl + 4*n, 4)
        return f'{MF} {dd}, {w_ if c < 4 else x_}, {x_ if c < 4 else w_}, {0 if first else dd}'
    stamp(a, 'pre')
    a('@wait vm=x0,w0 lg=*\ns_barrier')
    stamp(a, 'b0')
    bg = [f'v_and_b32 v{t}, 15, v0', f'v_lshlrev_b32 v{PA}, 2, v{t}', f'v_add_u32 v{PA}, {APAR}, v{PA}',
          f'v_lshlrev_b32 v{RA}, 4, v{XL+1}', f'v_add_u32 v{RA}, {APAR}, v{RA}', f'v_cmp_gt_u32 s[{sM1}:{sM1+1}], 48, v0',
          f'v_lshlrev_b32 v{t+1}, 2, v{XL+1}', f'v_sub_u32 v{t+1}, v{t}, v{t+1}', f'v_mov_b32 v{t+3}, {hx(f2u(-1e30))}']
    for i in range(8):
        bg += [f'v_add_u32 v{t+2}, {(16 if i < 4 else 0) - (i & 3)}, v{t+1}', f'v_cmp_gt_u32 s[{sM0}:{sM0+1}], 8, v{t+2}',
               f'v_cndmask_b32 v{MK+i}, v{t+3}, 0, s[{sM0}:{sM0+1}]']
    kA, kB, kC, kD = sTH, sCT, sJ, sWO
    bg += [f's_mul_i32 s{kD}, s{sR}, 113', f's_lshl2_add_u32 s{T3}, s{sC}, s{sW}', f's_add_u32 s{T3}, s{T3}, 56', f's_lshl_b32 s{sST}, s{T3}, 10',
           [f's_cmp_eq_u32 s{sR}, 0', f's_cselect_b32 s{T3}, 0, 14'], f's_mov_b32 s{kA}, 26547', f's_mov_b32 s{kB}, {TH_BYTES}', f's_mov_b32 s{kC}, {72*1024}',
           f'v_mov_b32 v{t+7}, {OOB}']
    for p in range(2):
        bg += [f'v_lshl_add_u32 v{t+1}, v0, 1, {p}', f'v_add_u32 v{t+2}, s{kD}, v{t+1}', f'v_mul_u32_u24 v{t+3}, s{kA}, v{t+2}', f'v_lshrrev_b32 v{t+3}, 22, v{t+3}',
               f'v_mul_u32_u24 v{t+4}, 158, v{t+3}', f'v_sub_u32 v{t+2}, v{t+2}, v{t+4}',
               f'v_bfe_u32 v{t+4}, v{t+2}, 4, 1', f'v_lshl_add_u32 v{t+3}, v{t+3}, 1, v{t+4}', f'v_mul_u32_u24 v{t+3}, s{kB}, v{t+3}',
               f'v_lshrrev_b32 v{t+4}, 5, v{t+2}', f'v_mad_u32_u24 v{t+3}, v{t+4}, s{kC}, v{t+3}',
               f'v_bfe_u32 v{t+4}, v{t+2}, 1, 3', f'v_lshl_add_u32 v{t+3}, v{t+4}, 4, v{t+3}', f'v_and_b32 v{t+4}, 1, v{t+2}', f'v_lshl_add_u32 v{OA+p}, v{t+4}, 7, v{t+3}',
               f'v_cmp_le_u32 s[{sM0}:{sM0+1}], s{T3}, v{t+1}', f'v_cndmask_b32 v{OA+p}, v{t+7}, v{OA+p}, s[{sM0}:{sM0+1}]']
    bg += [f'v_cmp_gt_u32 s[{sM0}:{sM0+1}], 63, v0', f'v_cndmask_b32 v{OA+1}, v{t+7}, v{OA+1}, s[{sM0}:{sM0+1}]']
    bg += [f's_add_u32 s{T3}, s{T3}, s{kD}', f's_mul_i32 s{T3}, s{T3}, 26547', f's_lshr_b32 s{T3}, s{T3}, 22', f's_add_u32 s{kD}, s{kD}, 126', f's_mul_i32 s{kD}, s{kD}, 26547',
           f's_lshr_b32 s{kD}, s{kD}, 22', f's_sub_u32 s{kD}, s{kD}, s{T3}', f'v_cmp_ge_u32 s[{sM0}:{sM0+1}], s{kD}, v0', f'v_lshlrev_b32 v{CB}, 9, v0',
           f's_lshl2_add_u32 s{T3}, s{T3}, s{sC}', f's_lshl_b32 s{T3}, s{T3}, 7', f's_add_u32 s{sFL}, s{T3}, {FH + 4*FST}',
           f'v_cndmask_b32 v{CB}, v{t+7}, v{CB}, s[{sM0}:{sM0+1}]']
    bgs = Stream(items(bg))
    z = ZD + 6
    src = [f's_and_b32 s{T0}, s{sW}, 1', f's_mul_i32 s{T1}, s{sR}, 113', f's_add_u32 s{T1}, s{T1}, s{T0}', f's_lshr_b32 s{T2}, s{T1}, 1', f'v_add_u32 v{z}, s{T2}, v0']
    src += stats_src(z, z + 1)
    src += [f's_and_b32 s{T1}, s{T1}, 1', f's_lshr_b32 s{T2}, s{sW}, 1', f's_lshl1_add_u32 s{T1}, s{T1}, s{T2}', f's_lshl_b32 s{T1}, s{T1}, 5',
            f's_add_u32 s{T1}, s{T1}, {STATS}', f's_lshl1_add_u32 s{T0}, s{T0}, s{T2}', f's_lshl_b32 s{T0}, s{T0}, 8', f's_add_u32 s{T0}, s{T0}, {APAR}',
            f'v_lshl_add_u32 v{z+1}, v0, 2, s{T0}']
    sy = sync_stream('La', G, OPT['atc'], src, [f'buffer_load_dword v{z+2}, v{z}, s[{SH}:{SH+3}], s{T1} offen sc1'], [z + 2], [f'ds_write_b32 v{z+1}, v{z+2}'], OPT['atl'], OPT['atl'] + 5)
    par = [Item(f'ds_read2_b32 {V(PR + 2*T, 2)}, v{PA} offset0:{128*(T>>2) + 16*(T&3)} offset1:{64 + 128*(T>>2) + 16*(T&3)}', t0=B(12)) for T in range(8)]
    CQ, CK = 2, 54
    par += [Item(f'v_mov_b32_dpp v{CK+k}, v{K+56+k} row_newbcast:15 row_mask:0xf bank_mask:0xf', t0=25*G + 16) for k in range(8)]
    for c, sv in enumerate((V0 + 31, V1 + 31)):
        par += items([f'v_mov_b32 v62, v{sv}', f'v_mov_b32 v63, v{sv}', 'v_permlane32_swap_b32 v62, v63', f'v_mov_b32 v{CV+c}, v63', f'v_permlane16_swap_b32 v63, v{CV+c}'])
    par += [Item(f'v_mov_b32_dpp v{CQ+k}, v{Q+56+k} row_newbcast:15 row_mask:0xf bank_mask:0xf', t0=27*G + 13) for k in range(8)]
    pars = Stream(par)
    def ck25(): assert sy.done() and bgs.done() and dma.done()
    gemm1(a, S_, G, 4, 6, OPT['ad_'], OPT['am'], areads, bread, mfma, dma, [sy, pars, bgs], {12: ck25}, {5: steady})
    assert dma.done()
    S_.flush(pars)
    a('@wait lg=*')
    stamp(a, 'g1')
    for T in range(8):
        P = PR + 2 * T; dd = Q + 8 * T
        for k in range(0, 8, 2): a(f'v_pk_fma_f32 {V(dd+k, 2)}, {V(CQ+k, 2)}, {V(P, 2)}, {V(dd+k, 2)} op_sel_hi:[1,0,1]')
        dk = K + 8 * T
        for k in range(0, 8, 2): a(f'v_pk_fma_f32 {V(dk+k, 2)}, {V(CK+k, 2)}, {V(P, 2)}, {V(dk+k, 2)} op_sel_hi:[1,0,1]')
        for k in range(4): a(f'v_cvt_pk_bf16_f32 v{Q+4*T+k}, v{dd+2*k}, v{dd+2*k+1}')
        for k in range(0, 8, 2): a(f'v_pk_mul_f32 {V(dk+k, 2)}, {V(dk+k, 2)}, {V(P, 2)} op_sel:[0,1] op_sel_hi:[1,1]')
        for k in (() if OPT['zpad'] else (2, 3)): a(f'v_cndmask_b32 v{Q+4*T+k}, 0, v{Q+4*T+k}, s[{sM1}:{sM1+1}]')
        for k in range(4): a(f'v_cvt_pk_bf16_f32 v{K+4*T+k}, v{dk+2*k}, v{dk+2*k+1}')
    def SR(T): return (Q + 32 + 8 * T) if T < 4 else (K + 32 + 8 * (T - 4))
    RB = (2, 54)
    def rread(T):
        for ar in range(2): a(f'ds_read_b128 {V(RB[T&1] + 4*ar, 4)}, v{RA} offset:{512*(T>>2) + 256*ar + 64*(T&3)}', tag=f'R{T}')
    rread(0); rread(1)
    for T in range(8):
        if T & 3: a(f'{MF} {V(SR(T), 4)}, {V(K + 4*(T-1), 4)}, {V(Q + 4*T, 4)}, {V(MK, 4)}')
        a(f'{MF} {V(SR(T) + 4, 4)}, {V(K + 4*T, 4)}, {V(Q + 4*T, 4)}, {V(MK + 4, 4)}')
        a(f'v_mul_f32 v{PR + 2*T + 1}, {hx(f2u(LOG2E * 28 ** -0.5))}, v{PR + 2*T + 1}')
    MX = 10
    mx = [10, 11, 12, 13, 22, 23, 24, 25]
    for T in range(8):
        a(f'@wait lg=R{T}')
        b = RB[T & 1]
        for c, base in enumerate((V0, V1)):
            for k in (0, 2): a(f'v_pk_fma_f32 {V(base+4*T+k, 2)}, {V(b+k, 2)}, {V(CV, 2)}, {V(base+4*T+k, 2)} op_sel:[0,{c},0] op_sel_hi:[1,{c},1]')
        for c, base in enumerate((V0, V1)):
            for k in (0, 2): a(f'v_pk_mul_f32 {V(base+4*T+k, 2)}, {V(base+4*T+k, 2)}, {V(b+4+k, 2)}')
        if T < 6: rread(T + 2)
        for c, base in enumerate((V0, V1)):
            for k in range(2): a(f'v_cvt_pk_bf16_f32 v{base+2*T+k}, v{base+4*T+2*k}, v{base+4*T+2*k+1}')
        s = SR(T); m = mx[T]
        if T & 3: a(f'v_max3_f32 v{m}, v{s}, v{s+1}, v{s+2}\nv_max3_f32 v{m}, v{m}, v{s+3}, v{s+4}\nv_max3_f32 v{m}, v{m}, v{s+5}, v{s+6}\nv_max_f32 v{m}, v{m}, v{s+7}')
        else: a(f'v_max3_f32 v{m}, v{s+4}, v{s+5}, v{s+6}\nv_max_f32 v{m}, v{m}, v{s+7}')
    stamp(a, 'e1')
    for b in (0, 2, 4, 6): a(f'v_permlane32_swap_b32 v{mx[b]}, v{mx[b+1]}')
    for b in (0, 2, 4, 6): a(f'v_max_f32 v{mx[b]}, v{mx[b]}, v{mx[b+1]}')
    for b in (0, 4): a(f'v_permlane16_swap_b32 v{mx[b]}, v{mx[b+2]}')
    for b in (0, 4): a(f'v_max_f32 v{mx[b]}, v{mx[b]}, v{mx[b+2]}')
    for b in (0, 4): a(f'v_mov_b32 v{mx[b+2]}, v{mx[b]}')
    ONE = 54; PF = 56; OT = K
    for k in range(2): a(f'v_mov_b32 v{2+k}, 0x3f803f80')
    for b in (0, 4): a(f'v_permlane16_swap_b32 v{mx[b]}, v{mx[b+2]}')
    for b in (0, 2, 4, 6): a(f'v_mov_b32 v{mx[b+1]}, v{mx[b]}')
    for k in range(2, 4): a(f'v_mov_b32 v{2+k}, 0x3f803f80')
    ONE = 2
    for b in (0, 2, 4, 6): a(f'v_permlane32_swap_b32 v{mx[b]}, v{mx[b+1]}')
    for T in range(8): a(f'v_mul_f32 v{PR + 2*T}, v{mx[T]}, v{PR + 2*T + 1}')
    def pf(T): return PF + 4 * (T & 1)
    def soft(T):
        s = SR(T); P = PR + 2 * T
        lo = 0 if T & 3 else 4
        for k in range(lo, 8, 2): a(f'v_pk_fma_f32 {V(s+k, 2)}, {V(s+k, 2)}, {V(P, 2)}, {V(P, 2)} op_sel:[0,1,0] op_sel_hi:[1,1,0] neg_lo:[0,0,1] neg_hi:[0,0,1]')
        return [f'v_exp_f32 v{s+k}, v{s+k}' for k in range(lo, 8)]
    def pack(T):
        s = SR(T)
        if T & 3:
            for k in range(4): a(f'v_cvt_pk_bf16_f32 v{pf(T)+k}, v{s+2*k}, v{s+2*k+1}')
        else:
            for k in range(2): a(f'v_cvt_pk_bf16_f32 v{pf(T)+k}, v{s+4+2*k}, v{s+5+2*k}')
            a(f'v_mov_b32 v{pf(T)+2}, 0\nv_mov_b32 v{pf(T)+3}, 0')
    def OB(T): return OT + 12 * (T & 1)
    def pv(T):
        v = 2 * (T - 1) if T & 3 else 2 * T
        o = OB(T)
        return [f'{MF} {V(o + 8, 4)}, {V(ONE, 4)}, {V(pf(T), 4)}, 0', f'{MF} {V(o, 4)}, {V(V0 + v, 4)}, {V(pf(T), 4)}, 0', f'{MF} {V(o + 4, 4)}, {V(V1 + v, 4)}, {V(pf(T), 4)}, 0']
    def fin(T):
        o = OB(T); R = Q + 4 * T
        a(f'v_rcp_f32 v{o+8}, v{o+8}')
        for k in range(0, 8, 2): a(f'v_pk_mul_f32 {V(o+k, 2)}, {V(o+k, 2)}, {V(o+8, 2)} op_sel_hi:[1,0]')
        for k in range(4): a(f'v_cvt_pk_bf16_f32 v{R+k}, v{o+2*k}, v{o+2*k+1}')
        if T & 3 == 3:
            R0 = R - 12
            for k in range(4):
                for q in (0, 1): a(f'v_permlane32_swap_b32 v{R0+4*q+k}, v{R0+4*(q+2)+k}')
            for q in (0, 2):
                for k in range(4): a(f'v_permlane16_swap_b32 v{R0+4*q+k}, v{R0+4*(q+1)+k}')
                for g in (q, q + 1): a(f'buffer_store_dwordx4 {V(R0+4*g, 4)}, v{OA + (T>>2)}, s[{SH}:{SH+3}], s{sST} offen offset:{256*g} sc1', tag='o')
    for T in range(9):
        ex = soft(T) if T < 8 else []
        mm = pv(T - 1) if T else []
        for x in mm:
            a(x)
            if ex: a(ex.pop(0))
        em(a, ex)
        if T < 8: pack(T)
        if T: fin(T - 1)
    stamp(a, 'e2')
    a(f'v_mov_b32 v2, 1\ns_waitcnt vmcnt(0)\nbuffer_atomic_add v2, v{CB}, s[{SH}:{SH+3}], s{sFL} offen sc1')

def desc(name):
    return f""".amdhsa_kernel {name}
  .amdhsa_next_free_vgpr 512
  .amdhsa_next_free_sgpr 102
  .amdhsa_accum_offset 256
  .amdhsa_group_segment_fixed_size 0
  .amdhsa_kernarg_size 80
  .amdhsa_user_sgpr_count 2
  .amdhsa_user_sgpr_kernarg_segment_ptr 1
  .amdhsa_system_sgpr_workgroup_id_x 1
  .amdhsa_float_denorm_mode_32 3
.end_amdhsa_kernel
"""

def build():
    del SLOW[:]
    hdr = open('cdna_kernels/' + NAME + '.s.ref').read().split('; Override launch')[0]
    k1 = NAME + '_kernel'
    out = hdr + '; @launch grid=(256,1,1) block=(256,1,1) lds=163840\n.amdgcn_target "amdgcn-amd-amdhsa--gfx950"\n.text\n'
    c = Asm()
    c.raw(f'.globl {k1}\n.type {k1},@function\n.p2align 10\n.fill {OPT["pad"] // 4}, 4, 0xbf810000\n.p2align 8\n{k1}:')
    c('s_cmp_ge_u32 s2, 256\ns_cbranch_scc1 L_done')
    if PROF: c.raw(f'    s_mem{"real" if "real" in STAMPS else ""}time s[86:87]\n    s_memrealtime s[84:85]\n    s_waitcnt lgkmcnt(0)\n    s_mov_b32 s87, s84\n    s_getreg_b32 s99, hwreg(HW_REG_XCC_ID)\n    s_lshl_b32 s99, s99, 16')
    else: stamp(c, 0)
    c('s_load_dwordx16 s[4:19], s[0:1], 0\ns_load_dwordx4 s[20:23], s[0:1], 64')
    per = 11
    c(f's_getpc_b64 s[{sFH}:{sFH+1}]\nv_lshrrev_b32 v1, 6, v0\nv_and_b32 v0, 63, v0\ns_lshr_b32 s{T0}, s2, 3\ns_mul_i32 s{T1}, s{T0}, {per}')
    c(f'v_min_u32 v{XL}, {per-1}, v0\nv_readfirstlane_b32 s{sW}, v1\nv_add_lshl_u32 v{XL}, v{XL}, s{T1}, 7')
    c(f'global_load_dword v37, v{XL}, s[{sFH}:{sFH+1}] offset:896', tag='pf')
    stats_addr(c); em(c, srd_c(SX, 2048 * 896))
    c(f's_and_b32 s{sJ}, s{sW}, 1\ns_lshr_b32 s{sWO}, s{sW}, 1\ns_lshl_b32 s{T2}, s{sJ}, 2')
    c(f'v_lshrrev_b32 v{XL}, 3, v0\nv_and_b32 v1, 7, v0\nv_lshrrev_b32 v{XL+1}, 4, v0\nv_mul_u32_u24 v{XL}, 112, v{XL}\nv_xor_b32 v1, s{T2}, v1')
    c(f's_bfe_u32 s{T1}, s2, 0x10002\ns_and_b32 s{sC}, s2, 3\nv_xor_b32 v1, v1, v{XL+1}\ns_cmp_lt_u32 s{T0}, 23\nv_add_lshl_u32 v{XL}, v{XL}, v1, 4\ns_cbranch_scc1 L_ffn')
    aa = Asm(); aa.vm = ['pf']
    cut = []
    def split():
        aa('s_branch L_attn'); cut.append(len(aa.lines)); aa.label('L_attn')
    attn(aa, split); dump(aa); aa('s_endpgm')
    f = Asm(); f.vm = ['pf']
    f.label('L_ffn')
    f(f's_mul_i32 s{T2}, s{sC}, 23\ns_add_u32 s{T0}, s{T0}, s{T2}\ns_cmp_ge_u32 s{T0}, 91\ns_cbranch_scc1 L_idle')
    ffn(f); dump(f)
    f.label('L_done'); f('s_endpgm')
    a = Asm(); a.vm = ['pf']
    a.label('L_idle')
    a(f's_cmp_eq_u32 s{T1}, 0\ns_cselect_b32 s{T1}, 0, {OOB}\ns_lshl_b32 s{T0}, s{sW}, 12\ns_add_u32 s{T0}, s{T0}, {STATS}\ns_mul_i32 s{T2}, s{sW}, {FST}\ns_add_u32 s{T2}, s{T2}, {FH}')
    a(f's_cmp_eq_u32 s{sW}, 0\ns_cselect_b32 s{T3}, s{T1}, {OOB}\ns_mov_b32 s{sMX}, {FH + 4*FST}')
    a(f'v_lshl_add_u32 v2, v0, 4, s{T1}\nv_lshl_add_u32 v3, v0, 7, s{T1}\nv_lshl_add_u32 v9, v0, 7, s{T3}\nv_mov_b32 v4, 0\nv_mov_b32 v5, 0\nv_mov_b32 v6, 0\nv_mov_b32 v7, 0')
    a('s_waitcnt lgkmcnt(0)')
    em(a, srd(SH, 22, WS_USED))
    a(f'buffer_store_dword v4, v3, s[{SH}:{SH+3}], s{T2} offen sc1\nbuffer_store_dword v4, v9, s[{SH}:{SH+3}], s{sMX} offen sc1')
    for i in range(4): a(f'buffer_store_dwordx4 v[4:7], v2, s[{SH}:{SH+3}], s{T0} offen offset:{i*1024} sc1')
    em(a, srd(SDB, 20, 256) + srd_p(SX, 4))
    a(f'v_mov_b32 v8, 1\nv_lshl_add_u32 v9, v0, 8, s{T3}')
    a(f's_waitcnt vmcnt(0)\ns_barrier\nbuffer_store_dword v8, v9, s[{SDB}:{SDB+3}], 0 offen sc1')
    stats_load(a); stats_do(a)
    a('s_waitcnt lgkmcnt(0)\ns_barrier')
    em(a, stats_prep(ZD, ZD + 4))
    a(cert_load(ZD + 5)); a('s_waitcnt vmcnt(0) lgkmcnt(0)')
    em(a, vec_check('Li_cert', [cert_load(ZD + 5)], [ZD + 5])); a(stats_post(ZD, ZD + 4)); a('s_endpgm')
    for s in SLOW: a.raw(s)
    a.raw('L_end:\n.fill 3072, 4, 0xbf810000')
    sys.stderr.write(f'instr: ffn {f.count} attn {aa.count}; nops {f.nops} {aa.nops}\n')
    lines = c.lines + aa.lines[:cut[0]] + f.lines + aa.lines[cut[0]:] + a.lines
    if OPT['align']: lines = align_pass(lines, k1, 'L_end')
    text = '\n'.join(lines) + '\n'
    if OPT['sf'] != 'sc1': text = re.sub(r'(buffer_store_dwordx4 .*) sc1', lambda m: m.group(1) + ' ' + OPT['sf'].replace('+', ' '), text)
    return out + text + '.section .rodata,"a"\n.p2align 6\n' + desc(k1)

if __name__ == '__main__':
    args = sys.argv[1:]
    for x in [x for x in args if x.startswith('enc:')]:
        args.remove(x); ENC = (x.split(':')[1], int(x.split(':')[2]))
    for x in [x for x in args if x.startswith('st:')]:
        PROF = True; args.remove(x); STAMPS[:] = x[3:].split(',')
    for x in [x for x in args if '=' in x]:
        k, v = x.split('='); args.remove(x)
        OPT[k] = type(OPT[k])(v) if not isinstance(OPT[k], bool) else v == '1'
    roles = [decode_py(b) for b in range(256)]
    F = [r for r in roles if r and r[0] == 'F']; Aa = [r for r in roles if r and r[0] == 'A']
    assert sorted((r[1], r[2]) for r in F) == [(r, c) for r in range(13) for c in range(14)]
    assert sorted((r[3], r[4]) for r in F) == [(t, c) for t in range(26) for c in range(7)]
    assert sorted((r[1], r[2]) for r in Aa) == [(x, g) for x in range(18) for g in range(4)]
    assert all(((t * 26547) >> 22) == t // 158 for t in range(2200))
    assert all(((t * 4682) >> 16) == t // 14 for t in range(140))
    for r in range(13):
        need = {0 if tk < 127 else (tk - 14) // 113 for tk in range(158 * r, min(158 * r + 158, 2048))}
        assert len(need) == ((min(158 * r + 143, 2033) * 580) >> 16) - (((max(158 * r, 14) - 14) * 580) >> 16) + 1
        assert need == {x for x in range(18) if ((113 * x + (14 if x else 0)) // 158) <= r <= (113 * x + 126) // 158}
    open(args[0] if args else 'cdna_kernels/' + NAME + '.s', 'w').write(build())
```

```python
import sys, struct
from asmlib import *

NAME = "parallel_sum__sliding_local_dilated__swiglu_ffn__prompt"
LOG2E = 1.4426950408889634
def f2u(x): return struct.unpack('<I', struct.pack('<f', x))[0]
def hx(x): return f'0x{x & 0xffffffff:08x}'

OPT = dict(rotf='h3', rota='1.0.0.7.1', rate=0.25, rate2=0.2, rate3=0.22, rs=4, arate=0.2, erate=0.25, w2s=13, w2g=50, npro=17, anpro=16, rot2=2, sleep=3,
           tc=1, atc=-1, atl=13, tl=13, nhb=12, pi=9, early=0, lag=60, touch='', tn=4, tpos=20, tstep=4.0, nO=4, pad=256, otr=1, lt=0, ltr=128, zpos=0, align=1, lead=8, fm=2, am=0, arate0=0.3, fd=3, ad_=2, chain=1, zpad=1, of='sc1', xo=0, sf='sc1', wso=0, diag=0, roto=0, aw=0, ad=60, awp=0, ol=0, azs=0, adip=4, pair=0, lc=4, rt=18, zi=99, nbg=999, p2=0, zr=1, noa=0, pfn=11, iw=0, iws=1, nA=8, a6=0, ost=80, nochk=0, x='', ap=0, tk=4, elag=40)

SX, SG, SU, SH, SD, SO, SOUT, SDB = 24, 28, 32, 36, 40, 44, 48, 52
sR, sC, sTH, sCT, sW = 56, 57, 58, 59, 60
T0, T1, T2, T3 = 61, 62, 63, 64
sMX, sMW, sSO, sJ, sWO, sST, sSPIN = 65, 66, 67, 68, 69, 70, 71
sPL, sONE, sXJ, sWJ = 72, 73, 74, 75
sFH, sNO = 76, 78
sM0, sM1 = 80, 82
sRT = 4
sFL = 3

TH_BYTES = 5 * 72 * 1024
FH, FST, STATS, WS_USED = 0x930000, 8192, 0x93a000, 0x940000
OOB = 0x7ffffff0
MF = 'v_mfma_f32_16x16x32_bf16'

PROF = False; STAMPS = []; ENC = None; sP = 86
def stamp(a, i, real=False):
    if ENC:
        if i == 0 or i == ENC[0]:
            a.raw(f'    s_memrealtime s[84:85]\n    s_waitcnt lgkmcnt(0)\n    s_mov_b32 s{86 + (i != 0)}, s84'); a.lg = []
        return
    if not PROF: return
    if isinstance(i, str):
        if i not in STAMPS: return
        i = 2 + STAMPS.index(i)
    real = real or 'real' in STAMPS
    a.raw(f'    s_mem{"real" if real else ""}time s[84:85]\n    s_waitcnt lgkmcnt(0)\n    s_mov_b32 s{sP+i}, s84')
    a.lg = []
def dump(a):
    if ENC:
        l = f'Lenc{a.count}'
        stamp(a, 'end')
        a.raw(f'    s_cmp_eq_u32 s2, {ENC[1]}\n    s_cbranch_scc0 {l}_e\n    s_sub_u32 s87, s87, s86\n    s_min_u32 s87, s87, 5000\n    s_mul_i32 s87, s87, 10\n    s_memrealtime s[88:89]\n{l}:\n    s_memrealtime s[84:85]\n    s_waitcnt lgkmcnt(0)\n    s_sub_u32 s84, s84, s88\n    s_cmp_lt_u32 s84, s87\n    s_cbranch_scc1 {l}\n{l}_e:')
        return
    if not PROF: return
    a('s_waitcnt vmcnt(0)')
    stamp(a, 14); stamp(a, 15, True)
    a(f's_mov_b32 s{SH+2}, 0x2000000')
    a(f's_lshl_b32 s{T0}, s2, 2\ns_add_u32 s{T0}, s{T0}, s{sW}\ns_lshl_b32 s{T0}, s{T0}, 6\ns_add_u32 s{T0}, s{T0}, 0x1000000')
    for i in range(16): a(f'v_mov_b32 v{4+i}, s{sP+i}')
    a('v_mov_b32 v2, 0\ns_mov_b64 exec, 1')
    for i in range(4): a(f'buffer_store_dwordx4 v[{4+4*i}:{7+4*i}], v2, s[{SH}:{SH+3}], s{T0} offen offset:{16*i}')

def srd_c(dst, nbytes): return [f's_mov_b32 s{dst+2}, {nbytes}', f's_mov_b32 s{dst+3}, 0x20000']
def srd_p(dst, ptr, back=0):
    if back: return [[f's_sub_u32 s{dst}, s{ptr}, {back}', f's_subb_u32 s{dst+1}, s{ptr+1}, 0']]
    return [f's_mov_b64 s[{dst}:{dst+1}], s[{ptr}:{ptr+1}]']
def srd(dst, ptr, nbytes): return srd_p(dst, ptr) + srd_c(dst, nbytes)
def em(a, l, tag=None):
    for x in l:
        for y in ([x] if isinstance(x, str) else x): a(y, tag=tag)
def items(l, **k): return [Item(x, **k) for x in l]

SLOW = []
NL = '\n    '
def mark(): return f'{NL}s_bitset1_b32 s99, {len(SLOW)}' if PROF and len(STAMPS) < 12 else ''
def vec_check(name, loads, regs):
    r = regs[-1]
    t = {1: [], 2: [f'v_min_u32 v{r}, v{regs[0]}, v{r}'], 3: [f'v_min3_u32 v{r}, v{regs[0]}, v{regs[1]}, v{r}']}[len(regs)] if len(regs) > 1 else []
    t.append(f'v_cmp_eq_u32 vcc, 0, v{r}')
    SLOW.append(f"""{name}:{mark()}
    s_mov_b32 s{sSPIN}, 0
{name}_l:
    s_sleep 4
    {NL.join(loads)}
    s_add_u32 s{sSPIN}, s{sSPIN}, 1
    s_waitcnt vmcnt(0)
    {NL.join(t)}
    s_nop 4
    s_cbranch_vccz {name}_r
    s_cmp_lt_u32 s{sSPIN}, 0x40000
    s_cbranch_scc1 {name}_l
    s_branch {name}_r""")
    return t + ['s_nop 4', f's_cbranch_vccnz {name}', f'{name}_r:']
def preg(f): return 79 if f & 1 else sPL
def poll_issue(f): return f's_load_dword s{preg(f)}, s[{sFH}:{sFH+1}], {f*FST} glc'
def poll_check(name, f, want, first=()):
    SLOW.append(f"""{name}:{mark()}
    {NL.join(list(first) + [f's_mov_b32 s{sSPIN}, 0'])}
{name}_l:
    {poll_issue(f)}
    s_add_u32 s{sSPIN}, s{sSPIN}, 1
    s_waitcnt lgkmcnt(0)
    s_cmp_eq_u32 s{preg(f)}, {want}
    s_cbranch_scc1 {name}_r
    s_sleep {OPT['sleep']}
    s_cmp_lt_u32 s{sSPIN}, 0x40000
    s_cbranch_scc1 {name}_l
    s_branch {name}_r""")
    return ['s_waitcnt lgkmcnt(0)', [f's_cmp_eq_u32 s{preg(f)}, {want}', f's_cbranch_scc0 {name}', f'{name}_r:']]

def decode_py(b):
    i, hf, q = b >> 3, (b >> 2) & 1, b & 3
    if i >= 23: return ('A', 9 * hf + i - 23, q)
    f = i + 23 * q
    if f >= 91: return None
    p = 91 * hf + f; th = (p * 9363) >> 16; ct = p - 7 * th
    l1 = 49 - 7 * hf; sec = int(f >= l1); f2 = f - (l1 if sec else 0)
    m, n = (37, 7) if (sec ^ hf) == 0 else (43, 6)
    c = (f2 * m) >> 8; r = f2 - n * c
    return ('F', r + (7 - sec) * hf, c + 7 * sec, th, ct)

ZD, ZT = 38, 46
ZL = 163840 - 128
sZB = sSPIN
def zb(): return sZB if OPT['zr'] else 2
def stats_addr(a):
    if OPT['zr']: a(f's_bfe_u32 s{T3}, s2, 0x10002\ns_lshl_b32 s{T3}, s{T3}, 5\ns_add_u32 s{T3}, s{T3}, s{T0}\ns_and_b32 s{sZB}, s2, 3\ns_lshl2_add_u32 s{sZB}, s{T3}, s{sZB}')
    a(f's_andn2_b32 s{T3}, s{zb()}, 1\ns_lshl1_add_u32 s{T3}, s{T3}, s{sW}\ns_and_b32 s{sSO}, s2, 1\ns_lshl2_add_u32 s{sST}, s{T3}, s{sSO}\ns_mulk_i32 s{sST}, 896')
    a(f'v_lshrrev_b32 v{ZT}, 5, v0\nv_and_b32 v{ZT+1}, 31, v0\nv_mul_u32_u24 v{ZT+2}, 1792, v{ZT}\nv_cmp_gt_u32 vcc, 28, v{ZT+1}')
    a(f'v_lshl_add_u32 v{ZT+2}, v{ZT+1}, 4, v{ZT+2}\nv_mov_b32 v{ZT+3}, {OOB}\nv_cndmask_b32 v{ZT+2}, v{ZT+3}, v{ZT+2}, vcc')
def stats_load(a):
    a(f'buffer_load_dwordx4 {V(ZD, 4)}, v{ZT+2}, s[{SX}:{SX+3}], s{sST} offen', tag='z')
    a(f'buffer_load_dwordx4 {V(ZD+4, 4)}, v{ZT+2}, s[{SX}:{SX+3}], s{sST} offen offset:448', tag='z')
def stats_do(a_, more=None):
    cnt = [-1]
    def a(t, **k):
        for x in t.split('\n'):
            a_(x, **k)
            if cnt[0] >= 0 and more:
                if cnt[0] % OPT['zi'] == 0: more()
                cnt[0] += 1
    s, q, lo, hi = ZT + 4, ZT + 5, ZT + 6, ZT + 7
    a(f'v_and_b32 v{ZT+2}, 1, v0\nv_cmp_eq_u32 s[{sM0}:{sM0+1}], 1, v{ZT+2}\nv_lshlrev_b32 v{ZT+2}, 5, v{ZT+2}\nv_lshl_add_u32 v{ZT+2}, v{ZT}, 2, v{ZT+2}')
    a(f'v_bfe_u32 v{ZT+1}, v0, 4, 1\nv_lshlrev_b32 v{ZT+1}, 6, v{ZT+1}\nv_sub_u32 v{ZT+2}, v{ZT+2}, v{ZT+1}\ns_lshl3_add_u32 s{T0}, s{sW}, {ZL + 64}')
    a(f'v_cmp_eq_u32 vcc, 0, v0\nv_add_u32 v{ZT+2}, s{T0}, v{ZT+2}\nv_mov_b32 v{ZT}, 0\nv_cndmask_b32 v1, v{ZT+3}, v{ZT}, vcc')
    a_.raw(';HOP')
    stamp(a_, 'z0')
    a('@wait vm=z')
    stamp(a_, 'z1')
    cnt[0] = 0
    for k in range(8):
        r = ZD + k
        a(f'v_lshlrev_b32 v{lo}, 16, v{r}\nv_and_b32 v{hi}, 0xffff0000, v{r}')
        if k == 0: a(f'v_pk_add_f32 {V(ZT, 2)}, {V(lo, 2)}, 0\nv_pk_mul_f32 {V(s, 2)}, {V(lo, 2)}, {V(lo, 2)}')
        else: a(f'v_pk_add_f32 {V(ZT, 2)}, {V(ZT, 2)}, {V(lo, 2)}\nv_pk_fma_f32 {V(s, 2)}, {V(lo, 2)}, {V(lo, 2)}, {V(s, 2)}')
    a(f'v_add_f32 v{q}, v{s}, v{q}\nv_add_f32 v{s}, v{ZT}, v{ZT+1}')
    for ctl in ('quad_perm:[1,0,3,2] row_mask:0xf', 'quad_perm:[2,3,0,1] row_mask:0xf', 'row_half_mirror row_mask:0xf', 'row_mirror row_mask:0xf', 'row_bcast:15 row_mask:0xa'):
        for r in (q, s): a(f'v_add_f32_dpp v{r}, v{r}, v{r} {ctl} bank_mask:0xf')
    a(f'v_mul_f32 v{s}, {hx(f2u(1/448))}, v{s}\nv_mul_f32 v{q}, {hx(f2u(1/448))}, v{q}\nv_fma_f32 v{q}, -v{s}, v{s}, v{q}\nv_max_f32 v{q}, 0, v{q}')
    a(f'v_cvt_pk_bf16_f32 v{s}, -v{s}, v{q}\nv_and_b32 v{q}, 0xffff0000, v{s}\nv_lshlrev_b32 v{s}, 16, v{s}')
    a(f'v_add_f32 v{q}, {hx(f2u(1e-5))}, v{q}\nv_cvt_pk_bf16_f32 v{q}, v{q}, v{q}\nv_and_b32 v{q}, 0xffff0000, v{q}\nv_sqrt_f32 v{q}, v{q}')
    a(f'v_cvt_pk_bf16_f32 v{q}, v{q}, v{q}\nv_and_b32 v{q}, 0xffff0000, v{q}\nv_rcp_f32 v{q}, v{q}')
    a(f'v_cndmask_b32 v{s}, v{s}, v{q}, s[{sM0}:{sM0+1}]\nv_or_b32 v{s}, 1, v{s}')
    a(f'ds_write_b32 v{ZT+2}, v{s}')
    stamp(a_, 'z2')
def cert_load(v, k=0): return f'buffer_load_dword v{v}, off, s[{SDB}:{SDB+3}], 0 offset:{128*k} sc1'
def stats_prep(vd, va):
    return [f'v_and_b32 v{va}, 3, v0', f'v_lshlrev_b32 v{va}, 4, v{va}', f'v_add_u32 v{va}, {ZL}, v{va}', f'ds_read_b128 {V(vd, 4)}, v{va}',
            f's_lshl_b32 s{T0}, s{zb()}, 6', f's_add_u32 s{T0}, s{T0}, {STATS - ZL}', [f's_cmp_eq_u32 s{sW}, 0', f's_cselect_b32 s{T0}, s{T0}, {OOB}'],
            f'v_add_u32 v{va}, s{T0}, v{va}', f'v_cmp_gt_u32 vcc, 4, v0', f'v_cndmask_b32 v{va}, v1, v{va}, vcc']
def stats_post(vd, va): return f'buffer_store_dwordx4 {V(vd, 4)}, v{va}, s[{SH}:{SH+3}], 0 offen sc1'
def stats_src(vd, vt):
    return [f'v_min_u32 v{vd}, 1023, v{vd}', f'v_and_b32 v{vt}, 7, v{vd}', f'v_lshrrev_b32 v{vd}, 3, v{vd}', f'v_lshlrev_b32 v{vd}, 7, v{vd}', f'v_lshl_add_u32 v{vd}, v{vt}, 2, v{vd}']
def sync_stream(pfx, G, tc, src, loads, regs, writes, t_load, t_check, C=ZD+5):
    D = ZD
    loads = loads + [cert_load(C, 1)]; regs = regs + [C]
    o = items(stats_prep(D, D + 4), tag='zg')
    if tc >= 0: o.append(Item(cert_load(C), tag='cert', t0=tc * G))
    o.append(Item(['@wait vm=cert lg=zg'] + vec_check(pfx + '_cert', [cert_load(C)], [C]), t0=(tc + OPT['tk']) * G + 2))
    if OPT['diag']:
        o.append(Item(['s_waitcnt vmcnt(0)', 's_memrealtime s[84:85]', 's_waitcnt lgkmcnt(0)', 's_mov_b32 s88, s84', stats_post(D, D + 4), 's_waitcnt vmcnt(0)', 's_memrealtime s[84:85]', 's_waitcnt lgkmcnt(0)', 's_mov_b32 s89, s84']))
    else: o.append(Item(stats_post(D, D + 4)))
    o += items(src) + items(loads, tag='par', t0=t_load * G)
    o.append(Item(['@wait vm=par'] + vec_check(pfx + '_par', loads, regs), t0=t_check * G))
    return Stream(o + items(writes, tag='sw'))

def rot_init(a, spec, rowbytes):
    if not spec: return
    if spec == 'x':
        a(f's_and_b32 s{sXJ}, s2, 7\ns_cmp_eq_u32 s{sXJ}, 7\ns_cselect_b32 s{sXJ}, 0, s{sXJ}\ns_mul_i32 s{sWJ}, s{sXJ}, {64*rowbytes}\ns_lshl_b32 s{sXJ}, s{sXJ}, 7')
        return
    if spec[0] == 'h':
        a(f's_mul_i32 s{sWJ}, s{T1}, {64*rowbytes*int(spec[1])}\ns_mul_i32 s{sXJ}, s{T1}, {128*int(spec[1])}')
        return
    p, q, s, m, k = map(int, spec.split('.'))
    terms = [(c, r) for c, r in ((p, sR), (q, sC), (s, T1)) if c]
    src = terms[0][1]
    if terms[0][0] != 1 or len(terms) > 1:
        a(f's_mul_i32 s{sXJ}, s{src}, {terms[0][0]}'); src = sXJ
        for c, r in terms[1:]: a(f's_mul_i32 s{sWJ}, s{r}, {c}\ns_add_u32 s{sXJ}, s{sXJ}, s{sWJ}')
    a(f's_mul_i32 s{sWJ}, s{src}, {65536 // m + 1}\ns_lshr_b32 s{sWJ}, s{sWJ}, 16\ns_mul_i32 s{sWJ}, s{sWJ}, {m}\ns_sub_u32 s{sXJ}, s{src}, s{sWJ}')
    a(f's_mul_i32 s{sWJ}, s{sXJ}, {64*k*rowbytes}\ns_mulk_i32 s{sXJ}, {128*k}')
def x_off(spec, j):
    if not spec: return [f's_movk_i32 s{sXJ}, {128*j}']
    return [f's_add_u32 s{sXJ}, s{sXJ}, 128', [f's_cmp_eq_u32 s{sXJ}, 896', f's_cselect_b32 s{sXJ}, 0, s{sXJ}']] if j else []
def w_off(spec, m, i, rowbytes, comp):
    if not spec: return [f's_mov_b32 s{sSO}, {(32*m + 16*i)*rowbytes - comp}']
    o = []
    if i == 0 and m and m % 2 == 0: o = [f's_add_u32 s{sWJ}, s{sWJ}, {64*rowbytes}', [f's_cmp_eq_u32 s{sWJ}, {448*rowbytes}', f's_cselect_b32 s{sWJ}, 0, s{sWJ}']]
    return o + [f's_add_u32 s{sSO}, s{sWJ}, {(32*(m&1) + 16*i)*rowbytes - comp}']

def add_touches(d, vb, vt, vdump):
    mats = dict(d=([0], 7), o=([18], 7))
    n = OPT['tn']; pieces = []
    for sp in [x for x in OPT['touch'].split(',') if x]:
        m, r0, r1 = sp.split(':')
        ptrs, lpr = mats[m]; l0 = int(r0) * lpr; l1 = int(r1) * lpr
        for l in range(l0, l1, 1024 * n):
            o = [f'v_add_u32 v{vt}, {l*128}, v{vb}'] + ([f'v_min_u32 v{vt}, {(l1-1)*128}, v{vt}'] if l + 1024 * n > l1 else [])
            for p in ptrs:
                pieces.append(items(o) + [Item(f'global_load_dword v{vdump}, v{vt}, s[{p}:{p+1}]', tag='touch')]); o = []
    ins = {}
    for k, p in enumerate(pieces): ins.setdefault(int(OPT['tpos'] + k * OPT['tstep']), []).extend(p)
    if pieces:
        ins[OPT['tpos']][:0] = items([f's_lshl2_add_u32 s79, s2, s{sW}', f's_mul_i32 s79, s79, {n}', f'v_min_u32 v{vb}, {n-1}, v0', f'v_add_lshl_u32 v{vb}, v{vb}, s79, 7'])
    out = []; k = 0; done = False
    for it in d:
        out.append(it)
        if it.paced:
            k += 1; out += ins.pop(k, [])
    return out
def keep_ptrs(a): a('s_mov_b64 s[0:1], s[16:17]\ns_mov_b64 s[18:19], s[8:9]')

XL = 54
def x_read_addr(a, XA, XB, t, octet_stride):
    a(f'v_and_b32 v{t}, 7, v0\nv_bfe_u32 v{t+1}, v0, 3, 1\nv_lshrrev_b32 v{t+2}, 4, v0\nv_bfe_u32 v{t+3}, v0, 1, 3')
    a(f'v_xor_b32 v{t+2}, v{t+2}, v{t+3}\nv_lshlrev_b32 v{t+2}, 4, v{t+2}\nv_lshl_add_u32 v{t+2}, v{t}, 7, v{t+2}')
    a(f'v_mul_u32_u24 v{t+1}, {octet_stride}, v{t+1}\nv_add_u32 v{XA}, v{t+1}, v{t+2}\nv_xor_b32 v{XA+1}, 64, v{XA}')
    a(f'v_and_b32 v{t+1}, 15, v0\nv_cmp_eq_u32 vcc, 15, v{t+1}\nv_mov_b32 v{t+3}, 0x100\nv_lshlrev_b32 v{t}, 4, v{t}\nv_cndmask_b32 v{t+3}, 0, v{t+3}, vcc')
    a(f'v_add_u32 v{XB}, v{XA}, v{t+3}\nv_add_u32 v{XB+1}, v{XA+1}, v{t+3}')
    for k in range(4): a(f'v_mov_b32 v{t+2+k}, 0x3f803f80')

def bar_gap(G, nt, nc, dist, M, m):
    if m < 0: return 0
    if m < M: return (2 * m + 1) * G + 1
    if m == M: return 2 * M * G + nc + 1
    if m == 14: return 27 * G + (nt - 1) * nc + 1
    return (2 * m - 1) * G + (nt - dist) * 2 * nc + 1
def x_bar(M, j):
    return -1 if j < 3 else (2 * j - 4 if 2 * j - 5 < M else 2 * j - 3)
def gemm1(a, S_, G, nt, nc, dist, M, areads, bread, mfma, dma, others, checks, hooks={}, last_bar=False):
    segs = []
    for k in range(M): segs += [(0, [k], None, None), (1, [k], k, 0)]
    segs.append((0, [M], M, 1))
    segs += [(m & 1, [m - 1, m], m, nt - dist) for m in range(M + 1, 14)]
    segs.append((0, [13], 14, nt - 1 if last_bar else None))
    units = [(g, q, ks, bm if q == bq else None) for g, ks, bm, bq in segs for q in range(nt)]
    def brd(u):
        if u >= len(units): return []
        g, q, ks, _ = units[u]
        return [Item(bread(g, q, k, u & 3, n), tag=f'b{u}') for n, k in enumerate(ks)]
    S_.flush(Stream(items(areads(0), tag='a0') + sum((brd(u) for u in range(dist)), [])))
    rds = Stream([]); forced = []
    for u, (g, q, ks, m) in enumerate(units):
        while any(x.tag in (f'b{u}', f'a{ks[-1]}') for x in rds.items[rds.i:]): S_.put(rds, rds.items[rds.i])
        bar = m is not None
        if bar and m in checks: checks[m]()
        a(f'@wait lg=b{u}' + (f',a{ks[-1]}' if q == 0 else '') + (',sw' if bar and m in checks else ''))
        if S_.t % G == 0 or S_.t % G + len(ks) * nc > G:
            n = -(-S_.t // G)
            if n in hooks: hooks[n]()
            stamp(a, f's{n}')
        nb = brd(u + dist)
        if not bar: rds.items += nb
        seq = [(c, n ^ (c & 1) if len(ks) == 2 else n) for c in (range(nc) if u % 2 == 0 or len(ks) == 2 else range(nc - 1, -1, -1)) for n in range(len(ks))]
        seen = set()
        for p, (c, n) in enumerate(seq):
            a(mfma(g, q, c, ks[n], u & 3, n, ks[0] == 0 and c not in seen)); seen.add(c)
            if bar and p == 0:
                assert S_.t + 1 == bar_gap(G, nt, nc, dist, M, m)
                need = (f'x{(m+1)>>1}', f'w{m+1}')
                while True:
                    if dma.done() and hasattr(dma, 'refill'): dma.refill()
                    young = len(a.vm) - 1 - max([k for k, tg in enumerate(a.vm) if tg in need], default=-99)
                    nxp = next((x for x in dma.items[dma.i:] if x.paced), None)
                    if nxp is None or nxp.t0 > S_.t or not (young < OPT['lead'] or any(x.tag in need for x in dma.items[dma.i:])): break
                    S_.flush(dma, 1); forced.append(m)
                a(f'@wait vm={need[0]},{need[1]}\ns_barrier'); S_.gap([], 0)
                rds.items += nb + (items(areads(m + 1), tag=f'a{m+1}') if m < 13 else [])
                continue
            left = (nt - q) * len(seq) - p - 1
            pend = [x.tag for x in rds.items[rds.i:]]
            na = max([k + 1 for k, tg in enumerate(pend) if tg[0] == 'a'], default=0)
            urgent = na >= left - 7 or f'b{u+1}' in pend or (f'b{u+2}' in pend and p >= len(seq) - 4)
            S_.gap(([rds, dma] if urgent else [dma, rds]) + others, 1 if p == len(seq) - 1 else 2)
    print('forced', forced, file=sys.stderr)

FXS = 162 * 128; FW0 = 3 * FXS; FPAR = FW0 + 6 * 16384
assert FPAR + 2048 <= ZL
def ffn(a):
    DV, RX, RW, RH, HV, PA, FV, DZ = 2, 6, 10, 14, 18, 19, 20, 21
    XV, WV, XA, XB, WA = 22, 27, 28, 30, 32
    E, O = 22, 30
    CS = 38; PR = 56; t = 56
    ACC = 96
    BF = 176; AF = 208
    a(f's_mul_i32 s{sTH}, s{T1}, 91\ns_add_u32 s{sTH}, s{sTH}, s{T0}\ns_mul_i32 s{T2}, s{T1}, 7\ns_sub_u32 s{T2}, 49, s{T2}')
    a(f's_cmp_ge_u32 s{T0}, s{T2}\ns_cselect_b32 s{T3}, 7, 0\ns_cselect_b32 s{T2}, s{T2}, 0\ns_cselect_b32 s{sCT}, 6, 7\ns_cselect_b32 s{sMX}, 1, 0\ns_sub_u32 s{T0}, s{T0}, s{T2}')
    a(f's_cmp_eq_u32 s{sMX}, s{T1}\ns_cselect_b32 s{sR}, 37, 43\ns_cselect_b32 s{T2}, 7, 6')
    a(f's_mul_i32 s{sC}, s{T0}, s{sR}\ns_lshr_b32 s{sC}, s{sC}, 8\ns_mul_i32 s{T2}, s{T2}, s{sC}\ns_sub_u32 s{sR}, s{T0}, s{T2}')
    a(f's_add_u32 s{sC}, s{sC}, s{T3}\ns_mul_i32 s{sCT}, s{sCT}, s{T1}\ns_add_u32 s{sR}, s{sR}, s{sCT}')
    rot_init(a, OPT['rotf'], 3584)
    a(f'v_and_b32 v{t+1}, 15, v0\nv_lshl_add_u32 v{t}, v{XL+1}, 1, s{sWO}\nv_lshlrev_b32 v{t}, 1, v{t}\nv_xor_b32 v{t+1}, v{t+1}, v{t}')
    a(f's_mul_i32 s{T0}, s{sW}, 56\ns_add_u32 s{T0}, s{T0}, s{sC}\ns_lshl_b32 s{T0}, s{T0}, 8')
    a(f'v_mul_u32_u24 v{t+2}, 224, v{XL+1}\nv_add_lshl_u32 v{t+2}, v{t+1}, v{t+2}, 4\nv_add_u32 v{WV}, s{T0}, v{t+2}')
    a(f's_mul_i32 s{T2}, s{sR}, 158\ns_lshl4_add_u32 s{T2}, s{sWO}, s{T2}\ns_add_u32 s{T2}, s{T2}, s{sJ}\ns_mulk_i32 s{T2}, 896\nv_add_u32 v{XV}, s{T2}, v{XL}')
    for i in range(1, 5): a(f'v_add_u32 v{XV+i}, {i*28672 - (i*1024 if i < 4 else 0)}, v{XV}')
    a(f's_mul_i32 s{sMX}, s{sW}, 5120\ns_lshl_b32 s{sMW}, s{sW}, 12\ns_add_u32 s{sMW}, s{sMW}, {FW0}')
    a(f's_mov_b32 s{SG+2}, {448*3584}\ns_mov_b32 s{SG+3}, s{SX+3}\ns_mov_b32 s{SU+2}, {448*3584 + 1024}\ns_mov_b32 s{SU+3}, s{SX+3}')
    a('s_waitcnt lgkmcnt(0)')
    stamp(a, 'ka')
    em(a, srd_p(SX, 4))
    if not OPT['zpos']: stats_load(a)
    em(a, srd_p(SG, 12) + srd_p(SU, 14, back=1024))
    G = 20
    B = lambda m: bar_gap(G, 5, 4, OPT['fd'], OPT['fm'], m)
    def xd(j):
        e = B(x_bar(OPT['fm'], j)); o = items(x_off(OPT['rotf'], j))
        for i in range(5):
            if i in (0, 4): o.append(Item(f's_add_u32 m0, s{sMX}, {(j%3)*FXS + i*1024}'))
            o.append(Item(f'buffer_load_dwordx4 v{XV+i}, s[{SX}:{SX+3}], s{sXJ} offen offset:{(i&3)*1024} lds', tag=f'x{j}', t0=e, paced=True))
        return o
    def wd(m):
        e = B(m - 4); o = [Item(f's_add_u32 m0, s{sMW}, {(m&3)*16384}', brk=False)]
        o[0].brk = False
        for i in range(2):
            o += items(w_off(OPT['rotf'], m, i, 3584, i*2048))
            o.append(Item(f'buffer_load_dwordx4 v{WV}, s[{SG}:{SG+3}], s{sSO} offen offset:{i*2048} lds', tag=f'w{m}', t0=e, paced=True))
            o.append(Item(f'buffer_load_dwordx4 v{WV}, s[{SU}:{SU+3}], s{sSO} offen offset:{i*2048 + 1024} lds', tag=f'w{m}', t0=e, paced=True))
        return o
    def wslot(k, free): return (RW if k < 4 else RH, (k & 3) * 16384, sMW, k * 16384, free)
    slots = [wslot(4, 0), wslot(5, 0), wslot(2, B(10)), wslot(3, B(11)), (RX, FXS, sMX, FXS, B(11)), wslot(0, B(12)), wslot(1, B(13)), (RX, 2*FXS, sMX, 2*FXS, B(13)), (RX, 0, sMX, 0, B(14))]
    kslot = []
    NG = 14 if OPT['xo'] else 18
    WX = 56
    def wfrag(kk, c):
        i = 16 * kk + 4 * c
        return (i, 'a') if i < 256 else (WX + i - 256, 'v')
    def w2d(kk):
        reg, off, base, moff, free = slots[kslot[kk]]
        prev = [k for k in range(kk) if kslot[k] == kslot[kk]]
        o = [Item(f's_add_u32 m0, s{base}, {moff}')]; o[0].brk = False
        if kk < 14: o += [Item(f's_mul_i32 s{sSO}, s{sRT+kk}, 28')]; sr = SD
        elif OPT['roto']: o += items([f's_add_u32 s{sSO}, s2, {kk-14}', f's_and_b32 s{sSO}, s{sSO}, 3', f's_mul_i32 s{sSO}, s{sSO}, {28*896}']); sr = SO
        else: o += [Item(f's_mov_b32 s{sSO}, {28*(kk-14)*896}')]; sr = SO
        if prev: o.append(Item(f'@wait lg=t{prev[-1]}'))
        for i in range(4):
            o.append(Item(f'buffer_load_dwordx4 v{DZ if (kk >= 14 and i == 3) else DV+i}, s[{sr}:{sr+3}], s{sSO} offen offset:{i*1024} lds', tag=f'k{kk}', t0=free, paced=True, name=f'k{kk}' if i == 3 else None))
        return o
    def w2r(kk, lag):
        reg, off, base, moff, free = slots[kslot[kk]]
        o = [Item(f'@wait vm=k{kk}', after={f'k{kk}': lag})]
        for c in range(4):
            r, k = wfrag(kk, c)
            for jj in range(2):
                o.append(Item(f'ds_read_b64_tr_b16 {V(r + 2*jj, 2, k)}, v{reg+c} offset:{off + jj*2048}', tag=f't{kk}', name=f't{kk}' if (c, jj) == (3, 1) else None))
        return o
    d = add_touches(wd(0) + xd(0) + wd(1) + xd(1) + wd(2) + wd(3), 35, 36, 37)
    p1 = []
    for m in range(10):
        p1 += [xd(j) for j in range(2, 7) if max(0, x_bar(OPT['fm'], j)) == m]
        p1.append(wd(m + 4))
    dma = Stream(d, rate=OPT['rate'])
    trs = Stream([])
    S_ = Sched(a)
    NT = 11
    st8 = dict(last=-999, lag=OPT['lag'])
    def refill(force=False):
        if p1 and p1[0][-1].t0 <= S_.t + 3:
            dma.items += p1.pop(0); return
        kk = len(kslot)
        if not bgs.done(): return
        if kk == NG or S_.t < OPT['w2s'] * G or (p1 and S_.t < st8['last'] + OPT['w2g']): return
        for k, sl in enumerate(slots):
            prev = [q for q in range(kk) if kslot[q] == k]
            if sl[4] <= S_.t and (not prev or S_.when.get(f't{prev[-1]}', 1e9) + (0 if force else 5) <= S_.t):
                kslot.append(k); st8['last'] = S_.t
                dma.items += w2d(kk)
                if kk < NT: trs.items += w2r(kk, st8['lag'])
                return
    dma.refill = refill
    def steady(): dma.rate = OPT['rate2']
    def late(): dma.rate = OPT['rate3']
    S_.flush(dma, 7)
    a.raw('L_f7:')
    stamp(a, 'i7')
    x_read_addr(a, XA, XB, t, 5120)
    for st in range(3): a(f'ds_write_b128 v{t}, v[{t+2}:{t+5}] offset:{st*FXS + 161*128}')
    u = t + 6
    a(f'v_bfe_u32 v{u}, v0, 4, 1\nv_bfe_u32 v{u+1}, v0, 2, 2\nv_lshrrev_b32 v{u+2}, 5, v0\nv_and_b32 v{u+3}, 3, v0')
    a(f'v_lshl_add_u32 v{u+4}, v{u+1}, 1, v{u}\ns_lshl_b32 s{T0}, s{sW}, 1\nv_xor_b32 v{u+4}, s{T0}, v{u+4}\nv_lshlrev_b32 v{u+4}, 5, v{u+4}')
    a(f'v_lshl_add_u32 v{u+4}, v{u+3}, 3, v{u+4}\nv_lshl_add_u32 v{u+4}, v{u+1}, 8, v{u+4}\nv_lshl_add_u32 v{u+4}, v{u+2}, 11, v{u+4}')
    a(f'v_lshl_add_u32 v{u+4}, v{u}, 13, v{u+4}\nv_add_u32 v{WA}, {FW0}, v{u+4}\nv_xor_b32 v{WA+1}, 32, v{WA}')
    S_.flush(dma, 2)
    if OPT['zpos']: stats_load(a)
    em(a, srd(SH, 22, WS_USED) + srd(SDB, 20, 256) + srd(SOUT, 18, 2048 * 896))
    a(f's_mul_i32 s{T0}, s{sW}, {448*896}\ns_add_u32 s{SD}, s16, s{T0}\ns_addc_u32 s{SD+1}, s17, 0')
    a(f's_mul_i32 s{T0}, s{sW}, {112*896}\ns_add_u32 s{SO}, s8, s{T0}\ns_addc_u32 s{SO+1}, s9, 0')
    em(a, srd_c(SD, 448 * 896) + srd_c(SO, 112 * 896))
    if OPT['p2']: a(f's_cmp_ge_u32 s{sC}, 7\ns_cselect_b32 s{T3}, 7, 0\ns_addc_u32 s{sTH}, s{sR}, s{sR}\ns_sub_u32 s{sCT}, s{sC}, s{T3}')
    else: a(f's_mul_i32 s{T3}, s{sTH}, 9363\ns_lshr_b32 s{T3}, s{T3}, 16\ns_mul_i32 s{sCT}, s{T3}, 7\ns_sub_u32 s{sCT}, s{sTH}, s{sCT}\ns_mov_b32 s{sTH}, s{T3}')
    a(f'v_lshrrev_b32 v{u}, 3, v0\nv_and_b32 v{u+1}, 7, v0\nv_lshlrev_b32 v{u+2}, 1, v{XL+1}\nv_xor_b32 v{u+1}, v{u+1}, v{u+2}\nv_lshlrev_b32 v{u+1}, 4, v{u+1}')
    a(f'v_mul_u32_u24 v{u}, 896, v{u}\ns_lshl_b32 s{T3}, s{sCT}, 7\nv_add3_u32 v{DV}, v{u}, v{u+1}, s{T3}')
    for i in range(1, 4): a(f'v_add_u32 v{DV+i}, {6144*i}, v{DV}')
    a(f'v_cmp_gt_u32 vcc, 32, v0\nv_bfe_u32 v{u}, v0, 2, 3\nv_lshrrev_b32 v{u+1}, 5, v0\nv_cndmask_b32 v{DZ}, v{ZT+3}, v{DV+3}, vcc')
    a(f'v_and_b32 v{u+2}, 3, v0\nv_bfe_u32 v{u+3}, v0, 3, 2\nv_lshlrev_b32 v{u}, 7, v{u}\nv_lshl_add_u32 v{u}, v{u+1}, 10, v{u}')
    a(f'v_lshl_add_u32 v{u}, v{u+2}, 3, v{u}\nv_lshl_add_u32 v{u}, v{u+3}, 5, v{u}\nv_add_u32 v{RX}, s{sMX}, v{u}\nv_add_u32 v{RW}, s{sMW}, v{u}')
    for c in range(1, 4): a(f'v_xor_b32 v{RX+c}, {32*c}, v{RX}\nv_xor_b32 v{RW+c}, {32*c}, v{RW}')
    for c in range(4): a(f'v_add_u32 v{RH+c}, 0x10000, v{RW+c}')
    bg = []
    if OPT['rot2'] == 2:
        bg += [f's_and_b32 s{T3}, s2, 7', f's_mul_i32 s{T3}, s{T3}, 7', f's_lshr_b32 s{T3}, s{T3}, 2', f's_lshl_b32 s{sRT}, s{T3}, 10']
    elif OPT['rot2'] == 4:
        bg += [f's_bfe_u32 s{T3}, s2, 0x20001', f's_mul_i32 s{T3}, s{T3}, 7', f's_lshr_b32 s{T3}, s{T3}, 1', f's_lshl_b32 s{sRT}, s{T3}, 10']
    elif OPT['rot2'] == 3:
        bg += [f's_and_b32 s{T3}, s2, 7', f's_mul_i32 s{T3}, s{T3}, 7', f's_lshr_b32 s{T3}, s{T3}, 2', f's_lshl1_add_u32 s{T3}, s{sCT}, s{T3}', f's_sub_u32 s{sRT}, s{T3}, 14',
               f's_min_u32 s{T3}, s{T3}, s{sRT}', f's_lshl_b32 s{sRT}, s{T3}, 10']
    elif OPT['rot2']:
        bg += [f's_mul_i32 s{T3}, s{sTH}, 5', f's_lshl1_add_u32 s{T3}, s{sCT}, s{T3}', f's_mul_i32 s{sRT}, s{T3}, 4682', f's_lshr_b32 s{sRT}, s{sRT}, 16',
               f's_mul_i32 s{sRT}, s{sRT}, 14', f's_sub_u32 s{sRT}, s{T3}, s{sRT}', f's_lshl_b32 s{sRT}, s{sRT}, 10']
    else:
        bg += [f's_mov_b32 s{sRT}, 0']
    for k in range(1, 14):
        bg += [f's_add_u32 s{sRT+k}, s{sRT+k-1}, 1024', [f's_cmp_eq_u32 s{sRT+k}, {14*1024}', f's_cselect_b32 s{sRT+k}, 0, s{sRT+k}']]
    bg += [f'v_lshlrev_b32 v{HV}, 4, v0', f'v_mov_b32 v{FV}, 1', f's_mov_b32 s{sONE}, 1',
           f'v_and_b32 v{PA}, 7, v0', f'v_bfe_u32 v{u}, v0, 3, 1', f'v_lshlrev_b32 v{PA}, 2, v{PA}', f'v_lshl_add_u32 v{PA}, v{u}, 10, v{PA}', f'v_add_u32 v{PA}, {FPAR}, v{PA}',
           f's_lshl2_add_u32 s{T3}, s{sC}, s{sW}', f's_mul_i32 s{sFL}, s{T3}, 4682', f's_lshr_b32 s{sFL}, s{sFL}, 16', f's_lshl2_add_u32 s{sFL}, s{sR}, s{sFL}',
           f's_lshl_b32 s{sFL}, s{sFL}, 7', f's_add_u32 s{sFL}, s{sFL}, {FH}', [f's_add_u32 s{sM1}, s22, s{sFL}', f's_addc_u32 s{sM1+1}, s23, 0'],
           f's_lshl_b32 s{T3}, s{T3}, 10', f's_mul_i32 s{sST}, s{sR}, {2*TH_BYTES}', f's_add_u32 s{sST}, s{sST}, s{T3}',
           f's_lshr_b32 s{T3}, s{sTH}, 1', f's_lshl2_add_u32 s{sFH}, s{T3}, s{sW}', f's_lshl_b32 s{sFH}, s{sFH}, 7', f's_add_u32 s{sFH}, s{sFH}, {FH}',
           [f's_add_u32 s{sFH}, s22, s{sFH}', f's_addc_u32 s{sFH+1}, s23, 0'],
           f's_mul_i32 s{T3}, s{T3}, 158', f's_add_u32 s{sNO}, s{T3}, {157-14}', f's_min_u32 s{sNO}, s{sNO}, {2047-14}', f's_mul_i32 s{sNO}, s{sNO}, 580', f's_lshr_b32 s{sNO}, s{sNO}, 16',
           f's_max_u32 s{T3}, s{T3}, 14', f's_sub_u32 s{T3}, s{T3}, 14', f's_mul_i32 s{T3}, s{T3}, 580', f's_lshr_b32 s{T3}, s{T3}, 16',
           f's_sub_u32 s{sNO}, s{sNO}, s{T3}', f's_lshl2_add_u32 s{sNO}, s{sNO}, 4',
           f's_mul_i32 s{sJ}, s{sTH}, {TH_BYTES}', f's_mul_i32 s{T3}, s{sW}, {14*1024}', f's_add_u32 s{sJ}, s{sJ}, s{T3}',
           f's_mul_i32 s{T3}, s{sW}, {10*1024}', f's_sub_u32 s{sWO}, {56*1024}, s{T3}']
    keep_ptrs(a); em(a, bg[:OPT['nbg']])
    bgs = Stream(items(bg[OPT['nbg']:]))
    left = [OPT['npro'] - 9]
    def more():
        if left[0] and OPT['zi'] < 99: S_.flush(dma, 1); left[0] -= 1
    stats_do(a, more)
    if OPT['tc'] < 0: a(cert_load(ZD + 5), tag='cert')
    S_.flush(dma, left[0])

    tiles = [[(T, 0) for T in range(5)], [(4, 1), (0, 1), (1, 1), (2, 1), (3, 1)]]
    def bread(g, q, k, sl, n):
        T, h = tiles[g][q]
        return f'ds_read_b128 {A(BF + 8*sl + 4*n, 4)}, v{(XB if (T, h) == (4, 1) else XA) + (k & 1)} offset:{((k>>1)%3)*FXS + (10*h + T)*1024}'
    def areads(m):
        return [f'ds_read_b64_tr_b16 {A(AF + 16*(m%3) + 8*mat + 4*uu + 2*jj, 2)}, v{WA + uu} offset:{(m&3)*16384 + jj*4096 + mat*1024}'
                for mat in range(2) for uu in range(2) for jj in range(2)]
    acc = lambda T, h: ACC + 16 * (2 * T + h)
    def mfma(g, q, c, k, sl, n, first):
        dd = V(acc(*tiles[g][q]) + 4 * c, 4)
        return f'{MF} {dd}, {A(AF + 16*(k%3) + 4*c, 4)}, {A(BF + 8*sl + 4*n, 4)}, {0 if first else dd}'
    stamp(a, 'pre')
    a('@wait vm=x0,w0 lg=*\ns_barrier')
    stamp(a, 'b0')
    z = ZD + 6
    src = [f's_mul_i32 s{T0}, s{sR}, 79', f'v_add_u32 v{z}, s{T0}, v0', f'v_min_u32 v{z+1}, 15, v0', f'v_add3_u32 v{z+1}, v{z+1}, s{T0}, 64']
    src += stats_src(z, z + 2) + stats_src(z + 1, z + 2)
    src += [f's_and_b32 s{T0}, s{sW}, 1', f's_lshr_b32 s{T2}, s{sW}, 1', f's_lshl1_add_u32 s{T0}, s{T0}, s{T2}', f's_lshl_b32 s{T1}, s{T0}, 5',
            f's_add_u32 s{T1}, s{T1}, {STATS}', f's_lshl_b32 s{T0}, s{T0}, 9', f's_add_u32 s{T0}, s{T0}, {FPAR}', f'v_lshl_add_u32 v{z+2}, v0, 2, s{T0}']
    sy = sync_stream('Lf', G, OPT['tc'], src, [f'buffer_load_dword v{z+3+i}, v{z+i}, s[{SH}:{SH+3}], s{T1} offen sc1' for i in range(2)], [z + 3, z + 4],
                     [f'ds_write_b32 v{z+2}, v{z+3+i} offset:{256*i}' for i in range(2)], OPT['tl'], OPT['tl'] + OPT['tk'])
    pb = (OPT['tl'] + OPT['tk'] + 2) // 2
    par = []
    for T in range(5):
        for h in (1, 0):
            par.append(Item(f'ds_read2_b32 {V(PR + 4*(2*T + h), 2)}, v{PA} offset0:{16*T + 8*h} offset1:{128 + 16*T + 8*h}', t0=B(pb), tag='pr', name='pr' if (T, h) == (4, 0) else None))
    par.append(Item('@wait lg=pr', after={'pr': 6}))
    for T in range(5):
        for h in (1, 0):
            P = PR + 4 * (2 * T + h)
            par += items([f'v_mul_f32 v{P+2}, {hx(f2u(-LOG2E))}, v{P+1}', f'v_mul_f32 v{P+1}, v{P+1}, v{P+1}', f'v_rcp_f32 v{P+1}, v{P+1}'])
    par += [Item(f'v_mov_b32_dpp v{CS+k}, v{acc(4, 1)+k} row_newbcast:15 row_mask:0xf bank_mask:0xf', t0=25*G + 12) for k in range(16)]
    pars = Stream(par)
    def ck23(): assert sy.done() and bgs.done()
    gemm1(a, S_, G, 5, 4, OPT['fd'], OPT['fm'], areads, bread, mfma, dma, [bgs, sy, pars, trs], {pb: ck23}, {OPT['rs']: steady, 19: late}, True)
    assert not p1
    ntr = sum(f't{k}' in S_.when for k in range(18))
    print('end of gemm: par left', pars.left(), 'groups', len(kslot), 'left in group', sum(x.paced for x in dma.items[dma.i:]), 'read', ntr, [S_.when.get(f'k{k}', 0) // G for k in range(18)], file=sys.stderr)
    NT = max(NG - 9, ntr + (trs.i % 9 > 0)); trs.items = trs.items[:9 * NT]; st8['lag'] = OPT['elag']
    S_.flush(pars)
    stamp(a, 'g1')
    a.raw(';EPI')
    l0 = len(a.lines)
    dma.rate = OPT['erate']
    for it in trs.items[trs.i:]:
        for k in it.after: it.after[k] = OPT['elag']
    def post(f): return [f'@wait vm=h{f}', f's_add_u32 s{T3}, s{sFL}, {f*FST}', f'buffer_atomic_add v{FV}, v1, s[{SH}:{SH+3}], s{T3} offen sc1']
    ACC2, HB, NHB = 176, 96, OPT['nhb']
    XO, XR, WRA, RDA, t = 22, 28, 38, 46, 48
    LEAD = NHB - 2
    nO = OPT['nO']
    hl = [(T, kk) for T in range(nO) for kk in range(14)] + [(T, kk) for T in range(nO) for kk in range(14, 18)] + [(T, kk) for T in range(nO, 5) for kk in range(18)]
    if OPT['nA']:
        mv = [(nO, kk) for kk in range(OPT['nA'])]
        hl = hl[:14*nO] + mv + [x for x in hl[14*nO:] if x not in mv]
    if OPT['xo']: hl = [x for x in hl if x[1] not in (15, 16)]
    HA = 88
    def hload(i, ha=HA):
        T, kk = hl[i]
        if kk < 14: return f'buffer_load_dwordx4 {V(HB + 4*(i % NHB), 4)}, v{ha+T}, s[{SH}:{SH+3}], s{sRT+kk} offen sc1'
        if OPT['roto']: return f'buffer_load_dwordx4 {V(HB + 4*(i % NHB), 4)}, v{ha+T}, s[{SH}:{SH+3}], s{SG+kk-14} offen sc1'
        return f'buffer_load_dwordx4 {V(HB + 4*(i % NHB), 4)}, v{ha+T}, s[{SH}:{SH+3}], s{sWO} offen offset:{(kk-14)*1024} sc1'
    for T in range(5):
        stamp(a, f'T{T}')
        for h in (1, 0):
            P = PR + 4 * (2 * T + h); dd = acc(T, h); OO = O + 4 * h
            ops = []
            for k in range(0, 16, 2): ops.append(f'v_pk_fma_f32 {V(dd+k, 2)}, {V(CS+k, 2)}, {V(P, 2)}, {V(dd+k, 2)} op_sel_hi:[1,0,1]')
            for k in range(0, 8, 2): ops.append(f'v_pk_mul_f32 {V(E+k, 2)}, {V(dd+k, 2)}, {V(P+2, 2)} op_sel_hi:[1,0]')
            for k in range(8): ops.append(f'v_exp_f32 v{E+k}, v{E+k}')
            for k in range(0, 8, 2): ops.append(f'v_pk_mul_f32 {V(dd+k, 2)}, {V(dd+k, 2)}, {V(dd+8+k, 2)}')
            for k in range(0, 8, 2): ops.append(f'v_pk_fma_f32 {V(E+k, 2)}, {V(E+k, 2)}, {V(P, 2)}, {V(P, 2)} op_sel:[0,1,1] op_sel_hi:[1,1,1]')
            for k in range(8): ops.append(f'v_rcp_f32 v{E+k}, v{E+k}')
            for k in range(0, 8, 2): ops.append(f'v_pk_mul_f32 {V(dd+k, 2)}, {V(dd+k, 2)}, {V(E+k, 2)}')
            ops.append(f's_add_u32 s{T2}, s{sST}, {h*TH_BYTES + T*72*1024}')
            for k in range(4): ops.append(f'v_cvt_pk_bf16_f32 v{OO+k}, v{dd+2*k}, v{dd+2*k+1}')
            n2 = 2 * T + 1 - h
            if n2 == OPT['pi']:
                while len(kslot) < NG or not trs.done():
                    S_.flush(dma); S_.flush(trs)
                a('@wait lg=*'); a(poll_issue(0))
            acc_c = 0
            for x in ops:
                a(x)
                if x.startswith(TRANS): S_.gap([dma, trs], 2)
            if n2 == 9: S_.flush(dma)
            a(f'buffer_store_dwordx4 {V(OO, 4)}, v{HV}, s[{SH}:{SH+3}], s{T2} offen sc1', tag=f'h{T}')
            if n2 in (4, 6, 8): em(a, post(n2 // 2 - 2)); stamp(a, f'F{n2//2-2}')
    if OPT['x']:
        pats = dict(s='buffer_store', t='ds_read_b64_tr', d='buffer_load', v='v_')
        a.lines[l0:] = [l for l in a.lines[l0:] if not any(l.strip().startswith(pats[c]) for c in OPT['x'])]
    stamp(a, 'e1')
    fin = f's_atomic_add s{sONE}, s[{sM1}:{sM1+1}], {3*FST}'
    early = ['s_waitcnt vmcnt(0)', fin, 's_waitcnt lgkmcnt(0)', f's_mov_b32 s{sONE}, 0'] if OPT['early'] else []
    a(f'v_add_u32 v{HA}, s{sJ}, v{HV}')
    em(a, poll_check('Lf_p0', 0, 14, early))
    stamp(a, 'p0')
    a(poll_issue(1))
    rest = Stream(sum((w2r(kk, 0) for kk in range(NT, NG)), []))
    for i in range(LEAD):
        a(hload(i), tag=f'g{i}'); S_.gap([rest], 4, ds=4)
    S_.flush(rest)
    stamp(a, 'tr')
    bg2 = [f'v_add_u32 v{HA+T}, {T*72*1024}, v{HA}' for T in range(1, 5)]
    bg2 += f"""s_lshr_b32 s{T0}, s{sTH}, 1
s_mul_i32 s{T0}, s{T0}, 158
s_and_b32 s{T1}, s{sTH}, 1
s_and_b32 s{T2}, s{sW}, 1
s_lshl1_add_u32 s{T1}, s{T1}, s{T2}
s_lshr_b32 s{T3}, s{sW}, 1
s_lshl3_add_u32 s{T1}, s{T1}, s{T3}
v_lshl_add_u32 v{t}, v{XL+1}, 1, s{T1}
v_add_u32 v{t+1}, s{T0}, v{t}
v_mul_u32_u24 v{t+1}, 896, v{t+1}
v_and_b32 v{t+3}, 15, v0
v_lshlrev_b32 v{t+2}, 3, v{t+3}
s_lshl_b32 s{T0}, s{sCT}, 7
v_add3_u32 v{XO}, v{t+1}, v{t+2}, s{T0}""".split('\n')
    bg2 += [f'v_add_u32 v{XO+T}, {32*896*T}, v{XO}' for T in range(1, 5)]
    bg2 += f"""v_cmp_gt_u32 vcc, 30, v{t}
v_mov_b32 v{t+1}, {OOB}
v_and_b32 v{t+2}, 7, v0
v_cndmask_b32 v{XO+4}, v{t+1}, v{XO+4}, vcc
v_xor_b32 v{t+1}, v{XL+1}, v{t+2}
v_lshlrev_b32 v{t+1}, 4, v{t+1}
v_lshl_add_u32 v{t}, v{t+3}, 8, v{t+1}
s_lshl_b32 s{T0}, s{sW}, 12
v_add_u32 v{WRA}, s{T0}, v{t}""".split('\n')
    bg2 += [f'v_xor_b32 v{WRA+c}, {64*c}, v{WRA}' for c in range(1, 4)] + [f'v_add_u32 v{WRA+4+c}, 0x10000, v{WRA+c}' for c in range(4)]
    bg2 += f"""s_lshl_b32 s{T0}, s{sW}, 2
v_add_u32 v{t}, s{T0}, v{XL+1}
v_and_b32 v{t+1}, 7, v{t}
v_xor_b32 v{t+1}, v{t+1}, v{t+3}
v_lshlrev_b32 v{t+1}, 4, v{t+1}
v_lshl_add_u32 v{RDA}, v{t}, 8, v{t+1}
v_add_u32 v{RDA+1}, 0x10000, v{RDA}""".split('\n')
    if OPT['roto']:
        for k in range(4): bg2 += [f's_add_u32 s{T0}, s2, {k}', f's_and_b32 s{T0}, s{T0}, 3', f's_lshl_b32 s{T0}, s{T0}, 10', f's_add_u32 s{SG+k}, s{T0}, s{sWO}']
    em(a, bg2[:1]); bg2s = Stream(items(bg2[1:])); bg2s.items[-1].name = 'bg2'
    em(a, poll_check('Lf_p1', 1, 14, early))
    stamp(a, 'p1')
    a('@wait vm=h4')
    stamp(a, 'e2')
    a(fin)
    pre = {}
    def guard(name, f, want, first):
        stp = first - LEAD - 1
        pre.setdefault(stp - 8, []).append(poll_issue(f)); pre.setdefault(stp, []).extend(poll_check(name, f, want))
        return stp
    guard('Lf_p2', 2, 14, hl.index((2, 0)))
    i3, iO = hl.index((3, 0)), hl.index((0, 14))
    if i3 > iO: i3 = iO - 9
    lastg = max(guard('Lf_p3', 3, 14, i3), 0 if OPT['nochk'] else guard('Lf_p4', 4, f's{sNO}', iO + OPT['ol']))
    first_done = hl.index((0, 17))
    assert lastg < first_done
    pre.setdefault(first_done, []).append('s_barrier')
    t_base = S_.t
    xr = Stream([Item(f'buffer_load_dwordx2 {V(XR + 2*T, 2)}, v{XO+T}, s[{SX}:{SX+3}], 0 offen', tag=f'xr{T}', t0=t_base + 4*(24 + 3*T), after={'bg2': 0}) for T in range(5)])
    RD = (144, 160); U = 48
    def wr(T): return [Item(f'ds_write_b128 v{WRA + c + (4 if T == 4 else 0)}, {V(ACC2 + 16*T + 4*c, 4)} offset:{(T & 3)*16384}', tag=f'pw{T}', paced=True, name=f'pw{T}' if c == 3 else None) for c in range(4)]
    def rdp(T): return [Item(f'ds_read_b128 {V(RD[T&1] + 4*w, 4)}, v{RDA + (T == 4)} offset:{(T & 3)*16384 + w*4096}', tag=f'p{T}', name=f'p{T}' if w == 3 else None) for w in range(4)]
    def unp(T):
        x = XR + 2 * T
        return [f'@wait vm=xr{T}', f'v_lshlrev_b32 v{U}, 16, v{x}', f'v_and_b32 v{U+1}, 0xffff0000, v{x}', f'v_lshlrev_b32 v{U+2}, 16, v{x+1}', f'v_and_b32 v{U+3}, 0xffff0000, v{x+1}']
    def fin2(T, pk):
        x = XR + 2 * T; b = RD[T & 1]
        if pk: o = [f'v_pk_add_f32 {V(U+k, 2)}, {V(U+k, 2)}, {V(b+4*w+k, 2)}' for w in range(4) for k in (0, 2)]
        else: o = [f'v_add_f32 v{U+k}, v{U+k}, v{b+4*w+k}' for w in range(4) for k in range(4)]
        return o + [f'v_cvt_pk_bf16_f32 v{x}, v{U}, v{U+1}', f'v_cvt_pk_bf16_f32 v{x+1}, v{U+2}, v{U+3}', f'buffer_store_dwordx2 {V(x, 2)}, v{XO+T}, s[{SOUT}:{SOUT+3}], 0 offen {OPT["of"].replace("+", " ")}']
    assert NHB <= 12
    wrs = Stream([], rate=0.27, burst=0.1); red = Stream([]); outs = Stream([])
    shadow = [T for T in range(5) if len(hl) - hl.index((T, 17)) > 14]
    CH = 2 if OPT['chain'] else 1
    nxt = [LEAD]
    ends = list(range(CH - 1, len(hl) - OPT['lc'], CH)) + [len(hl) - 1]
    for i in ends:
        T, kk = hl[i]
        if i == len(hl) - 1:
            CH = OPT['lc']
            w_ = wr(T)
            for c in range(4): w_[c].t0 = S_.t + CH * (c + 1) + 3
            wrs.items += w_
        a(f'@wait vm=g{i}')
        for q in range(i - CH + 1, i + 1): stamp(a, f'h{q}')
        fx = []
        for q in range(i - CH + 1, i + 1):
            due = [x for x in range(nxt[0], min(q + LEAD + 1, len(hl))) if x < iO or q + LEAD >= iO + OPT['ol']][:2]
            fx += [Item(hload(x), tag=f'g{x}', t0=S_.t + 4 * (q - i + CH - 1) + 2 * n_) for n_, x in enumerate(due)]
            nxt[0] += len(due)
            fx += items(pre.get(q, []))
        fx = Stream(fx)
        for c in range(4):
            for q in (range(i - CH + 1, i + 1) if c % 2 == 0 or kk < 2 else range(i, i - CH, -1)):
                r, k = wfrag(hl[q][1], c)
                if OPT['xo'] and hl[q][1] >= 14 and (c >> 1) != (q & 1): continue
                dd = V(ACC2 + 16 * T + 4 * c, 4)
                a(f'{MF} {dd}, {V(r, 4, k)}, {V(HB + 4*(q % NHB), 4)}, {dd if hl[q][1] else 0}')
                S_.gap([fx, wrs, xr, bg2s, outs, red], 1 if (c, q) == (3, i if kk < 2 else i - CH + 1) else 2)
        S_.flush(fx)
        if i + LEAD + 2 >= iO: assert bg2s.done()
        if kk == 17 and i < len(hl) - 1:
            w_ = wr(T); w_[0].t0 = S_.t + 1
            wrs.items += w_
            grp = [T - 1, T] if OPT['pair'] and T & 1 else ([] if OPT['pair'] and T + 1 in shadow else [T])
            if T in shadow and grp:
                red.items += [Item([f'@wait lg=pw{T}', 's_barrier'], after={f'pw{T}': 6}, t0=S_.t + OPT['rt'])] + sum((rdp(x) for x in grp), [])
                for x in grp:
                    red.items += items(unp(x)) + [Item(f'@wait lg=p{x}', after={f'p{x}': 5})] + items(fin2(x, False)[:-1])
                    red.items[-1].name = f'r{x}'
                    outs.items.append(Item(fin2(x, False)[-1], after={f'r{x}': 1}, t0=t_base + OPT['ost'] * 4))
    todo = [T for T in range(5) if T not in shadow]
    if red.done():
        S_.flush(outs); em(a, unp(todo[0])); S_.flush(wrs)
    else:
        S_.flush(wrs); S_.flush(red); S_.flush(outs); em(a, unp(todo[0]))
    a('s_waitcnt lgkmcnt(0)\ns_barrier')
    stamp(a, 'red')
    S_.flush(Stream(rdp(todo[0])))
    for k, T in enumerate(todo):
        if k + 1 < len(todo): S_.flush(Stream(rdp(todo[k + 1])))
        if k: em(a, unp(T))
        a(f'@wait lg=p{T}')
        em(a, fin2(T, True))

AXS = 130 * 128; AW0 = 3 * AXS; APAR = AW0 + 4 * 24576
def attn(a, split):
    XV, WV, XA, XB, WA = 2, 4, 7, 9, 11
    PA, RA, CB = 15, 16, 17
    OA = 20
    MK = 28
    CV = 36
    PR = 38
    t = 56
    Q, K, V0, V1 = 64, 128, 192, 224
    BF = 0; AF = 32
    a(f's_mul_i32 s{sR}, s{T1}, 9\ns_add_u32 s{sR}, s{sR}, s{T0}\ns_sub_u32 s{sR}, s{sR}, 23')
    rot_init(a, OPT['rota'], 2688)
    a(f'v_lshl_add_u32 v{t}, v{XL+1}, 1, s{sWO}\nv_lshlrev_b32 v{t}, 1, v{t}\nv_sub_u32 v{t+1}, v0, v{t}\nv_and_b32 v{t+1}, 15, v{t+1}')
    a(f'v_cmp_gt_u32 vcc, 14, v{t+1}' if OPT['zpad'] else f'v_min_u32 v{t+1}, 13, v{t+1}')
    a(f's_mul_i32 s{T0}, s{sW}, 48\ns_add_u32 s{T0}, s{T0}, s{sC}\ns_mulk_i32 s{T0}, 224')
    a(f'v_mul_u32_u24 v{t+2}, 168, v{XL+1}\nv_add_lshl_u32 v{t+2}, v{t+1}, v{t+2}, 4\nv_add_u32 v{WV+2}, s{T0}, v{t+2}')
    if OPT['zpad']: a(f'v_cndmask_b32 v{WV+2}, v{ZT+3}, v{WV+2}, vcc')
    a(f'v_add_u32 v{WV+1}, 128, v{WV+2}\nv_add_u32 v{WV}, 256, v{WV+2}')
    a(f's_mul_i32 s{sMW}, s{sW}, 6144\ns_add_u32 s{sMW}, s{sMW}, {AW0}')
    a(f's_mov_b32 s{SG+2}, {448*2688 + 256}\ns_mov_b32 s{SG+3}, s{SX+3}')
    a('s_waitcnt lgkmcnt(0)')
    stamp(a, 'ka')
    em(a, srd_p(SX, 4)); stats_load(a)
    def help_w():
        r0 = OPT['aw']
        if OPT['rotf'] == 'h3':
            a(f's_lshr_b32 s{T0}, s2, 3\ns_lshl1_add_u32 s{T0}, s{T0}, s{sWO}\ns_mul_i32 s{T2}, s{T1}, 192\ns_add_u32 s{T0}, s{T0}, s{T2}\ns_add_u32 s{T0}, s{T0}, {r0 - 46}')
            a(f'v_mul_u32_u24 v18, 37, v0\nv_lshrrev_b32 v18, 8, v18\nv_mul_u32_u24 v36, 7, v18\nv_sub_u32 v36, v0, v36\nv_mad_u32_u24 v18, v18, 18, s{T0}')
            a(f's_lshl_b32 s{T2}, s{T1}, 8\ns_add_u32 s{T2}, s{T2}, 191\ns_mul_i32 s{T0}, s{sC}, 7\nv_min_u32 v18, s{T2}, v18\nv_mad_u32_u24 v18, v18, 28, v36')
            a(f's_cmp_eq_u32 s{sJ}, 0\ns_cselect_b64 s[{sM1}:{sM1+1}], s[12:13], s[14:15]\nv_add_lshl_u32 v18, v18, s{T0}, 7\nglobal_load_dword v19, v18, s[{sM1}:{sM1+1}]')
            return
        a(f's_lshr_b32 s{T0}, s2, 3\ns_sub_u32 s{T0}, s{T0}, 23\ns_lshl1_add_u32 s{T0}, s{T0}, s{sWO}\ns_lshl1_add_u32 s{T0}, s{T0}, s{T1}\ns_add_u32 s{T0}, s{T0}, {r0}')
        a(f'v_mul_u32_u24 v18, 37, v0\nv_lshrrev_b32 v18, 8, v18\nv_mul_u32_u24 v36, 7, v18\nv_sub_u32 v36, v0, v36\nv_mad_u32_u24 v18, v18, 36, s{T0}')
        a(f's_mul_i32 s{T0}, s{sC}, 7\nv_min_u32 v18, 447, v18\nv_mad_u32_u24 v18, v18, 28, v36\ns_cmp_eq_u32 s{sJ}, 0\ns_cselect_b64 s[{sM1}:{sM1+1}], s[12:13], s[14:15]')
        if OPT['a6']:
            a(f's_add_u32 s{T2}, s{sC}, 1\ns_bitcmp0_b32 s{T2}, 1\ns_cselect_b32 s{T2}, -1, 0\ns_and_b32 s{T0}, s{sC}, 2\ns_mul_i32 s{T0}, s{T0}, 7')
            a(f'v_add_lshl_u32 v18, v18, s{T0}, 7\nv_and_b32 v18, s{T2}, v18\nglobal_load_dword v19, v18, s[{sM1}:{sM1+1}]\nglobal_load_dword v19, v18, s[{sM1}:{sM1+1}] offset:896')
            return
        a(f'v_add_lshl_u32 v18, v18, s{T0}, 7\nglobal_load_dword v19, v18, s[{sM1}:{sM1+1}]')
    def help_d():
        if OPT['a6']:
            a(f's_sub_u32 s{T0}, s2, 184\ns_lshr_b32 s{T0}, s{T0}, 1\ns_lshl2_add_u32 s{T0}, s{T0}, s{sW}\ns_mul_i32 s{T2}, s{T0}, 88\ns_mul_i32 s{T0}, s{T0}, 22')
            a(f'v_min_u32 v18, 43, v0\nv_lshl_add_u32 v18, v18, 1, s{T2}\ns_add_u32 s{T2}, s{sC}, 1\ns_bfe_i32 s{T2}, s{T2}, 0x10001\nv_min_u32 v18, 12542, v18\nv_lshlrev_b32 v18, 7, v18')
            a(f'v_bfi_b32 v18, s{T2}, 0, v18\nglobal_load_dword v19, v18, s[16:17]\nglobal_load_dword v19, v18, s[16:17] offset:128')
            a(f'v_min_u32 v18, 21, v0\nv_add_u32 v18, s{T0}, v18\nv_min_u32 v18, 3135, v18\nv_lshlrev_b32 v18, 7, v18\nv_bfi_b32 v18, s{T2}, 0, v18\nglobal_load_dword v19, v18, s[8:9]')
            return
        a(f's_sub_u32 s{T0}, s2, 184\ns_lshl2_add_u32 s{T0}, s{T0}, s{sW}\ns_mul_i32 s{T2}, s{T0}, 44\ns_mul_i32 s{T0}, s{T0}, 11')
        a(f'v_min_u32 v18, 43, v0\nv_add_u32 v18, s{T2}, v18\nv_min_u32 v18, 12543, v18\nv_lshlrev_b32 v18, 7, v18\nglobal_load_dword v19, v18, s[16:17]')
        a(f'v_min_u32 v18, 10, v0\nv_add_u32 v18, s{T0}, v18\nv_min_u32 v18, 3135, v18\nv_lshlrev_b32 v18, 7, v18\nglobal_load_dword v19, v18, s[8:9]')
    if OPT['aw'] and not OPT['awp']: split(); help_w()
    if OPT['ad'] == 1: help_d()
    em(a, srd_p(SG, 6, back=256))
    G = 24
    B = lambda m: bar_gap(G, 4, 6, OPT['ad_'], OPT['am'], m)
    def xd(j):
        o = items(x_off(OPT['rota'], j))
        for i in range(4):
            if i % 2 == 0: o.append(Item(f's_add_u32 m0, s{sMX}, {(j%3)*AXS + (i>>1)*(2048 - 896)}'))
            o.append(Item(f'buffer_load_dwordx4 v{XV + (i&1)}, s[{SX}:{SX+3}], s{sXJ} offen offset:{(i&1)*1024 + (i>>1)*896} lds', tag=f'x{j}', t0=B(x_bar(OPT['am'], j)), paced=True))
        return o
    def wd(h):
        o = []
        for i in range(2):
            o.append(Item(f's_add_u32 m0, s{sMW}, {(h%4)*24576 + i*3072}')); o[-1].brk = False
            o += items(w_off(OPT['rota'], h, i, 2688, 0))
            o += [Item(f'buffer_load_dwordx4 v{WV+m}, s[{SG}:{SG+3}], s{sSO} offen offset:{m*1024} lds', tag=f'w{h}', t0=B(h - 4), paced=True) for m in range(3)]
        return o
    d = wd(0) + xd(0) + wd(1)
    for h in range(2, 14):
        if h in (2, 4): d += xd(h // 2)
        for j in range(3, 7):
            if x_bar(OPT['am'], j) == h - 4: d += xd(j)
        d += wd(h)
    d = add_touches(d, 36, 18, 19)
    if OPT['ap']:
        k0 = OPT['ap']; n = (14 - k0) * 224; per = -(-n // 9)
        d += items([f's_and_b32 s79, s2, 7', f's_mul_i32 s79, s79, 7', f's_lshr_b32 s79, s79, 2', f's_add_u32 s79, s79, {k0}', f's_mul_i32 s79, s79, 224',
                    f's_lshr_b32 s{sPL}, s2, 3', f's_sub_u32 s{sPL}, s{sPL}, 23', f's_mul_i32 s{sSPIN}, s{sPL}, {per}', f's_add_u32 s79, s79, s{sSPIN}', f's_mul_i32 s{sSPIN}, s{sW}, 3136'])
        for k in range(0, per, 64):
            d += items([f'v_min_u32 v18, {min(63, per - 1 - k)}, v0', f'v_add_u32 v18, s79, v18', f'v_subrev_u32 v36, 3136, v18', 'v_min_u32 v18, v18, v36', f'v_subrev_u32 v36, 3136, v18', 'v_min_u32 v18, v18, v36',
                        f'v_add_lshl_u32 v18, v18, s{sSPIN}, 7', 's_add_u32 s79, s79, 64']) + [Item('global_load_dword v19, v18, s[0:1]', paced=True)]
        d += items([f's_mul_i32 s79, s{sPL}, 88', f's_mul_i32 s{sSPIN}, s{sW}, 784'])
        for k in (0, 44):
            d += items([f'v_min_u32 v18, 43, v0', f'v_add3_u32 v18, v18, s79, {k}', 'v_min_u32 v18, 783, v18', f'v_add_lshl_u32 v18, v18, s{sSPIN}, 7']) + [Item('global_load_dword v19, v18, s[18:19]', paced=True, name='apd')]
    dma = Stream(d, rate=OPT['arate0'])
    def steady(): dma.rate = OPT['arate']
    S_ = Sched(a)
    S_.flush(dma, 6)
    if not OPT['aw'] or OPT['awp']: split()
    stamp(a, 'i7')
    a(f's_mul_i32 s{T2}, s{sR}, 113\ns_lshl4_add_u32 s{T2}, s{sW}, s{T2}\ns_mul_i32 s{T2}, s{T2}, 896\ns_lshl_b32 s{sMX}, s{sW}, 12')
    a(f'v_add_u32 v{XV}, s{T2}, v{XL}\nv_add_u32 v{XV+1}, {64*896 - 1024}, v{XV}')
    S_.flush(dma, 2)
    em(a, srd(SH, 22, WS_USED) + srd(SDB, 20, 256)); keep_ptrs(a)
    x_read_addr(a, XA, XB, t, 4096)
    for st in range(3): a(f'ds_write_b128 v{t}, v[{t+2}:{t+5}] offset:{st*AXS + 129*128}')
    u = 20
    a(f'v_bfe_u32 v{u}, v0, 4, 1\nv_bfe_u32 v{u+1}, v0, 2, 2\nv_lshrrev_b32 v{u+2}, 5, v0\nv_and_b32 v{u+3}, 3, v0')
    a(f'v_lshl_add_u32 v{u+4}, v{u+1}, 1, v{u}\nv_lshl_add_u32 v{u+4}, v{u+4}, 2, v{u+3}\ns_mul_i32 s{T0}, s{sW}, 56\nv_lshl_add_u32 v{u+4}, v{u+4}, 3, s{T0}')
    a(f'v_add_u32 v{u+5}, 32, v{u+4}')
    if OPT['zpad']: a(f's_sub_u32 s{T0}, 168, s{T0}\nv_cmp_eq_u32 vcc, 3, v{u+3}\nv_add_u32 v{u+6}, s{T0}, v{u+5}\nv_cndmask_b32 v{u+5}, v{u+5}, v{u+6}, vcc')
    a(f'v_and_b32 v{u+4}, 0xff, v{u+4}\nv_and_b32 v{u+5}, 0xff, v{u+5}')
    a(f'v_mul_u32_u24 v{u}, 12288, v{u}\nv_mul_u32_u24 v{u+2}, 3072, v{u+2}\nv_lshl_add_u32 v{u}, v{u+1}, 8, v{u}\nv_add_u32 v{u}, v{u}, v{u+2}\nv_add_u32 v{u}, {AW0}, v{u}')
    a(f'v_add_u32 v{WA}, v{u}, v{u+4}\nv_add_u32 v{WA+1}, v{u}, v{u+5}\nv_add_u32 v{WA+2}, 49152, v{WA}\nv_add_u32 v{WA+3}, 49152, v{WA+1}')
    left = [OPT['anpro'] - 8]
    def more():
        if left[0] and OPT['zi'] < 99: S_.flush(dma, 1); left[0] -= 1
    if not OPT['azs']: stats_do(a, more)
    else: a.raw(';HOP')
    S_.flush(dma, left[0])
    if OPT['ad'] == 2: help_d()
    if OPT['ad'] > 2:
        rec = []; a_ = a; a = lambda t: rec.extend(t.split('\n')); help_d(); a = a_
        k = [i for i, x in enumerate(dma.items) if x.paced][OPT['ad'] - 1] + 1
        dma.items[k:k] = items([x.replace(f's{T0}', 's79').replace(f's{T2}', f's{sPL}') for x in rec])

    tiles = [[0, 1, 2, 3], [7, 4, 5, 6]]
    def bread(g, q, k, sl, n):
        T = tiles[g][q]
        return f'ds_read_b128 {A(BF + 8*sl + 4*n, 4)}, v{(XB if T == 7 else XA) + (k & 1)} offset:{((k>>1)%3)*AXS + (8*(T&1) + (T>>1))*1024}'
    def areads(h):
        o = []
        for mat in range(3):
            for ct in range(2):
                for jj in range(2):
                    off = (h % 4) * 24576 + jj * 6144 + mat * 1024
                    o.append(f'ds_read_b64_tr_b16 {A(AF + 24*(h%3) + 8*mat + 4*ct + 2*jj, 2)}, v{WA + ct + (2 if off >= 49152 else 0)} offset:{off % 49152}')
        return o
    def acc(T, c): return (Q + 8*T, Q + 8*T + 4, K + 8*T, K + 8*T + 4, V0 + 4*T, V1 + 4*T)[c]
    def mfma(g, q, c, k, sl, n, first):
        dd = V(acc(tiles[g][q], c), 4); w_, x_ = A(AF + 24*(k%3) + 4*c, 4), A(BF + 8*sl + 4*n, 4)
        return f'{MF} {dd}, {w_ if c < 4 else x_}, {x_ if c < 4 else w_}, {0 if first else dd}'
    stamp(a, 'pre')
    a('@wait vm=x0,w0 lg=*\ns_barrier')
    stamp(a, 'b0')
    if OPT['atc'] < 0: a(cert_load(27), tag='cert')
    bg = [f'v_and_b32 v{t}, 15, v0', f'v_lshlrev_b32 v{PA}, 2, v{t}', f'v_add_u32 v{PA}, {APAR}, v{PA}',
          f'v_lshlrev_b32 v{RA}, 4, v{XL+1}', f'v_add_u32 v{RA}, {APAR}, v{RA}', f'v_cmp_gt_u32 s[{sM1}:{sM1+1}], 48, v0',
          f'v_lshlrev_b32 v{t+1}, 2, v{XL+1}', f'v_sub_u32 v{t+1}, v{t}, v{t+1}', f'v_mov_b32 v{t+3}, {hx(f2u(-1e30))}']
    for i in range(8):
        bg += [f'v_add_u32 v{t+2}, {(16 if i < 4 else 0) - (i & 3)}, v{t+1}', f'v_cmp_gt_u32 s[{sM0}:{sM0+1}], 8, v{t+2}',
               f'v_cndmask_b32 v{MK+i}, v{t+3}, 0, s[{sM0}:{sM0+1}]']
    kA, kB, kC, kD = sTH, sCT, sJ, sWO
    bg += [f's_mul_i32 s{kD}, s{sR}, 113', f's_lshl2_add_u32 s{T3}, s{sC}, s{sW}', f's_add_u32 s{T3}, s{T3}, 56', f's_lshl_b32 s{sST}, s{T3}, 10',
           [f's_cmp_eq_u32 s{sR}, 0', f's_cselect_b32 s{T3}, 0, 14'], f's_mov_b32 s{kA}, 26547', f's_mov_b32 s{kB}, {TH_BYTES}', f's_mov_b32 s{kC}, {72*1024}',
           f'v_mov_b32 v{t+7}, {OOB}']
    for p in range(2):
        bg += [f'v_lshl_add_u32 v{t+1}, v0, 1, {p}', f'v_add_u32 v{t+2}, s{kD}, v{t+1}', f'v_mul_u32_u24 v{t+3}, s{kA}, v{t+2}', f'v_lshrrev_b32 v{t+3}, 22, v{t+3}',
               f'v_mul_u32_u24 v{t+4}, 158, v{t+3}', f'v_sub_u32 v{t+2}, v{t+2}, v{t+4}',
               f'v_bfe_u32 v{t+4}, v{t+2}, 4, 1', f'v_lshl_add_u32 v{t+3}, v{t+3}, 1, v{t+4}', f'v_mul_u32_u24 v{t+3}, s{kB}, v{t+3}',
               f'v_lshrrev_b32 v{t+4}, 5, v{t+2}', f'v_mad_u32_u24 v{t+3}, v{t+4}, s{kC}, v{t+3}',
               f'v_bfe_u32 v{t+4}, v{t+2}, 1, 3', f'v_lshl_add_u32 v{t+3}, v{t+4}, 4, v{t+3}', f'v_and_b32 v{t+4}, 1, v{t+2}', f'v_lshl_add_u32 v{OA+p}, v{t+4}, 7, v{t+3}',
               f'v_cmp_le_u32 s[{sM0}:{sM0+1}], s{T3}, v{t+1}', f'v_cndmask_b32 v{OA+p}, v{t+7}, v{OA+p}, s[{sM0}:{sM0+1}]']
    bg += [f'v_cmp_gt_u32 s[{sM0}:{sM0+1}], 63, v0', f'v_cndmask_b32 v{OA+1}, v{t+7}, v{OA+1}, s[{sM0}:{sM0+1}]']
    bg += [f's_add_u32 s{T3}, s{T3}, s{kD}', f's_mul_i32 s{T3}, s{T3}, 26547', f's_lshr_b32 s{T3}, s{T3}, 22', f's_add_u32 s{kD}, s{kD}, 126', f's_mul_i32 s{kD}, s{kD}, 26547',
           f's_lshr_b32 s{kD}, s{kD}, 22', f's_sub_u32 s{kD}, s{kD}, s{T3}', f'v_cmp_ge_u32 s[{sM0}:{sM0+1}], s{kD}, v0', f'v_lshlrev_b32 v{CB}, 9, v0',
           f's_lshl2_add_u32 s{T3}, s{T3}, s{sC}', f's_lshl_b32 s{T3}, s{T3}, 7', f's_add_u32 s{sFL}, s{T3}, {FH + 4*FST}',
           f'v_cndmask_b32 v{CB}, v{t+7}, v{CB}, s[{sM0}:{sM0+1}]']
    bgs = Stream(items(bg))
    z = ZD + 6
    src = [f's_and_b32 s{T0}, s{sW}, 1', f's_mul_i32 s{T1}, s{sR}, 113', f's_add_u32 s{T1}, s{T1}, s{T0}', f's_lshr_b32 s{T2}, s{T1}, 1', f'v_add_u32 v{z}, s{T2}, v0']
    src += stats_src(z, z + 1)
    src += [f's_and_b32 s{T1}, s{T1}, 1', f's_lshr_b32 s{T2}, s{sW}, 1', f's_lshl1_add_u32 s{T1}, s{T1}, s{T2}', f's_lshl_b32 s{T1}, s{T1}, 5',
            f's_add_u32 s{T1}, s{T1}, {STATS}', f's_lshl1_add_u32 s{T0}, s{T0}, s{T2}', f's_lshl_b32 s{T0}, s{T0}, 8', f's_add_u32 s{T0}, s{T0}, {APAR}',
            f'v_lshl_add_u32 v{z+1}, v0, 2, s{T0}']
    sy = sync_stream('La', G, OPT['atc'], src, [f'buffer_load_dword v{z+2}, v{z}, s[{SH}:{SH+3}], s{T1} offen sc1'], [z + 2], [f'ds_write_b32 v{z+1}, v{z+2}'], OPT['atl'], OPT['atl'] + 5, 27)
    par = [Item(f'ds_read2_b32 {V(PR + 2*T, 2)}, v{PA} offset0:{128*(T>>2) + 16*(T&3)} offset1:{64 + 128*(T>>2) + 16*(T&3)}', t0=B(12)) for T in range(8)]
    CQ, CK = 2, 54
    par += [Item(f'v_mov_b32_dpp v{CK+k}, v{K+56+k} row_newbcast:15 row_mask:0xf bank_mask:0xf', t0=25*G + 16) for k in range(8)]
    for c, sv in enumerate((V0 + 31, V1 + 31)):
        par += items([f'v_mov_b32 v62, v{sv}', f'v_mov_b32 v63, v{sv}', 'v_permlane32_swap_b32 v62, v63', f'v_mov_b32 v{CV+c}, v63', f'v_permlane16_swap_b32 v63, v{CV+c}'])
    par += [Item(f'v_mov_b32_dpp v{CQ+k}, v{Q+56+k} row_newbcast:15 row_mask:0xf bank_mask:0xf', t0=27*G + 13) for k in range(8)]
    pars = Stream(par)
    hooks = {5: steady}
    if OPT['azs']:
        zb_ = min(m for m in range(14) if B(m) > OPT['azs'] * G + 12)
        def late_stats():
            n0 = len(a.lines); stats_do(a); a.lines.remove(';HOP') if a.lines.count(';HOP') > 1 else None
            a('@wait lg=*')
        hooks[OPT['azs']] = late_stats
        assert OPT['atc'] < 0
        sy.items[0].t0 = B(zb_)
    if OPT['adip']: hooks[OPT['adip']] = lambda: (steady() if OPT['adip'] == 5 else None, S_.flush(bgs))
    def ck25(): assert sy.done() and bgs.done() and dma.done()
    gemm1(a, S_, G, 4, 6, OPT['ad_'], OPT['am'], areads, bread, mfma, dma, [sy, pars] + ([] if OPT['adip'] else [bgs]), {12: ck25}, hooks)
    assert dma.done()
    S_.flush(pars)
    a('@wait lg=*')
    stamp(a, 'g1')
    a.raw(';EPI')
    for T in range(8):
        P = PR + 2 * T; dd = Q + 8 * T
        for k in range(0, 8, 2): a(f'v_pk_fma_f32 {V(dd+k, 2)}, {V(CQ+k, 2)}, {V(P, 2)}, {V(dd+k, 2)} op_sel_hi:[1,0,1]')
        dk = K + 8 * T
        for k in range(0, 8, 2): a(f'v_pk_fma_f32 {V(dk+k, 2)}, {V(CK+k, 2)}, {V(P, 2)}, {V(dk+k, 2)} op_sel_hi:[1,0,1]')
        for k in range(4): a(f'v_cvt_pk_bf16_f32 v{Q+4*T+k}, v{dd+2*k}, v{dd+2*k+1}')
        for k in range(0, 8, 2): a(f'v_pk_mul_f32 {V(dk+k, 2)}, {V(dk+k, 2)}, {V(P, 2)} op_sel:[0,1] op_sel_hi:[1,1]')
        for k in (() if OPT['zpad'] else (2, 3)): a(f'v_cndmask_b32 v{Q+4*T+k}, 0, v{Q+4*T+k}, s[{sM1}:{sM1+1}]')
        for k in range(4): a(f'v_cvt_pk_bf16_f32 v{K+4*T+k}, v{dk+2*k}, v{dk+2*k+1}')
    def SR(T): return (Q + 32 + 8 * T) if T < 4 else (K + 32 + 8 * (T - 4))
    RB = (2, 54)
    def rread(T):
        for ar in range(2): a(f'ds_read_b128 {V(RB[T&1] + 4*ar, 4)}, v{RA} offset:{512*(T>>2) + 256*ar + 64*(T&3)}', tag=f'R{T}')
    rread(0); rread(1)
    for T in range(8):
        if T & 3: a(f'{MF} {V(SR(T), 4)}, {V(K + 4*(T-1), 4)}, {V(Q + 4*T, 4)}, {V(MK, 4)}')
        a(f'{MF} {V(SR(T) + 4, 4)}, {V(K + 4*T, 4)}, {V(Q + 4*T, 4)}, {V(MK + 4, 4)}')
        a(f'v_mul_f32 v{PR + 2*T + 1}, {hx(f2u(LOG2E * 28 ** -0.5))}, v{PR + 2*T + 1}')
    MX = 10
    mx = [10, 11, 12, 13, 22, 23, 24, 25]
    for T in range(8):
        a(f'@wait lg=R{T}')
        b = RB[T & 1]
        for c, base in enumerate((V0, V1)):
            for k in (0, 2): a(f'v_pk_fma_f32 {V(base+4*T+k, 2)}, {V(b+k, 2)}, {V(CV, 2)}, {V(base+4*T+k, 2)} op_sel:[0,{c},0] op_sel_hi:[1,{c},1]')
        for c, base in enumerate((V0, V1)):
            for k in (0, 2): a(f'v_pk_mul_f32 {V(base+4*T+k, 2)}, {V(base+4*T+k, 2)}, {V(b+4+k, 2)}')
        if T < 6: rread(T + 2)
        for c, base in enumerate((V0, V1)):
            for k in range(2): a(f'v_cvt_pk_bf16_f32 v{base+2*T+k}, v{base+4*T+2*k}, v{base+4*T+2*k+1}')
        s = SR(T); m = mx[T]
        if T & 3: a(f'v_max3_f32 v{m}, v{s}, v{s+1}, v{s+2}\nv_max3_f32 v{m}, v{m}, v{s+3}, v{s+4}\nv_max3_f32 v{m}, v{m}, v{s+5}, v{s+6}\nv_max_f32 v{m}, v{m}, v{s+7}')
        else: a(f'v_max3_f32 v{m}, v{s+4}, v{s+5}, v{s+6}\nv_max_f32 v{m}, v{m}, v{s+7}')
    stamp(a, 'e1')
    for b in (0, 2, 4, 6): a(f'v_permlane32_swap_b32 v{mx[b]}, v{mx[b+1]}')
    for b in (0, 2, 4, 6): a(f'v_max_f32 v{mx[b]}, v{mx[b]}, v{mx[b+1]}')
    for b in (0, 4): a(f'v_permlane16_swap_b32 v{mx[b]}, v{mx[b+2]}')
    for b in (0, 4): a(f'v_max_f32 v{mx[b]}, v{mx[b]}, v{mx[b+2]}')
    for b in (0, 4): a(f'v_mov_b32 v{mx[b+2]}, v{mx[b]}')
    ONE = 54; PF = 56; OT = K
    for k in range(2): a(f'v_mov_b32 v{2+k}, 0x3f803f80')
    for b in (0, 4): a(f'v_permlane16_swap_b32 v{mx[b]}, v{mx[b+2]}')
    for b in (0, 2, 4, 6): a(f'v_mov_b32 v{mx[b+1]}, v{mx[b]}')
    for k in range(2, 4): a(f'v_mov_b32 v{2+k}, 0x3f803f80')
    ONE = 2
    for b in (0, 2, 4, 6): a(f'v_permlane32_swap_b32 v{mx[b]}, v{mx[b+1]}')
    for T in range(8): a(f'v_mul_f32 v{PR + 2*T}, v{mx[T]}, v{PR + 2*T + 1}')
    def pf(T): return PF + 4 * (T & 1)
    def soft(T):
        s = SR(T); P = PR + 2 * T
        lo = 0 if T & 3 else 4
        for k in range(lo, 8, 2): a(f'v_pk_fma_f32 {V(s+k, 2)}, {V(s+k, 2)}, {V(P, 2)}, {V(P, 2)} op_sel:[0,1,0] op_sel_hi:[1,1,0] neg_lo:[0,0,1] neg_hi:[0,0,1]')
        return [f'v_exp_f32 v{s+k}, v{s+k}' for k in range(lo, 8)]
    def pack(T):
        s = SR(T)
        if T & 3:
            for k in range(4): a(f'v_cvt_pk_bf16_f32 v{pf(T)+k}, v{s+2*k}, v{s+2*k+1}')
        else:
            for k in range(2): a(f'v_cvt_pk_bf16_f32 v{pf(T)+k}, v{s+4+2*k}, v{s+5+2*k}')
            a(f'v_mov_b32 v{pf(T)+2}, 0\nv_mov_b32 v{pf(T)+3}, 0')
    def OB(T): return OT + 12 * (T & 1)
    def pv(T):
        v = 2 * (T - 1) if T & 3 else 2 * T
        o = OB(T)
        return [f'{MF} {V(o + 8, 4)}, {V(ONE, 4)}, {V(pf(T), 4)}, 0', f'{MF} {V(o, 4)}, {V(V0 + v, 4)}, {V(pf(T), 4)}, 0', f'{MF} {V(o + 4, 4)}, {V(V1 + v, 4)}, {V(pf(T), 4)}, 0']
    def fin(T):
        o = OB(T); R = Q + 4 * T
        a(f'v_rcp_f32 v{o+8}, v{o+8}')
        for k in range(0, 8, 2): a(f'v_pk_mul_f32 {V(o+k, 2)}, {V(o+k, 2)}, {V(o+8, 2)} op_sel_hi:[1,0]')
        for k in range(4): a(f'v_cvt_pk_bf16_f32 v{R+k}, v{o+2*k}, v{o+2*k+1}')
        if T & 3 == 3:
            R0 = R - 12
            for k in range(4):
                for q in (0, 1): a(f'v_permlane32_swap_b32 v{R0+4*q+k}, v{R0+4*(q+2)+k}')
            for q in (0, 2):
                for k in range(4): a(f'v_permlane16_swap_b32 v{R0+4*q+k}, v{R0+4*(q+1)+k}')
                for g in (q, q + 1): a(f'buffer_store_dwordx4 {V(R0+4*g, 4)}, v{OA + (T>>2)}, s[{SH}:{SH+3}], s{sST} offen offset:{256*g} sc1', tag='o')
    for T in range(9):
        ex = soft(T) if T < 8 else []
        mm = pv(T - 1) if T else []
        for x in mm:
            a(x)
            if ex: a(ex.pop(0))
        em(a, ex)
        if T < 8: pack(T)
        if T: fin(T - 1)
    stamp(a, 'e2')
    a(f'v_mov_b32 v2, 1\ns_waitcnt vmcnt(0)\nbuffer_atomic_add v2, v{CB}, s[{SH}:{SH+3}], s{sFL} offen sc1')

def add_pads(lines, pfx):
    flat = []
    for l in lines: flat += l.split('\n')
    h = flat.index(';HOP')
    if not OPT['iw']: return flat[:h] + flat[h+1:]
    start = flat.index(';EPI') if OPT['iws'] else h + OPT['iw']
    pos = []; k = start
    while k < len(flat) - 60:
        j = k
        while j < k + 40 and not (flat[j-1].strip().startswith('v_mfma') and flat[j].strip().startswith('v_mfma')): j += 1
        pos.append(j if j < k + 40 else k); k += OPT['iw']
    n = len(pos); first = [w * n // 4 for w in range(5)]
    hop = ['    s_mov_b64 exec, 0']
    for w in range(3): hop += [f'    s_cmp_eq_u32 s{sW}, {w}', f'    s_cbranch_scc1 {pfx}_pad{first[w]}']
    hop += [f'    s_branch {pfx}_pad{first[3]}', f'{pfx}_back:', '    s_mov_b64 exec, -1']
    out = flat[:h] + hop
    for i in range(h + 1, len(flat)):
        if i in pos:
            q = pos.index(i)
            out += [f'{pfx}_pad{q}:', f'    s_cbranch_execz {pfx}_' + ('back' if q + 1 in first else f'pad{q+1}')]
        out.append(flat[i])
    print(pfx, 'pads', n, file=sys.stderr)
    return out

def desc(name):
    return f""".amdhsa_kernel {name}
  .amdhsa_next_free_vgpr 512
  .amdhsa_next_free_sgpr 102
  .amdhsa_accum_offset 256
  .amdhsa_group_segment_fixed_size 0
  .amdhsa_kernarg_size 80
  .amdhsa_user_sgpr_count 2
  .amdhsa_user_sgpr_kernarg_segment_ptr 1
  .amdhsa_system_sgpr_workgroup_id_x 1
  .amdhsa_float_denorm_mode_32 3
.end_amdhsa_kernel
"""

def build():
    del SLOW[:]
    hdr = open('cdna_kernels/' + NAME + '.s.ref').read().split('; Override launch')[0]
    k1 = NAME + '_kernel'
    out = hdr + '; @launch grid=(256,1,1) block=(256,1,1) lds=163840\n.amdgcn_target "amdgcn-amd-amdhsa--gfx950"\n.text\n'
    c = Asm()
    c.raw(f'.globl {k1}\n.type {k1},@function\n.p2align 10\n.fill {OPT["pad"] // 4}, 4, 0xbf810000\n.p2align 8\n{k1}:')
    c('s_cmpk_ge_u32 s2, 256\ns_cbranch_scc1 L_done')
    if PROF: c.raw(f'    s_mem{"real" if "real" in STAMPS else ""}time s[86:87]\n    s_memrealtime s[84:85]\n    s_waitcnt lgkmcnt(0)\n    s_mov_b32 s87, s84\n    s_getreg_b32 s99, hwreg(HW_REG_XCC_ID)\n    s_lshl_b32 s99, s99, 16')
    else: stamp(c, 0)
    c('s_load_dwordx16 s[4:19], s[0:1], 0\ns_load_dwordx4 s[20:23], s[0:1], 64')
    per = OPT['pfn']
    c(f's_getpc_b64 s[{sFH}:{sFH+1}]\nv_lshrrev_b32 v1, 6, v0\nv_and_b32 v0, 63, v0\ns_lshr_b32 s{T0}, s2, 3\ns_mul_i32 s{T1}, s{T0}, {per}')
    c(f'v_min_u32 v{XL}, {per-1}, v0\nv_readfirstlane_b32 s{sW}, v1\nv_add_lshl_u32 v{XL}, v{XL}, s{T1}, 7')
    c(f'global_load_dword v37, v{XL}, s[{sFH}:{sFH+1}] offset:896', tag='pf')
    stats_addr(c); em(c, srd_c(SX, 2048 * 896))
    c(f's_and_b32 s{sJ}, s{sW}, 1\ns_lshr_b32 s{sWO}, s{sW}, 1\ns_lshl_b32 s{T2}, s{sJ}, 2')
    c(f'v_lshrrev_b32 v{XL}, 3, v0\nv_and_b32 v1, 7, v0\nv_lshrrev_b32 v{XL+1}, 4, v0\nv_mul_u32_u24 v{XL}, 112, v{XL}\nv_xor_b32 v1, s{T2}, v1')
    c(f's_bfe_u32 s{T1}, s2, 0x10002\ns_and_b32 s{sC}, s2, 3\nv_xor_b32 v1, v1, v{XL+1}\ns_cmp_lt_u32 s{T0}, 23\nv_add_lshl_u32 v{XL}, v{XL}, v1, 4\ns_cbranch_scc1 L_ffn')
    aa = Asm(); aa.vm = ['pf']
    if OPT['noa']: aa(f's_mov_b32 s{T1}, 1\ns_branch L_idle')
    cut = []
    def split():
        aa('s_branch L_attn'); cut.append(len(aa.lines)); aa.label('L_attn')
    attn(aa, split); dump(aa); aa('s_endpgm')
    f = Asm(); f.vm = ['pf']
    f.label('L_ffn')
    f(f's_mul_i32 s{T2}, s{sC}, 23\ns_add_u32 s{T0}, s{T0}, s{T2}\ns_cmpk_ge_u32 s{T0}, 91\ns_cbranch_scc1 L_idle0')
    ffn(f); dump(f)
    f.label('L_done'); f('s_endpgm')
    a = Asm(); a.vm = ['pf']
    a.label('L_idle')
    z = Asm(); z.label('L_idle0')
    z(f'v_mov_b32 v4, 0\nv_mov_b32 v5, 0\nv_mov_b32 v6, 0\nv_mov_b32 v7, 0\ns_lshl_b32 s{T0}, s{sW}, 12\ns_add_u32 s{T0}, s{T0}, {STATS}\nv_lshl_add_u32 v2, v0, 4, s{T0}')
    z(f's_cmp_lg_u32 s{T1}, 0\ns_waitcnt lgkmcnt(0)\ns_cbranch_scc1 L_idle1')
    for i in range(4): z(f'global_store_dwordx4 v2, v[4:7], s[22:23] offset:{i*1024} sc1')
    z('s_branch L_idle')
    a.lines[-1:] = ['L_idle1:']
    a(f's_mul_i32 s{T0}, s{sW}, {5*FST//4}\ns_add_u32 s{T0}, s{T0}, {FH + 4096}\nv_lshl_add_u32 v2, v0, 4, s{T0}\nv_add_u32 v3, 4096, v2')
    for i in range(10): a(f'global_store_dwordx4 v{2 + (i >= 8)}, v[4:7], s[22:23] offset:{(i - 4 - 4*(i >= 8))*1024} sc1')
    a.label('L_idle')
    em(a, srd(SH, 22, WS_USED) + srd(SDB, 20, 256) + srd_p(SX, 4))
    a(f's_lshl_b32 s{T3}, s{T1}, 7\ns_cmp_eq_u32 s{sW}, 0\ns_cselect_b32 s{T3}, s{T3}, {OOB}\nv_mov_b32 v8, 1\nv_lshl_add_u32 v9, v0, 8, s{T3}')
    a(f's_waitcnt vmcnt(0)\ns_barrier\nbuffer_store_dword v8, v9, s[{SDB}:{SDB+3}], 0 offen sc1')
    stats_load(a); stats_do(a)
    a('s_waitcnt lgkmcnt(0)\ns_barrier')
    em(a, stats_prep(ZD, ZD + 4))
    a(cert_load(ZD + 5)); a('s_waitcnt vmcnt(0) lgkmcnt(0)')
    em(a, vec_check('Li_cert', [cert_load(ZD + 5)], [ZD + 5])); a(stats_post(ZD, ZD + 4)); a('s_endpgm')
    for s in SLOW: a.raw(s)
    a.raw('L_end:\n.fill 3072, 4, 0xbf810000')
    sys.stderr.write(f'instr: ffn {f.count} attn {aa.count}; nops {f.nops} {aa.nops}\n')
    lines = c.lines + aa.lines[:cut[0]] + z.lines + add_pads(f.lines, 'Lf') + add_pads(aa.lines[cut[0]:], 'La') + a.lines
    lines = [l for l in lines if not l.startswith(';')]
    if OPT['align']: lines = align_pass(lines, k1, 'L_end', 'L_f7')
    text = '\n'.join(lines) + '\n'
    if OPT['sf'] != 'sc1': text = re.sub(r'(buffer_store_dwordx4 .*) sc1', lambda m: m.group(1) + ' ' + OPT['sf'].replace('+', ' '), text)
    return out + text + '.section .rodata,"a"\n.p2align 6\n' + desc(k1)

if __name__ == '__main__':
    args = sys.argv[1:]
    for x in [x for x in args if x.startswith('enc:')]:
        args.remove(x); ENC = (x.split(':')[1], int(x.split(':')[2]))
    for x in [x for x in args if x.startswith('st:')]:
        PROF = True; args.remove(x); STAMPS[:] = x[3:].split(',')
    for x in [x for x in args if '=' in x]:
        k, v = x.split('='); args.remove(x)
        OPT[k] = type(OPT[k])(v) if not isinstance(OPT[k], bool) else v == '1'
    roles = [decode_py(b) for b in range(256)]
    F = [r for r in roles if r and r[0] == 'F']; Aa = [r for r in roles if r and r[0] == 'A']
    assert sorted((r[1], r[2]) for r in F) == [(r, c) for r in range(13) for c in range(14)]
    assert sorted((r[3], r[4]) for r in F) == [(t, c) for t in range(26) for c in range(7)]
    assert sorted((r[1], r[2]) for r in Aa) == [(x, g) for x in range(18) for g in range(4)]
    assert all(((t * 26547) >> 22) == t // 158 for t in range(2200))
    assert all(((t * 4682) >> 16) == t // 14 for t in range(140))
    for r in range(13):
        need = {0 if tk < 127 else (tk - 14) // 113 for tk in range(158 * r, min(158 * r + 158, 2048))}
        assert len(need) == ((min(158 * r + 143, 2033) * 580) >> 16) - (((max(158 * r, 14) - 14) * 580) >> 16) + 1
        assert need == {x for x in range(18) if ((113 * x + (14 if x else 0)) // 158) <= r <= (113 * x + 126) // 158}
    open(args[0] if args else 'cdna_kernels/' + NAME + '.s', 'w').write(build())
```

```python
import sys, struct
from asmlib import *

NAME = "parallel_sum__sliding_local_dilated__swiglu_ffn__prompt"
LOG2E = 1.4426950408889634
def f2u(x): return struct.unpack('<I', struct.pack('<f', x))[0]
def hx(x): return f'0x{x & 0xffffffff:08x}'

OPT = dict(rotf='h3', rota='1.0.0.7.1', rate=0.25, rate2=0.2, rate3=0.22, rs=4, arate=0.2, erate=0.25, w2s=13, w2g=50, npro=17, anpro=16, rot2=2, sleep=3,
           tc=1, atc=-1, atl=13, tl=13, nhb=12, pi=9, early=0, lag=60, touch='', tn=4, tpos=20, tstep=4.0, nO=4, pad=256, otr=1, lt=0, ltr=128, zpos=0, align=1, lead=8, fm=6, am=0, arate0=0.3, fd=3, ad_=2, chain=1, zpad=1, of='sc1', ofl='sc1', xo=0, sf='sc1', wso=0, diag=0, roto=0, aw=0, ad=60, awp=0, ol=0, ash=1, dw=0, dt=1, pe=0, wrate=0.12, fp=0, azs=0, adip=3, pair=0, lc=4, rt=18, zi=99, nbg=999, p2=0, zr=1, noa=0, pfn=11, iw=0, iws=1, nA=8, a6=0, ost=80, nochk=0, x='', ap=0, tk=4, elag=40)

SX, SG, SU, SH, SD, SO, SOUT, SDB = 24, 28, 32, 36, 40, 44, 48, 52
sR, sC, sTH, sCT, sW = 56, 57, 58, 59, 60
T0, T1, T2, T3 = 61, 62, 63, 64
sMX, sMW, sSO, sJ, sWO, sST, sSPIN = 65, 66, 67, 68, 69, 70, 71
sPL, sONE, sXJ, sWJ = 72, 73, 74, 75
sFH, sNO = 76, 78
sM0, sM1 = 80, 82
sRT = 4
sFL = 3

TH_BYTES = 5 * 72 * 1024
FH, FST, STATS, WS_USED = 0x930000, 8192, 0x93a000, 0x940000
OOB = 0x7ffffff0
MF = 'v_mfma_f32_16x16x32_bf16'

PROF = False; STAMPS = []; ENC = None; sP = 86
def stamp(a, i, real=False):
    if ENC:
        if i == 0 or i == ENC[0]:
            a.raw(f'    s_memrealtime s[84:85]\n    s_waitcnt lgkmcnt(0)\n    s_mov_b32 s{86 + (i != 0)}, s84'); a.lg = []
        return
    if not PROF: return
    if isinstance(i, str):
        if i not in STAMPS: return
        i = 2 + STAMPS.index(i)
    real = real or 'real' in STAMPS
    a.raw(f'    s_mem{"real" if real else ""}time s[84:85]\n    s_waitcnt lgkmcnt(0)\n    s_mov_b32 s{sP+i}, s84')
    a.lg = []
def dump(a):
    if ENC:
        l = f'Lenc{a.count}'
        stamp(a, 'end')
        a.raw(f'    s_cmp_eq_u32 s2, {ENC[1]}\n    s_cbranch_scc0 {l}_e\n    s_sub_u32 s87, s87, s86\n    s_min_u32 s87, s87, 5000\n    s_mul_i32 s87, s87, 10\n    s_memrealtime s[88:89]\n{l}:\n    s_memrealtime s[84:85]\n    s_waitcnt lgkmcnt(0)\n    s_sub_u32 s84, s84, s88\n    s_cmp_lt_u32 s84, s87\n    s_cbranch_scc1 {l}\n{l}_e:')
        return
    if not PROF: return
    a('s_waitcnt vmcnt(0)')
    stamp(a, 14); stamp(a, 15, True)
    a(f's_mov_b32 s{SH+2}, 0x2000000')
    a(f's_lshl_b32 s{T0}, s2, 2\ns_add_u32 s{T0}, s{T0}, s{sW}\ns_lshl_b32 s{T0}, s{T0}, 6\ns_add_u32 s{T0}, s{T0}, 0x1000000')
    for i in range(16): a(f'v_mov_b32 v{4+i}, s{sP+i}')
    a('v_mov_b32 v2, 0\ns_mov_b64 exec, 1')
    for i in range(4): a(f'buffer_store_dwordx4 v[{4+4*i}:{7+4*i}], v2, s[{SH}:{SH+3}], s{T0} offen offset:{16*i}')

def srd_c(dst, nbytes): return [f's_mov_b32 s{dst+2}, {nbytes}', f's_mov_b32 s{dst+3}, 0x20000']
def srd_p(dst, ptr, back=0):
    if back: return [[f's_sub_u32 s{dst}, s{ptr}, {back}', f's_subb_u32 s{dst+1}, s{ptr+1}, 0']]
    return [f's_mov_b64 s[{dst}:{dst+1}], s[{ptr}:{ptr+1}]']
def srd(dst, ptr, nbytes): return srd_p(dst, ptr) + srd_c(dst, nbytes)
def em(a, l, tag=None):
    for x in l:
        for y in ([x] if isinstance(x, str) else x): a(y, tag=tag)
def items(l, **k): return [Item(x, **k) for x in l]

SLOW = []
NL = '\n    '
def mark(): return f'{NL}s_bitset1_b32 s99, {len(SLOW)}' if PROF and len(STAMPS) < 12 else ''
def vec_check(name, loads, regs):
    r = regs[-1]
    t = {1: [], 2: [f'v_min_u32 v{r}, v{regs[0]}, v{r}'], 3: [f'v_min3_u32 v{r}, v{regs[0]}, v{regs[1]}, v{r}']}[len(regs)] if len(regs) > 1 else []
    t.append(f'v_cmp_eq_u32 vcc, 0, v{r}')
    SLOW.append(f"""{name}:{mark()}
    s_mov_b32 s{sSPIN}, 0
{name}_l:
    s_sleep 4
    {NL.join(loads)}
    s_add_u32 s{sSPIN}, s{sSPIN}, 1
    s_waitcnt vmcnt(0)
    {NL.join(t)}
    s_nop 4
    s_cbranch_vccz {name}_r
    s_cmp_lt_u32 s{sSPIN}, 0x40000
    s_cbranch_scc1 {name}_l
    s_branch {name}_r""")
    return t + ['s_nop 4', f's_cbranch_vccnz {name}', f'{name}_r:']
def preg(f): return 79 if f & 1 else sPL
def poll_issue(f): return f's_load_dword s{preg(f)}, s[{sFH}:{sFH+1}], {f*FST} glc'
def poll_check(name, f, want, first=()):
    SLOW.append(f"""{name}:{mark()}
    {NL.join(list(first) + [f's_mov_b32 s{sSPIN}, 0'])}
{name}_l:
    {poll_issue(f)}
    s_add_u32 s{sSPIN}, s{sSPIN}, 1
    s_waitcnt lgkmcnt(0)
    s_cmp_eq_u32 s{preg(f)}, {want}
    s_cbranch_scc1 {name}_r
    s_sleep {OPT['sleep']}
    s_cmp_lt_u32 s{sSPIN}, 0x40000
    s_cbranch_scc1 {name}_l
    s_branch {name}_r""")
    return ['s_waitcnt lgkmcnt(0)', [f's_cmp_eq_u32 s{preg(f)}, {want}', f's_cbranch_scc0 {name}', f'{name}_r:']]

def decode_py(b):
    i, hf, q = b >> 3, (b >> 2) & 1, b & 3
    if i >= 23: return ('A', 9 * hf + i - 23, q)
    f = i + 23 * q
    if f >= 91: return None
    p = 91 * hf + f; th = (p * 9363) >> 16; ct = p - 7 * th
    l1 = 49 - 7 * hf; sec = int(f >= l1); f2 = f - (l1 if sec else 0)
    m, n = (37, 7) if (sec ^ hf) == 0 else (43, 6)
    c = (f2 * m) >> 8; r = f2 - n * c
    return ('F', r + (7 - sec) * hf, c + 7 * sec, th, ct)

ZD, ZT = 38, 46
ZL = 163840 - 128
sZB = sSPIN
def zb(): return sZB if OPT['zr'] else 2
def stats_addr(a):
    if OPT['zr']: a(f's_bfe_u32 s{T3}, s2, 0x10002\ns_lshl_b32 s{T3}, s{T3}, 5\ns_add_u32 s{T3}, s{T3}, s{T0}\ns_and_b32 s{sZB}, s2, 3\ns_lshl2_add_u32 s{sZB}, s{T3}, s{sZB}')
    a(f's_andn2_b32 s{T3}, s{zb()}, 1\ns_lshl1_add_u32 s{T3}, s{T3}, s{sW}\ns_and_b32 s{sSO}, s2, 1\ns_lshl2_add_u32 s{sST}, s{T3}, s{sSO}\ns_mulk_i32 s{sST}, 896')
    a(f'v_lshrrev_b32 v{ZT}, 5, v0\nv_and_b32 v{ZT+1}, 31, v0\nv_mul_u32_u24 v{ZT+2}, 1792, v{ZT}\nv_cmp_gt_u32 vcc, 28, v{ZT+1}')
    a(f'v_lshl_add_u32 v{ZT+2}, v{ZT+1}, 4, v{ZT+2}\nv_mov_b32 v{ZT+3}, {OOB}\nv_cndmask_b32 v{ZT+2}, v{ZT+3}, v{ZT+2}, vcc')
def stats_load(a):
    a(f'buffer_load_dwordx4 {V(ZD, 4)}, v{ZT+2}, s[{SX}:{SX+3}], s{sST} offen', tag='z')
    a(f'buffer_load_dwordx4 {V(ZD+4, 4)}, v{ZT+2}, s[{SX}:{SX+3}], s{sST} offen offset:448', tag='z')
def stats_do(a_, more=None):
    cnt = [-1]
    def a(t, **k):
        for x in t.split('\n'):
            a_(x, **k)
            if cnt[0] >= 0 and more:
                if cnt[0] % OPT['zi'] == 0: more()
                cnt[0] += 1
    s, q, lo, hi = ZT + 4, ZT + 5, ZT + 6, ZT + 7
    a(f'v_and_b32 v{ZT+2}, 1, v0\nv_cmp_eq_u32 s[{sM0}:{sM0+1}], 1, v{ZT+2}\nv_lshlrev_b32 v{ZT+2}, 5, v{ZT+2}\nv_lshl_add_u32 v{ZT+2}, v{ZT}, 2, v{ZT+2}')
    a(f'v_bfe_u32 v{ZT+1}, v0, 4, 1\nv_lshlrev_b32 v{ZT+1}, 6, v{ZT+1}\nv_sub_u32 v{ZT+2}, v{ZT+2}, v{ZT+1}\ns_lshl3_add_u32 s{T0}, s{sW}, {ZL + 64}')
    a(f'v_cmp_eq_u32 vcc, 0, v0\nv_add_u32 v{ZT+2}, s{T0}, v{ZT+2}\nv_mov_b32 v{ZT}, 0\nv_cndmask_b32 v1, v{ZT+3}, v{ZT}, vcc')
    a_.raw(';HOP')
    stamp(a_, 'z0')
    a('@wait vm=z')
    stamp(a_, 'z1')
    cnt[0] = 0
    for k in range(8):
        r = ZD + k
        a(f'v_lshlrev_b32 v{lo}, 16, v{r}\nv_and_b32 v{hi}, 0xffff0000, v{r}')
        if k == 0: a(f'v_pk_add_f32 {V(ZT, 2)}, {V(lo, 2)}, 0\nv_pk_mul_f32 {V(s, 2)}, {V(lo, 2)}, {V(lo, 2)}')
        else: a(f'v_pk_add_f32 {V(ZT, 2)}, {V(ZT, 2)}, {V(lo, 2)}\nv_pk_fma_f32 {V(s, 2)}, {V(lo, 2)}, {V(lo, 2)}, {V(s, 2)}')
    a(f'v_add_f32 v{q}, v{s}, v{q}\nv_add_f32 v{s}, v{ZT}, v{ZT+1}')
    for ctl in ('quad_perm:[1,0,3,2] row_mask:0xf', 'quad_perm:[2,3,0,1] row_mask:0xf', 'row_half_mirror row_mask:0xf', 'row_mirror row_mask:0xf', 'row_bcast:15 row_mask:0xa'):
        for r in (q, s): a(f'v_add_f32_dpp v{r}, v{r}, v{r} {ctl} bank_mask:0xf')
    a(f'v_mul_f32 v{s}, {hx(f2u(1/448))}, v{s}\nv_mul_f32 v{q}, {hx(f2u(1/448))}, v{q}\nv_fma_f32 v{q}, -v{s}, v{s}, v{q}\nv_max_f32 v{q}, 0, v{q}')
    a(f'v_cvt_pk_bf16_f32 v{s}, -v{s}, v{q}\nv_and_b32 v{q}, 0xffff0000, v{s}\nv_lshlrev_b32 v{s}, 16, v{s}')
    a(f'v_add_f32 v{q}, {hx(f2u(1e-5))}, v{q}\nv_cvt_pk_bf16_f32 v{q}, v{q}, v{q}\nv_and_b32 v{q}, 0xffff0000, v{q}\nv_sqrt_f32 v{q}, v{q}')
    a(f'v_cvt_pk_bf16_f32 v{q}, v{q}, v{q}\nv_and_b32 v{q}, 0xffff0000, v{q}\nv_rcp_f32 v{q}, v{q}')
    a(f'v_cndmask_b32 v{s}, v{s}, v{q}, s[{sM0}:{sM0+1}]\nv_or_b32 v{s}, 1, v{s}')
    a(f'ds_write_b32 v{ZT+2}, v{s}')
    stamp(a_, 'z2')
def cert_load(v, k=0): return f'buffer_load_dword v{v}, off, s[{SDB}:{SDB+3}], 0 offset:{128*k} sc1'
def stats_prep(vd, va):
    return [f'v_and_b32 v{va}, 3, v0', f'v_lshlrev_b32 v{va}, 4, v{va}', f'v_add_u32 v{va}, {ZL}, v{va}', f'ds_read_b128 {V(vd, 4)}, v{va}',
            f's_lshl_b32 s{T0}, s{zb()}, 6', f's_add_u32 s{T0}, s{T0}, {STATS - ZL}', [f's_cmp_eq_u32 s{sW}, 0', f's_cselect_b32 s{T0}, s{T0}, {OOB}'],
            f'v_add_u32 v{va}, s{T0}, v{va}', f'v_cmp_gt_u32 vcc, 4, v0', f'v_cndmask_b32 v{va}, v1, v{va}, vcc']
def stats_post(vd, va): return f'buffer_store_dwordx4 {V(vd, 4)}, v{va}, s[{SH}:{SH+3}], 0 offen sc1'
def stats_src(vd, vt):
    return [f'v_min_u32 v{vd}, 1023, v{vd}', f'v_and_b32 v{vt}, 7, v{vd}', f'v_lshrrev_b32 v{vd}, 3, v{vd}', f'v_lshlrev_b32 v{vd}, 7, v{vd}', f'v_lshl_add_u32 v{vd}, v{vt}, 2, v{vd}']
def sync_stream(pfx, G, tc, src, loads, regs, writes, t_load, t_check, C=ZD+5):
    D = ZD
    loads = loads + [cert_load(C, 1)]; regs = regs + [C]
    o = items(stats_prep(D, D + 4), tag='zg')
    if tc >= 0: o.append(Item(cert_load(C), tag='cert', t0=tc * G))
    o.append(Item(['@wait vm=cert lg=zg'] + vec_check(pfx + '_cert', [cert_load(C)], [C]), t0=(tc + OPT['tk']) * G + 2))
    if OPT['diag']:
        o.append(Item(['s_waitcnt vmcnt(0)', 's_memrealtime s[84:85]', 's_waitcnt lgkmcnt(0)', 's_mov_b32 s88, s84', stats_post(D, D + 4), 's_waitcnt vmcnt(0)', 's_memrealtime s[84:85]', 's_waitcnt lgkmcnt(0)', 's_mov_b32 s89, s84']))
    else: o.append(Item(stats_post(D, D + 4)))
    o += items(src) + items(loads, tag='par', t0=t_load * G)
    o.append(Item(['@wait vm=par'] + vec_check(pfx + '_par', loads, regs), t0=t_check * G))
    return Stream(o + items(writes, tag='sw'))

def rot_init(a, spec, rowbytes):
    if not spec: return
    if spec == 'x':
        a(f's_and_b32 s{sXJ}, s2, 7\ns_cmp_eq_u32 s{sXJ}, 7\ns_cselect_b32 s{sXJ}, 0, s{sXJ}\ns_mul_i32 s{sWJ}, s{sXJ}, {64*rowbytes}\ns_lshl_b32 s{sXJ}, s{sXJ}, 7')
        return
    if spec[0] == 'h':
        a(f's_mul_i32 s{sWJ}, s{T1}, {64*rowbytes*int(spec[1])}\ns_mul_i32 s{sXJ}, s{T1}, {128*int(spec[1])}')
        return
    p, q, s, m, k = map(int, spec.split('.'))
    terms = [(c, r) for c, r in ((p, sR), (q, sC), (s, T1)) if c]
    src = terms[0][1]
    if terms[0][0] != 1 or len(terms) > 1:
        a(f's_mul_i32 s{sXJ}, s{src}, {terms[0][0]}'); src = sXJ
        for c, r in terms[1:]: a(f's_mul_i32 s{sWJ}, s{r}, {c}\ns_add_u32 s{sXJ}, s{sXJ}, s{sWJ}')
    a(f's_mul_i32 s{sWJ}, s{src}, {65536 // m + 1}\ns_lshr_b32 s{sWJ}, s{sWJ}, 16\ns_mul_i32 s{sWJ}, s{sWJ}, {m}\ns_sub_u32 s{sXJ}, s{src}, s{sWJ}')
    a(f's_mul_i32 s{sWJ}, s{sXJ}, {64*k*rowbytes}\ns_mulk_i32 s{sXJ}, {128*k}')
def x_off(spec, j):
    if not spec: return [f's_movk_i32 s{sXJ}, {128*j}']
    return [f's_add_u32 s{sXJ}, s{sXJ}, 128', [f's_cmp_eq_u32 s{sXJ}, 896', f's_cselect_b32 s{sXJ}, 0, s{sXJ}']] if j else []
def w_off(spec, m, i, rowbytes, comp):
    if not spec: return [f's_mov_b32 s{sSO}, {(32*m + 16*i)*rowbytes - comp}']
    o = []
    if i == 0 and m and m % 2 == 0: o = [f's_add_u32 s{sWJ}, s{sWJ}, {64*rowbytes}', [f's_cmp_eq_u32 s{sWJ}, {448*rowbytes}', f's_cselect_b32 s{sWJ}, 0, s{sWJ}']]
    return o + [f's_add_u32 s{sSO}, s{sWJ}, {(32*(m&1) + 16*i)*rowbytes - comp}']

def add_touches(d, vb, vt, vdump):
    mats = dict(d=([0], 7), o=([18], 7))
    n = OPT['tn']; pieces = []
    for sp in [x for x in OPT['touch'].split(',') if x]:
        m, r0, r1 = sp.split(':')
        ptrs, lpr = mats[m]; l0 = int(r0) * lpr; l1 = int(r1) * lpr
        for l in range(l0, l1, 1024 * n):
            o = [f'v_add_u32 v{vt}, {l*128}, v{vb}'] + ([f'v_min_u32 v{vt}, {(l1-1)*128}, v{vt}'] if l + 1024 * n > l1 else [])
            for p in ptrs:
                pieces.append(items(o) + [Item(f'global_load_dword v{vdump}, v{vt}, s[{p}:{p+1}]', tag='touch')]); o = []
    ins = {}
    for k, p in enumerate(pieces): ins.setdefault(int(OPT['tpos'] + k * OPT['tstep']), []).extend(p)
    if pieces:
        ins[OPT['tpos']][:0] = items([f's_lshl2_add_u32 s79, s2, s{sW}', f's_mul_i32 s79, s79, {n}', f'v_min_u32 v{vb}, {n-1}, v0', f'v_add_lshl_u32 v{vb}, v{vb}, s79, 7'])
    out = []; k = 0; done = False
    for it in d:
        out.append(it)
        if it.paced:
            k += 1; out += ins.pop(k, [])
    return out
def keep_ptrs(a): a('s_mov_b64 s[0:1], s[16:17]\ns_mov_b64 s[18:19], s[8:9]')

XL = 54
def x_read_addr(a, XA, XB, t, octet_stride):
    a(f'v_and_b32 v{t}, 7, v0\nv_bfe_u32 v{t+1}, v0, 3, 1\nv_lshrrev_b32 v{t+2}, 4, v0\nv_bfe_u32 v{t+3}, v0, 1, 3')
    a(f'v_xor_b32 v{t+2}, v{t+2}, v{t+3}\nv_lshlrev_b32 v{t+2}, 4, v{t+2}\nv_lshl_add_u32 v{t+2}, v{t}, 7, v{t+2}')
    a(f'v_mul_u32_u24 v{t+1}, {octet_stride}, v{t+1}\nv_add_u32 v{XA}, v{t+1}, v{t+2}\nv_xor_b32 v{XA+1}, 64, v{XA}')
    a(f'v_and_b32 v{t+1}, 15, v0\nv_cmp_eq_u32 vcc, 15, v{t+1}\nv_mov_b32 v{t+3}, 0x100\nv_lshlrev_b32 v{t}, 4, v{t}\nv_cndmask_b32 v{t+3}, 0, v{t+3}, vcc')
    a(f'v_add_u32 v{XB}, v{XA}, v{t+3}\nv_add_u32 v{XB+1}, v{XA+1}, v{t+3}')
    for k in range(4): a(f'v_mov_b32 v{t+2+k}, 0x3f803f80')

def bar_gap(G, nt, nc, dist, M, m):
    if m < 0: return 0
    if m < M: return (2 * m + 1) * G + 1
    if m == M: return 2 * M * G + nc + 1
    if m == 14: return 27 * G + (nt - 1) * nc + 1
    return (2 * m - 1) * G + (nt - dist) * 2 * nc + 1
def x_bar(M, j):
    return -1 if j < 3 else (2 * j - 4 if 2 * j - 5 < M else 2 * j - 3)
def gemm1(a, S_, G, nt, nc, dist, M, areads, bread, mfma, dma, others, checks, hooks={}, last_bar=False):
    segs = []
    for k in range(M): segs += [(0, [k], None, None), (1, [k], k, 0)]
    segs.append((0, [M], M, 1))
    segs += [(m & 1, [m - 1, m], m, nt - dist) for m in range(M + 1, 14)]
    segs.append((0, [13], 14, nt - 1 if last_bar else None))
    units = [(g, q, ks, bm if q == bq else None) for g, ks, bm, bq in segs for q in range(nt)]
    def brd(u):
        if u >= len(units): return []
        g, q, ks, _ = units[u]
        return [Item(bread(g, q, k, u & 3, n), tag=f'b{u}') for n, k in enumerate(ks)]
    S_.flush(Stream(items(areads(0), tag='a0') + sum((brd(u) for u in range(dist)), [])))
    rds = Stream([]); forced = []
    for u, (g, q, ks, m) in enumerate(units):
        while any(x.tag in (f'b{u}', f'a{ks[-1]}') for x in rds.items[rds.i:]): S_.put(rds, rds.items[rds.i])
        bar = m is not None
        if bar and m in checks: checks[m]()
        a(f'@wait lg=b{u}' + (f',a{ks[-1]}' if q == 0 else '') + (',sw' if bar and m in checks else ''))
        if S_.t % G == 0 or S_.t % G + len(ks) * nc > G:
            n = -(-S_.t // G)
            if n in hooks: hooks[n]()
            stamp(a, f's{n}')
        nb = brd(u + dist)
        if not bar: rds.items += nb
        seq = [(c, n ^ (c & 1) if len(ks) == 2 else n) for c in (range(nc) if u % 2 == 0 or len(ks) == 2 else range(nc - 1, -1, -1)) for n in range(len(ks))]
        seen = set()
        for p, (c, n) in enumerate(seq):
            a(mfma(g, q, c, ks[n], u & 3, n, ks[0] == 0 and c not in seen)); seen.add(c)
            if bar and p == 0:
                assert S_.t + 1 == bar_gap(G, nt, nc, dist, M, m)
                need = (f'x{(m+1)>>1}', f'w{m+1}')
                while True:
                    if dma.done() and hasattr(dma, 'refill'): dma.refill()
                    young = len(a.vm) - 1 - max([k for k, tg in enumerate(a.vm) if tg in need], default=-99)
                    nxp = next((x for x in dma.items[dma.i:] if x.paced), None)
                    if nxp is None or nxp.t0 > S_.t or not (young < OPT['lead'] or any(x.tag in need for x in dma.items[dma.i:])): break
                    S_.flush(dma, 1); forced.append(m)
                a(f'@wait vm={need[0]},{need[1]}\ns_barrier'); S_.gap([], 0)
                rds.items += nb + (items(areads(m + 1), tag=f'a{m+1}') if m < 13 else [])
                continue
            left = (nt - q) * len(seq) - p - 1
            pend = [x.tag for x in rds.items[rds.i:]]
            na = max([k + 1 for k, tg in enumerate(pend) if tg[0] == 'a'], default=0)
            urgent = na >= left - 7 or f'b{u+1}' in pend or (f'b{u+2}' in pend and p >= len(seq) - 4)
            S_.gap(([rds, dma] if urgent else [dma, rds]) + others, 1 if p == len(seq) - 1 else 2)
    print('forced', forced, file=sys.stderr)

FXS = 162 * 128; FW0 = 3 * FXS; FPAR = FW0 + 6 * 16384
assert FPAR + 2048 <= ZL
def ffn(a):
    DV, RX, RW, RH, HV, PA, FV, DZ = 2, 6, 10, 14, 18, 19, 20, 21
    XV, WV, XA, XB, WA = 22, 27, 28, 30, 32
    E, O = 22, 30
    CS = 38; PR = 56; t = 56
    ACC = 96
    BF = 176; AF = 208
    a(f's_mul_i32 s{sTH}, s{T1}, 91\ns_add_u32 s{sTH}, s{sTH}, s{T0}\ns_mul_i32 s{T2}, s{T1}, 7\ns_sub_u32 s{T2}, 49, s{T2}')
    a(f's_cmp_ge_u32 s{T0}, s{T2}\ns_cselect_b32 s{T3}, 7, 0\ns_cselect_b32 s{T2}, s{T2}, 0\ns_cselect_b32 s{sCT}, 6, 7\ns_cselect_b32 s{sMX}, 1, 0\ns_sub_u32 s{T0}, s{T0}, s{T2}')
    a(f's_cmp_eq_u32 s{sMX}, s{T1}\ns_cselect_b32 s{sR}, 37, 43\ns_cselect_b32 s{T2}, 7, 6')
    a(f's_mul_i32 s{sC}, s{T0}, s{sR}\ns_lshr_b32 s{sC}, s{sC}, 8\ns_mul_i32 s{T2}, s{T2}, s{sC}\ns_sub_u32 s{sR}, s{T0}, s{T2}')
    a(f's_add_u32 s{sC}, s{sC}, s{T3}\ns_mul_i32 s{sCT}, s{sCT}, s{T1}\ns_add_u32 s{sR}, s{sR}, s{sCT}')
    rot_init(a, OPT['rotf'], 3584)
    a(f'v_and_b32 v{t+1}, 15, v0\nv_lshl_add_u32 v{t}, v{XL+1}, 1, s{sWO}\nv_lshlrev_b32 v{t}, 1, v{t}\nv_xor_b32 v{t+1}, v{t+1}, v{t}')
    a(f's_mul_i32 s{T0}, s{sW}, 56\ns_add_u32 s{T0}, s{T0}, s{sC}\ns_lshl_b32 s{T0}, s{T0}, 8')
    a(f'v_mul_u32_u24 v{t+2}, 224, v{XL+1}\nv_add_lshl_u32 v{t+2}, v{t+1}, v{t+2}, 4\nv_add_u32 v{WV}, s{T0}, v{t+2}')
    a(f's_mul_i32 s{T2}, s{sR}, 158\ns_lshl4_add_u32 s{T2}, s{sWO}, s{T2}\ns_add_u32 s{T2}, s{T2}, s{sJ}\ns_mulk_i32 s{T2}, 896\nv_add_u32 v{XV}, s{T2}, v{XL}')
    for i in range(1, 5): a(f'v_add_u32 v{XV+i}, {i*28672 - (i*1024 if i < 4 else 0)}, v{XV}')
    a(f's_mul_i32 s{sMX}, s{sW}, 5120\ns_lshl_b32 s{sMW}, s{sW}, 12\ns_add_u32 s{sMW}, s{sMW}, {FW0}')
    a(f's_mov_b32 s{SG+2}, {448*3584}\ns_mov_b32 s{SG+3}, s{SX+3}\ns_mov_b32 s{SU+2}, {448*3584 + 1024}\ns_mov_b32 s{SU+3}, s{SX+3}')
    a('s_waitcnt lgkmcnt(0)')
    stamp(a, 'ka')
    em(a, srd_p(SX, 4))
    if not OPT['zpos']: stats_load(a)
    em(a, srd_p(SG, 12) + srd_p(SU, 14, back=1024))
    G = 20
    B = lambda m: bar_gap(G, 5, 4, OPT['fd'], OPT['fm'], m)
    def xd(j):
        e = B(x_bar(OPT['fm'], j)); o = items(x_off(OPT['rotf'], j))
        for i in range(5):
            if i in (0, 4): o.append(Item(f's_add_u32 m0, s{sMX}, {(j%3)*FXS + i*1024}'))
            o.append(Item(f'buffer_load_dwordx4 v{XV+i}, s[{SX}:{SX+3}], s{sXJ} offen offset:{(i&3)*1024} lds', tag=f'x{j}', t0=e, paced=True))
        return o
    def wd(m):
        e = B(m - 4); o = [Item(f's_add_u32 m0, s{sMW}, {(m&3)*16384}', brk=False)]
        o[0].brk = False
        for i in range(2):
            o += items(w_off(OPT['rotf'], m, i, 3584, i*2048))
            o.append(Item(f'buffer_load_dwordx4 v{WV}, s[{SG}:{SG+3}], s{sSO} offen offset:{i*2048} lds', tag=f'w{m}', t0=e, paced=True))
            o.append(Item(f'buffer_load_dwordx4 v{WV}, s[{SU}:{SU+3}], s{sSO} offen offset:{i*2048 + 1024} lds', tag=f'w{m}', t0=e, paced=True))
        return o
    def wslot(k, free): return (RW if k < 4 else RH, (k & 3) * 16384, sMW, k * 16384, free)
    slots = [wslot(4, 0), wslot(5, 0), wslot(2, B(10)), wslot(3, B(11)), (RX, FXS, sMX, FXS, B(11)), wslot(0, B(12)), wslot(1, B(13)), (RX, 2*FXS, sMX, 2*FXS, B(13)), (RX, 0, sMX, 0, B(14))]
    kslot = []
    NG = 14 if OPT['xo'] else 18 - OPT['dw']
    WX = 56
    def wfrag(kk, c):
        i = 16 * kk + 4 * c
        return (i, 'a') if i < 256 else (WX + i - 256, 'v')
    def w2d(kk):
        reg, off, base, moff, free = slots[kslot[kk]]
        prev = [k for k in range(kk) if kslot[k] == kslot[kk]]
        o = [Item(f's_add_u32 m0, s{base}, {moff}')]; o[0].brk = False
        if kk < 14: o += [Item(f's_mul_i32 s{sSO}, s{sRT+kk}, 28')]; sr = SD
        elif OPT['roto']: o += items([f's_add_u32 s{sSO}, s2, {kk-14}', f's_and_b32 s{sSO}, s{sSO}, 3', f's_mul_i32 s{sSO}, s{sSO}, {28*896}']); sr = SO
        else: o += [Item(f's_mov_b32 s{sSO}, {28*(kk-14)*896}')]; sr = SO
        if prev: o.append(Item(f'@wait lg=t{prev[-1]}'))
        for i in range(4):
            o.append(Item(f'buffer_load_dwordx4 v{DZ if (kk >= 14 and i == 3) else DV+i}, s[{sr}:{sr+3}], s{sSO} offen offset:{i*1024} lds', tag=f'k{kk}', t0=free, paced=True, name=f'k{kk}' if i == 3 else None))
        return o
    def w2r(kk, lag):
        reg, off, base, moff, free = slots[kslot[kk]]
        o = [Item(f'@wait vm=k{kk}', after={f'k{kk}': lag})]
        for c in range(4):
            r, k = wfrag(kk, c)
            for jj in range(2):
                o.append(Item(f'ds_read_b64_tr_b16 {V(r + 2*jj, 2, k)}, v{reg+c} offset:{off + jj*2048}', tag=f't{kk}', name=f't{kk}' if (c, jj) == (3, 1) else None))
        return o
    d = add_touches(wd(0) + xd(0) + wd(1) + xd(1) + wd(2) + wd(3), 35, 36, 37)
    p1 = []
    for m in range(10):
        p1 += [xd(j) for j in range(2, 7) if max(0, x_bar(OPT['fm'], j)) == m]
        p1.append(wd(m + 4))
    dma = Stream(d, rate=OPT['rate'])
    trs = Stream([])
    S_ = Sched(a)
    NT = 11
    st8 = dict(last=-999, lag=OPT['lag'])
    def refill(force=False):
        if p1 and p1[0][-1].t0 <= S_.t + 3:
            dma.items += p1.pop(0); return
        kk = len(kslot)
        if not bgs.done(): return
        if kk == NG or S_.t < OPT['w2s'] * G or (p1 and S_.t < st8['last'] + OPT['w2g']): return
        for k, sl in enumerate(slots):
            prev = [q for q in range(kk) if kslot[q] == k]
            if sl[4] <= S_.t and (not prev or S_.when.get(f't{prev[-1]}', 1e9) + (0 if force else 5) <= S_.t):
                kslot.append(k); st8['last'] = S_.t
                dma.items += w2d(kk)
                if kk < NT: trs.items += w2r(kk, st8['lag'])
                return
    dma.refill = refill
    def steady(): dma.rate = OPT['rate2']
    def late(): dma.rate = OPT['rate3']
    S_.flush(dma, 7)
    a.raw('L_f7:')
    stamp(a, 'i7')
    x_read_addr(a, XA, XB, t, 5120)
    for st in range(3): a(f'ds_write_b128 v{t}, v[{t+2}:{t+5}] offset:{st*FXS + 161*128}')
    u = t + 6
    a(f'v_bfe_u32 v{u}, v0, 4, 1\nv_bfe_u32 v{u+1}, v0, 2, 2\nv_lshrrev_b32 v{u+2}, 5, v0\nv_and_b32 v{u+3}, 3, v0')
    a(f'v_lshl_add_u32 v{u+4}, v{u+1}, 1, v{u}\ns_lshl_b32 s{T0}, s{sW}, 1\nv_xor_b32 v{u+4}, s{T0}, v{u+4}\nv_lshlrev_b32 v{u+4}, 5, v{u+4}')
    a(f'v_lshl_add_u32 v{u+4}, v{u+3}, 3, v{u+4}\nv_lshl_add_u32 v{u+4}, v{u+1}, 8, v{u+4}\nv_lshl_add_u32 v{u+4}, v{u+2}, 11, v{u+4}')
    a(f'v_lshl_add_u32 v{u+4}, v{u}, 13, v{u+4}\nv_add_u32 v{WA}, {FW0}, v{u+4}\nv_xor_b32 v{WA+1}, 32, v{WA}')
    S_.flush(dma, 2)
    if OPT['zpos']: stats_load(a)
    em(a, srd(SH, 22, WS_USED) + srd(SDB, 20, 256) + srd(SOUT, 18, 2048 * 896))
    a(f's_mul_i32 s{T0}, s{sW}, {448*896}\ns_add_u32 s{SD}, s16, s{T0}\ns_addc_u32 s{SD+1}, s17, 0')
    a(f's_mul_i32 s{T0}, s{sW}, {112*896}\ns_add_u32 s{SO}, s8, s{T0}\ns_addc_u32 s{SO+1}, s9, 0')
    em(a, srd_c(SD, 448 * 896) + srd_c(SO, 112 * 896))
    if OPT['p2']: a(f's_cmp_ge_u32 s{sC}, 7\ns_cselect_b32 s{T3}, 7, 0\ns_addc_u32 s{sTH}, s{sR}, s{sR}\ns_sub_u32 s{sCT}, s{sC}, s{T3}')
    else: a(f's_mul_i32 s{T3}, s{sTH}, 9363\ns_lshr_b32 s{T3}, s{T3}, 16\ns_mul_i32 s{sCT}, s{T3}, 7\ns_sub_u32 s{sCT}, s{sTH}, s{sCT}\ns_mov_b32 s{sTH}, s{T3}')
    a(f'v_lshrrev_b32 v{u}, 3, v0\nv_and_b32 v{u+1}, 7, v0\nv_lshlrev_b32 v{u+2}, 1, v{XL+1}\nv_xor_b32 v{u+1}, v{u+1}, v{u+2}\nv_lshlrev_b32 v{u+1}, 4, v{u+1}')
    a(f'v_mul_u32_u24 v{u}, 896, v{u}\ns_lshl_b32 s{T3}, s{sCT}, 7\nv_add3_u32 v{DV}, v{u}, v{u+1}, s{T3}')
    for i in range(1, 4): a(f'v_add_u32 v{DV+i}, {6144*i}, v{DV}')
    a(f'v_cmp_gt_u32 vcc, 32, v0\nv_bfe_u32 v{u}, v0, 2, 3\nv_lshrrev_b32 v{u+1}, 5, v0\nv_cndmask_b32 v{DZ}, v{ZT+3}, v{DV+3}, vcc')
    a(f'v_and_b32 v{u+2}, 3, v0\nv_bfe_u32 v{u+3}, v0, 3, 2\nv_lshlrev_b32 v{u}, 7, v{u}\nv_lshl_add_u32 v{u}, v{u+1}, 10, v{u}')
    a(f'v_lshl_add_u32 v{u}, v{u+2}, 3, v{u}\nv_lshl_add_u32 v{u}, v{u+3}, 5, v{u}\nv_add_u32 v{RX}, s{sMX}, v{u}\nv_add_u32 v{RW}, s{sMW}, v{u}')
    for c in range(1, 4): a(f'v_xor_b32 v{RX+c}, {32*c}, v{RX}\nv_xor_b32 v{RW+c}, {32*c}, v{RW}')
    for c in range(4): a(f'v_add_u32 v{RH+c}, 0x10000, v{RW+c}')
    bg = []
    if OPT['rot2'] == 2:
        bg += [f's_and_b32 s{T3}, s2, 7', f's_mul_i32 s{T3}, s{T3}, 7', f's_lshr_b32 s{T3}, s{T3}, 2', f's_lshl_b32 s{sRT}, s{T3}, 10']
    elif OPT['rot2'] == 4:
        bg += [f's_bfe_u32 s{T3}, s2, 0x20001', f's_mul_i32 s{T3}, s{T3}, 7', f's_lshr_b32 s{T3}, s{T3}, 1', f's_lshl_b32 s{sRT}, s{T3}, 10']
    elif OPT['rot2'] == 3:
        bg += [f's_and_b32 s{T3}, s2, 7', f's_mul_i32 s{T3}, s{T3}, 7', f's_lshr_b32 s{T3}, s{T3}, 2', f's_lshl1_add_u32 s{T3}, s{sCT}, s{T3}', f's_sub_u32 s{sRT}, s{T3}, 14',
               f's_min_u32 s{T3}, s{T3}, s{sRT}', f's_lshl_b32 s{sRT}, s{T3}, 10']
    elif OPT['rot2']:
        bg += [f's_mul_i32 s{T3}, s{sTH}, 5', f's_lshl1_add_u32 s{T3}, s{sCT}, s{T3}', f's_mul_i32 s{sRT}, s{T3}, 4682', f's_lshr_b32 s{sRT}, s{sRT}, 16',
               f's_mul_i32 s{sRT}, s{sRT}, 14', f's_sub_u32 s{sRT}, s{T3}, s{sRT}', f's_lshl_b32 s{sRT}, s{sRT}, 10']
    else:
        bg += [f's_mov_b32 s{sRT}, 0']
    for k in range(1, 14):
        bg += [f's_add_u32 s{sRT+k}, s{sRT+k-1}, 1024', [f's_cmp_eq_u32 s{sRT+k}, {14*1024}', f's_cselect_b32 s{sRT+k}, 0, s{sRT+k}']]
    bg += [f'v_lshlrev_b32 v{HV}, 4, v0', f'v_mov_b32 v{FV}, 1', f's_mov_b32 s{sONE}, 1',
           f'v_and_b32 v{PA}, 7, v0', f'v_bfe_u32 v{u}, v0, 3, 1', f'v_lshlrev_b32 v{PA}, 2, v{PA}', f'v_lshl_add_u32 v{PA}, v{u}, 10, v{PA}', f'v_add_u32 v{PA}, {FPAR}, v{PA}',
           f's_lshl2_add_u32 s{T3}, s{sC}, s{sW}', f's_mul_i32 s{sFL}, s{T3}, 4682', f's_lshr_b32 s{sFL}, s{sFL}, 16', f's_lshl2_add_u32 s{sFL}, s{sR}, s{sFL}',
           f's_lshl_b32 s{sFL}, s{sFL}, 7', f's_add_u32 s{sFL}, s{sFL}, {FH}', [f's_add_u32 s{sM1}, s22, s{sFL}', f's_addc_u32 s{sM1+1}, s23, 0'],
           f's_lshl_b32 s{T3}, s{T3}, 10', f's_mul_i32 s{sST}, s{sR}, {2*TH_BYTES}', f's_add_u32 s{sST}, s{sST}, s{T3}',
           f's_lshr_b32 s{T3}, s{sTH}, 1', f's_lshl2_add_u32 s{sFH}, s{T3}, s{sW}', f's_lshl_b32 s{sFH}, s{sFH}, 7', f's_add_u32 s{sFH}, s{sFH}, {FH}',
           [f's_add_u32 s{sFH}, s22, s{sFH}', f's_addc_u32 s{sFH+1}, s23, 0'],
           f's_mul_i32 s{T3}, s{T3}, 158', f's_add_u32 s{sNO}, s{T3}, {157-14}', f's_min_u32 s{sNO}, s{sNO}, {2047-14}', f's_mul_i32 s{sNO}, s{sNO}, 580', f's_lshr_b32 s{sNO}, s{sNO}, 16',
           f's_max_u32 s{T3}, s{T3}, 14', f's_sub_u32 s{T3}, s{T3}, 14', f's_mul_i32 s{T3}, s{T3}, 580', f's_lshr_b32 s{T3}, s{T3}, 16',
           f's_sub_u32 s{sNO}, s{sNO}, s{T3}', f's_lshl2_add_u32 s{sNO}, s{sNO}, 4',
           f's_mul_i32 s{sJ}, s{sTH}, {TH_BYTES}', f's_mul_i32 s{T3}, s{sW}, {14*1024}', f's_add_u32 s{sJ}, s{sJ}, s{T3}',
           f's_mul_i32 s{T3}, s{sW}, {10*1024}', f's_sub_u32 s{sWO}, {56*1024}, s{T3}']
    keep_ptrs(a); em(a, bg[:OPT['nbg']])
    bgs = Stream(items(bg[OPT['nbg']:]))
    left = [OPT['npro'] - 9]
    def more():
        if left[0] and OPT['zi'] < 99: S_.flush(dma, 1); left[0] -= 1
    stats_do(a, more)
    if OPT['tc'] < 0: a(cert_load(ZD + 5), tag='cert')
    S_.flush(dma, left[0])

    tiles = [[(T, 0) for T in range(5)], [(4, 1), (0, 1), (1, 1), (2, 1), (3, 1)]]
    def bread(g, q, k, sl, n):
        T, h = tiles[g][q]
        return f'ds_read_b128 {A(BF + 8*sl + 4*n, 4)}, v{(XB if (T, h) == (4, 1) else XA) + (k & 1)} offset:{((k>>1)%3)*FXS + (10*h + T)*1024}'
    def areads(m):
        return [f'ds_read_b64_tr_b16 {A(AF + 16*(m%3) + 8*mat + 4*uu + 2*jj, 2)}, v{WA + uu} offset:{(m&3)*16384 + jj*4096 + mat*1024}'
                for mat in range(2) for uu in range(2) for jj in range(2)]
    acc = lambda T, h: ACC + 16 * (2 * T + h)
    def mfma(g, q, c, k, sl, n, first):
        dd = V(acc(*tiles[g][q]) + 4 * c, 4)
        return f'{MF} {dd}, {A(AF + 16*(k%3) + 4*c, 4)}, {A(BF + 8*sl + 4*n, 4)}, {0 if first else dd}'
    stamp(a, 'pre')
    a('@wait vm=x0,w0 lg=*\ns_barrier')
    stamp(a, 'b0')
    z = ZD + 6
    src = [f's_mul_i32 s{T0}, s{sR}, 79', f'v_add_u32 v{z}, s{T0}, v0', f'v_min_u32 v{z+1}, 15, v0', f'v_add3_u32 v{z+1}, v{z+1}, s{T0}, 64']
    src += stats_src(z, z + 2) + stats_src(z + 1, z + 2)
    src += [f's_and_b32 s{T0}, s{sW}, 1', f's_lshr_b32 s{T2}, s{sW}, 1', f's_lshl1_add_u32 s{T0}, s{T0}, s{T2}', f's_lshl_b32 s{T1}, s{T0}, 5',
            f's_add_u32 s{T1}, s{T1}, {STATS}', f's_lshl_b32 s{T0}, s{T0}, 9', f's_add_u32 s{T0}, s{T0}, {FPAR}', f'v_lshl_add_u32 v{z+2}, v0, 2, s{T0}']
    sy = sync_stream('Lf', G, OPT['tc'], src, [f'buffer_load_dword v{z+3+i}, v{z+i}, s[{SH}:{SH+3}], s{T1} offen sc1' for i in range(2)], [z + 3, z + 4],
                     [f'ds_write_b32 v{z+2}, v{z+3+i} offset:{256*i}' for i in range(2)], OPT['tl'], OPT['tl'] + OPT['tk'])
    pb = (OPT['tl'] + OPT['tk'] + 2) // 2
    par = []
    for T in range(5):
        for h in (1, 0):
            par.append(Item(f'ds_read2_b32 {V(PR + 4*(2*T + h), 2)}, v{PA} offset0:{16*T + 8*h} offset1:{128 + 16*T + 8*h}', t0=B(pb), tag='pr', name='pr' if (T, h) == (4, 0) else None))
    par.append(Item('@wait lg=pr', after={'pr': 6}))
    for T in range(5):
        for h in (1, 0):
            P = PR + 4 * (2 * T + h)
            par += items([f'v_mul_f32 v{P+2}, {hx(f2u(-LOG2E))}, v{P+1}', f'v_mul_f32 v{P+1}, v{P+1}, v{P+1}', f'v_rcp_f32 v{P+1}, v{P+1}'])
    par += [Item(f'v_mov_b32_dpp v{CS+k}, v{acc(4, 1)+k} row_newbcast:15 row_mask:0xf bank_mask:0xf', t0=25*G + 12) for k in range(16)]
    pars = Stream(par)
    def ck23(): assert sy.done() and bgs.done()
    gemm1(a, S_, G, 5, 4, OPT['fd'], OPT['fm'], areads, bread, mfma, dma, [bgs, sy, pars, trs], {pb: ck23}, {OPT['rs']: steady, 19: late}, True)
    assert not p1
    ntr = sum(f't{k}' in S_.when for k in range(18))
    print('end of gemm: par left', pars.left(), 'groups', len(kslot), 'left in group', sum(x.paced for x in dma.items[dma.i:]), 'read', ntr, [S_.when.get(f'k{k}', 0) // G for k in range(18)], file=sys.stderr)
    NT = max(NG - 9, ntr + (trs.i % 9 > 0)); trs.items = trs.items[:9 * NT]; st8['lag'] = OPT['elag']
    S_.flush(pars)
    stamp(a, 'g1')
    a.raw(';EPI')
    l0 = len(a.lines)
    dma.rate = OPT['erate']
    for it in trs.items[trs.i:]:
        for k in it.after: it.after[k] = OPT['elag']
    def post(f): return [f'@wait vm=h{f}', f's_add_u32 s{T3}, s{sFL}, {f*FST}', f'buffer_atomic_add v{FV}, v1, s[{SH}:{SH+3}], s{T3} offen sc1']
    ACC2, HB, NHB = 176, 96, OPT['nhb']
    XO, XR, WRA, RDA, t = 22, 28, 38, 46, 48
    LEAD = NHB - 2
    nO = OPT['nO']
    hl = [(T, kk) for T in range(nO) for kk in range(14)] + [(T, kk) for T in range(nO) for kk in range(14, 18)] + [(T, kk) for T in range(nO, 5) for kk in range(18)]
    if OPT['nA']:
        mv = [(nO, kk) for kk in range(OPT['nA'])]
        hl = hl[:14*nO] + mv + [x for x in hl[14*nO:] if x not in mv]
    if OPT['xo']: hl = [x for x in hl if x[1] not in (15, 16)]
    HA = 88
    def hload(i, ha=HA):
        T, kk = hl[i]
        if kk < 14: return f'buffer_load_dwordx4 {V(HB + 4*(i % NHB), 4)}, v{ha+T}, s[{SH}:{SH+3}], s{sRT+kk} offen sc1'
        if OPT['roto']: return f'buffer_load_dwordx4 {V(HB + 4*(i % NHB), 4)}, v{ha+T}, s[{SH}:{SH+3}], s{SG+kk-14} offen sc1'
        return f'buffer_load_dwordx4 {V(HB + 4*(i % NHB), 4)}, v{ha+T}, s[{SH}:{SH+3}], s{sWO} offen offset:{(kk-14)*1024} sc1'
    for T in range(5):
        stamp(a, f'T{T}')
        for h in (1, 0):
            P = PR + 4 * (2 * T + h); dd = acc(T, h); OO = O + 4 * h
            ops = []
            for k in range(0, 16, 2): ops.append(f'v_pk_fma_f32 {V(dd+k, 2)}, {V(CS+k, 2)}, {V(P, 2)}, {V(dd+k, 2)} op_sel_hi:[1,0,1]')
            for k in range(0, 8, 2): ops.append(f'v_pk_mul_f32 {V(E+k, 2)}, {V(dd+k, 2)}, {V(P+2, 2)} op_sel_hi:[1,0]')
            for k in range(8): ops.append(f'v_exp_f32 v{E+k}, v{E+k}')
            for k in range(0, 8, 2): ops.append(f'v_pk_mul_f32 {V(dd+k, 2)}, {V(dd+k, 2)}, {V(dd+8+k, 2)}')
            for k in range(0, 8, 2): ops.append(f'v_pk_fma_f32 {V(E+k, 2)}, {V(E+k, 2)}, {V(P, 2)}, {V(P, 2)} op_sel:[0,1,1] op_sel_hi:[1,1,1]')
            for k in range(8): ops.append(f'v_rcp_f32 v{E+k}, v{E+k}')
            for k in range(0, 8, 2): ops.append(f'v_pk_mul_f32 {V(dd+k, 2)}, {V(dd+k, 2)}, {V(E+k, 2)}')
            ops.append(f's_add_u32 s{T2}, s{sST}, {h*TH_BYTES + T*72*1024}')
            for k in range(4): ops.append(f'v_cvt_pk_bf16_f32 v{OO+k}, v{dd+2*k}, v{dd+2*k+1}')
            n2 = 2 * T + 1 - h
            if n2 == OPT['pi']:
                while len(kslot) < NG or not trs.done():
                    S_.flush(dma); S_.flush(trs)
                a('@wait lg=*'); a(poll_issue(0))
            if n2 == 9 and OPT['pe']:
                S_.flush(dma); a(f'v_add_u32 v168, s{sJ}, v{HV}')
                em(a, poll_check('Lf_p0', 0, 14)); stamp(a, 'p0')
                dma = Stream([Item(hload(i, 168), tag=f'g{i}') for i in range(LEAD)])
            for x in ops:
                a(x)
                if x.startswith(TRANS): S_.gap([dma, trs], 2)
            if n2 == 9: S_.flush(dma)
            a(f'buffer_store_dwordx4 {V(OO, 4)}, v{HV}, s[{SH}:{SH+3}], s{T2} offen sc1', tag=f'h{T}')
            if n2 in (4, 6, 8): em(a, post(n2 // 2 - 2)); stamp(a, f'F{n2//2-2}')
    if OPT['x']:
        pats = dict(s='buffer_store', t='ds_read_b64_tr', d='buffer_load', v='v_')
        a.lines[l0:] = [l for l in a.lines[l0:] if not any(l.strip().startswith(pats[c]) for c in OPT['x'])]
    stamp(a, 'e1')
    fin = f's_atomic_add s{sONE}, s[{sM1}:{sM1+1}], {3*FST}'
    early = ['s_waitcnt vmcnt(0)', fin, 's_waitcnt lgkmcnt(0)', f's_mov_b32 s{sONE}, 0'] if OPT['early'] else []
    a(f'v_add_u32 v{HA}, s{sJ}, v{HV}')
    if not OPT['pe']:
        em(a, poll_check('Lf_p0', 0, 14, early))
        stamp(a, 'p0')
    a(poll_issue(1))
    NR = min(NG, 14) if OPT['dt'] else NG
    rest = Stream(sum((w2r(kk, 0) for kk in range(NT, NR)), []))
    for i in range(0 if OPT['pe'] else LEAD):
        a(hload(i), tag=f'g{i}'); S_.gap([rest], 4, ds=4)
    S_.flush(rest)
    free = [k for k in range(9) if k not in kslot[NR:]]
    wod = []
    for kk in range(NG, 14 if OPT['xo'] else 18):
        kslot.append(free.pop(0)); wod += [x for x in w2d(kk) if not x.body[0].startswith('@wait')]
    wod = Stream(wod, rate=OPT['wrate'], burst=0.1)
    wor = Stream(sum((w2r(kk, 4 * LEAD + 8 if kk >= NG else 0) for kk in range(NR, 14 if OPT['xo'] else 18)), []))
    stamp(a, 'tr')
    bg2 = [f'v_add_u32 v{HA+T}, {T*72*1024}, v{HA}' for T in range(1, 5)]
    bg2 += f"""s_lshr_b32 s{T0}, s{sTH}, 1
s_mul_i32 s{T0}, s{T0}, 158
s_and_b32 s{T1}, s{sTH}, 1
s_and_b32 s{T2}, s{sW}, 1
s_lshl1_add_u32 s{T1}, s{T1}, s{T2}
s_lshr_b32 s{T3}, s{sW}, 1
s_lshl3_add_u32 s{T1}, s{T1}, s{T3}
v_lshl_add_u32 v{t}, v{XL+1}, 1, s{T1}
v_add_u32 v{t+1}, s{T0}, v{t}
v_mul_u32_u24 v{t+1}, 896, v{t+1}
v_and_b32 v{t+3}, 15, v0
v_lshlrev_b32 v{t+2}, 3, v{t+3}
s_lshl_b32 s{T0}, s{sCT}, 7
v_add3_u32 v{XO}, v{t+1}, v{t+2}, s{T0}""".split('\n')
    bg2 += [f'v_add_u32 v{XO+T}, {32*896*T}, v{XO}' for T in range(1, 5)]
    bg2 += f"""v_cmp_gt_u32 vcc, 30, v{t}
v_mov_b32 v{t+1}, {OOB}
v_and_b32 v{t+2}, 7, v0
v_cndmask_b32 v{XO+4}, v{t+1}, v{XO+4}, vcc
v_xor_b32 v{t+1}, v{XL+1}, v{t+2}
v_lshlrev_b32 v{t+1}, 4, v{t+1}
v_lshl_add_u32 v{t}, v{t+3}, 8, v{t+1}
s_lshl_b32 s{T0}, s{sW}, 12
v_add_u32 v{WRA}, s{T0}, v{t}""".split('\n')
    bg2 += [f'v_xor_b32 v{WRA+c}, {64*c}, v{WRA}' for c in range(1, 4)] + [f'v_add_u32 v{WRA+4+c}, 0x10000, v{WRA+c}' for c in range(4)]
    bg2 += f"""s_lshl_b32 s{T0}, s{sW}, 2
v_add_u32 v{t}, s{T0}, v{XL+1}
v_and_b32 v{t+1}, 7, v{t}
v_xor_b32 v{t+1}, v{t+1}, v{t+3}
v_lshlrev_b32 v{t+1}, 4, v{t+1}
v_lshl_add_u32 v{RDA}, v{t}, 8, v{t+1}
v_add_u32 v{RDA+1}, 0x10000, v{RDA}""".split('\n')
    if OPT['roto']:
        for k in range(4): bg2 += [f's_add_u32 s{T0}, s2, {k}', f's_and_b32 s{T0}, s{T0}, 3', f's_lshl_b32 s{T0}, s{T0}, 10', f's_add_u32 s{SG+k}, s{T0}, s{sWO}']
    em(a, bg2[:1]); bg2s = Stream(items(bg2[1:])); bg2s.items[-1].name = 'bg2'
    em(a, poll_check('Lf_p1', 1, 14, early))
    stamp(a, 'p1')
    pre = {}
    if OPT['fp']: pre[OPT['fp']] = ['@wait vm=h4', fin]
    else: a('@wait vm=h4'); stamp(a, 'e2'); a(fin)
    def guard(name, f, want, first):
        stp = first - LEAD - 1
        pre.setdefault(stp - 8, []).append(poll_issue(f)); pre.setdefault(stp, []).extend(poll_check(name, f, want))
        return stp
    guard('Lf_p2', 2, 14, hl.index((2, 0)))
    i3, iO = hl.index((3, 0)), hl.index((0, 14))
    if i3 > iO: i3 = iO - 9
    lastg = max(guard('Lf_p3', 3, 14, i3), 0 if OPT['nochk'] else guard('Lf_p4', 4, f's{sNO}', iO + OPT['ol']))
    first_done = hl.index((0, 17))
    assert lastg < first_done
    pre.setdefault(first_done, []).append('s_barrier')
    t_base = S_.t
    xr = Stream([Item(f'buffer_load_dwordx2 {V(XR + 2*T, 2)}, v{XO+T}, s[{SX}:{SX+3}], 0 offen', tag=f'xr{T}', t0=t_base + 4*(24 + 3*T), after={'bg2': 0}) for T in range(5)])
    RD = (144, 160); U = 48
    def wr(T): return [Item(f'ds_write_b128 v{WRA + c + (4 if T == 4 else 0)}, {V(ACC2 + 16*T + 4*c, 4)} offset:{(T & 3)*16384}', tag=f'pw{T}', paced=True, name=f'pw{T}' if c == 3 else None) for c in range(4)]
    def rdp(T): return [Item(f'ds_read_b128 {V(RD[T&1] + 4*w, 4)}, v{RDA + (T == 4)} offset:{(T & 3)*16384 + w*4096}', tag=f'p{T}', name=f'p{T}' if w == 3 else None) for w in range(4)]
    def unp(T):
        x = XR + 2 * T
        return [f'@wait vm=xr{T}', f'v_lshlrev_b32 v{U}, 16, v{x}', f'v_and_b32 v{U+1}, 0xffff0000, v{x}', f'v_lshlrev_b32 v{U+2}, 16, v{x+1}', f'v_and_b32 v{U+3}, 0xffff0000, v{x+1}']
    def fin2(T, pk):
        x = XR + 2 * T; b = RD[T & 1]
        if pk: o = [f'v_pk_add_f32 {V(U+k, 2)}, {V(U+k, 2)}, {V(b+4*w+k, 2)}' for w in range(4) for k in (0, 2)]
        else: o = [f'v_add_f32 v{U+k}, v{U+k}, v{b+4*w+k}' for w in range(4) for k in range(4)]
        return o + [f'v_cvt_pk_bf16_f32 v{x}, v{U}, v{U+1}', f'v_cvt_pk_bf16_f32 v{x+1}, v{U+2}, v{U+3}', f'buffer_store_dwordx2 {V(x, 2)}, v{XO+T}, s[{SOUT}:{SOUT+3}], 0 offen {OPT["ofl" if pk else "of"].replace("+", " ")}']
    assert NHB <= 12
    wrs = Stream([], rate=0.27, burst=0.1); red = Stream([]); outs = Stream([])
    shadow = [T for T in range(5) if len(hl) - hl.index((T, 17)) > 14]
    CH = 2 if OPT['chain'] else 1
    nxt = [LEAD]
    ends = list(range(CH - 1, len(hl) - OPT['lc'], CH)) + [len(hl) - 1]
    for i in ends:
        T, kk = hl[i]
        if i == len(hl) - 1:
            CH = OPT['lc']
            w_ = wr(T)
            for c in range(4): w_[c].t0 = S_.t + CH * (c + 1) + 3
            wrs.items += w_
        a(f'@wait vm=g{i}')
        for q in range(i - CH + 1, i + 1): stamp(a, f'h{q}')
        fx = []
        for q in range(i - CH + 1, i + 1):
            due = [x for x in range(nxt[0], min(q + LEAD + 1, len(hl))) if x < iO or q + LEAD >= iO + OPT['ol']][:2]
            fx += [Item(hload(x), tag=f'g{x}', t0=S_.t + 4 * (q - i + CH - 1) + 2 * n_) for n_, x in enumerate(due)]
            nxt[0] += len(due)
            fx += items(pre.get(q, []))
        fx = Stream(fx)
        for c in range(4):
            for q in (range(i - CH + 1, i + 1) if c % 2 == 0 or kk < 2 else range(i, i - CH, -1)):
                r, k = wfrag(hl[q][1], c)
                if OPT['xo'] and hl[q][1] >= 14 and (c >> 1) != (q & 1): continue
                dd = V(ACC2 + 16 * T + 4 * c, 4)
                a(f'{MF} {dd}, {V(r, 4, k)}, {V(HB + 4*(q % NHB), 4)}, {dd if hl[q][1] else 0}')
                S_.gap([fx, wod, wrs, xr, wor, bg2s, outs, red], 1 if (c, q) == (3, i if kk < 2 else i - CH + 1) else 2)
        S_.flush(fx)
        if i + LEAD + 4 >= iO: assert bg2s.done() and wor.done() and not OPT['nochk'] or not wor.items, wor.left()
        if kk == 17 and i < len(hl) - 1:
            w_ = wr(T); w_[0].t0 = S_.t + 1
            wrs.items += w_
            grp = [T - 1, T] if OPT['pair'] and T & 1 else ([] if OPT['pair'] and T + 1 in shadow else [T])
            if T in shadow and grp:
                red.items += [Item([f'@wait lg=pw{T}', 's_barrier'], after={f'pw{T}': 6}, t0=S_.t + OPT['rt'])] + sum((rdp(x) for x in grp), [])
                for x in grp:
                    red.items += items(unp(x)) + [Item(f'@wait lg=p{x}', after={f'p{x}': 5})] + items(fin2(x, False)[:-1])
                    red.items[-1].name = f'r{x}'
                    outs.items.append(Item(fin2(x, False)[-1], after={f'r{x}': 1}, t0=t_base + OPT['ost'] * 4))
    todo = [T for T in range(5) if T not in shadow]
    if red.done():
        S_.flush(outs); em(a, unp(todo[0])); S_.flush(wrs)
    else:
        S_.flush(wrs); S_.flush(red); S_.flush(outs); em(a, unp(todo[0]))
    a('s_waitcnt lgkmcnt(0)\ns_barrier')
    stamp(a, 'red')
    S_.flush(Stream(rdp(todo[0])))
    for k, T in enumerate(todo):
        if k + 1 < len(todo): S_.flush(Stream(rdp(todo[k + 1])))
        if k: em(a, unp(T))
        a(f'@wait lg=p{T}')
        em(a, fin2(T, True))

AXS = 130 * 128; AW0 = 3 * AXS; APAR = AW0 + 4 * 24576
def attn(a, split):
    XV, WV, XA, XB, WA = 2, 4, 7, 9, 11
    PA, RA, CB = 15, 16, 17
    OA = 20
    MK = 28
    CV = 36
    PR = 38
    t = 56
    Q, K, V0, V1 = 64, 128, 192, 224
    BF = 0; AF = 32
    a(f's_mul_i32 s{sR}, s{T1}, 9\ns_add_u32 s{sR}, s{sR}, s{T0}\ns_sub_u32 s{sR}, s{sR}, 23')
    rot_init(a, OPT['rota'], 2688)
    a(f'v_lshl_add_u32 v{t}, v{XL+1}, 1, s{sWO}\nv_lshlrev_b32 v{t}, 1, v{t}\nv_sub_u32 v{t+1}, v0, v{t}\nv_and_b32 v{t+1}, 15, v{t+1}')
    a(f'v_cmp_gt_u32 vcc, 14, v{t+1}' if OPT['zpad'] else f'v_min_u32 v{t+1}, 13, v{t+1}')
    a(f's_mul_i32 s{T0}, s{sW}, 48\ns_add_u32 s{T0}, s{T0}, s{sC}\ns_mulk_i32 s{T0}, 224')
    a(f'v_mul_u32_u24 v{t+2}, 168, v{XL+1}\nv_add_lshl_u32 v{t+2}, v{t+1}, v{t+2}, 4\nv_add_u32 v{WV+2}, s{T0}, v{t+2}')
    if OPT['zpad']: a(f'v_cndmask_b32 v{WV+2}, v{ZT+3}, v{WV+2}, vcc')
    a(f'v_add_u32 v{WV+1}, 128, v{WV+2}\nv_add_u32 v{WV}, 256, v{WV+2}')
    a(f's_mul_i32 s{sMW}, s{sW}, 6144\ns_add_u32 s{sMW}, s{sMW}, {AW0}')
    a(f's_mov_b32 s{SG+2}, {448*2688 + 256}\ns_mov_b32 s{SG+3}, s{SX+3}')
    a('s_waitcnt lgkmcnt(0)')
    stamp(a, 'ka')
    em(a, srd_p(SX, 4)); stats_load(a)
    def help_w():
        r0 = OPT['aw']
        if OPT['rotf'] == 'h3':
            a(f's_lshr_b32 s{T0}, s2, 3\ns_lshl1_add_u32 s{T0}, s{T0}, s{sWO}\ns_mul_i32 s{T2}, s{T1}, 192\ns_add_u32 s{T0}, s{T0}, s{T2}\ns_add_u32 s{T0}, s{T0}, {r0 - 46}')
            a(f'v_mul_u32_u24 v18, 37, v0\nv_lshrrev_b32 v18, 8, v18\nv_mul_u32_u24 v36, 7, v18\nv_sub_u32 v36, v0, v36\nv_mad_u32_u24 v18, v18, 18, s{T0}')
            a(f's_lshl_b32 s{T2}, s{T1}, 8\ns_add_u32 s{T2}, s{T2}, 191\ns_mul_i32 s{T0}, s{sC}, 7\nv_min_u32 v18, s{T2}, v18\nv_mad_u32_u24 v18, v18, 28, v36')
            a(f's_cmp_eq_u32 s{sJ}, 0\ns_cselect_b64 s[{sM1}:{sM1+1}], s[12:13], s[14:15]\nv_add_lshl_u32 v18, v18, s{T0}, 7\nglobal_load_dword v19, v18, s[{sM1}:{sM1+1}]')
            return
        a(f's_lshr_b32 s{T0}, s2, 3\ns_sub_u32 s{T0}, s{T0}, 23\ns_lshl1_add_u32 s{T0}, s{T0}, s{sWO}\ns_lshl1_add_u32 s{T0}, s{T0}, s{T1}\ns_add_u32 s{T0}, s{T0}, {r0}')
        a(f'v_mul_u32_u24 v18, 37, v0\nv_lshrrev_b32 v18, 8, v18\nv_mul_u32_u24 v36, 7, v18\nv_sub_u32 v36, v0, v36\nv_mad_u32_u24 v18, v18, 36, s{T0}')
        a(f's_mul_i32 s{T0}, s{sC}, 7\nv_min_u32 v18, 447, v18\nv_mad_u32_u24 v18, v18, 28, v36\ns_cmp_eq_u32 s{sJ}, 0\ns_cselect_b64 s[{sM1}:{sM1+1}], s[12:13], s[14:15]')
        if OPT['a6']:
            a(f's_add_u32 s{T2}, s{sC}, 1\ns_bitcmp0_b32 s{T2}, 1\ns_cselect_b32 s{T2}, -1, 0\ns_and_b32 s{T0}, s{sC}, 2\ns_mul_i32 s{T0}, s{T0}, 7')
            a(f'v_add_lshl_u32 v18, v18, s{T0}, 7\nv_and_b32 v18, s{T2}, v18\nglobal_load_dword v19, v18, s[{sM1}:{sM1+1}]\nglobal_load_dword v19, v18, s[{sM1}:{sM1+1}] offset:896')
            return
        a(f'v_add_lshl_u32 v18, v18, s{T0}, 7\nglobal_load_dword v19, v18, s[{sM1}:{sM1+1}]')
    def help_d():
        if OPT['a6']:
            a(f's_sub_u32 s{T0}, s2, 184\ns_lshr_b32 s{T0}, s{T0}, 1\ns_lshl2_add_u32 s{T0}, s{T0}, s{sW}\ns_mul_i32 s{T2}, s{T0}, 88\ns_mul_i32 s{T0}, s{T0}, 22')
            a(f'v_min_u32 v18, 43, v0\nv_lshl_add_u32 v18, v18, 1, s{T2}\ns_add_u32 s{T2}, s{sC}, 1\ns_bfe_i32 s{T2}, s{T2}, 0x10001\nv_min_u32 v18, 12542, v18\nv_lshlrev_b32 v18, 7, v18')
            a(f'v_bfi_b32 v18, s{T2}, 0, v18\nglobal_load_dword v19, v18, s[16:17]\nglobal_load_dword v19, v18, s[16:17] offset:128')
            a(f'v_min_u32 v18, 21, v0\nv_add_u32 v18, s{T0}, v18\nv_min_u32 v18, 3135, v18\nv_lshlrev_b32 v18, 7, v18\nv_bfi_b32 v18, s{T2}, 0, v18\nglobal_load_dword v19, v18, s[8:9]')
            return
        a(f's_sub_u32 s{T0}, s2, 184\ns_lshl2_add_u32 s{T0}, s{T0}, s{sW}\ns_mul_i32 s{T2}, s{T0}, 44\ns_mul_i32 s{T0}, s{T0}, 11')
        a(f'v_min_u32 v18, 43, v0\nv_add_u32 v18, s{T2}, v18\nv_min_u32 v18, 12543, v18\nv_lshlrev_b32 v18, 7, v18\nglobal_load_dword v19, v18, s[16:17]')
        a(f'v_min_u32 v18, 10, v0\nv_add_u32 v18, s{T0}, v18\nv_min_u32 v18, 3135, v18\nv_lshlrev_b32 v18, 7, v18\nglobal_load_dword v19, v18, s[8:9]')
    if OPT['aw'] and not OPT['awp']: split(); help_w()
    if OPT['ad'] == 1: help_d()
    em(a, srd_p(SG, 6, back=256))
    G = 24
    B = lambda m: bar_gap(G, 4, 6, OPT['ad_'], OPT['am'], m)
    def xd(j):
        o = items(x_off(OPT['rota'], j))
        for i in range(4):
            if i % 2 == 0: o.append(Item(f's_add_u32 m0, s{sMX}, {(j%3)*AXS + (i>>1)*(2048 - 896)}'))
            o.append(Item(f'buffer_load_dwordx4 v{XV + (i&1)}, s[{SX}:{SX+3}], s{sXJ} offen offset:{(i&1)*1024 + (i>>1)*896} lds', tag=f'x{j}', t0=B(x_bar(OPT['am'], j)), paced=True))
        return o
    def wd(h):
        o = []
        for i in range(2):
            o.append(Item(f's_add_u32 m0, s{sMW}, {(h%4)*24576 + i*3072}')); o[-1].brk = False
            o += items(w_off(OPT['rota'], h, i, 2688, 0))
            o += [Item(f'buffer_load_dwordx4 v{WV+m}, s[{SG}:{SG+3}], s{sSO} offen offset:{m*1024} lds', tag=f'w{h}', t0=B(h - 4), paced=True) for m in range(3)]
        return o
    d = wd(0) + xd(0) + wd(1)
    for h in range(2, 14):
        if h in (2, 4): d += xd(h // 2)
        for j in range(3, 7):
            if x_bar(OPT['am'], j) == h - 4: d += xd(j)
        d += wd(h)
    d = add_touches(d, 36, 18, 19)
    if OPT['ap']:
        k0 = OPT['ap']; n = (14 - k0) * 224; per = -(-n // 9)
        d += items([f's_and_b32 s79, s2, 7', f's_mul_i32 s79, s79, 7', f's_lshr_b32 s79, s79, 2', f's_add_u32 s79, s79, {k0}', f's_mul_i32 s79, s79, 224',
                    f's_lshr_b32 s{sPL}, s2, 3', f's_sub_u32 s{sPL}, s{sPL}, 23', f's_mul_i32 s{sSPIN}, s{sPL}, {per}', f's_add_u32 s79, s79, s{sSPIN}', f's_mul_i32 s{sSPIN}, s{sW}, 3136'])
        for k in range(0, per, 64):
            d += items([f'v_min_u32 v18, {min(63, per - 1 - k)}, v0', f'v_add_u32 v18, s79, v18', f'v_subrev_u32 v36, 3136, v18', 'v_min_u32 v18, v18, v36', f'v_subrev_u32 v36, 3136, v18', 'v_min_u32 v18, v18, v36',
                        f'v_add_lshl_u32 v18, v18, s{sSPIN}, 7', 's_add_u32 s79, s79, 64']) + [Item('global_load_dword v19, v18, s[0:1]', paced=True)]
        d += items([f's_mul_i32 s79, s{sPL}, 88', f's_mul_i32 s{sSPIN}, s{sW}, 784'])
        for k in (0, 44):
            d += items([f'v_min_u32 v18, 43, v0', f'v_add3_u32 v18, v18, s79, {k}', 'v_min_u32 v18, 783, v18', f'v_add_lshl_u32 v18, v18, s{sSPIN}, 7']) + [Item('global_load_dword v19, v18, s[18:19]', paced=True, name='apd')]
    dma = Stream(d, rate=OPT['arate0'])
    def steady(): dma.rate = OPT['arate']
    S_ = Sched(a)
    S_.flush(dma, 6)
    if not OPT['aw'] or OPT['awp']: split()
    stamp(a, 'i7')
    a(f's_mul_i32 s{T2}, s{sR}, 113\ns_lshl4_add_u32 s{T2}, s{sW}, s{T2}\ns_mul_i32 s{T2}, s{T2}, 896\ns_lshl_b32 s{sMX}, s{sW}, 12')
    a(f'v_add_u32 v{XV}, s{T2}, v{XL}\nv_add_u32 v{XV+1}, {64*896 - 1024}, v{XV}')
    S_.flush(dma, 2)
    em(a, srd(SH, 22, WS_USED) + srd(SDB, 20, 256)); keep_ptrs(a)
    x_read_addr(a, XA, XB, t, 4096)
    for st in range(3): a(f'ds_write_b128 v{t}, v[{t+2}:{t+5}] offset:{st*AXS + 129*128}')
    u = 20
    a(f'v_bfe_u32 v{u}, v0, 4, 1\nv_bfe_u32 v{u+1}, v0, 2, 2\nv_lshrrev_b32 v{u+2}, 5, v0\nv_and_b32 v{u+3}, 3, v0')
    a(f'v_lshl_add_u32 v{u+4}, v{u+1}, 1, v{u}\nv_lshl_add_u32 v{u+4}, v{u+4}, 2, v{u+3}\ns_mul_i32 s{T0}, s{sW}, 56\nv_lshl_add_u32 v{u+4}, v{u+4}, 3, s{T0}')
    a(f'v_add_u32 v{u+5}, 32, v{u+4}')
    if OPT['zpad']: a(f's_sub_u32 s{T0}, 168, s{T0}\nv_cmp_eq_u32 vcc, 3, v{u+3}\nv_add_u32 v{u+6}, s{T0}, v{u+5}\nv_cndmask_b32 v{u+5}, v{u+5}, v{u+6}, vcc')
    a(f'v_and_b32 v{u+4}, 0xff, v{u+4}\nv_and_b32 v{u+5}, 0xff, v{u+5}')
    a(f'v_mul_u32_u24 v{u}, 12288, v{u}\nv_mul_u32_u24 v{u+2}, 3072, v{u+2}\nv_lshl_add_u32 v{u}, v{u+1}, 8, v{u}\nv_add_u32 v{u}, v{u}, v{u+2}\nv_add_u32 v{u}, {AW0}, v{u}')
    a(f'v_add_u32 v{WA}, v{u}, v{u+4}\nv_add_u32 v{WA+1}, v{u}, v{u+5}\nv_add_u32 v{WA+2}, 49152, v{WA}\nv_add_u32 v{WA+3}, 49152, v{WA+1}')
    left = [OPT['anpro'] - 8]
    def more():
        if left[0] and OPT['zi'] < 99: S_.flush(dma, 1); left[0] -= 1
    if not OPT['azs']: stats_do(a, more)
    else: a.raw(';HOP')
    S_.flush(dma, left[0])
    if OPT['ad'] == 2: help_d()
    if OPT['ad'] > 2:
        rec = []; a_ = a; a = lambda t: rec.extend(t.split('\n')); help_d(); a = a_
        k = [i for i, x in enumerate(dma.items) if x.paced][OPT['ad'] - 1] + 1
        dma.items[k:k] = items([x.replace(f's{T0}', 's79').replace(f's{T2}', f's{sPL}') for x in rec])

    tiles = [[0, 1, 2, 3], [7, 4, 5, 6]]
    def bread(g, q, k, sl, n):
        T = tiles[g][q]
        return f'ds_read_b128 {A(BF + 8*sl + 4*n, 4)}, v{(XB if T == 7 else XA) + (k & 1)} offset:{((k>>1)%3)*AXS + (8*(T&1) + (T>>1))*1024}'
    def areads(h):
        o = []
        for mat in range(3):
            for ct in range(2):
                for jj in range(2):
                    off = (h % 4) * 24576 + jj * 6144 + mat * 1024
                    o.append(f'ds_read_b64_tr_b16 {A(AF + 24*(h%3) + 8*mat + 4*ct + 2*jj, 2)}, v{WA + ct + (2 if off >= 49152 else 0)} offset:{off % 49152}')
        return o
    def acc(T, c): return (Q + 8*T, Q + 8*T + 4, K + 8*T, K + 8*T + 4, V0 + 4*T, V1 + 4*T)[c]
    def mfma(g, q, c, k, sl, n, first):
        dd = V(acc(tiles[g][q], c), 4); w_, x_ = A(AF + 24*(k%3) + 4*c, 4), A(BF + 8*sl + 4*n, 4)
        return f'{MF} {dd}, {w_ if c < 4 else x_}, {x_ if c < 4 else w_}, {0 if first else dd}'
    stamp(a, 'pre')
    a('@wait vm=x0,w0 lg=*\ns_barrier')
    stamp(a, 'b0')
    if OPT['atc'] < 0: a(cert_load(27), tag='cert')
    bg = [f'v_and_b32 v{t}, 15, v0', f'v_lshlrev_b32 v{PA}, 2, v{t}', f'v_add_u32 v{PA}, {APAR}, v{PA}',
          f'v_lshlrev_b32 v{RA}, 4, v{XL+1}', f'v_add_u32 v{RA}, {APAR}, v{RA}', f'v_cmp_gt_u32 s[{sM1}:{sM1+1}], 48, v0',
          f'v_lshlrev_b32 v{t+1}, 2, v{XL+1}', f'v_sub_u32 v{t+1}, v{t}, v{t+1}', f'v_mov_b32 v{t+3}, {hx(f2u(-1e30))}']
    for i in range(8):
        bg += [f'v_add_u32 v{t+2}, {(16 if i < 4 else 0) - (i & 3)}, v{t+1}', f'v_cmp_gt_u32 s[{sM0}:{sM0+1}], 8, v{t+2}',
               f'v_cndmask_b32 v{MK+i}, v{t+3}, 0, s[{sM0}:{sM0+1}]']
    kA, kB, kC, kD = sTH, sCT, sJ, sWO
    bg += [f's_mul_i32 s{kD}, s{sR}, 113', f's_lshl2_add_u32 s{T3}, s{sC}, s{sW}', f's_add_u32 s{T3}, s{T3}, 56', f's_lshl_b32 s{sST}, s{T3}, 10',
           [f's_cmp_eq_u32 s{sR}, 0', f's_cselect_b32 s{T3}, 0, 14'], f's_mov_b32 s{kA}, 26547', f's_mov_b32 s{kB}, {TH_BYTES}', f's_mov_b32 s{kC}, {72*1024}',
           f'v_mov_b32 v{t+7}, {OOB}']
    for p in range(2):
        bg += [f'v_lshl_add_u32 v{t+1}, v0, 1, {p}', f'v_add_u32 v{t+2}, s{kD}, v{t+1}', f'v_mul_u32_u24 v{t+3}, s{kA}, v{t+2}', f'v_lshrrev_b32 v{t+3}, 22, v{t+3}',
               f'v_mul_u32_u24 v{t+4}, 158, v{t+3}', f'v_sub_u32 v{t+2}, v{t+2}, v{t+4}',
               f'v_bfe_u32 v{t+4}, v{t+2}, 4, 1', f'v_lshl_add_u32 v{t+3}, v{t+3}, 1, v{t+4}', f'v_mul_u32_u24 v{t+3}, s{kB}, v{t+3}',
               f'v_lshrrev_b32 v{t+4}, 5, v{t+2}', f'v_mad_u32_u24 v{t+3}, v{t+4}, s{kC}, v{t+3}',
               f'v_bfe_u32 v{t+4}, v{t+2}, 1, 3', f'v_lshl_add_u32 v{t+3}, v{t+4}, 4, v{t+3}', f'v_and_b32 v{t+4}, 1, v{t+2}', f'v_lshl_add_u32 v{OA+p}, v{t+4}, 7, v{t+3}',
               f'v_cmp_le_u32 s[{sM0}:{sM0+1}], s{T3}, v{t+1}', f'v_cndmask_b32 v{OA+p}, v{t+7}, v{OA+p}, s[{sM0}:{sM0+1}]']
    bg += [f'v_cmp_gt_u32 s[{sM0}:{sM0+1}], 63, v0', f'v_cndmask_b32 v{OA+1}, v{t+7}, v{OA+1}, s[{sM0}:{sM0+1}]']
    bg += [f's_add_u32 s{T3}, s{T3}, s{kD}', f's_mul_i32 s{T3}, s{T3}, 26547', f's_lshr_b32 s{T3}, s{T3}, 22', f's_add_u32 s{kD}, s{kD}, 126', f's_mul_i32 s{kD}, s{kD}, 26547',
           f's_lshr_b32 s{kD}, s{kD}, 22', f's_sub_u32 s{kD}, s{kD}, s{T3}', f'v_cmp_ge_u32 s[{sM0}:{sM0+1}], s{kD}, v0', f'v_lshlrev_b32 v{CB}, 9, v0',
           f's_lshl2_add_u32 s{T3}, s{T3}, s{sC}', f's_lshl_b32 s{T3}, s{T3}, 7', f's_add_u32 s{sFL}, s{T3}, {FH + 4*FST}',
           f'v_cndmask_b32 v{CB}, v{t+7}, v{CB}, s[{sM0}:{sM0+1}]']
    bgs = Stream(items(bg))
    z = ZD + 6
    src = [f's_and_b32 s{T0}, s{sW}, 1', f's_mul_i32 s{T1}, s{sR}, 113', f's_add_u32 s{T1}, s{T1}, s{T0}', f's_lshr_b32 s{T2}, s{T1}, 1', f'v_add_u32 v{z}, s{T2}, v0']
    src += stats_src(z, z + 1)
    src += [f's_and_b32 s{T1}, s{T1}, 1', f's_lshr_b32 s{T2}, s{sW}, 1', f's_lshl1_add_u32 s{T1}, s{T1}, s{T2}', f's_lshl_b32 s{T1}, s{T1}, 5',
            f's_add_u32 s{T1}, s{T1}, {STATS}', f's_lshl1_add_u32 s{T0}, s{T0}, s{T2}', f's_lshl_b32 s{T0}, s{T0}, 8', f's_add_u32 s{T0}, s{T0}, {APAR}',
            f'v_lshl_add_u32 v{z+1}, v0, 2, s{T0}']
    sy = sync_stream('La', G, OPT['atc'], src, [f'buffer_load_dword v{z+2}, v{z}, s[{SH}:{SH+3}], s{T1} offen sc1'], [z + 2], [f'ds_write_b32 v{z+1}, v{z+2}'], OPT['atl'], OPT['atl'] + 5, 27)
    par = [Item(f'ds_read2_b32 {V(PR + 2*T, 2)}, v{PA} offset0:{128*(T>>2) + 16*(T&3)} offset1:{64 + 128*(T>>2) + 16*(T&3)}', t0=B(12), tag='pr') for T in range(8)]
    CQ, CK = 2, 54
    par += [Item(f'v_mov_b32_dpp v{CK+k}, v{K+56+k} row_newbcast:15 row_mask:0xf bank_mask:0xf', t0=25*G + 16) for k in range(8)]
    for c, sv in enumerate((V0 + 31, V1 + 31)):
        par += items([f'v_mov_b32 v62, v{sv}', f'v_mov_b32 v63, v{sv}', 'v_permlane32_swap_b32 v62, v63', f'v_mov_b32 v{CV+c}, v63', f'v_permlane16_swap_b32 v63, v{CV+c}'])
    par += [Item(f'v_mov_b32_dpp v{CQ+k}, v{Q+56+k} row_newbcast:15 row_mask:0xf bank_mask:0xf', t0=27*G + 13) for k in range(8)]
    par[15].name = 'ck'
    pars = Stream(par)
    sh = [Item('@wait lg=pr', after={'ck': 0})]
    for q, T in enumerate(tiles[1] if OPT['ash'] else []):
        P = PR + 2 * T; t0 = 25 * G + 12 * (q + 1) + 3
        o = [f'v_fmac_f32 v{K+8*T+k}, v{CK+k}, v{P}' for k in range(8)] + [f'v_mul_f32 v{K+8*T+k}, v{K+8*T+k}, v{P+1}' for k in range(8)]
        sh += items(o, t0=t0); sh[-1].name = f'K{T}'
        if T != 7:
            sh += items([f'v_fmac_f32_dpp v{Q+8*T+k}, v{Q+56+k}, v{P} row_newbcast:15 row_mask:0xf bank_mask:0xf' for k in range(8)], t0=t0); sh[-1].name = f'Q{T}'
    shs = Stream(sh)
    hooks = {5: steady}
    if OPT['azs']:
        zb_ = min(m for m in range(14) if B(m) > OPT['azs'] * G + 12)
        def late_stats():
            n0 = len(a.lines); stats_do(a); a.lines.remove(';HOP') if a.lines.count(';HOP') > 1 else None
            a('@wait lg=*')
        hooks[OPT['azs']] = late_stats
        assert OPT['atc'] < 0
        sy.items[0].t0 = B(zb_)
    if OPT['adip']: hooks[OPT['adip']] = lambda: (steady() if OPT['adip'] == 5 else None, S_.flush(bgs))
    def ck25(): assert sy.done() and bgs.done() and dma.done()
    gemm1(a, S_, G, 4, 6, OPT['ad_'], OPT['am'], areads, bread, mfma, dma, [sy, pars, shs] + ([] if OPT['adip'] else [bgs]), {12: ck25}, hooks)
    while shs.i > 1 and not shs.done() and shs.items[shs.i - 1].name is None: S_.put(shs, shs.items[shs.i])
    print('shadow', [k for k in S_.when if k[0] in 'KQ'], file=sys.stderr)
    assert dma.done()
    S_.flush(pars)
    a('@wait lg=*')
    stamp(a, 'g1')
    a.raw(';EPI')
    def SR(T): return (Q + 32 + 8 * T) if T < 4 else (K + 32 + 8 * (T - 4))
    RB = (2, 54)
    def rread(T):
        for ar in range(2): a(f'ds_read_b128 {V(RB[T&1] + 4*ar, 4)}, v{RA} offset:{512*(T>>2) + 256*ar + 64*(T&3)}', tag=f'R{T}')
    for T in range(8):
        P = PR + 2 * T; dd = Q + 8 * T; dk = K + 8 * T
        if f'Q{T}' not in S_.when:
            for k in range(0, 8, 2): a(f'v_pk_fma_f32 {V(dd+k, 2)}, {V(CQ+k, 2)}, {V(P, 2)}, {V(dd+k, 2)} op_sel_hi:[1,0,1]')
        if f'K{T}' not in S_.when:
            for k in range(0, 8, 2): a(f'v_pk_fma_f32 {V(dk+k, 2)}, {V(CK+k, 2)}, {V(P, 2)}, {V(dk+k, 2)} op_sel_hi:[1,0,1]')
            for k in range(0, 8, 2): a(f'v_pk_mul_f32 {V(dk+k, 2)}, {V(dk+k, 2)}, {V(P, 2)} op_sel:[0,1] op_sel_hi:[1,1]')
    rread(0); rread(1)
    cv = []
    for T in range(8):
        cv += [f'v_cvt_pk_bf16_f32 v{Q+4*T+k}, v{Q+8*T+2*k}, v{Q+8*T+2*k+1}' for k in range(4)]
        cv += [f'v_cndmask_b32 v{Q+4*T+k}, 0, v{Q+4*T+k}, s[{sM1}:{sM1+1}]' for k in (() if OPT['zpad'] else (2, 3))]
        cv += [f'v_cvt_pk_bf16_f32 v{K+4*T+k}, v{K+8*T+2*k}, v{K+8*T+2*k+1}' for k in range(4)]
    n8 = len(cv) // 8
    for T in range(8):
        em(a, cv[n8*T:n8*(T+1)])
        a(f'@wait lg=R{T}')
        b = RB[T & 1]
        for c, base in enumerate((V0, V1)):
            for k in (0, 2): a(f'v_pk_fma_f32 {V(base+4*T+k, 2)}, {V(b+k, 2)}, {V(CV, 2)}, {V(base+4*T+k, 2)} op_sel:[0,{c},0] op_sel_hi:[1,{c},1]')
        for c, base in enumerate((V0, V1)):
            for k in (0, 2): a(f'v_pk_mul_f32 {V(base+4*T+k, 2)}, {V(base+4*T+k, 2)}, {V(b+4+k, 2)}')
        if T < 6: rread(T + 2)
    fill = [f'v_cvt_pk_bf16_f32 v{base+2*T+k}, v{base+4*T+2*k}, v{base+4*T+2*k+1}' for T in range(8) for base in (V0, V1) for k in range(2)]
    fill += [f'v_mul_f32 v{PR + 2*T + 1}, {hx(f2u(LOG2E * 28 ** -0.5))}, v{PR + 2*T + 1}' for T in range(8)]
    for T in range(8):
        if T & 3:
            a(f'{MF} {V(SR(T), 4)}, {V(K + 4*(T-1), 4)}, {V(Q + 4*T, 4)}, {V(MK, 4)}'); em(a, fill[:2]); del fill[:2]
        a(f'{MF} {V(SR(T) + 4, 4)}, {V(K + 4*T, 4)}, {V(Q + 4*T, 4)}, {V(MK + 4, 4)}'); em(a, fill[:2]); del fill[:2]
    em(a, fill)
    mx = [10, 11, 12, 13, 22, 23, 24, 25]
    for T in range(8):
        s = SR(T); m = mx[T]
        if T & 3: a(f'v_max3_f32 v{m}, v{s}, v{s+1}, v{s+2}\nv_max3_f32 v{m}, v{m}, v{s+3}, v{s+4}\nv_max3_f32 v{m}, v{m}, v{s+5}, v{s+6}\nv_max_f32 v{m}, v{m}, v{s+7}')
        else: a(f'v_max3_f32 v{m}, v{s+4}, v{s+5}, v{s+6}\nv_max_f32 v{m}, v{m}, v{s+7}')
    stamp(a, 'e1')
    for b in (0, 2, 4, 6): a(f'v_permlane32_swap_b32 v{mx[b]}, v{mx[b+1]}')
    for b in (0, 2, 4, 6): a(f'v_max_f32 v{mx[b]}, v{mx[b]}, v{mx[b+1]}')
    for b in (0, 4): a(f'v_permlane16_swap_b32 v{mx[b]}, v{mx[b+2]}')
    for b in (0, 4): a(f'v_max_f32 v{mx[b]}, v{mx[b]}, v{mx[b+2]}')
    for b in (0, 4): a(f'v_mov_b32 v{mx[b+2]}, v{mx[b]}')
    ONE = 54; PF = 56; OT = K
    for k in range(2): a(f'v_mov_b32 v{2+k}, 0x3f803f80')
    for b in (0, 4): a(f'v_permlane16_swap_b32 v{mx[b]}, v{mx[b+2]}')
    for b in (0, 2, 4, 6): a(f'v_mov_b32 v{mx[b+1]}, v{mx[b]}')
    for k in range(2, 4): a(f'v_mov_b32 v{2+k}, 0x3f803f80')
    ONE = 2
    for b in (0, 2, 4, 6): a(f'v_permlane32_swap_b32 v{mx[b]}, v{mx[b+1]}')
    for T in range(8): a(f'v_mul_f32 v{PR + 2*T}, v{mx[T]}, v{PR + 2*T + 1}')
    def pf(T): return PF + 4 * (T & 1)
    def soft(T):
        s = SR(T); P = PR + 2 * T
        lo = 0 if T & 3 else 4
        for k in range(lo, 8, 2): a(f'v_pk_fma_f32 {V(s+k, 2)}, {V(s+k, 2)}, {V(P, 2)}, {V(P, 2)} op_sel:[0,1,0] op_sel_hi:[1,1,0] neg_lo:[0,0,1] neg_hi:[0,0,1]')
        return [f'v_exp_f32 v{s+k}, v{s+k}' for k in range(lo, 8)]
    def pack(T):
        s = SR(T)
        if T & 3:
            for k in range(4): a(f'v_cvt_pk_bf16_f32 v{pf(T)+k}, v{s+2*k}, v{s+2*k+1}')
        else:
            for k in range(2): a(f'v_cvt_pk_bf16_f32 v{pf(T)+k}, v{s+4+2*k}, v{s+5+2*k}')
            a(f'v_mov_b32 v{pf(T)+2}, 0\nv_mov_b32 v{pf(T)+3}, 0')
    def OB(T): return OT + 12 * (T & 1)
    def pv(T):
        v = 2 * (T - 1) if T & 3 else 2 * T
        o = OB(T)
        return [f'{MF} {V(o + 8, 4)}, {V(ONE, 4)}, {V(pf(T), 4)}, 0', f'{MF} {V(o, 4)}, {V(V0 + v, 4)}, {V(pf(T), 4)}, 0', f'{MF} {V(o + 4, 4)}, {V(V1 + v, 4)}, {V(pf(T), 4)}, 0']
    def fin(T):
        o = OB(T); R = Q + 4 * T
        for k in range(0, 8, 2): a(f'v_pk_mul_f32 {V(o+k, 2)}, {V(o+k, 2)}, {V(o+8, 2)} op_sel_hi:[1,0]')
        for k in range(4): a(f'v_cvt_pk_bf16_f32 v{R+k}, v{o+2*k}, v{o+2*k+1}')
        if T & 3 == 3:
            R0 = R - 12
            for k in range(4):
                for q in (0, 1): a(f'v_permlane32_swap_b32 v{R0+4*q+k}, v{R0+4*(q+2)+k}')
            for q in (0, 2):
                for k in range(4): a(f'v_permlane16_swap_b32 v{R0+4*q+k}, v{R0+4*(q+1)+k}')
                for g in (q, q + 1): a(f'buffer_store_dwordx4 {V(R0+4*g, 4)}, v{OA + (T>>2)}, s[{SH}:{SH+3}], s{sST} offen offset:{256*g} sc1', tag='o')
    for T in range(9):
        ex = soft(T) if T < 8 else []
        mm = pv(T - 1) if T else []
        for x in mm:
            a(x)
            if ex: a(ex.pop(0))
        em(a, ex)
        if T: a(f'v_rcp_f32 v{OB(T-1)+8}, v{OB(T-1)+8}')
        if T < 8: pack(T)
        if T: fin(T - 1)
    stamp(a, 'e2')
    a(f'v_mov_b32 v2, 1\ns_waitcnt vmcnt(0)\nbuffer_atomic_add v2, v{CB}, s[{SH}:{SH+3}], s{sFL} offen sc1')

def add_pads(lines, pfx):
    flat = []
    for l in lines: flat += l.split('\n')
    h = flat.index(';HOP')
    if not OPT['iw']: return flat[:h] + flat[h+1:]
    start = flat.index(';EPI') if OPT['iws'] else h + OPT['iw']
    pos = []; k = start
    while k < len(flat) - 60:
        j = k
        while j < k + 40 and not (flat[j-1].strip().startswith('v_mfma') and flat[j].strip().startswith('v_mfma')): j += 1
        pos.append(j if j < k + 40 else k); k += OPT['iw']
    n = len(pos); first = [w * n // 4 for w in range(5)]
    hop = ['    s_mov_b64 exec, 0']
    for w in range(3): hop += [f'    s_cmp_eq_u32 s{sW}, {w}', f'    s_cbranch_scc1 {pfx}_pad{first[w]}']
    hop += [f'    s_branch {pfx}_pad{first[3]}', f'{pfx}_back:', '    s_mov_b64 exec, -1']
    out = flat[:h] + hop
    for i in range(h + 1, len(flat)):
        if i in pos:
            q = pos.index(i)
            out += [f'{pfx}_pad{q}:', f'    s_cbranch_execz {pfx}_' + ('back' if q + 1 in first else f'pad{q+1}')]
        out.append(flat[i])
    print(pfx, 'pads', n, file=sys.stderr)
    return out

def desc(name):
    return f""".amdhsa_kernel {name}
  .amdhsa_next_free_vgpr 512
  .amdhsa_next_free_sgpr 102
  .amdhsa_accum_offset 256
  .amdhsa_group_segment_fixed_size 0
  .amdhsa_kernarg_size 80
  .amdhsa_user_sgpr_count 2
  .amdhsa_user_sgpr_kernarg_segment_ptr 1
  .amdhsa_system_sgpr_workgroup_id_x 1
  .amdhsa_float_denorm_mode_32 3
.end_amdhsa_kernel
"""

DOC = """;
; Straight-line code written by a hand-made scheduler script (4 waves, 512 registers each, 16x16x32 bf16 MFMA).
;                then an output tile of 80 token slots x 64 columns over K = [H | O], K split over the waves.
;   A workgroups (72 = 18 row blocks x 4)  : q/k/v GEMM of 127 tokens x 4 heads (one head per wave), windowed
; LayerNorm is applied after the first GEMMs: (x W - mean * colsum(W)) / std; colsum comes from an all-ones token
; Hand-offs: write-through (sc1) stores -> s_waitcnt vmcnt -> arrival counter; consumers poll, then load (sc1).
; Workgroup ids are mapped to tiles for cache locality only; any placement gives the same result.
"""
def build():
    del SLOW[:]
    hdr = open('cdna_kernels/' + NAME + '.s.ref').read().split('; Override launch')[0]
    k1 = NAME + '_kernel'
    out = hdr + '; @launch grid=(256,1,1) block=(256,1,1) lds=163840\n' + DOC + '.amdgcn_target "amdgcn-amd-amdhsa--gfx950"\n.text\n'
    c = Asm()
    c.raw(f'.globl {k1}\n.type {k1},@function\n.p2align 10\n.fill {OPT["pad"] // 4}, 4, 0xbf810000\n.p2align 8\n{k1}:')
    c('s_cmpk_ge_u32 s2, 256\ns_cbranch_scc1 L_done')
    if PROF: c.raw(f'    s_mem{"real" if "real" in STAMPS else ""}time s[86:87]\n    s_memrealtime s[84:85]\n    s_waitcnt lgkmcnt(0)\n    s_mov_b32 s87, s84\n    s_getreg_b32 s99, hwreg(HW_REG_XCC_ID)\n    s_lshl_b32 s99, s99, 16')
    else: stamp(c, 0)
    c('s_load_dwordx16 s[4:19], s[0:1], 0\ns_load_dwordx4 s[20:23], s[0:1], 64')
    per = OPT['pfn']
    c(f's_getpc_b64 s[{sFH}:{sFH+1}]\nv_lshrrev_b32 v1, 6, v0\nv_and_b32 v0, 63, v0\ns_lshr_b32 s{T0}, s2, 3\ns_mul_i32 s{T1}, s{T0}, {per}')
    c(f'v_min_u32 v{XL}, {per-1}, v0\nv_readfirstlane_b32 s{sW}, v1\nv_add_lshl_u32 v{XL}, v{XL}, s{T1}, 7')
    c(f'global_load_dword v37, v{XL}, s[{sFH}:{sFH+1}] offset:896', tag='pf')
    stats_addr(c); em(c, srd_c(SX, 2048 * 896))
    c(f's_and_b32 s{sJ}, s{sW}, 1\ns_lshr_b32 s{sWO}, s{sW}, 1\ns_lshl_b32 s{T2}, s{sJ}, 2')
    c(f'v_lshrrev_b32 v{XL}, 3, v0\nv_and_b32 v1, 7, v0\nv_lshrrev_b32 v{XL+1}, 4, v0\nv_mul_u32_u24 v{XL}, 112, v{XL}\nv_xor_b32 v1, s{T2}, v1')
    c(f's_bfe_u32 s{T1}, s2, 0x10002\ns_and_b32 s{sC}, s2, 3\nv_xor_b32 v1, v1, v{XL+1}\ns_cmp_lt_u32 s{T0}, 23\nv_add_lshl_u32 v{XL}, v{XL}, v1, 4\ns_cbranch_scc1 L_ffn')
    aa = Asm(); aa.vm = ['pf']
    if OPT['noa']: aa(f's_mov_b32 s{T1}, 1\ns_branch L_idle')
    cut = []
    def split():
        aa('s_branch L_attn'); cut.append(len(aa.lines)); aa.label('L_attn')
    attn(aa, split); dump(aa); aa('s_endpgm')
    f = Asm(); f.vm = ['pf']
    f.label('L_ffn')
    f(f's_mul_i32 s{T2}, s{sC}, 23\ns_add_u32 s{T0}, s{T0}, s{T2}\ns_cmpk_ge_u32 s{T0}, 91\ns_cbranch_scc1 L_idle0')
    ffn(f); dump(f)
    f.label('L_done'); f('s_endpgm')
    a = Asm(); a.vm = ['pf']
    a.label('L_idle')
    z = Asm(); z.label('L_idle0')
    z(f'v_mov_b32 v4, 0\nv_mov_b32 v5, 0\nv_mov_b32 v6, 0\nv_mov_b32 v7, 0\ns_lshl_b32 s{T0}, s{sW}, 12\ns_add_u32 s{T0}, s{T0}, {STATS}\nv_lshl_add_u32 v2, v0, 4, s{T0}')
    z(f's_cmp_lg_u32 s{T1}, 0\ns_waitcnt lgkmcnt(0)\ns_cbranch_scc1 L_idle1')
    for i in range(4): z(f'global_store_dwordx4 v2, v[4:7], s[22:23] offset:{i*1024} sc1')
    z('s_branch L_idle')
    a.lines[-1:] = ['L_idle1:']
    a(f's_mul_i32 s{T0}, s{sW}, {5*FST//4}\ns_add_u32 s{T0}, s{T0}, {FH + 4096}\nv_lshl_add_u32 v2, v0, 4, s{T0}\nv_add_u32 v3, 4096, v2')
    for i in range(10): a(f'global_store_dwordx4 v{2 + (i >= 8)}, v[4:7], s[22:23] offset:{(i - 4 - 4*(i >= 8))*1024} sc1')
    a.label('L_idle')
    em(a, srd(SH, 22, WS_USED) + srd(SDB, 20, 256) + srd_p(SX, 4))
    a(f's_lshl_b32 s{T3}, s{T1}, 7\ns_cmp_eq_u32 s{sW}, 0\ns_cselect_b32 s{T3}, s{T3}, {OOB}\nv_mov_b32 v8, 1\nv_lshl_add_u32 v9, v0, 8, s{T3}')
    a(f's_waitcnt vmcnt(0)\ns_barrier\nbuffer_store_dword v8, v9, s[{SDB}:{SDB+3}], 0 offen sc1')
    stats_load(a); stats_do(a)
    a('s_waitcnt lgkmcnt(0)\ns_barrier')
    em(a, stats_prep(ZD, ZD + 4))
    a(cert_load(ZD + 5)); a('s_waitcnt vmcnt(0) lgkmcnt(0)')
    em(a, vec_check('Li_cert', [cert_load(ZD + 5)], [ZD + 5])); a(stats_post(ZD, ZD + 4)); a('s_endpgm')
    for s in SLOW: a.raw(s)
    a.raw('L_end:\n.fill 3072, 4, 0xbf810000')
    sys.stderr.write(f'instr: ffn {f.count} attn {aa.count}; nops {f.nops} {aa.nops}\n')
    lines = c.lines + aa.lines[:cut[0]] + z.lines + add_pads(f.lines, 'Lf') + add_pads(aa.lines[cut[0]:], 'La') + a.lines
    lines = [l for l in lines if not l.startswith(';')]
    if OPT['align']: lines = align_pass(lines, k1, 'L_end', 'L_f7')
    text = '\n'.join(lines) + '\n'
    if OPT['sf'] != 'sc1': text = re.sub(r'(buffer_store_dwordx4 .*) sc1', lambda m: m.group(1) + ' ' + OPT['sf'].replace('+', ' '), text)
    return out + text + '.section .rodata,"a"\n.p2align 6\n' + desc(k1)

if __name__ == '__main__':
    args = sys.argv[1:]
    for x in [x for x in args if x.startswith('enc:')]:
        args.remove(x); ENC = (x.split(':')[1], int(x.split(':')[2]))
    for x in [x for x in args if x.startswith('st:')]:
        PROF = True; args.remove(x); STAMPS[:] = x[3:].split(',')
    for x in [x for x in args if '=' in x]:
        k, v = x.split('='); args.remove(x)
        OPT[k] = type(OPT[k])(v) if not isinstance(OPT[k], bool) else v == '1'
    roles = [decode_py(b) for b in range(256)]
    F = [r for r in roles if r and r[0] == 'F']; Aa = [r for r in roles if r and r[0] == 'A']
    assert sorted((r[1], r[2]) for r in F) == [(r, c) for r in range(13) for c in range(14)]
    assert sorted((r[3], r[4]) for r in F) == [(t, c) for t in range(26) for c in range(7)]
    assert sorted((r[1], r[2]) for r in Aa) == [(x, g) for x in range(18) for g in range(4)]
    assert all(((t * 26547) >> 22) == t // 158 for t in range(2200))
    assert all(((t * 4682) >> 16) == t // 14 for t in range(140))
    for r in range(13):
        need = {0 if tk < 127 else (tk - 14) // 113 for tk in range(158 * r, min(158 * r + 158, 2048))}
        assert len(need) == ((min(158 * r + 143, 2033) * 580) >> 16) - (((max(158 * r, 14) - 14) * 580) >> 16) + 1
        assert need == {x for x in range(18) if ((113 * x + (14 if x else 0)) // 158) <= r <= (113 * x + 126) // 158}
    open(args[0] if args else 'cdna_kernels/' + NAME + '.s', 'w').write(build())
```

```python
import sys, struct
from asmlib import *

NAME = "parallel_sum__sliding_local_dilated__swiglu_ffn__prompt"
LOG2E = 1.4426950408889634
def f2u(x): return struct.unpack('<I', struct.pack('<f', x))[0]
def hx(x): return f'0x{x & 0xffffffff:08x}'

OPT = dict(rotf='h3', rota='1.0.0.7.1', rate=0.25, rate2=0.2, rate3=0.22, rs=4, arate=0.2, erate=0.25, w2s=13, w2g=50, npro=17, anpro=16, rot2=2, sleep=3,
           tc=1, atc=-1, atl=13, tl=13, nhb=12, pi=9, early=0, lag=60, touch='', tn=4, tpos=20, tstep=4.0, nO=4, pad=256, otr=1, lt=0, ltr=128, zpos=0, align=1, lead=8, fm=6, am=0, arate0=0.3, fd=3, ad_=2, chain=1, zpad=1, of='sc1', ofl='sc1', xo=0, sf='sc1', wso=0, diag=0, roto=0, aw=0, ad=60, awp=0, ol=0, oc=1, map2=1, gx=0, pd=0, xb=0, xs=4, ash=1, dw=0, dt=1, pe=0, wrate=0.12, fp=0, azs=0, adip=3, pair=0, lc=4, rt=18, zi=99, nbg=999, p2=0, zr=1, noa=0, pfn=11, iw=0, iws=1, nA=8, a6=0, ost=80, nochk=0, x='', ap=0, tk=4, elag=40)

SX, SG, SU, SH, SD, SO, SOUT, SDB = 24, 28, 32, 36, 40, 44, 48, 52
sR, sC, sTH, sCT, sW = 56, 57, 58, 59, 60
T0, T1, T2, T3 = 61, 62, 63, 64
sMX, sMW, sSO, sJ, sWO, sST, sSPIN = 65, 66, 67, 68, 69, 70, 71
sPL, sONE, sXJ, sWJ = 72, 73, 74, 75
sFH, sNO = 76, 78
sM0, sM1 = 80, 82
sRT = 4
sFL = 3

TH_BYTES = 5 * 72 * 1024
FH, FST, STATS, WS_USED = 0x930000, 8192, 0x93a000, 0x940000
OOB = 0x7ffffff0
MF = 'v_mfma_f32_16x16x32_bf16'

PROF = False; STAMPS = []; ENC = None; sP = 86
def stamp(a, i, real=False):
    if ENC:
        if i == 0 or i == ENC[0]:
            a.raw(f'    s_memrealtime s[84:85]\n    s_waitcnt lgkmcnt(0)\n    s_mov_b32 s{86 + (i != 0)}, s84'); a.lg = []
        return
    if not PROF: return
    if isinstance(i, str):
        if i not in STAMPS: return
        i = 2 + STAMPS.index(i)
    real = real or 'real' in STAMPS
    a.raw(f'    s_mem{"real" if real else ""}time s[84:85]\n    s_waitcnt lgkmcnt(0)\n    s_mov_b32 s{sP+i}, s84')
    a.lg = []
def dump(a):
    if ENC:
        l = f'Lenc{a.count}'
        stamp(a, 'end')
        a.raw(f'    s_cmp_eq_u32 s2, {ENC[1]}\n    s_cbranch_scc0 {l}_e\n    s_sub_u32 s87, s87, s86\n    s_min_u32 s87, s87, 5000\n    s_mul_i32 s87, s87, 10\n    s_memrealtime s[88:89]\n{l}:\n    s_memrealtime s[84:85]\n    s_waitcnt lgkmcnt(0)\n    s_sub_u32 s84, s84, s88\n    s_cmp_lt_u32 s84, s87\n    s_cbranch_scc1 {l}\n{l}_e:')
        return
    if not PROF: return
    a('s_waitcnt vmcnt(0)')
    stamp(a, 14); stamp(a, 15, True)
    a(f's_mov_b32 s{SH+2}, 0x2000000')
    a(f's_lshl_b32 s{T0}, s2, 2\ns_add_u32 s{T0}, s{T0}, s{sW}\ns_lshl_b32 s{T0}, s{T0}, 6\ns_add_u32 s{T0}, s{T0}, 0x1000000')
    for i in range(16): a(f'v_mov_b32 v{4+i}, s{sP+i}')
    a('v_mov_b32 v2, 0\ns_mov_b64 exec, 1')
    for i in range(4): a(f'buffer_store_dwordx4 v[{4+4*i}:{7+4*i}], v2, s[{SH}:{SH+3}], s{T0} offen offset:{16*i}')

def srd_c(dst, nbytes): return [f's_mov_b32 s{dst+2}, {nbytes}', f's_mov_b32 s{dst+3}, 0x20000']
def srd_p(dst, ptr, back=0):
    if back: return [[f's_sub_u32 s{dst}, s{ptr}, {back}', f's_subb_u32 s{dst+1}, s{ptr+1}, 0']]
    return [f's_mov_b64 s[{dst}:{dst+1}], s[{ptr}:{ptr+1}]']
def srd(dst, ptr, nbytes): return srd_p(dst, ptr) + srd_c(dst, nbytes)
def em(a, l, tag=None):
    for x in l:
        for y in ([x] if isinstance(x, str) else x): a(y, tag=tag)
def items(l, **k): return [Item(x, **k) for x in l]

SLOW = []
NL = '\n    '
def mark(): return f'{NL}s_bitset1_b32 s99, {len(SLOW)}' if PROF and len(STAMPS) < 12 else ''
def vec_check(name, loads, regs):
    r = regs[-1]
    t = {1: [], 2: [f'v_min_u32 v{r}, v{regs[0]}, v{r}'], 3: [f'v_min3_u32 v{r}, v{regs[0]}, v{regs[1]}, v{r}']}[len(regs)] if len(regs) > 1 else []
    t.append(f'v_cmp_eq_u32 vcc, 0, v{r}')
    SLOW.append(f"""{name}:{mark()}
    s_mov_b32 s{sSPIN}, 0
{name}_l:
    s_sleep 4
    {NL.join(loads)}
    s_add_u32 s{sSPIN}, s{sSPIN}, 1
    s_waitcnt vmcnt(0)
    {NL.join(t)}
    s_nop 4
    s_cbranch_vccz {name}_r
    s_cmp_lt_u32 s{sSPIN}, 0x40000
    s_cbranch_scc1 {name}_l
    s_branch {name}_r""")
    return t + ['s_nop 4', f's_cbranch_vccnz {name}', f'{name}_r:']
def preg(f): return 79 if f & 1 else sPL
def poll_issue(f): return f's_load_dword s{preg(f)}, s[{sFH}:{sFH+1}], {f*FST} glc'
def poll_check(name, f, want, first=()):
    SLOW.append(f"""{name}:{mark()}
    {NL.join(list(first) + [f's_mov_b32 s{sSPIN}, 0'])}
{name}_l:
    {poll_issue(f)}
    s_add_u32 s{sSPIN}, s{sSPIN}, 1
    s_waitcnt lgkmcnt(0)
    s_cmp_eq_u32 s{preg(f)}, {want}
    s_cbranch_scc1 {name}_r
    s_sleep {OPT['sleep']}
    s_cmp_lt_u32 s{sSPIN}, 0x40000
    s_cbranch_scc1 {name}_l
    s_branch {name}_r""")
    return ['s_waitcnt lgkmcnt(0)', [f's_cmp_eq_u32 s{preg(f)}, {want}', f's_cbranch_scc0 {name}', f'{name}_r:']]

def decode_py(b):
    i, hf, q = b >> 3, (b >> 2) & 1, b & 3
    if OPT['map2']:
        n = 28 if q == 3 else 21
        if i >= n:
            if (b | 4) == 255: return None
            u = i - n + ((0x160b1900 >> (8 * q)) & 31); G = (u * 57) >> 9
            return ('A', u + 9 * (hf - G), G ^ 1)
        f = 21 * q + i; p = 91 * hf + f; th = (p * 9363) >> 16
        m, n, f2 = (43, 6, f - 7) if f >= 49 else (37, 7, f)
        c = (f2 * m) >> 8; r = f2 - n * c
        return ('F', 12 - r if hf else r, 13 - c if hf else c, th, p - 7 * th)
    if i >= 23: return ('A', 9 * hf + i - 23, q)
    f = i + 23 * q
    if f >= 91: return None
    p = 91 * hf + f; th = (p * 9363) >> 16; ct = p - 7 * th
    l1 = 49 - 7 * hf; sec = int(f >= l1); f2 = f - (l1 if sec else 0)
    m, n = (37, 7) if (sec ^ hf) == 0 else (43, 6)
    c = (f2 * m) >> 8; r = f2 - n * c
    return ('F', r + (7 - sec) * hf, c + 7 * sec, th, ct)

ZD, ZT = 38, 46
ZL = 163840 - 128
sZB = sSPIN
def zb(): return sZB if OPT['zr'] else 2
def stats_addr(a):
    if OPT['zr']: a(f's_bfe_u32 s{T3}, s2, 0x10002\ns_lshl_b32 s{T3}, s{T3}, 5\ns_add_u32 s{T3}, s{T3}, s{T0}\ns_and_b32 s{sZB}, s2, 3\ns_lshl2_add_u32 s{sZB}, s{T3}, s{sZB}')
    a(f's_andn2_b32 s{T3}, s{zb()}, 1\ns_lshl1_add_u32 s{T3}, s{T3}, s{sW}\ns_and_b32 s{sSO}, s2, 1\ns_lshl2_add_u32 s{sST}, s{T3}, s{sSO}\ns_mulk_i32 s{sST}, 896')
    a(f'v_lshrrev_b32 v{ZT}, 5, v0\nv_and_b32 v{ZT+1}, 31, v0\nv_mul_u32_u24 v{ZT+2}, 1792, v{ZT}\nv_cmp_gt_u32 vcc, 28, v{ZT+1}')
    a(f'v_lshl_add_u32 v{ZT+2}, v{ZT+1}, 4, v{ZT+2}\nv_mov_b32 v{ZT+3}, {OOB}\nv_cndmask_b32 v{ZT+2}, v{ZT+3}, v{ZT+2}, vcc')
def stats_load(a):
    a(f'buffer_load_dwordx4 {V(ZD, 4)}, v{ZT+2}, s[{SX}:{SX+3}], s{sST} offen', tag='z')
    a(f'buffer_load_dwordx4 {V(ZD+4, 4)}, v{ZT+2}, s[{SX}:{SX+3}], s{sST} offen offset:448', tag='z')
def stats_do(a_, more=None):
    cnt = [-1]
    def a(t, **k):
        for x in t.split('\n'):
            a_(x, **k)
            if cnt[0] >= 0 and more:
                if cnt[0] % OPT['zi'] == 0: more()
                cnt[0] += 1
    s, q, lo, hi = ZT + 4, ZT + 5, ZT + 6, ZT + 7
    a(f'v_and_b32 v{ZT+2}, 1, v0\nv_cmp_eq_u32 s[{sM0}:{sM0+1}], 1, v{ZT+2}\nv_lshlrev_b32 v{ZT+2}, 5, v{ZT+2}\nv_lshl_add_u32 v{ZT+2}, v{ZT}, 2, v{ZT+2}')
    a(f'v_bfe_u32 v{ZT+1}, v0, 4, 1\nv_lshlrev_b32 v{ZT+1}, 6, v{ZT+1}\nv_sub_u32 v{ZT+2}, v{ZT+2}, v{ZT+1}\ns_lshl3_add_u32 s{T0}, s{sW}, {ZL + 64}')
    a(f'v_cmp_eq_u32 vcc, 0, v0\nv_add_u32 v{ZT+2}, s{T0}, v{ZT+2}\nv_mov_b32 v{ZT}, 0\nv_cndmask_b32 v1, v{ZT+3}, v{ZT}, vcc')
    a_.raw(';HOP')
    stamp(a_, 'z0')
    a('@wait vm=z')
    stamp(a_, 'z1')
    cnt[0] = 0
    for k in range(8):
        r = ZD + k
        a(f'v_lshlrev_b32 v{lo}, 16, v{r}\nv_and_b32 v{hi}, 0xffff0000, v{r}')
        if k == 0: a(f'v_pk_add_f32 {V(ZT, 2)}, {V(lo, 2)}, 0\nv_pk_mul_f32 {V(s, 2)}, {V(lo, 2)}, {V(lo, 2)}')
        else: a(f'v_pk_add_f32 {V(ZT, 2)}, {V(ZT, 2)}, {V(lo, 2)}\nv_pk_fma_f32 {V(s, 2)}, {V(lo, 2)}, {V(lo, 2)}, {V(s, 2)}')
    a(f'v_add_f32 v{q}, v{s}, v{q}\nv_add_f32 v{s}, v{ZT}, v{ZT+1}')
    for ctl in ('quad_perm:[1,0,3,2] row_mask:0xf', 'quad_perm:[2,3,0,1] row_mask:0xf', 'row_half_mirror row_mask:0xf', 'row_mirror row_mask:0xf', 'row_bcast:15 row_mask:0xa'):
        for r in (q, s): a(f'v_add_f32_dpp v{r}, v{r}, v{r} {ctl} bank_mask:0xf')
    a(f'v_mul_f32 v{s}, {hx(f2u(1/448))}, v{s}\nv_mul_f32 v{q}, {hx(f2u(1/448))}, v{q}\nv_fma_f32 v{q}, -v{s}, v{s}, v{q}\nv_max_f32 v{q}, 0, v{q}')
    a(f'v_cvt_pk_bf16_f32 v{s}, -v{s}, v{q}\nv_and_b32 v{q}, 0xffff0000, v{s}\nv_lshlrev_b32 v{s}, 16, v{s}')
    a(f'v_add_f32 v{q}, {hx(f2u(1e-5))}, v{q}\nv_cvt_pk_bf16_f32 v{q}, v{q}, v{q}\nv_and_b32 v{q}, 0xffff0000, v{q}\nv_sqrt_f32 v{q}, v{q}')
    a(f'v_cvt_pk_bf16_f32 v{q}, v{q}, v{q}\nv_and_b32 v{q}, 0xffff0000, v{q}\nv_rcp_f32 v{q}, v{q}')
    a(f'v_cndmask_b32 v{s}, v{s}, v{q}, s[{sM0}:{sM0+1}]\nv_or_b32 v{s}, 1, v{s}')
    a(f'ds_write_b32 v{ZT+2}, v{s}')
    stamp(a_, 'z2')
def cert_load(v, k=0): return f'buffer_load_dword v{v}, off, s[{SDB}:{SDB+3}], 0 offset:{128*k} sc1'
def stats_prep(vd, va):
    return [f'v_and_b32 v{va}, 3, v0', f'v_lshlrev_b32 v{va}, 4, v{va}', f'v_add_u32 v{va}, {ZL}, v{va}', f'ds_read_b128 {V(vd, 4)}, v{va}',
            f's_lshl_b32 s{T0}, s{zb()}, 6', f's_add_u32 s{T0}, s{T0}, {STATS - ZL}', [f's_cmp_eq_u32 s{sW}, 0', f's_cselect_b32 s{T0}, s{T0}, {OOB}'],
            f'v_add_u32 v{va}, s{T0}, v{va}', f'v_cmp_gt_u32 vcc, 4, v0', f'v_cndmask_b32 v{va}, v1, v{va}, vcc']
def stats_post(vd, va): return f'buffer_store_dwordx4 {V(vd, 4)}, v{va}, s[{SH}:{SH+3}], 0 offen sc1'
def stats_src(vd, vt):
    return [f'v_min_u32 v{vd}, 1023, v{vd}', f'v_and_b32 v{vt}, 7, v{vd}', f'v_lshrrev_b32 v{vd}, 3, v{vd}', f'v_lshlrev_b32 v{vd}, 7, v{vd}', f'v_lshl_add_u32 v{vd}, v{vt}, 2, v{vd}']
def sync_stream(pfx, G, tc, src, loads, regs, writes, t_load, t_check, C=ZD+5):
    D = ZD
    loads = loads + [cert_load(C, 1)]; regs = regs + [C]
    o = items(stats_prep(D, D + 4), tag='zg')
    if tc >= 0: o.append(Item(cert_load(C), tag='cert', t0=tc * G))
    o.append(Item(['@wait vm=cert lg=zg'] + vec_check(pfx + '_cert', [cert_load(C)], [C]), t0=(tc + OPT['tk']) * G + 2))
    if OPT['diag']:
        o.append(Item(['s_waitcnt vmcnt(0)', 's_memrealtime s[84:85]', 's_waitcnt lgkmcnt(0)', 's_mov_b32 s88, s84', stats_post(D, D + 4), 's_waitcnt vmcnt(0)', 's_memrealtime s[84:85]', 's_waitcnt lgkmcnt(0)', 's_mov_b32 s89, s84']))
    else: o.append(Item(stats_post(D, D + 4)))
    o += items(src) + items(loads, tag='par', t0=t_load * G)
    o.append(Item(['@wait vm=par'] + vec_check(pfx + '_par', loads, regs), t0=t_check * G))
    return Stream(o + items(writes, tag='sw'))

def rot_init(a, spec, rowbytes):
    if not spec: return
    if spec == 'x':
        a(f's_and_b32 s{sXJ}, s2, 7\ns_cmp_eq_u32 s{sXJ}, 7\ns_cselect_b32 s{sXJ}, 0, s{sXJ}\ns_mul_i32 s{sWJ}, s{sXJ}, {64*rowbytes}\ns_lshl_b32 s{sXJ}, s{sXJ}, 7')
        return
    if spec[0] == 'h':
        a(f's_mul_i32 s{sWJ}, s{T1}, {64*rowbytes*int(spec[1])}\ns_mul_i32 s{sXJ}, s{T1}, {128*int(spec[1])}')
        return
    p, q, s, m, k = map(int, spec.split('.'))
    terms = [(c, r) for c, r in ((p, sR), (q, sC), (s, T1)) if c]
    src = terms[0][1]
    if terms[0][0] != 1 or len(terms) > 1:
        a(f's_mul_i32 s{sXJ}, s{src}, {terms[0][0]}'); src = sXJ
        for c, r in terms[1:]: a(f's_mul_i32 s{sWJ}, s{r}, {c}\ns_add_u32 s{sXJ}, s{sXJ}, s{sWJ}')
    a(f's_mul_i32 s{sWJ}, s{src}, {65536 // m + 1}\ns_lshr_b32 s{sWJ}, s{sWJ}, 16\ns_mul_i32 s{sWJ}, s{sWJ}, {m}\ns_sub_u32 s{sXJ}, s{src}, s{sWJ}')
    a(f's_mul_i32 s{sWJ}, s{sXJ}, {64*k*rowbytes}\ns_mulk_i32 s{sXJ}, {128*k}')
def x_off(spec, j):
    if not spec: return [f's_movk_i32 s{sXJ}, {128*j}']
    return [f's_add_u32 s{sXJ}, s{sXJ}, 128', [f's_cmp_eq_u32 s{sXJ}, 896', f's_cselect_b32 s{sXJ}, 0, s{sXJ}']] if j else []
def w_off(spec, m, i, rowbytes, comp):
    if not spec: return [f's_mov_b32 s{sSO}, {(32*m + 16*i)*rowbytes - comp}']
    o = []
    if i == 0 and m and m % 2 == 0: o = [f's_add_u32 s{sWJ}, s{sWJ}, {64*rowbytes}', [f's_cmp_eq_u32 s{sWJ}, {448*rowbytes}', f's_cselect_b32 s{sWJ}, 0, s{sWJ}']]
    return o + [f's_add_u32 s{sSO}, s{sWJ}, {(32*(m&1) + 16*i)*rowbytes - comp}']

def add_touches(d, vb, vt, vdump):
    mats = dict(d=([0], 7), o=([18], 7))
    n = OPT['tn']; pieces = []
    for sp in [x for x in OPT['touch'].split(',') if x]:
        m, r0, r1 = sp.split(':')
        ptrs, lpr = mats[m]; l0 = int(r0) * lpr; l1 = int(r1) * lpr
        for l in range(l0, l1, 1024 * n):
            o = [f'v_add_u32 v{vt}, {l*128}, v{vb}'] + ([f'v_min_u32 v{vt}, {(l1-1)*128}, v{vt}'] if l + 1024 * n > l1 else [])
            for p in ptrs:
                pieces.append(items(o) + [Item(f'global_load_dword v{vdump}, v{vt}, s[{p}:{p+1}]', tag='touch')]); o = []
    ins = {}
    for k, p in enumerate(pieces): ins.setdefault(int(OPT['tpos'] + k * OPT['tstep']), []).extend(p)
    if pieces:
        ins[OPT['tpos']][:0] = items([f's_lshl2_add_u32 s79, s2, s{sW}', f's_mul_i32 s79, s79, {n}', f'v_min_u32 v{vb}, {n-1}, v0', f'v_add_lshl_u32 v{vb}, v{vb}, s79, 7'])
    out = []; k = 0; done = False
    for it in d:
        out.append(it)
        if it.paced:
            k += 1; out += ins.pop(k, [])
    return out
def keep_ptrs(a): a('s_mov_b64 s[0:1], s[16:17]\ns_mov_b64 s[18:19], s[8:9]')

XL = 54
def x_read_addr(a, XA, XB, t, octet_stride):
    a(f'v_and_b32 v{t}, 7, v0\nv_bfe_u32 v{t+1}, v0, 3, 1\nv_lshrrev_b32 v{t+2}, 4, v0\nv_bfe_u32 v{t+3}, v0, 1, 3')
    a(f'v_xor_b32 v{t+2}, v{t+2}, v{t+3}\nv_lshlrev_b32 v{t+2}, 4, v{t+2}\nv_lshl_add_u32 v{t+2}, v{t}, 7, v{t+2}')
    a(f'v_mul_u32_u24 v{t+1}, {octet_stride}, v{t+1}\nv_add_u32 v{XA}, v{t+1}, v{t+2}\nv_xor_b32 v{XA+1}, 64, v{XA}')
    a(f'v_and_b32 v{t+1}, 15, v0\nv_cmp_eq_u32 vcc, 15, v{t+1}\nv_mov_b32 v{t+3}, 0x100\nv_lshlrev_b32 v{t}, 4, v{t}\nv_cndmask_b32 v{t+3}, 0, v{t+3}, vcc')
    a(f'v_add_u32 v{XB}, v{XA}, v{t+3}\nv_add_u32 v{XB+1}, v{XA+1}, v{t+3}')
    for k in range(4): a(f'v_mov_b32 v{t+2+k}, 0x3f803f80')

def bar_gap(G, nt, nc, dist, M, m):
    if m < 0: return 0
    if m < M: return (2 * m + 1) * G + 1
    if m == M: return 2 * M * G + nc + 1
    if m == 14: return 27 * G + (nt - 1) * nc + 1
    return (2 * m - 1) * G + (nt - dist) * 2 * nc + 1
def x_bar(M, j):
    return -1 if j < 3 else (2 * j - 4 if 2 * j - 5 < M else 2 * j - 3)
def gemm1(a, S_, G, nt, nc, dist, M, areads, bread, mfma, dma, others, checks, hooks={}, last_bar=False):
    segs = []
    for k in range(M): segs += [(0, [k], None, None), (1, [k], k, 0)]
    segs.append((0, [M], M, 1))
    segs += [(m & 1, [m - 1, m], m, nt - dist) for m in range(M + 1, 14)]
    segs.append((0, [13], 14, nt - 1 if last_bar else None))
    units = [(g, q, ks, bm if q == bq else None) for g, ks, bm, bq in segs for q in range(nt)]
    def brd(u):
        if u >= len(units): return []
        g, q, ks, _ = units[u]
        return [Item(bread(g, q, k, u & 3, n), tag=f'b{u}') for n, k in enumerate(ks)]
    S_.flush(Stream(items(areads(0), tag='a0') + sum((brd(u) for u in range(dist)), [])))
    rds = Stream([]); forced = []
    for u, (g, q, ks, m) in enumerate(units):
        while any(x.tag in (f'b{u}', f'a{ks[-1]}') for x in rds.items[rds.i:]): S_.put(rds, rds.items[rds.i])
        bar = m is not None
        if bar and m in checks: checks[m]()
        a(f'@wait lg=b{u}' + (f',a{ks[-1]}' if q == 0 else '') + (',sw' if bar and m in checks else ''))
        if S_.t % G == 0 or S_.t % G + len(ks) * nc > G:
            n = -(-S_.t // G)
            if n in hooks: hooks[n]()
            stamp(a, f's{n}')
        nb = brd(u + dist)
        if not bar: rds.items += nb
        seq = [(c, n ^ (c & 1) if len(ks) == 2 else n) for c in (range(nc) if u % 2 == 0 or len(ks) == 2 else range(nc - 1, -1, -1)) for n in range(len(ks))]
        seen = set()
        for p, (c, n) in enumerate(seq):
            a(mfma(g, q, c, ks[n], u & 3, n, ks[0] == 0 and c not in seen)); seen.add(c)
            if bar and p == 0:
                assert S_.t + 1 == bar_gap(G, nt, nc, dist, M, m)
                need = (f'x{(m+1)>>1}', f'w{m+1}')
                while True:
                    if dma.done() and hasattr(dma, 'refill'): dma.refill()
                    young = len(a.vm) - 1 - max([k for k, tg in enumerate(a.vm) if tg in need], default=-99)
                    nxp = next((x for x in dma.items[dma.i:] if x.paced), None)
                    if nxp is None or nxp.t0 > S_.t or not (young < OPT['lead'] or any(x.tag in need for x in dma.items[dma.i:])): break
                    S_.flush(dma, 1); forced.append(m)
                a(f'@wait vm={need[0]},{need[1]}\ns_barrier'); S_.gap([], 0)
                rds.items += nb + (items(areads(m + 1), tag=f'a{m+1}') if m < 13 else [])
                continue
            left = (nt - q) * len(seq) - p - 1
            pend = [x.tag for x in rds.items[rds.i:]]
            na = max([k + 1 for k, tg in enumerate(pend) if tg[0] == 'a'], default=0)
            urgent = na >= left - 7 or f'b{u+1}' in pend or (f'b{u+2}' in pend and p >= len(seq) - 4)
            S_.gap(([rds, dma] if urgent else [dma, rds]) + others, 1 if p == len(seq) - 1 else 2)
    print('forced', forced, file=sys.stderr)

FXS = 162 * 128; FW0 = 3 * FXS; FPAR = FW0 + 6 * 16384
assert FPAR + 2048 <= ZL
def ffn(a):
    DV, RX, RW, RH, HV, PA, FV, DZ = 2, 6, 10, 14, 18, 19, 20, 21
    XV, WV, XA, XB, WA = 22, 27, 28, 30, 32
    E, O = 22, 30
    CS = 38; PR = 56; t = 56
    ACC = 96
    BF = 176; AF = 208
    if OPT['map2']:
        a(f's_mul_i32 s{sTH}, s{T1}, 91\ns_add_u32 s{sTH}, s{sTH}, s{T0}\ns_cmp_ge_u32 s{T0}, 49\ns_cselect_b32 s{T3}, 7, 0\ns_cselect_b32 s{sR}, 43, 37\ns_cselect_b32 s{T2}, 6, 7')
        a(f's_sub_u32 s{T0}, s{T0}, s{T3}\ns_mul_i32 s{sC}, s{T0}, s{sR}\ns_lshr_b32 s{sC}, s{sC}, 8\ns_mul_i32 s{T2}, s{T2}, s{sC}\ns_sub_u32 s{sR}, s{T0}, s{T2}')
        a(f's_sub_u32 s{T2}, 12, s{sR}\ns_sub_u32 s{T3}, 13, s{sC}\ns_cmp_eq_u32 s{T1}, 0\ns_cselect_b32 s{sR}, s{sR}, s{T2}\ns_cselect_b32 s{sC}, s{sC}, s{T3}')
        a_ = a; a = lambda t: None
    a(f's_mul_i32 s{sTH}, s{T1}, 91\ns_add_u32 s{sTH}, s{sTH}, s{T0}\ns_mul_i32 s{T2}, s{T1}, 7\ns_sub_u32 s{T2}, 49, s{T2}')
    a(f's_cmp_ge_u32 s{T0}, s{T2}\ns_cselect_b32 s{T3}, 7, 0\ns_cselect_b32 s{T2}, s{T2}, 0\ns_cselect_b32 s{sCT}, 6, 7\ns_cselect_b32 s{sMX}, 1, 0\ns_sub_u32 s{T0}, s{T0}, s{T2}')
    a(f's_cmp_eq_u32 s{sMX}, s{T1}\ns_cselect_b32 s{sR}, 37, 43\ns_cselect_b32 s{T2}, 7, 6')
    a(f's_mul_i32 s{sC}, s{T0}, s{sR}\ns_lshr_b32 s{sC}, s{sC}, 8\ns_mul_i32 s{T2}, s{T2}, s{sC}\ns_sub_u32 s{sR}, s{T0}, s{T2}')
    a(f's_add_u32 s{sC}, s{sC}, s{T3}\ns_mul_i32 s{sCT}, s{sCT}, s{T1}\ns_add_u32 s{sR}, s{sR}, s{sCT}')
    if OPT['map2']: a = a_
    rot_init(a, OPT['rotf'], 3584)
    a(f'v_and_b32 v{t+1}, 15, v0\nv_lshl_add_u32 v{t}, v{XL+1}, 1, s{sWO}\nv_lshlrev_b32 v{t}, 1, v{t}\nv_xor_b32 v{t+1}, v{t+1}, v{t}')
    a(f's_mul_i32 s{T0}, s{sW}, 56\ns_add_u32 s{T0}, s{T0}, s{sC}\ns_lshl_b32 s{T0}, s{T0}, 8')
    a(f'v_mul_u32_u24 v{t+2}, 224, v{XL+1}\nv_add_lshl_u32 v{t+2}, v{t+1}, v{t+2}, 4\nv_add_u32 v{WV}, s{T0}, v{t+2}')
    a(f's_mul_i32 s{T2}, s{sR}, 158\ns_lshl4_add_u32 s{T2}, s{sWO}, s{T2}\ns_add_u32 s{T2}, s{T2}, s{sJ}\ns_mulk_i32 s{T2}, 896\nv_add_u32 v{XV}, s{T2}, v{XL}')
    for i in range(1, 5): a(f'v_add_u32 v{XV+i}, {i*28672 - (i*1024 if i < 4 else 0)}, v{XV}')
    a(f's_mul_i32 s{sMX}, s{sW}, 5120\ns_lshl_b32 s{sMW}, s{sW}, 12\ns_add_u32 s{sMW}, s{sMW}, {FW0}')
    a(f's_mov_b32 s{SG+2}, {448*3584}\ns_mov_b32 s{SG+3}, s{SX+3}\ns_mov_b32 s{SU+2}, {448*3584 + 1024}\ns_mov_b32 s{SU+3}, s{SX+3}')
    a('s_waitcnt lgkmcnt(0)')
    stamp(a, 'ka')
    em(a, srd_p(SX, 4))
    if not OPT['zpos']: stats_load(a)
    em(a, srd_p(SG, 12) + srd_p(SU, 14, back=1024))
    G = 20
    B = lambda m: bar_gap(G, 5, 4, OPT['fd'], OPT['fm'], m)
    def xd(j):
        e = B(x_bar(OPT['fm'], j)); o = items(x_off(OPT['rotf'], j))
        for i in range(5):
            if i in (0, 4): o.append(Item(f's_add_u32 m0, s{sMX}, {(j%3)*FXS + i*1024}'))
            o.append(Item(f'buffer_load_dwordx4 v{XV+i}, s[{SX}:{SX+3}], s{sXJ} offen offset:{(i&3)*1024} lds', tag=f'x{j}', t0=e, paced=True))
        return o
    def wd(m):
        e = B(m - 4); o = [Item(f's_add_u32 m0, s{sMW}, {(m&3)*16384}', brk=False)]
        o[0].brk = False
        for i in range(2):
            o += items(w_off(OPT['rotf'], m, i, 3584, i*2048))
            o.append(Item(f'buffer_load_dwordx4 v{WV}, s[{SG}:{SG+3}], s{sSO} offen offset:{i*2048} lds', tag=f'w{m}', t0=e, paced=True))
            o.append(Item(f'buffer_load_dwordx4 v{WV}, s[{SU}:{SU+3}], s{sSO} offen offset:{i*2048 + 1024} lds', tag=f'w{m}', t0=e, paced=True))
        return o
    def wslot(k, free): return (RW if k < 4 else RH, (k & 3) * 16384, sMW, k * 16384, free)
    slots = [wslot(4, 0), wslot(5, 0), wslot(2, B(10)), wslot(3, B(11)), (RX, FXS, sMX, FXS, B(11)), wslot(0, B(12)), wslot(1, B(13)), (RX, 2*FXS, sMX, 2*FXS, B(13)), (RX, 0, sMX, 0, B(14))]
    kslot = []
    NG = 14 if OPT['xo'] else 18 - OPT['dw']
    WX = 56
    def wfrag(kk, c):
        i = 16 * kk + 4 * c
        return (i, 'a') if i < 256 else (WX + i - 256, 'v')
    def w2d(kk):
        reg, off, base, moff, free = slots[kslot[kk]]
        prev = [k for k in range(kk) if kslot[k] == kslot[kk]]
        o = [Item(f's_add_u32 m0, s{base}, {moff}')]; o[0].brk = False
        if kk < 14: o += [Item(f's_mul_i32 s{sSO}, s{sRT+kk}, 28')]; sr = SD
        elif OPT['roto']: o += items([f's_add_u32 s{sSO}, s2, {kk-14}', f's_and_b32 s{sSO}, s{sSO}, 3', f's_mul_i32 s{sSO}, s{sSO}, {28*896}']); sr = SO
        else: o += [Item(f's_mov_b32 s{sSO}, {28*(kk-14)*896}')]; sr = SO
        if prev: o.append(Item(f'@wait lg=t{prev[-1]}'))
        for i in range(4):
            o.append(Item(f'buffer_load_dwordx4 v{DZ if (kk >= 14 and i == 3) else DV+i}, s[{sr}:{sr+3}], s{sSO} offen offset:{i*1024} lds', tag=f'k{kk}', t0=free, paced=True, name=f'k{kk}' if i == 3 else None))
        return o
    def w2r(kk, lag):
        reg, off, base, moff, free = slots[kslot[kk]]
        o = [Item(f'@wait vm=k{kk}', after={f'k{kk}': lag})]
        for c in range(4):
            r, k = wfrag(kk, c)
            for jj in range(2):
                o.append(Item(f'ds_read_b64_tr_b16 {V(r + 2*jj, 2, k)}, v{reg+c} offset:{off + jj*2048}', tag=f't{kk}', name=f't{kk}' if (c, jj) == (3, 1) else None))
        return o
    d = add_touches(wd(0) + xd(0) + wd(1) + xd(1) + wd(2) + wd(3), 35, 36, 37)
    p1 = []
    for m in range(10):
        p1 += [xd(j) for j in range(2, 7) if max(0, x_bar(OPT['fm'], j)) == m]
        p1.append(wd(m + 4))
    dma = Stream(d, rate=OPT['rate'])
    trs = Stream([])
    S_ = Sched(a)
    NT = 11
    st8 = dict(last=-999, lag=OPT['lag'])
    def refill(force=False):
        if p1 and p1[0][-1].t0 <= S_.t + 3:
            dma.items += p1.pop(0); return
        kk = len(kslot)
        if not bgs.done(): return
        if kk == NG or S_.t < OPT['w2s'] * G or (p1 and S_.t < st8['last'] + OPT['w2g']): return
        for k, sl in enumerate(slots):
            prev = [q for q in range(kk) if kslot[q] == k]
            if sl[4] <= S_.t and (not prev or S_.when.get(f't{prev[-1]}', 1e9) + (0 if force else 5) <= S_.t):
                kslot.append(k); st8['last'] = S_.t
                dma.items += w2d(kk)
                if kk < NT: trs.items += w2r(kk, st8['lag'])
                return
    dma.refill = refill
    def steady(): dma.rate = OPT['rate2']
    def late(): dma.rate = OPT['rate3']
    S_.flush(dma, 7)
    a.raw('L_f7:')
    stamp(a, 'i7')
    x_read_addr(a, XA, XB, t, 5120)
    for st in range(3): a(f'ds_write_b128 v{t}, v[{t+2}:{t+5}] offset:{st*FXS + 161*128}')
    u = t + 6
    a(f'v_bfe_u32 v{u}, v0, 4, 1\nv_bfe_u32 v{u+1}, v0, 2, 2\nv_lshrrev_b32 v{u+2}, 5, v0\nv_and_b32 v{u+3}, 3, v0')
    a(f'v_lshl_add_u32 v{u+4}, v{u+1}, 1, v{u}\ns_lshl_b32 s{T0}, s{sW}, 1\nv_xor_b32 v{u+4}, s{T0}, v{u+4}\nv_lshlrev_b32 v{u+4}, 5, v{u+4}')
    a(f'v_lshl_add_u32 v{u+4}, v{u+3}, 3, v{u+4}\nv_lshl_add_u32 v{u+4}, v{u+1}, 8, v{u+4}\nv_lshl_add_u32 v{u+4}, v{u+2}, 11, v{u+4}')
    a(f'v_lshl_add_u32 v{u+4}, v{u}, 13, v{u+4}\nv_add_u32 v{WA}, {FW0}, v{u+4}\nv_xor_b32 v{WA+1}, 32, v{WA}')
    S_.flush(dma, 2)
    if OPT['zpos']: stats_load(a)
    em(a, srd(SH, 22, WS_USED) + srd(SDB, 20, 256) + srd(SOUT, 18, 2048 * 896))
    a(f's_mul_i32 s{T0}, s{sW}, {448*896}\ns_add_u32 s{SD}, s16, s{T0}\ns_addc_u32 s{SD+1}, s17, 0')
    a(f's_mul_i32 s{T0}, s{sW}, {112*896}\ns_add_u32 s{SO}, s8, s{T0}\ns_addc_u32 s{SO+1}, s9, 0')
    em(a, srd_c(SD, 448 * 896) + srd_c(SO, 112 * 896))
    if OPT['p2']: a(f's_cmp_ge_u32 s{sC}, 7\ns_cselect_b32 s{T3}, 7, 0\ns_addc_u32 s{sTH}, s{sR}, s{sR}\ns_sub_u32 s{sCT}, s{sC}, s{T3}')
    else: a(f's_mul_i32 s{T3}, s{sTH}, 9363\ns_lshr_b32 s{T3}, s{T3}, 16\ns_mul_i32 s{sCT}, s{T3}, 7\ns_sub_u32 s{sCT}, s{sTH}, s{sCT}\ns_mov_b32 s{sTH}, s{T3}')
    a(f'v_lshrrev_b32 v{u}, 3, v0\nv_and_b32 v{u+1}, 7, v0\nv_lshlrev_b32 v{u+2}, 1, v{XL+1}\nv_xor_b32 v{u+1}, v{u+1}, v{u+2}\nv_lshlrev_b32 v{u+1}, 4, v{u+1}')
    a(f'v_mul_u32_u24 v{u}, 896, v{u}\ns_lshl_b32 s{T3}, s{sCT}, 7\nv_add3_u32 v{DV}, v{u}, v{u+1}, s{T3}')
    for i in range(1, 4): a(f'v_add_u32 v{DV+i}, {6144*i}, v{DV}')
    a(f'v_cmp_gt_u32 vcc, 32, v0\nv_bfe_u32 v{u}, v0, 2, 3\nv_lshrrev_b32 v{u+1}, 5, v0\nv_cndmask_b32 v{DZ}, v{ZT+3}, v{DV+3}, vcc')
    a(f'v_and_b32 v{u+2}, 3, v0\nv_bfe_u32 v{u+3}, v0, 3, 2\nv_lshlrev_b32 v{u}, 7, v{u}\nv_lshl_add_u32 v{u}, v{u+1}, 10, v{u}')
    a(f'v_lshl_add_u32 v{u}, v{u+2}, 3, v{u}\nv_lshl_add_u32 v{u}, v{u+3}, 5, v{u}\nv_add_u32 v{RX}, s{sMX}, v{u}\nv_add_u32 v{RW}, s{sMW}, v{u}')
    for c in range(1, 4): a(f'v_xor_b32 v{RX+c}, {32*c}, v{RX}\nv_xor_b32 v{RW+c}, {32*c}, v{RW}')
    for c in range(4): a(f'v_add_u32 v{RH+c}, 0x10000, v{RW+c}')
    bg = []
    if OPT['rot2'] == 2:
        bg += [f's_and_b32 s{T3}, s2, 7', f's_mul_i32 s{T3}, s{T3}, 7', f's_lshr_b32 s{T3}, s{T3}, 2', f's_lshl_b32 s{sRT}, s{T3}, 10']
    elif OPT['rot2'] == 4:
        bg += [f's_bfe_u32 s{T3}, s2, 0x20001', f's_mul_i32 s{T3}, s{T3}, 7', f's_lshr_b32 s{T3}, s{T3}, 1', f's_lshl_b32 s{sRT}, s{T3}, 10']
    elif OPT['rot2'] == 3:
        bg += [f's_and_b32 s{T3}, s2, 7', f's_mul_i32 s{T3}, s{T3}, 7', f's_lshr_b32 s{T3}, s{T3}, 2', f's_lshl1_add_u32 s{T3}, s{sCT}, s{T3}', f's_sub_u32 s{sRT}, s{T3}, 14',
               f's_min_u32 s{T3}, s{T3}, s{sRT}', f's_lshl_b32 s{sRT}, s{T3}, 10']
    elif OPT['rot2']:
        bg += [f's_mul_i32 s{T3}, s{sTH}, 5', f's_lshl1_add_u32 s{T3}, s{sCT}, s{T3}', f's_mul_i32 s{sRT}, s{T3}, 4682', f's_lshr_b32 s{sRT}, s{sRT}, 16',
               f's_mul_i32 s{sRT}, s{sRT}, 14', f's_sub_u32 s{sRT}, s{T3}, s{sRT}', f's_lshl_b32 s{sRT}, s{sRT}, 10']
    else:
        bg += [f's_mov_b32 s{sRT}, 0']
    for k in range(1, 14):
        bg += [f's_add_u32 s{sRT+k}, s{sRT+k-1}, 1024', [f's_cmp_eq_u32 s{sRT+k}, {14*1024}', f's_cselect_b32 s{sRT+k}, 0, s{sRT+k}']]
    bg += [f'v_lshlrev_b32 v{HV}, 4, v0', f'v_mov_b32 v{FV}, 1', f's_mov_b32 s{sONE}, 1',
           f'v_and_b32 v{PA}, 7, v0', f'v_bfe_u32 v{u}, v0, 3, 1', f'v_lshlrev_b32 v{PA}, 2, v{PA}', f'v_lshl_add_u32 v{PA}, v{u}, 10, v{PA}', f'v_add_u32 v{PA}, {FPAR}, v{PA}',
           f's_lshl2_add_u32 s{T3}, s{sC}, s{sW}', f's_mul_i32 s{sFL}, s{T3}, 4682', f's_lshr_b32 s{sFL}, s{sFL}, 16', f's_lshl2_add_u32 s{sFL}, s{sR}, s{sFL}',
           f's_lshl_b32 s{sFL}, s{sFL}, 7', f's_add_u32 s{sFL}, s{sFL}, {FH}', [f's_add_u32 s{sM1}, s22, s{sFL}', f's_addc_u32 s{sM1+1}, s23, 0'],
           f's_lshl_b32 s{T3}, s{T3}, 10', f's_mul_i32 s{sST}, s{sR}, {2*TH_BYTES}', f's_add_u32 s{sST}, s{sST}, s{T3}',
           f's_lshr_b32 s{T3}, s{sTH}, 1', f's_lshl2_add_u32 s{sFH}, s{T3}, s{sW}', f's_lshl_b32 s{sFH}, s{sFH}, 7', f's_add_u32 s{sFH}, s{sFH}, {FH}',
           [f's_add_u32 s{sFH}, s22, s{sFH}', f's_addc_u32 s{sFH+1}, s23, 0'],
           f's_mul_i32 s{T3}, s{T3}, 158', f's_add_u32 s{sNO}, s{T3}, {157-14}', f's_min_u32 s{sNO}, s{sNO}, {2047-14}', f's_mul_i32 s{sNO}, s{sNO}, 580', f's_lshr_b32 s{sNO}, s{sNO}, 16',
           f's_max_u32 s{T3}, s{T3}, 14', f's_sub_u32 s{T3}, s{T3}, 14', f's_mul_i32 s{T3}, s{T3}, 580', f's_lshr_b32 s{T3}, s{T3}, 16',
           f's_sub_u32 s{sNO}, s{sNO}, s{T3}', f's_lshl2_add_u32 s{sNO}, s{sNO}, 4',
           f's_mul_i32 s{sJ}, s{sTH}, {TH_BYTES}', f's_mul_i32 s{T3}, s{sW}, {14*1024}', f's_add_u32 s{sJ}, s{sJ}, s{T3}',
           f's_mul_i32 s{T3}, s{sW}, {10*1024}', f's_sub_u32 s{sWO}, {56*1024}, s{T3}']
    keep_ptrs(a); em(a, bg[:OPT['nbg']])
    bgs = Stream(items(bg[OPT['nbg']:]))
    left = [OPT['npro'] - 9]
    def more():
        if left[0] and OPT['zi'] < 99: S_.flush(dma, 1); left[0] -= 1
    stats_do(a, more)
    if OPT['tc'] < 0: a(cert_load(ZD + 5), tag='cert')
    S_.flush(dma, left[0])

    tiles = [[(T, 0) for T in range(5)], [(4, 1), (0, 1), (1, 1), (2, 1), (3, 1)]]
    def bread(g, q, k, sl, n):
        T, h = tiles[g][q]
        return f'ds_read_b128 {A(BF + 8*sl + 4*n, 4)}, v{(XB if (T, h) == (4, 1) else XA) + (k & 1)} offset:{((k>>1)%3)*FXS + (10*h + T)*1024}'
    def areads(m):
        return [f'ds_read_b64_tr_b16 {A(AF + 16*(m%3) + 8*mat + 4*uu + 2*jj, 2)}, v{WA + uu} offset:{(m&3)*16384 + jj*4096 + mat*1024}'
                for mat in range(2) for uu in range(2) for jj in range(2)]
    acc = lambda T, h: ACC + 16 * (2 * T + h)
    def mfma(g, q, c, k, sl, n, first):
        dd = V(acc(*tiles[g][q]) + 4 * c, 4)
        return f'{MF} {dd}, {A(AF + 16*(k%3) + 4*c, 4)}, {A(BF + 8*sl + 4*n, 4)}, {0 if first else dd}'
    stamp(a, 'pre')
    a('@wait vm=x0,w0 lg=*\ns_barrier')
    stamp(a, 'b0')
    z = ZD + 6
    src = [f's_mul_i32 s{T0}, s{sR}, 79', f'v_add_u32 v{z}, s{T0}, v0', f'v_min_u32 v{z+1}, 15, v0', f'v_add3_u32 v{z+1}, v{z+1}, s{T0}, 64']
    src += stats_src(z, z + 2) + stats_src(z + 1, z + 2)
    src += [f's_and_b32 s{T0}, s{sW}, 1', f's_lshr_b32 s{T2}, s{sW}, 1', f's_lshl1_add_u32 s{T0}, s{T0}, s{T2}', f's_lshl_b32 s{T1}, s{T0}, 5',
            f's_add_u32 s{T1}, s{T1}, {STATS}', f's_lshl_b32 s{T0}, s{T0}, 9', f's_add_u32 s{T0}, s{T0}, {FPAR}', f'v_lshl_add_u32 v{z+2}, v0, 2, s{T0}']
    sy = sync_stream('Lf', G, OPT['tc'], src, [f'buffer_load_dword v{z+3+i}, v{z+i}, s[{SH}:{SH+3}], s{T1} offen sc1' for i in range(2)], [z + 3, z + 4],
                     [f'ds_write_b32 v{z+2}, v{z+3+i} offset:{256*i}' for i in range(2)], OPT['tl'], OPT['tl'] + OPT['tk'])
    pb = (OPT['tl'] + OPT['tk'] + 2) // 2
    par = []
    for T in range(5):
        for h in (1, 0):
            par.append(Item(f'ds_read2_b32 {V(PR + 4*(2*T + h), 2)}, v{PA} offset0:{16*T + 8*h} offset1:{128 + 16*T + 8*h}', t0=B(pb), tag='pr', name='pr' if (T, h) == (4, 0) else None))
    par.append(Item('@wait lg=pr', after={'pr': 6}))
    for T in range(5):
        for h in (1, 0):
            P = PR + 4 * (2 * T + h)
            par += items([f'v_mul_f32 v{P+2}, {hx(f2u(-LOG2E))}, v{P+1}', f'v_mul_f32 v{P+1}, v{P+1}, v{P+1}', f'v_rcp_f32 v{P+1}, v{P+1}'])
    par += [Item(f'v_mov_b32_dpp v{CS+k}, v{acc(4, 1)+k} row_newbcast:15 row_mask:0xf bank_mask:0xf', t0=25*G + 12) for k in range(16)]
    pars = Stream(par)
    def ck23(): assert sy.done() and bgs.done()
    gemm1(a, S_, G, 5, 4, OPT['fd'], OPT['fm'], areads, bread, mfma, dma, [bgs, sy, pars, trs], {pb: ck23}, {OPT['rs']: steady, 19: late}, True)
    assert not p1
    ntr = sum(f't{k}' in S_.when for k in range(18))
    print('end of gemm: par left', pars.left(), 'groups', len(kslot), 'left in group', sum(x.paced for x in dma.items[dma.i:]), 'read', ntr, [S_.when.get(f'k{k}', 0) // G for k in range(18)], file=sys.stderr)
    NT = max(NG - 9, ntr + (trs.i % 9 > 0)); trs.items = trs.items[:9 * NT]; st8['lag'] = OPT['elag']
    S_.flush(pars)
    stamp(a, 'g1')
    a.raw(';EPI')
    l0 = len(a.lines)
    dma.rate = OPT['erate']
    for it in trs.items[trs.i:]:
        for k in it.after: it.after[k] = OPT['elag']
    def post(f): return [f'@wait vm=h{f}', f's_add_u32 s{T3}, s{sFL}, {f*FST}', f'buffer_atomic_add v{FV}, v1, s[{SH}:{SH+3}], s{T3} offen sc1']
    ACC2, HB, NHB = 176, 96, OPT['nhb']
    XO, XR, WRA, RDA, t = 22, 28, 38, 46, 48
    LEAD = NHB - 2
    nO = OPT['nO']
    hl = [(T, kk) for T in range(nO) for kk in range(14)] + [(T, kk) for T in range(nO) for kk in range(14, 18)] + [(T, kk) for T in range(nO, 5) for kk in range(18)]
    if OPT['nA']:
        mv = [(nO, kk) for kk in range(OPT['nA'])]
        hl = hl[:14*nO] + mv + [x for x in hl[14*nO:] if x not in mv]
    if OPT['xo']: hl = [x for x in hl if x[1] not in (15, 16)]
    HA = 88
    E_ = OPT['xb']; hbuf = {}
    assert E_ <= 4 and E_ * OPT['xs'] <= 18
    freeb = [HB + 4*k for k in range(NHB)] + [144 + 4*k for k in range(E_)]
    def hb(i):
        if i not in hbuf: hbuf[i] = freeb.pop(0)
        return hbuf[i]
    def hload(i, ha=HA):
        T, kk = hl[i]
        if kk < 14: return f'buffer_load_dwordx4 {V(hb(i), 4)}, v{ha+T}, s[{SH}:{SH+3}], s{sRT+kk} offen sc1'
        if OPT['roto']: return f'buffer_load_dwordx4 {V(hb(i), 4)}, v{ha+T}, s[{SH}:{SH+3}], s{SG+kk-14} offen sc1'
        return f'buffer_load_dwordx4 {V(hb(i), 4)}, v{ha+T}, s[{SH}:{SH+3}], s{sWO} offen offset:{(kk-14)*1024} sc1'
    for T in range(5):
        stamp(a, f'T{T}')
        for h in (1, 0):
            P = PR + 4 * (2 * T + h); dd = acc(T, h); OO = O + 4 * h
            ops = []
            for k in range(0, 16, 2): ops.append(f'v_pk_fma_f32 {V(dd+k, 2)}, {V(CS+k, 2)}, {V(P, 2)}, {V(dd+k, 2)} op_sel_hi:[1,0,1]')
            for k in range(0, 8, 2): ops.append(f'v_pk_mul_f32 {V(E+k, 2)}, {V(dd+k, 2)}, {V(P+2, 2)} op_sel_hi:[1,0]')
            for k in range(8): ops.append(f'v_exp_f32 v{E+k}, v{E+k}')
            for k in range(0, 8, 2): ops.append(f'v_pk_mul_f32 {V(dd+k, 2)}, {V(dd+k, 2)}, {V(dd+8+k, 2)}')
            for k in range(0, 8, 2): ops.append(f'v_pk_fma_f32 {V(E+k, 2)}, {V(E+k, 2)}, {V(P, 2)}, {V(P, 2)} op_sel:[0,1,1] op_sel_hi:[1,1,1]')
            for k in range(8): ops.append(f'v_rcp_f32 v{E+k}, v{E+k}')
            for k in range(0, 8, 2): ops.append(f'v_pk_mul_f32 {V(dd+k, 2)}, {V(dd+k, 2)}, {V(E+k, 2)}')
            ops.append(f's_add_u32 s{T2}, s{sST}, {h*TH_BYTES + T*72*1024}')
            for k in range(4): ops.append(f'v_cvt_pk_bf16_f32 v{OO+k}, v{dd+2*k}, v{dd+2*k+1}')
            n2 = 2 * T + 1 - h
            if n2 == OPT['pi']:
                print('at poll: groups', len(kslot), 'tr left', trs.left(), file=sys.stderr)
                if OPT['pd']: S_.flush(trs)
                while not OPT['pd'] and (len(kslot) < NG or not trs.done()):
                    S_.flush(dma); S_.flush(trs)
                a('@wait lg=*'); a(poll_issue(0))
            if n2 == 9 and OPT['pe']:
                S_.flush(dma); a(f'v_add_u32 v168, s{sJ}, v{HV}')
                em(a, poll_check('Lf_p0', 0, 14)); stamp(a, 'p0')
                dma = Stream([Item(hload(i, 168), tag=f'g{i}') for i in range(LEAD)])
            for x in ops:
                a(x)
                if x.startswith(TRANS): S_.gap([dma, trs], 2)
            if n2 == 9: S_.flush(dma)
            a(f'buffer_store_dwordx4 {V(OO, 4)}, v{HV}, s[{SH}:{SH+3}], s{T2} offen sc1', tag=f'h{T}')
            if n2 in (4, 6, 8): em(a, post(n2 // 2 - 2)); stamp(a, f'F{n2//2-2}')
    if OPT['x']:
        pats = dict(s='buffer_store', t='ds_read_b64_tr', d='buffer_load', v='v_')
        a.lines[l0:] = [l for l in a.lines[l0:] if not any(l.strip().startswith(pats[c]) for c in OPT['x'])]
    stamp(a, 'e1')
    fin = f's_atomic_add s{sONE}, s[{sM1}:{sM1+1}], {3*FST}'
    early = ['s_waitcnt vmcnt(0)', fin, 's_waitcnt lgkmcnt(0)', f's_mov_b32 s{sONE}, 0'] if OPT['early'] else []
    a(f'v_add_u32 v{HA}, s{sJ}, v{HV}')
    if not OPT['pe']:
        em(a, poll_check('Lf_p0', 0, 14, early))
        stamp(a, 'p0')
    a(poll_issue(1))
    NR = min(NG, 14) if OPT['dt'] else NG
    rest = Stream(sum((w2r(kk, 0) for kk in range(NT, NR)), []))
    for i in range(0 if OPT['pe'] else LEAD + E_):
        a(hload(i), tag=f'g{i}'); S_.gap([rest], 4, ds=4)
    S_.flush(rest)
    free = [k for k in range(9) if k not in kslot[NR:]]
    wod = []
    for kk in range(NG, 14 if OPT['xo'] else 18):
        kslot.append(free.pop(0)); wod += [x for x in w2d(kk) if not x.body[0].startswith('@wait')]
    wod = Stream(wod, rate=OPT['wrate'], burst=0.1)
    wor = Stream(sum((w2r(kk, 4 * LEAD + 8 if kk >= NG else 0) for kk in range(NR, 14 if OPT['xo'] else 18)), []))
    stamp(a, 'tr')
    bg2 = [f'v_add_u32 v{HA+T}, {T*72*1024}, v{HA}' for T in range(1, 5)]
    bg2 += f"""s_lshr_b32 s{T0}, s{sTH}, 1
s_mul_i32 s{T0}, s{T0}, 158
s_and_b32 s{T1}, s{sTH}, 1
s_and_b32 s{T2}, s{sW}, 1
s_lshl1_add_u32 s{T1}, s{T1}, s{T2}
s_lshr_b32 s{T3}, s{sW}, 1
s_lshl3_add_u32 s{T1}, s{T1}, s{T3}
v_lshl_add_u32 v{t}, v{XL+1}, 1, s{T1}
v_add_u32 v{t+1}, s{T0}, v{t}
v_mul_u32_u24 v{t+1}, 896, v{t+1}
v_and_b32 v{t+3}, 15, v0
v_lshlrev_b32 v{t+2}, 3, v{t+3}
s_lshl_b32 s{T0}, s{sCT}, 7
v_add3_u32 v{XO}, v{t+1}, v{t+2}, s{T0}""".split('\n')
    bg2 += [f'v_add_u32 v{XO+T}, {32*896*T}, v{XO}' for T in range(1, 5)]
    bg2 += f"""v_cmp_gt_u32 vcc, 30, v{t}
v_mov_b32 v{t+1}, {OOB}
v_and_b32 v{t+2}, 7, v0
v_cndmask_b32 v{XO+4}, v{t+1}, v{XO+4}, vcc
v_xor_b32 v{t+1}, v{XL+1}, v{t+2}
v_lshlrev_b32 v{t+1}, 4, v{t+1}
v_lshl_add_u32 v{t}, v{t+3}, 8, v{t+1}
s_lshl_b32 s{T0}, s{sW}, 12
v_add_u32 v{WRA}, s{T0}, v{t}""".split('\n')
    bg2 += [f'v_xor_b32 v{WRA+c}, {64*c}, v{WRA}' for c in range(1, 4)] + [f'v_add_u32 v{WRA+4+c}, 0x10000, v{WRA+c}' for c in range(4)]
    bg2 += f"""s_lshl_b32 s{T0}, s{sW}, 2
v_add_u32 v{t}, s{T0}, v{XL+1}
v_and_b32 v{t+1}, 7, v{t}
v_xor_b32 v{t+1}, v{t+1}, v{t+3}
v_lshlrev_b32 v{t+1}, 4, v{t+1}
v_lshl_add_u32 v{RDA}, v{t}, 8, v{t+1}
v_add_u32 v{RDA+1}, 0x10000, v{RDA}""".split('\n')
    if OPT['roto']:
        for k in range(4): bg2 += [f's_add_u32 s{T0}, s2, {k}', f's_and_b32 s{T0}, s{T0}, 3', f's_lshl_b32 s{T0}, s{T0}, 10', f's_add_u32 s{SG+k}, s{T0}, s{sWO}']
    em(a, bg2[:1]); bg2s = Stream(items(bg2[1:])); bg2s.items[-1].name = 'bg2'
    em(a, poll_check('Lf_p1', 1, 14, early))
    stamp(a, 'p1')
    pre = {}
    if OPT['fp']: pre[OPT['fp']] = ['@wait vm=h4', fin]
    else: a('@wait vm=h4'); stamp(a, 'e2'); a(fin)
    def guard(name, f, want, first):
        stp = first - LEAD - 1
        pre.setdefault(stp - 8, []).append(poll_issue(f)); pre.setdefault(stp, []).extend(poll_check(name, f, want))
        return stp
    guard('Lf_p2', 2, 14, hl.index((2, 0)))
    i3, iO = hl.index((3, 0)), hl.index((0, 14))
    if i3 > iO: i3 = iO - 9
    lastg = max(guard('Lf_p3', 3, 14, i3), 0 if OPT['nochk'] else guard('Lf_p4', 4, f's{sNO}', iO + OPT['ol']))
    first_done = hl.index((0, 17))
    assert lastg < first_done
    pre.setdefault(first_done, []).append('s_barrier')
    t_base = S_.t
    xr = Stream([Item(f'buffer_load_dwordx2 {V(XR + 2*T, 2)}, v{XO+T}, s[{SX}:{SX+3}], 0 offen', tag=f'xr{T}', t0=t_base + 4*(24 + 3*T), after={'bg2': 0}) for T in range(5)])
    RD = (144, 160); U = 48
    def wr(T): return [Item(f'ds_write_b128 v{WRA + c + (4 if T == 4 else 0)}, {V(ACC2 + 16*T + 4*c, 4)} offset:{(T & 3)*16384}', tag=f'pw{T}', paced=True, name=f'pw{T}' if c == 3 else None) for c in range(4)]
    def rdp(T): return [Item(f'ds_read_b128 {V(RD[T&1] + 4*w, 4)}, v{RDA + (T == 4)} offset:{(T & 3)*16384 + w*4096}', tag=f'p{T}', name=f'p{T}' if w == 3 else None) for w in range(4)]
    def unp(T):
        x = XR + 2 * T
        return [f'@wait vm=xr{T}', f'v_lshlrev_b32 v{U}, 16, v{x}', f'v_and_b32 v{U+1}, 0xffff0000, v{x}', f'v_lshlrev_b32 v{U+2}, 16, v{x+1}', f'v_and_b32 v{U+3}, 0xffff0000, v{x+1}']
    def fin2(T, pk):
        x = XR + 2 * T; b = RD[T & 1]
        if pk: o = [f'v_pk_add_f32 {V(U+k, 2)}, {V(U+k, 2)}, {V(b+4*w+k, 2)}' for w in range(4) for k in (0, 2)]
        else: o = [f'v_add_f32 v{U+k}, v{U+k}, v{b+4*w+k}' for w in range(4) for k in range(4)]
        return o + [f'v_cvt_pk_bf16_f32 v{x}, v{U}, v{U+1}', f'v_cvt_pk_bf16_f32 v{x+1}, v{U+2}, v{U+3}', f'buffer_store_dwordx2 {V(x, 2)}, v{XO+T}, s[{SOUT}:{SOUT+3}], 0 offen {OPT["ofl" if pk else "of"].replace("+", " ")}']
    assert NHB <= 12
    wrs = Stream([], rate=0.27, burst=0.1); red = Stream([]); outs = Stream([])
    shadow = [T for T in range(5) if len(hl) - hl.index((T, 17)) > 14]
    CH = 2 if OPT['chain'] else 1
    nxt = [LEAD + E_]
    ends = list(range(CH - 1, len(hl) - OPT['lc'], CH)) + [len(hl) - 1]
    for i in ends:
        T, kk = hl[i]
        if i == len(hl) - 1:
            CH = OPT['lc']
            w_ = wr(T)
            for c in range(4): w_[c].t0 = S_.t + CH * (c + 1) + 3
            wrs.items += w_
        a(f'@wait vm=g{i}')
        for q in range(i - CH + 1, i + 1): stamp(a, f'h{q}')
        fx = []
        for q in range(i - CH + 1, i + 1):
            due = [x for x in range(nxt[0], min(q + LEAD + max(0, E_ - q // OPT['xs']) + 1, len(hl))) if x < iO or q + LEAD >= iO + OPT['ol']][:2]
            fx += [Item(hload(x), tag=f'g{x}', t0=S_.t + 4 * (q - i + CH - 1) + 2 * n_) for n_, x in enumerate(due)]
            nxt[0] += len(due)
            fx += items(pre.get(q, []))
        fx = Stream(fx)
        for c in range(4):
            for q in (range(i - CH + 1, i + 1) if c % 2 == 0 or kk < 2 else range(i, i - CH, -1)):
                r, k = wfrag(hl[q][1], c)
                if OPT['xo'] and hl[q][1] >= 14 and (c >> 1) != (q & 1): continue
                dd = V(ACC2 + 16 * T + 4 * c, 4)
                a(f'{MF} {dd}, {V(r, 4, k)}, {V(hb(q), 4)}, {dd if hl[q][1] else 0}')
                S_.gap([fx, wod, wrs, xr, wor, bg2s, outs, red], 1 if (c, q) == (3, i if kk < 2 else i - CH + 1) else 2)
        S_.flush(fx)
        freeb += [hb(q) for q in range(i - CH + 1, i + 1) if hb(q) < 144 or i < 30]
        if i + LEAD + 4 >= iO: assert bg2s.done() and wor.done() and not OPT['nochk'] or not wor.items, wor.left()
        if kk == 17 and i < len(hl) - 1:
            w_ = wr(T); w_[0].t0 = S_.t + 1
            wrs.items += w_
            grp = [T - 1, T] if OPT['pair'] and T & 1 else ([] if OPT['pair'] and T + 1 in shadow else [T])
            if T in shadow and grp:
                red.items += [Item([f'@wait lg=pw{T}', 's_barrier'], after={f'pw{T}': 6}, t0=S_.t + OPT['rt'])] + sum((rdp(x) for x in grp), [])
                for x in grp:
                    red.items += items(unp(x)) + [Item(f'@wait lg=p{x}', after={f'p{x}': 5})] + items(fin2(x, False)[:-1])
                    red.items[-1].name = f'r{x}'
                    outs.items.append(Item(fin2(x, False)[-1], after={f'r{x}': 1}, t0=t_base + OPT['ost'] * 4))
    todo = [T for T in range(5) if T not in shadow]
    if red.done():
        S_.flush(outs); em(a, unp(todo[0])); S_.flush(wrs)
    else:
        S_.flush(wrs); S_.flush(red); S_.flush(outs); em(a, unp(todo[0]))
    a('s_waitcnt lgkmcnt(0)\ns_barrier')
    stamp(a, 'red')
    S_.flush(Stream(rdp(todo[0])))
    for k, T in enumerate(todo):
        if k + 1 < len(todo): S_.flush(Stream(rdp(todo[k + 1])))
        if k: em(a, unp(T))
        a(f'@wait lg=p{T}')
        em(a, fin2(T, True))

AXS = 130 * 128; AW0 = 3 * AXS; APAR = AW0 + 4 * 24576
def attn(a, split):
    XV, WV, XA, XB, WA = 2, 4, 7, 9, 11
    PA, RA, CB = 15, 16, 17
    OA = 20
    MK = 28
    CV = 36
    PR = 38
    t = 56
    Q, K, V0, V1 = 64, 128, 192, 224
    BF = 0; AF = 32
    if OPT['map2']:
        a(f's_sub_u32 s{T0}, s{T0}, s{T2}\ns_lshl_b32 s{T2}, s{sC}, 3\ns_lshr_b32 s{T2}, 0x160b1900, s{T2}\ns_and_b32 s{T2}, s{T2}, 31\ns_add_u32 s{sNO}, s{T0}, s{T2}')
        a(f's_or_b32 s{T0}, s2, 4\ns_cmpk_eq_u32 s{T0}, 255\ns_cbranch_scc1 L_idle0\ns_mul_i32 s{sC}, s{sNO}, 57\ns_lshr_b32 s{sC}, s{sC}, 9')
        a(f's_sub_u32 s{T0}, s{T1}, s{sC}\ns_mul_i32 s{T0}, s{T0}, 9\ns_add_u32 s{sR}, s{sNO}, s{T0}\ns_xor_b32 s{sC}, s{sC}, 1')
    else: a(f's_mul_i32 s{sR}, s{T1}, 9\ns_add_u32 s{sR}, s{sR}, s{T0}\ns_sub_u32 s{sR}, s{sR}, 23')
    if OPT['gx']: a(f's_xor_b32 s{sC}, s{sC}, 1')
    rot_init(a, OPT['rota'], 2688)
    a(f'v_lshl_add_u32 v{t}, v{XL+1}, 1, s{sWO}\nv_lshlrev_b32 v{t}, 1, v{t}\nv_sub_u32 v{t+1}, v0, v{t}\nv_and_b32 v{t+1}, 15, v{t+1}')
    a(f'v_cmp_gt_u32 vcc, 14, v{t+1}' if OPT['zpad'] else f'v_min_u32 v{t+1}, 13, v{t+1}')
    a(f's_mul_i32 s{T0}, s{sW}, 48\ns_add_u32 s{T0}, s{T0}, s{sC}\ns_mulk_i32 s{T0}, 224')
    a(f'v_mul_u32_u24 v{t+2}, 168, v{XL+1}\nv_add_lshl_u32 v{t+2}, v{t+1}, v{t+2}, 4\nv_add_u32 v{WV+2}, s{T0}, v{t+2}')
    if OPT['zpad']: a(f'v_cndmask_b32 v{WV+2}, v{ZT+3}, v{WV+2}, vcc')
    a(f'v_add_u32 v{WV+1}, 128, v{WV+2}\nv_add_u32 v{WV}, 256, v{WV+2}')
    a(f's_mul_i32 s{sMW}, s{sW}, 6144\ns_add_u32 s{sMW}, s{sMW}, {AW0}')
    a(f's_mov_b32 s{SG+2}, {448*2688 + 256}\ns_mov_b32 s{SG+3}, s{SX+3}')
    a('s_waitcnt lgkmcnt(0)')
    stamp(a, 'ka')
    em(a, srd_p(SX, 4)); stats_load(a)
    def help_w():
        r0 = OPT['aw']
        if OPT['rotf'] == 'h3':
            a(f's_lshr_b32 s{T0}, s2, 3\ns_lshl1_add_u32 s{T0}, s{T0}, s{sWO}\ns_mul_i32 s{T2}, s{T1}, 192\ns_add_u32 s{T0}, s{T0}, s{T2}\ns_add_u32 s{T0}, s{T0}, {r0 - 46}')
            a(f'v_mul_u32_u24 v18, 37, v0\nv_lshrrev_b32 v18, 8, v18\nv_mul_u32_u24 v36, 7, v18\nv_sub_u32 v36, v0, v36\nv_mad_u32_u24 v18, v18, 18, s{T0}')
            a(f's_lshl_b32 s{T2}, s{T1}, 8\ns_add_u32 s{T2}, s{T2}, 191\ns_mul_i32 s{T0}, s{sC}, 7\nv_min_u32 v18, s{T2}, v18\nv_mad_u32_u24 v18, v18, 28, v36')
            a(f's_cmp_eq_u32 s{sJ}, 0\ns_cselect_b64 s[{sM1}:{sM1+1}], s[12:13], s[14:15]\nv_add_lshl_u32 v18, v18, s{T0}, 7\nglobal_load_dword v19, v18, s[{sM1}:{sM1+1}]')
            return
        a(f's_lshr_b32 s{T0}, s2, 3\ns_sub_u32 s{T0}, s{T0}, 23\ns_lshl1_add_u32 s{T0}, s{T0}, s{sWO}\ns_lshl1_add_u32 s{T0}, s{T0}, s{T1}\ns_add_u32 s{T0}, s{T0}, {r0}')
        a(f'v_mul_u32_u24 v18, 37, v0\nv_lshrrev_b32 v18, 8, v18\nv_mul_u32_u24 v36, 7, v18\nv_sub_u32 v36, v0, v36\nv_mad_u32_u24 v18, v18, 36, s{T0}')
        a(f's_mul_i32 s{T0}, s{sC}, 7\nv_min_u32 v18, 447, v18\nv_mad_u32_u24 v18, v18, 28, v36\ns_cmp_eq_u32 s{sJ}, 0\ns_cselect_b64 s[{sM1}:{sM1+1}], s[12:13], s[14:15]')
        if OPT['a6']:
            a(f's_add_u32 s{T2}, s{sC}, 1\ns_bitcmp0_b32 s{T2}, 1\ns_cselect_b32 s{T2}, -1, 0\ns_and_b32 s{T0}, s{sC}, 2\ns_mul_i32 s{T0}, s{T0}, 7')
            a(f'v_add_lshl_u32 v18, v18, s{T0}, 7\nv_and_b32 v18, s{T2}, v18\nglobal_load_dword v19, v18, s[{sM1}:{sM1+1}]\nglobal_load_dword v19, v18, s[{sM1}:{sM1+1}] offset:896')
            return
        a(f'v_add_lshl_u32 v18, v18, s{T0}, 7\nglobal_load_dword v19, v18, s[{sM1}:{sM1+1}]')
    def help_d():
        if OPT['a6']:
            a(f's_sub_u32 s{T0}, s2, 184\ns_lshr_b32 s{T0}, s{T0}, 1\ns_lshl2_add_u32 s{T0}, s{T0}, s{sW}\ns_mul_i32 s{T2}, s{T0}, 88\ns_mul_i32 s{T0}, s{T0}, 22')
            a(f'v_min_u32 v18, 43, v0\nv_lshl_add_u32 v18, v18, 1, s{T2}\ns_add_u32 s{T2}, s{sC}, 1\ns_bfe_i32 s{T2}, s{T2}, 0x10001\nv_min_u32 v18, 12542, v18\nv_lshlrev_b32 v18, 7, v18')
            a(f'v_bfi_b32 v18, s{T2}, 0, v18\nglobal_load_dword v19, v18, s[16:17]\nglobal_load_dword v19, v18, s[16:17] offset:128')
            a(f'v_min_u32 v18, 21, v0\nv_add_u32 v18, s{T0}, v18\nv_min_u32 v18, 3135, v18\nv_lshlrev_b32 v18, 7, v18\nv_bfi_b32 v18, s{T2}, 0, v18\nglobal_load_dword v19, v18, s[8:9]')
            return
        a(f's_lshl2_add_u32 s{T0}, s{sR}, s{sC}' if OPT['map2'] else f's_sub_u32 s{T0}, s2, 184')
        a(f's_lshl2_add_u32 s{T0}, s{T0}, s{sW}\ns_mul_i32 s{T2}, s{T0}, 44\ns_mul_i32 s{T0}, s{T0}, 11')
        a(f'v_min_u32 v18, 43, v0\nv_add_u32 v18, s{T2}, v18\nv_min_u32 v18, 12543, v18\nv_lshlrev_b32 v18, 7, v18\nglobal_load_dword v19, v18, s[16:17]')
        a(f'v_min_u32 v18, 10, v0\nv_add_u32 v18, s{T0}, v18\nv_min_u32 v18, 3135, v18\nv_lshlrev_b32 v18, 7, v18\nglobal_load_dword v19, v18, s[8:9]')
    if OPT['aw'] and not OPT['awp']: split(); help_w()
    if OPT['ad'] == 1: help_d()
    em(a, srd_p(SG, 6, back=256))
    G = 24
    B = lambda m: bar_gap(G, 4, 6, OPT['ad_'], OPT['am'], m)
    def xd(j):
        o = items(x_off(OPT['rota'], j))
        for i in range(4):
            if i % 2 == 0: o.append(Item(f's_add_u32 m0, s{sMX}, {(j%3)*AXS + (i>>1)*(2048 - 896)}'))
            o.append(Item(f'buffer_load_dwordx4 v{XV + (i&1)}, s[{SX}:{SX+3}], s{sXJ} offen offset:{(i&1)*1024 + (i>>1)*896} lds', tag=f'x{j}', t0=B(x_bar(OPT['am'], j)), paced=True))
        return o
    def wd(h):
        o = []
        for i in range(2):
            o.append(Item(f's_add_u32 m0, s{sMW}, {(h%4)*24576 + i*3072}')); o[-1].brk = False
            o += items(w_off(OPT['rota'], h, i, 2688, 0))
            o += [Item(f'buffer_load_dwordx4 v{WV+m}, s[{SG}:{SG+3}], s{sSO} offen offset:{m*1024} lds', tag=f'w{h}', t0=B(h - 4), paced=True) for m in range(3)]
        return o
    d = wd(0) + xd(0) + wd(1)
    for h in range(2, 14):
        if h in (2, 4): d += xd(h // 2)
        for j in range(3, 7):
            if x_bar(OPT['am'], j) == h - 4: d += xd(j)
        d += wd(h)
    d = add_touches(d, 36, 18, 19)
    if OPT['ap']:
        k0 = OPT['ap']; n = (14 - k0) * 224; per = -(-n // 9)
        d += items([f's_and_b32 s79, s2, 7', f's_mul_i32 s79, s79, 7', f's_lshr_b32 s79, s79, 2', f's_add_u32 s79, s79, {k0}', f's_mul_i32 s79, s79, 224',
                    f's_lshr_b32 s{sPL}, s2, 3', f's_sub_u32 s{sPL}, s{sPL}, 23', f's_mul_i32 s{sSPIN}, s{sPL}, {per}', f's_add_u32 s79, s79, s{sSPIN}', f's_mul_i32 s{sSPIN}, s{sW}, 3136'])
        for k in range(0, per, 64):
            d += items([f'v_min_u32 v18, {min(63, per - 1 - k)}, v0', f'v_add_u32 v18, s79, v18', f'v_subrev_u32 v36, 3136, v18', 'v_min_u32 v18, v18, v36', f'v_subrev_u32 v36, 3136, v18', 'v_min_u32 v18, v18, v36',
                        f'v_add_lshl_u32 v18, v18, s{sSPIN}, 7', 's_add_u32 s79, s79, 64']) + [Item('global_load_dword v19, v18, s[0:1]', paced=True)]
        d += items([f's_mul_i32 s79, s{sPL}, 88', f's_mul_i32 s{sSPIN}, s{sW}, 784'])
        for k in (0, 44):
            d += items([f'v_min_u32 v18, 43, v0', f'v_add3_u32 v18, v18, s79, {k}', 'v_min_u32 v18, 783, v18', f'v_add_lshl_u32 v18, v18, s{sSPIN}, 7']) + [Item('global_load_dword v19, v18, s[18:19]', paced=True, name='apd')]
    dma = Stream(d, rate=OPT['arate0'])
    def steady(): dma.rate = OPT['arate']
    S_ = Sched(a)
    S_.flush(dma, 6)
    if not OPT['aw'] or OPT['awp']: split()
    stamp(a, 'i7')
    a(f's_mul_i32 s{T2}, s{sR}, 113\ns_lshl4_add_u32 s{T2}, s{sW}, s{T2}\ns_mul_i32 s{T2}, s{T2}, 896\ns_lshl_b32 s{sMX}, s{sW}, 12')
    a(f'v_add_u32 v{XV}, s{T2}, v{XL}\nv_add_u32 v{XV+1}, {64*896 - 1024}, v{XV}')
    S_.flush(dma, 2)
    em(a, srd(SH, 22, WS_USED) + srd(SDB, 20, 256)); keep_ptrs(a)
    x_read_addr(a, XA, XB, t, 4096)
    for st in range(3): a(f'ds_write_b128 v{t}, v[{t+2}:{t+5}] offset:{st*AXS + 129*128}')
    u = 20
    a(f'v_bfe_u32 v{u}, v0, 4, 1\nv_bfe_u32 v{u+1}, v0, 2, 2\nv_lshrrev_b32 v{u+2}, 5, v0\nv_and_b32 v{u+3}, 3, v0')
    a(f'v_lshl_add_u32 v{u+4}, v{u+1}, 1, v{u}\nv_lshl_add_u32 v{u+4}, v{u+4}, 2, v{u+3}\ns_mul_i32 s{T0}, s{sW}, 56\nv_lshl_add_u32 v{u+4}, v{u+4}, 3, s{T0}')
    a(f'v_add_u32 v{u+5}, 32, v{u+4}')
    if OPT['zpad']: a(f's_sub_u32 s{T0}, 168, s{T0}\nv_cmp_eq_u32 vcc, 3, v{u+3}\nv_add_u32 v{u+6}, s{T0}, v{u+5}\nv_cndmask_b32 v{u+5}, v{u+5}, v{u+6}, vcc')
    a(f'v_and_b32 v{u+4}, 0xff, v{u+4}\nv_and_b32 v{u+5}, 0xff, v{u+5}')
    a(f'v_mul_u32_u24 v{u}, 12288, v{u}\nv_mul_u32_u24 v{u+2}, 3072, v{u+2}\nv_lshl_add_u32 v{u}, v{u+1}, 8, v{u}\nv_add_u32 v{u}, v{u}, v{u+2}\nv_add_u32 v{u}, {AW0}, v{u}')
    a(f'v_add_u32 v{WA}, v{u}, v{u+4}\nv_add_u32 v{WA+1}, v{u}, v{u+5}\nv_add_u32 v{WA+2}, 49152, v{WA}\nv_add_u32 v{WA+3}, 49152, v{WA+1}')
    left = [OPT['anpro'] - 8]
    def more():
        if left[0] and OPT['zi'] < 99: S_.flush(dma, 1); left[0] -= 1
    if not OPT['azs']: stats_do(a, more)
    else: a.raw(';HOP')
    S_.flush(dma, left[0])
    if OPT['ad'] == 2: help_d()
    if OPT['ad'] > 2:
        rec = []; a_ = a; a = lambda t: rec.extend(t.split('\n')); help_d(); a = a_
        k = [i for i, x in enumerate(dma.items) if x.paced][OPT['ad'] - 1] + 1
        dma.items[k:k] = items([x.replace(f's{T0}', 's79').replace(f's{T2}', f's{sPL}') for x in rec])

    tiles = [[0, 1, 2, 3], [7, 4, 5, 6]]
    def bread(g, q, k, sl, n):
        T = tiles[g][q]
        return f'ds_read_b128 {A(BF + 8*sl + 4*n, 4)}, v{(XB if T == 7 else XA) + (k & 1)} offset:{((k>>1)%3)*AXS + (8*(T&1) + (T>>1))*1024}'
    def areads(h):
        o = []
        for mat in range(3):
            for ct in range(2):
                for jj in range(2):
                    off = (h % 4) * 24576 + jj * 6144 + mat * 1024
                    o.append(f'ds_read_b64_tr_b16 {A(AF + 24*(h%3) + 8*mat + 4*ct + 2*jj, 2)}, v{WA + ct + (2 if off >= 49152 else 0)} offset:{off % 49152}')
        return o
    def acc(T, c): return (Q + 8*T, Q + 8*T + 4, K + 8*T, K + 8*T + 4, V0 + 4*T, V1 + 4*T)[c]
    def mfma(g, q, c, k, sl, n, first):
        dd = V(acc(tiles[g][q], c), 4); w_, x_ = A(AF + 24*(k%3) + 4*c, 4), A(BF + 8*sl + 4*n, 4)
        return f'{MF} {dd}, {w_ if c < 4 else x_}, {x_ if c < 4 else w_}, {0 if first else dd}'
    stamp(a, 'pre')
    a('@wait vm=x0,w0 lg=*\ns_barrier')
    stamp(a, 'b0')
    if OPT['atc'] < 0: a(cert_load(27), tag='cert')
    bg = [f'v_and_b32 v{t}, 15, v0', f'v_lshlrev_b32 v{PA}, 2, v{t}', f'v_add_u32 v{PA}, {APAR}, v{PA}',
          f'v_lshlrev_b32 v{RA}, 4, v{XL+1}', f'v_add_u32 v{RA}, {APAR}, v{RA}', f'v_cmp_gt_u32 s[{sM1}:{sM1+1}], 48, v0',
          f'v_lshlrev_b32 v{t+1}, 2, v{XL+1}', f'v_sub_u32 v{t+1}, v{t}, v{t+1}', f'v_mov_b32 v{t+3}, {hx(f2u(-1e30))}']
    for i in range(8):
        bg += [f'v_add_u32 v{t+2}, {(16 if i < 4 else 0) - (i & 3)}, v{t+1}', f'v_cmp_gt_u32 s[{sM0}:{sM0+1}], 8, v{t+2}',
               f'v_cndmask_b32 v{MK+i}, v{t+3}, 0, s[{sM0}:{sM0+1}]']
    kA, kB, kC, kD = sTH, sCT, sJ, sWO
    bg += [f's_mul_i32 s{kD}, s{sR}, 113', f's_lshl2_add_u32 s{T3}, s{sC}, s{sW}', f's_add_u32 s{T3}, s{T3}, 56', f's_lshl_b32 s{sST}, s{T3}, 10',
           [f's_cmp_eq_u32 s{sR}, 0', f's_cselect_b32 s{T3}, 0, 14'], f's_mov_b32 s{kA}, 26547', f's_mov_b32 s{kB}, {TH_BYTES}', f's_mov_b32 s{kC}, {72*1024}',
           f'v_mov_b32 v{t+7}, {OOB}']
    for p in range(2):
        bg += [f'v_lshl_add_u32 v{t+1}, v0, 1, {p}', f'v_add_u32 v{t+2}, s{kD}, v{t+1}', f'v_mul_u32_u24 v{t+3}, s{kA}, v{t+2}', f'v_lshrrev_b32 v{t+3}, 22, v{t+3}',
               f'v_mul_u32_u24 v{t+4}, 158, v{t+3}', f'v_sub_u32 v{t+2}, v{t+2}, v{t+4}',
               f'v_bfe_u32 v{t+4}, v{t+2}, 4, 1', f'v_lshl_add_u32 v{t+3}, v{t+3}, 1, v{t+4}', f'v_mul_u32_u24 v{t+3}, s{kB}, v{t+3}',
               f'v_lshrrev_b32 v{t+4}, 5, v{t+2}', f'v_mad_u32_u24 v{t+3}, v{t+4}, s{kC}, v{t+3}',
               f'v_bfe_u32 v{t+4}, v{t+2}, 1, 3', f'v_lshl_add_u32 v{t+3}, v{t+4}, 4, v{t+3}', f'v_and_b32 v{t+4}, 1, v{t+2}', f'v_lshl_add_u32 v{OA+p}, v{t+4}, 7, v{t+3}',
               f'v_cmp_le_u32 s[{sM0}:{sM0+1}], s{T3}, v{t+1}', f'v_cndmask_b32 v{OA+p}, v{t+7}, v{OA+p}, s[{sM0}:{sM0+1}]']
    bg += [f'v_cmp_gt_u32 s[{sM0}:{sM0+1}], 63, v0', f'v_cndmask_b32 v{OA+1}, v{t+7}, v{OA+1}, s[{sM0}:{sM0+1}]']
    bg += [f's_add_u32 s{T3}, s{T3}, s{kD}', f's_mul_i32 s{T3}, s{T3}, 26547', f's_lshr_b32 s{T3}, s{T3}, 22', f's_add_u32 s{kD}, s{kD}, 126', f's_mul_i32 s{kD}, s{kD}, 26547',
           f's_lshr_b32 s{kD}, s{kD}, 22', f's_sub_u32 s{kD}, s{kD}, s{T3}', f'v_cmp_ge_u32 s[{sM0}:{sM0+1}], s{kD}, v0', f'v_lshlrev_b32 v{CB}, 9, v0',
           f's_lshl2_add_u32 s{T3}, s{T3}, s{sC}', f's_lshl_b32 s{T3}, s{T3}, 7', f's_add_u32 s{sFL}, s{T3}, {FH + 4*FST}',
           f'v_cndmask_b32 v{CB}, v{t+7}, v{CB}, s[{sM0}:{sM0+1}]']
    bgs = Stream(items(bg))
    z = ZD + 6
    src = [f's_and_b32 s{T0}, s{sW}, 1', f's_mul_i32 s{T1}, s{sR}, 113', f's_add_u32 s{T1}, s{T1}, s{T0}', f's_lshr_b32 s{T2}, s{T1}, 1', f'v_add_u32 v{z}, s{T2}, v0']
    src += stats_src(z, z + 1)
    src += [f's_and_b32 s{T1}, s{T1}, 1', f's_lshr_b32 s{T2}, s{sW}, 1', f's_lshl1_add_u32 s{T1}, s{T1}, s{T2}', f's_lshl_b32 s{T1}, s{T1}, 5',
            f's_add_u32 s{T1}, s{T1}, {STATS}', f's_lshl1_add_u32 s{T0}, s{T0}, s{T2}', f's_lshl_b32 s{T0}, s{T0}, 8', f's_add_u32 s{T0}, s{T0}, {APAR}',
            f'v_lshl_add_u32 v{z+1}, v0, 2, s{T0}']
    sy = sync_stream('La', G, OPT['atc'], src, [f'buffer_load_dword v{z+2}, v{z}, s[{SH}:{SH+3}], s{T1} offen sc1'], [z + 2], [f'ds_write_b32 v{z+1}, v{z+2}'], OPT['atl'], OPT['atl'] + 5, 27)
    par = [Item(f'ds_read2_b32 {V(PR + 2*T, 2)}, v{PA} offset0:{128*(T>>2) + 16*(T&3)} offset1:{64 + 128*(T>>2) + 16*(T&3)}', t0=B(12), tag='pr') for T in range(8)]
    CQ, CK = 2, 54
    par += [Item(f'v_mov_b32_dpp v{CK+k}, v{K+56+k} row_newbcast:15 row_mask:0xf bank_mask:0xf', t0=25*G + 16) for k in range(8)]
    for c, sv in enumerate((V0 + 31, V1 + 31)):
        par += items([f'v_mov_b32 v62, v{sv}', f'v_mov_b32 v63, v{sv}', 'v_permlane32_swap_b32 v62, v63', f'v_mov_b32 v{CV+c}, v63', f'v_permlane16_swap_b32 v63, v{CV+c}'])
    par += [Item(f'v_mov_b32_dpp v{CQ+k}, v{Q+56+k} row_newbcast:15 row_mask:0xf bank_mask:0xf', t0=27*G + 13) for k in range(8)]
    par[15].name = 'ck'
    pars = Stream(par)
    sh = [Item('@wait lg=pr', after={'ck': 0})]
    for q, T in enumerate(tiles[1] if OPT['ash'] else []):
        P = PR + 2 * T; t0 = 25 * G + 12 * (q + 1) + 3
        o = [f'v_fmac_f32 v{K+8*T+k}, v{CK+k}, v{P}' for k in range(8)] + [f'v_mul_f32 v{K+8*T+k}, v{K+8*T+k}, v{P+1}' for k in range(8)]
        sh += items(o, t0=t0); sh[-1].name = f'K{T}'
        if T != 7:
            sh += items([f'v_fmac_f32_dpp v{Q+8*T+k}, v{Q+56+k}, v{P} row_newbcast:15 row_mask:0xf bank_mask:0xf' for k in range(8)], t0=t0); sh[-1].name = f'Q{T}'
    shs = Stream(sh)
    hooks = {5: steady}
    if OPT['azs']:
        zb_ = min(m for m in range(14) if B(m) > OPT['azs'] * G + 12)
        def late_stats():
            n0 = len(a.lines); stats_do(a); a.lines.remove(';HOP') if a.lines.count(';HOP') > 1 else None
            a('@wait lg=*')
        hooks[OPT['azs']] = late_stats
        assert OPT['atc'] < 0
        sy.items[0].t0 = B(zb_)
    if OPT['adip']: hooks[OPT['adip']] = lambda: (steady() if OPT['adip'] == 5 else None, S_.flush(bgs))
    def ck25(): assert sy.done() and bgs.done() and dma.done()
    gemm1(a, S_, G, 4, 6, OPT['ad_'], OPT['am'], areads, bread, mfma, dma, [sy, pars, shs] + ([] if OPT['adip'] else [bgs]), {12: ck25}, hooks)
    while shs.i > 1 and not shs.done() and shs.items[shs.i - 1].name is None: S_.put(shs, shs.items[shs.i])
    print('shadow', [k for k in S_.when if k[0] in 'KQ'], file=sys.stderr)
    assert dma.done()
    S_.flush(pars)
    a('@wait lg=*')
    stamp(a, 'g1')
    a.raw(';EPI')
    def SR(T): return (Q + 32 + 8 * T) if T < 4 else (K + 32 + 8 * (T - 4))
    RB = (2, 54)
    def rread(T):
        for ar in range(2): a(f'ds_read_b128 {V(RB[T&1] + 4*ar, 4)}, v{RA} offset:{512*(T>>2) + 256*ar + 64*(T&3)}', tag=f'R{T}')
    for T in range(8):
        P = PR + 2 * T; dd = Q + 8 * T; dk = K + 8 * T
        if f'Q{T}' not in S_.when:
            for k in range(0, 8, 2): a(f'v_pk_fma_f32 {V(dd+k, 2)}, {V(CQ+k, 2)}, {V(P, 2)}, {V(dd+k, 2)} op_sel_hi:[1,0,1]')
        if f'K{T}' not in S_.when:
            for k in range(0, 8, 2): a(f'v_pk_fma_f32 {V(dk+k, 2)}, {V(CK+k, 2)}, {V(P, 2)}, {V(dk+k, 2)} op_sel_hi:[1,0,1]')
            for k in range(0, 8, 2): a(f'v_pk_mul_f32 {V(dk+k, 2)}, {V(dk+k, 2)}, {V(P, 2)} op_sel:[0,1] op_sel_hi:[1,1]')
    rread(0); rread(1)
    cv = []
    for T in range(8):
        cv += [f'v_cvt_pk_bf16_f32 v{Q+4*T+k}, v{Q+8*T+2*k}, v{Q+8*T+2*k+1}' for k in range(4)]
        cv += [f'v_cndmask_b32 v{Q+4*T+k}, 0, v{Q+4*T+k}, s[{sM1}:{sM1+1}]' for k in (() if OPT['zpad'] else (2, 3))]
        cv += [f'v_cvt_pk_bf16_f32 v{K+4*T+k}, v{K+8*T+2*k}, v{K+8*T+2*k+1}' for k in range(4)]
    n8 = len(cv) // 8
    for T in range(8):
        em(a, cv[n8*T:n8*(T+1)])
        a(f'@wait lg=R{T}')
        b = RB[T & 1]
        for c, base in enumerate((V0, V1)):
            for k in (0, 2): a(f'v_pk_fma_f32 {V(base+4*T+k, 2)}, {V(b+k, 2)}, {V(CV, 2)}, {V(base+4*T+k, 2)} op_sel:[0,{c},0] op_sel_hi:[1,{c},1]')
        for c, base in enumerate((V0, V1)):
            for k in (0, 2): a(f'v_pk_mul_f32 {V(base+4*T+k, 2)}, {V(base+4*T+k, 2)}, {V(b+4+k, 2)}')
        if T < 6: rread(T + 2)
    fill = [f'v_cvt_pk_bf16_f32 v{base+2*T+k}, v{base+4*T+2*k}, v{base+4*T+2*k+1}' for T in range(8) for base in (V0, V1) for k in range(2)]
    fill += [f'v_mul_f32 v{PR + 2*T + 1}, {hx(f2u(LOG2E * 28 ** -0.5))}, v{PR + 2*T + 1}' for T in range(8)]
    for T in range(8):
        if T & 3:
            a(f'{MF} {V(SR(T), 4)}, {V(K + 4*(T-1), 4)}, {V(Q + 4*T, 4)}, {V(MK, 4)}'); em(a, fill[:2]); del fill[:2]
        a(f'{MF} {V(SR(T) + 4, 4)}, {V(K + 4*T, 4)}, {V(Q + 4*T, 4)}, {V(MK + 4, 4)}'); em(a, fill[:2]); del fill[:2]
    em(a, fill)
    mx = [10, 11, 12, 13, 22, 23, 24, 25]
    for T in range(8):
        s = SR(T); m = mx[T]
        if T & 3: a(f'v_max3_f32 v{m}, v{s}, v{s+1}, v{s+2}\nv_max3_f32 v{m}, v{m}, v{s+3}, v{s+4}\nv_max3_f32 v{m}, v{m}, v{s+5}, v{s+6}\nv_max_f32 v{m}, v{m}, v{s+7}')
        else: a(f'v_max3_f32 v{m}, v{s+4}, v{s+5}, v{s+6}\nv_max_f32 v{m}, v{m}, v{s+7}')
    stamp(a, 'e1')
    for b in (0, 2, 4, 6): a(f'v_permlane32_swap_b32 v{mx[b]}, v{mx[b+1]}')
    for b in (0, 2, 4, 6): a(f'v_max_f32 v{mx[b]}, v{mx[b]}, v{mx[b+1]}')
    for b in (0, 4): a(f'v_permlane16_swap_b32 v{mx[b]}, v{mx[b+2]}')
    for b in (0, 4): a(f'v_max_f32 v{mx[b]}, v{mx[b]}, v{mx[b+2]}')
    for b in (0, 4): a(f'v_mov_b32 v{mx[b+2]}, v{mx[b]}')
    ONE = 54; PF = 56; OT = K
    for k in range(2): a(f'v_mov_b32 v{2+k}, 0x3f803f80')
    for b in (0, 4): a(f'v_permlane16_swap_b32 v{mx[b]}, v{mx[b+2]}')
    for b in (0, 2, 4, 6): a(f'v_mov_b32 v{mx[b+1]}, v{mx[b]}')
    for k in range(2, 4): a(f'v_mov_b32 v{2+k}, 0x3f803f80')
    ONE = 2
    for b in (0, 2, 4, 6): a(f'v_permlane32_swap_b32 v{mx[b]}, v{mx[b+1]}')
    for T in range(8): a(f'v_mul_f32 v{PR + 2*T}, v{mx[T]}, v{PR + 2*T + 1}')
    def pf(T): return PF + 4 * (T & 1)
    def soft(T):
        s = SR(T); P = PR + 2 * T
        lo = 0 if T & 3 else 4
        for k in range(lo, 8, 2): a(f'v_pk_fma_f32 {V(s+k, 2)}, {V(s+k, 2)}, {V(P, 2)}, {V(P, 2)} op_sel:[0,1,0] op_sel_hi:[1,1,0] neg_lo:[0,0,1] neg_hi:[0,0,1]')
        return [f'v_exp_f32 v{s+k}, v{s+k}' for k in range(lo, 8)]
    def pack(T):
        s = SR(T)
        if T & 3:
            for k in range(4): a(f'v_cvt_pk_bf16_f32 v{pf(T)+k}, v{s+2*k}, v{s+2*k+1}')
        else:
            for k in range(2): a(f'v_cvt_pk_bf16_f32 v{pf(T)+k}, v{s+4+2*k}, v{s+5+2*k}')
            a(f'v_mov_b32 v{pf(T)+2}, 0\nv_mov_b32 v{pf(T)+3}, 0')
    def OB(T): return OT + 12 * (T & 1)
    def pv(T):
        v = 2 * (T - 1) if T & 3 else 2 * T
        o = OB(T)
        return [f'{MF} {V(o + 8, 4)}, {V(ONE, 4)}, {V(pf(T), 4)}, 0', f'{MF} {V(o, 4)}, {V(V0 + v, 4)}, {V(pf(T), 4)}, 0', f'{MF} {V(o + 4, 4)}, {V(V1 + v, 4)}, {V(pf(T), 4)}, 0']
    def fin(T):
        o = OB(T); R = Q + 4 * T
        for k in range(0, 8, 2): a(f'v_pk_mul_f32 {V(o+k, 2)}, {V(o+k, 2)}, {V(o+8, 2)} op_sel_hi:[1,0]')
        for k in range(4): a(f'v_cvt_pk_bf16_f32 v{R+k}, v{o+2*k}, v{o+2*k+1}')
        if T & 3 == 3:
            R0 = R - 12
            for k in range(4):
                for q in (0, 1): a(f'v_permlane32_swap_b32 v{R0+4*q+k}, v{R0+4*(q+2)+k}')
            for q in (0, 2):
                for k in range(4): a(f'v_permlane16_swap_b32 v{R0+4*q+k}, v{R0+4*(q+1)+k}')
                for g in (q, q + 1): a(f'buffer_store_dwordx4 {V(R0+4*g, 4)}, v{OA + (T>>2)}, s[{SH}:{SH+3}], s{sST} offen offset:{256*g} sc1', tag='o')
    for T in range(9):
        ex = soft(T) if T < 8 else []
        mm = pv(T - 1) if T else []
        for x in mm:
            a(x)
            if ex: a(ex.pop(0))
        em(a, ex)
        if T: a(f'v_rcp_f32 v{OB(T-1)+8}, v{OB(T-1)+8}')
        if T < 8: pack(T)
        if T: fin(T - 1)
    stamp(a, 'e2')
    a(f'v_mov_b32 v2, 1\ns_waitcnt vmcnt(0)\nbuffer_atomic_add v2, v{CB}, s[{SH}:{SH+3}], s{sFL} offen sc1')

def add_pads(lines, pfx):
    flat = []
    for l in lines: flat += l.split('\n')
    h = flat.index(';HOP')
    if not OPT['iw']: return flat[:h] + flat[h+1:]
    start = flat.index(';EPI') if OPT['iws'] else h + OPT['iw']
    pos = []; k = start
    while k < len(flat) - 60:
        j = k
        while j < k + 40 and not (flat[j-1].strip().startswith('v_mfma') and flat[j].strip().startswith('v_mfma')): j += 1
        pos.append(j if j < k + 40 else k); k += OPT['iw']
    n = len(pos); first = [w * n // 4 for w in range(5)]
    hop = ['    s_mov_b64 exec, 0']
    for w in range(3): hop += [f'    s_cmp_eq_u32 s{sW}, {w}', f'    s_cbranch_scc1 {pfx}_pad{first[w]}']
    hop += [f'    s_branch {pfx}_pad{first[3]}', f'{pfx}_back:', '    s_mov_b64 exec, -1']
    out = flat[:h] + hop
    for i in range(h + 1, len(flat)):
        if i in pos:
            q = pos.index(i)
            out += [f'{pfx}_pad{q}:', f'    s_cbranch_execz {pfx}_' + ('back' if q + 1 in first else f'pad{q+1}')]
        out.append(flat[i])
    print(pfx, 'pads', n, file=sys.stderr)
    return out

def desc(name):
    return f""".amdhsa_kernel {name}
  .amdhsa_next_free_vgpr 512
  .amdhsa_next_free_sgpr 102
  .amdhsa_accum_offset 256
  .amdhsa_group_segment_fixed_size 0
  .amdhsa_kernarg_size 80
  .amdhsa_user_sgpr_count 2
  .amdhsa_user_sgpr_kernarg_segment_ptr 1
  .amdhsa_system_sgpr_workgroup_id_x 1
  .amdhsa_float_denorm_mode_32 3
.end_amdhsa_kernel
"""

DOC = """;
; Straight-line code written by a hand-made scheduler script (4 waves, 512 registers each, 16x16x32 bf16 MFMA).
;                then an output tile of 80 token slots x 64 columns over K = [H | O], K split over the waves.
;   A workgroups (72 = 18 row blocks x 4)  : q/k/v GEMM of 127 tokens x 4 heads (one head per wave), windowed
; LayerNorm is applied after the first GEMMs: (x W - mean * colsum(W)) / std; colsum comes from an all-ones token
; Hand-offs: write-through (sc1) stores -> s_waitcnt vmcnt -> arrival counter; consumers poll, then load (sc1).
; Workgroup ids are mapped to tiles for cache locality only; any placement gives the same result.
"""
def build():
    del SLOW[:]
    hdr = open('cdna_kernels/' + NAME + '.s.ref').read().split('; Override launch')[0]
    k1 = NAME + '_kernel'
    out = hdr + '; @launch grid=(256,1,1) block=(256,1,1) lds=163840\n' + DOC + '.amdgcn_target "amdgcn-amd-amdhsa--gfx950"\n.text\n'
    c = Asm()
    c.raw(f'.globl {k1}\n.type {k1},@function\n.p2align 10\n.fill {OPT["pad"] // 4}, 4, 0xbf810000\n.p2align 8\n{k1}:')
    c('s_cmpk_ge_u32 s2, 256\ns_cbranch_scc1 L_done')
    if PROF: c.raw(f'    s_mem{"real" if "real" in STAMPS else ""}time s[86:87]\n    s_memrealtime s[84:85]\n    s_waitcnt lgkmcnt(0)\n    s_mov_b32 s87, s84\n    s_getreg_b32 s99, hwreg(HW_REG_XCC_ID)\n    s_lshl_b32 s99, s99, 16')
    else: stamp(c, 0)
    c('s_load_dwordx16 s[4:19], s[0:1], 0\ns_load_dwordx4 s[20:23], s[0:1], 64')
    per = OPT['pfn']
    c(f's_getpc_b64 s[{sFH}:{sFH+1}]\nv_lshrrev_b32 v1, 6, v0\nv_and_b32 v0, 63, v0\ns_lshr_b32 s{T0}, s2, 3\ns_mul_i32 s{T1}, s{T0}, {per}')
    c(f'v_min_u32 v{XL}, {per-1}, v0\nv_readfirstlane_b32 s{sW}, v1\nv_add_lshl_u32 v{XL}, v{XL}, s{T1}, 7')
    c(f'global_load_dword v37, v{XL}, s[{sFH}:{sFH+1}] offset:896', tag='pf')
    stats_addr(c); em(c, srd_c(SX, 2048 * 896))
    c(f's_and_b32 s{sJ}, s{sW}, 1\ns_lshr_b32 s{sWO}, s{sW}, 1\ns_lshl_b32 s{T2}, s{sJ}, 2')
    c(f'v_lshrrev_b32 v{XL}, 3, v0\nv_and_b32 v1, 7, v0\nv_lshrrev_b32 v{XL+1}, 4, v0\nv_mul_u32_u24 v{XL}, 112, v{XL}\nv_xor_b32 v1, s{T2}, v1')
    c(f's_bfe_u32 s{T1}, s2, 0x10002\ns_and_b32 s{sC}, s2, 3\nv_xor_b32 v1, v1, v{XL+1}\n' + (f's_cmp_eq_u32 s{sC}, 3\ns_cselect_b32 s{T2}, 28, 21\ns_cmp_lt_u32 s{T0}, s{T2}' if OPT['map2'] else f's_cmp_lt_u32 s{T0}, 23') + f'\nv_add_lshl_u32 v{XL}, v{XL}, v1, 4\ns_cbranch_scc1 L_ffn')
    aa = Asm(); aa.vm = ['pf']
    if OPT['noa']: aa(f's_mov_b32 s{T1}, 1\ns_branch L_idle')
    cut = []
    def split():
        aa('s_branch L_attn'); cut.append(len(aa.lines)); aa.label('L_attn')
    attn(aa, split); dump(aa); aa('s_endpgm')
    f = Asm(); f.vm = ['pf']
    f.label('L_ffn')
    if OPT['map2']: f(f's_mul_i32 s{T2}, s{sC}, 21\ns_add_u32 s{T0}, s{T0}, s{T2}')
    else: f(f's_mul_i32 s{T2}, s{sC}, 23\ns_add_u32 s{T0}, s{T0}, s{T2}\ns_cmpk_ge_u32 s{T0}, 91\ns_cbranch_scc1 L_idle0')
    ffn(f); dump(f)
    f.label('L_done'); f('s_endpgm')
    a = Asm(); a.vm = ['pf']
    a.label('L_idle')
    z = Asm(); z.label('L_idle0')
    z(f'v_mov_b32 v4, 0\nv_mov_b32 v5, 0\nv_mov_b32 v6, 0\nv_mov_b32 v7, 0\ns_lshl_b32 s{T0}, s{sW}, 12\ns_add_u32 s{T0}, s{T0}, {STATS}\nv_lshl_add_u32 v2, v0, 4, s{T0}')
    z(f's_cmp_lg_u32 s{T1}, 0\ns_waitcnt lgkmcnt(0)\ns_cbranch_scc1 L_idle1')
    for i in range(4): z(f'global_store_dwordx4 v2, v[4:7], s[22:23] offset:{i*1024} sc1')
    z('s_branch L_idle')
    a.lines[-1:] = ['L_idle1:']
    a(f's_mul_i32 s{T0}, s{sW}, {5*FST//4}\ns_add_u32 s{T0}, s{T0}, {FH + 4096}\nv_lshl_add_u32 v2, v0, 4, s{T0}\nv_add_u32 v3, 4096, v2')
    for i in range(10): a(f'global_store_dwordx4 v{2 + (i >= 8)}, v[4:7], s[22:23] offset:{(i - 4 - 4*(i >= 8))*1024} sc1')
    if OPT['oc']:
        a(f's_lshl_b32 s{T0}, s{sW}, 12\ns_add_u32 s{T0}, s{T0}, {25*TH_BYTES + (4*72 + 56)*1024}\nv_lshl_add_u32 v2, v0, 4, s{T0}')
        for i in range(4): a(f'global_store_dwordx4 v2, v[4:7], s[22:23] offset:{i*1024} sc1')
    a.label('L_idle')
    em(a, srd(SH, 22, WS_USED) + srd(SDB, 20, 256) + srd_p(SX, 4))
    a(f's_lshl_b32 s{T3}, s{T1}, 7\ns_cmp_eq_u32 s{sW}, 0\ns_cselect_b32 s{T3}, s{T3}, {OOB}\nv_mov_b32 v8, 1\nv_lshl_add_u32 v9, v0, 8, s{T3}')
    a(f's_waitcnt vmcnt(0)\ns_barrier\nbuffer_store_dword v8, v9, s[{SDB}:{SDB+3}], 0 offen sc1')
    stats_load(a); stats_do(a)
    a('s_waitcnt lgkmcnt(0)\ns_barrier')
    em(a, stats_prep(ZD, ZD + 4))
    a(cert_load(ZD + 5)); a('s_waitcnt vmcnt(0) lgkmcnt(0)')
    em(a, vec_check('Li_cert', [cert_load(ZD + 5)], [ZD + 5])); a(stats_post(ZD, ZD + 4)); a('s_endpgm')
    for s in SLOW: a.raw(s)
    a.raw('L_end:\n.fill 3072, 4, 0xbf810000')
    sys.stderr.write(f'instr: ffn {f.count} attn {aa.count}; nops {f.nops} {aa.nops}\n')
    lines = c.lines + aa.lines[:cut[0]] + z.lines + add_pads(f.lines, 'Lf') + add_pads(aa.lines[cut[0]:], 'La') + a.lines
    lines = [l for l in lines if not l.startswith(';')]
    if OPT['align']: lines = align_pass(lines, k1, 'L_end', 'L_f7')
    text = '\n'.join(lines) + '\n'
    if OPT['sf'] != 'sc1': text = re.sub(r'(buffer_store_dwordx4 .*) sc1', lambda m: m.group(1) + ' ' + OPT['sf'].replace('+', ' '), text)
    return out + text + '.section .rodata,"a"\n.p2align 6\n' + desc(k1)

if __name__ == '__main__':
    args = sys.argv[1:]
    for x in [x for x in args if x.startswith('enc:')]:
        args.remove(x); ENC = (x.split(':')[1], int(x.split(':')[2]))
    for x in [x for x in args if x.startswith('st:')]:
        PROF = True; args.remove(x); STAMPS[:] = x[3:].split(',')
    for x in [x for x in args if '=' in x]:
        k, v = x.split('='); args.remove(x)
        OPT[k] = type(OPT[k])(v) if not isinstance(OPT[k], bool) else v == '1'
    roles = [decode_py(b) for b in range(256)]
    F = [r for r in roles if r and r[0] == 'F']; Aa = [r for r in roles if r and r[0] == 'A']
    assert sorted((r[1], r[2]) for r in F) == [(r, c) for r in range(13) for c in range(14)]
    assert sorted((r[3], r[4]) for r in F) == [(t, c) for t in range(26) for c in range(7)]
    assert sorted((r[1], r[2]) for r in Aa) == [(x, g) for x in range(18) for g in range(4)]
    assert all(((t * 26547) >> 22) == t // 158 for t in range(2200))
    assert all(((t * 4682) >> 16) == t // 14 for t in range(140))
    for r in range(13):
        need = {0 if tk < 127 else (tk - 14) // 113 for tk in range(158 * r, min(158 * r + 158, 2048))}
        assert len(need) == ((min(158 * r + 143, 2033) * 580) >> 16) - (((max(158 * r, 14) - 14) * 580) >> 16) + 1
        assert need == {x for x in range(18) if ((113 * x + (14 if x else 0)) // 158) <= r <= (113 * x + 126) // 158}
    open(args[0] if args else 'cdna_kernels/' + NAME + '.s', 'w').write(build())
```

```python
import sys, struct
from asmlib import *

NAME = "parallel_sum__sliding_local_dilated__swiglu_ffn__prompt"
LOG2E = 1.4426950408889634
def f2u(x): return struct.unpack('<I', struct.pack('<f', x))[0]
def hx(x): return f'0x{x & 0xffffffff:08x}'

OPT = dict(rotf='h3', rota='1.0.0.7.1', rate=0.25, rate2=0.2, rate3=0.22, rs=4, arate=0.2, erate=0.25, w2s=13, w2g=50, npro=17, anpro=16, rot2=2, sleep=3,
           tc=1, atc=-1, atl=13, tl=13, nhb=12, pi=9, early=0, lag=60, touch='', tn=4, tpos=20, tstep=4.0, nO=4, pad=256, otr=1, lt=0, ltr=128, zpos=0, align=1, lead=8, fm=6, am=0, arate0=0.3, fd=3, ad_=2, chain=1, zpad=1, of='sc1', ofl='sc1', xo=0, sf='sc1', wso=0, diag=0, roto=0, aw=0, ad=60, awp=0, ol=0, wc=0, vs=0, hf_='sc1', hp=0, oc=1, map2=1, gx=0, pd=0, xb=0, xs=4, ash=1, dw=0, dt=1, pe=0, wrate=0.12, fp=0, azs=0, adip=3, pair=0, lc=4, rt=18, zi=99, nbg=999, p2=0, zr=1, noa=0, pfn=11, iw=0, iws=1, nA=8, a6=0, ost=80, nochk=0, x='', ap=0, tk=4, elag=40)

SX, SG, SU, SH, SD, SO, SOUT, SDB = 24, 28, 32, 36, 40, 44, 48, 52
sR, sC, sTH, sCT, sW = 56, 57, 58, 59, 60
T0, T1, T2, T3 = 61, 62, 63, 64
sMX, sMW, sSO, sJ, sWO, sST, sSPIN = 65, 66, 67, 68, 69, 70, 71
sPL, sONE, sXJ, sWJ = 72, 73, 74, 75
sFH, sNO = 76, 78
sM0, sM1 = 80, 82
sRT = 4
sFL = 3

TH_BYTES = 5 * 72 * 1024
FH, FST, STATS, WS_USED = 0x930000, 8192, 0x93a000, 0x940000
OOB = 0x7ffffff0
MF = 'v_mfma_f32_16x16x32_bf16'

PROF = False; STAMPS = []; ENC = None; sP = 86
def stamp(a, i, real=False):
    if ENC:
        if i == 0 or i == ENC[0]:
            a.raw(f'    s_memrealtime s[84:85]\n    s_waitcnt lgkmcnt(0)\n    s_mov_b32 s{86 + (i != 0)}, s84'); a.lg = []
        return
    if not PROF: return
    if isinstance(i, str):
        if i not in STAMPS: return
        i = 2 + STAMPS.index(i)
    real = real or 'real' in STAMPS
    a.raw(f'    s_mem{"real" if real else ""}time s[84:85]\n    s_waitcnt lgkmcnt(0)\n    s_mov_b32 s{sP+i}, s84')
    a.lg = []
def dump(a):
    if ENC:
        l = f'Lenc{a.count}'
        stamp(a, 'end')
        a.raw(f'    s_cmp_eq_u32 s2, {ENC[1]}\n    s_cbranch_scc0 {l}_e\n    s_sub_u32 s87, s87, s86\n    s_min_u32 s87, s87, 5000\n    s_mul_i32 s87, s87, 10\n    s_memrealtime s[88:89]\n{l}:\n    s_memrealtime s[84:85]\n    s_waitcnt lgkmcnt(0)\n    s_sub_u32 s84, s84, s88\n    s_cmp_lt_u32 s84, s87\n    s_cbranch_scc1 {l}\n{l}_e:')
        return
    if not PROF: return
    a('s_waitcnt vmcnt(0)')
    stamp(a, 14); stamp(a, 15, True)
    a(f's_mov_b32 s{SH+2}, 0x2000000')
    a(f's_lshl_b32 s{T0}, s2, 2\ns_add_u32 s{T0}, s{T0}, s{sW}\ns_lshl_b32 s{T0}, s{T0}, 6\ns_add_u32 s{T0}, s{T0}, 0x1000000')
    for i in range(16): a(f'v_mov_b32 v{4+i}, s{sP+i}')
    a('v_mov_b32 v2, 0\ns_mov_b64 exec, 1')
    for i in range(4): a(f'buffer_store_dwordx4 v[{4+4*i}:{7+4*i}], v2, s[{SH}:{SH+3}], s{T0} offen offset:{16*i}')

def srd_c(dst, nbytes): return [f's_mov_b32 s{dst+2}, {nbytes}', f's_mov_b32 s{dst+3}, 0x20000']
def srd_p(dst, ptr, back=0):
    if back: return [[f's_sub_u32 s{dst}, s{ptr}, {back}', f's_subb_u32 s{dst+1}, s{ptr+1}, 0']]
    return [f's_mov_b64 s[{dst}:{dst+1}], s[{ptr}:{ptr+1}]']
def srd(dst, ptr, nbytes): return srd_p(dst, ptr) + srd_c(dst, nbytes)
def em(a, l, tag=None):
    for x in l:
        for y in ([x] if isinstance(x, str) else x): a(y, tag=tag)
def items(l, **k): return [Item(x, **k) for x in l]

SLOW = []
NL = '\n    '
def mark(): return f'{NL}s_bitset1_b32 s99, {len(SLOW)}' if PROF and len(STAMPS) < 12 else ''
def vec_check(name, loads, regs):
    r = regs[-1]
    t = {1: [], 2: [f'v_min_u32 v{r}, v{regs[0]}, v{r}'], 3: [f'v_min3_u32 v{r}, v{regs[0]}, v{regs[1]}, v{r}']}[len(regs)] if len(regs) > 1 else []
    t.append(f'v_cmp_eq_u32 vcc, 0, v{r}')
    SLOW.append(f"""{name}:{mark()}
    s_mov_b32 s{sSPIN}, 0
{name}_l:
    s_sleep 4
    {NL.join(loads)}
    s_add_u32 s{sSPIN}, s{sSPIN}, 1
    s_waitcnt vmcnt(0)
    {NL.join(t)}
    s_nop 4
    s_cbranch_vccz {name}_r
    s_cmp_lt_u32 s{sSPIN}, 0x40000
    s_cbranch_scc1 {name}_l
    s_branch {name}_r""")
    return t + ['s_nop 4', f's_cbranch_vccnz {name}', f'{name}_r:']
def preg(f): return 79 if f & 1 else sPL
def poll_issue(f): return f's_load_dword s{preg(f)}, s[{sFH}:{sFH+1}], {f*FST} glc'
def poll_check(name, f, want, first=()):
    SLOW.append(f"""{name}:{mark()}
    {NL.join(list(first) + [f's_mov_b32 s{sSPIN}, 0'])}
{name}_l:
    {poll_issue(f)}
    s_add_u32 s{sSPIN}, s{sSPIN}, 1
    s_waitcnt lgkmcnt(0)
    s_cmp_eq_u32 s{preg(f)}, {want}
    s_cbranch_scc1 {name}_r
    s_sleep {OPT['sleep']}
    s_cmp_lt_u32 s{sSPIN}, 0x40000
    s_cbranch_scc1 {name}_l
    s_branch {name}_r""")
    return ['s_waitcnt lgkmcnt(0)', [f's_cmp_eq_u32 s{preg(f)}, {want}', f's_cbranch_scc0 {name}', f'{name}_r:']]

def decode_py(b):
    i, hf, q = b >> 3, (b >> 2) & 1, b & 3
    if OPT['map2']:
        n = 28 if q == 3 else 21
        if i >= n:
            if (b | 4) == 255: return None
            u = i - n + ((0x160b1900 >> (8 * q)) & 31); G = (u * 57) >> 9
            return ('A', u + 9 * (hf - G), G ^ 1)
        f = 21 * q + i; p = 91 * hf + f; th = (p * 9363) >> 16
        m, n, f2 = (43, 6, f - 7) if f >= 49 else (37, 7, f)
        c = (f2 * m) >> 8; r = f2 - n * c
        return ('F', 12 - r if hf else r, 13 - c if hf else c, th, p - 7 * th)
    if i >= 23: return ('A', 9 * hf + i - 23, q)
    f = i + 23 * q
    if f >= 91: return None
    p = 91 * hf + f; th = (p * 9363) >> 16; ct = p - 7 * th
    l1 = 49 - 7 * hf; sec = int(f >= l1); f2 = f - (l1 if sec else 0)
    m, n = (37, 7) if (sec ^ hf) == 0 else (43, 6)
    c = (f2 * m) >> 8; r = f2 - n * c
    return ('F', r + (7 - sec) * hf, c + 7 * sec, th, ct)

ZD, ZT = 38, 46
ZL = 163840 - 128
sZB = sSPIN
def zb(): return sZB if OPT['zr'] else 2
def stats_addr(a):
    if OPT['zr']: a(f's_bfe_u32 s{T3}, s2, 0x10002\ns_lshl_b32 s{T3}, s{T3}, 5\ns_add_u32 s{T3}, s{T3}, s{T0}\ns_and_b32 s{sZB}, s2, 3\ns_lshl2_add_u32 s{sZB}, s{T3}, s{sZB}')
    a(f's_andn2_b32 s{T3}, s{zb()}, 1\ns_lshl1_add_u32 s{T3}, s{T3}, s{sW}\ns_and_b32 s{sSO}, s2, 1\ns_lshl2_add_u32 s{sST}, s{T3}, s{sSO}\ns_mulk_i32 s{sST}, 896')
    a(f'v_lshrrev_b32 v{ZT}, 5, v0\nv_and_b32 v{ZT+1}, 31, v0\nv_mul_u32_u24 v{ZT+2}, 1792, v{ZT}\nv_cmp_gt_u32 vcc, 28, v{ZT+1}')
    a(f'v_lshl_add_u32 v{ZT+2}, v{ZT+1}, 4, v{ZT+2}\nv_mov_b32 v{ZT+3}, {OOB}\nv_cndmask_b32 v{ZT+2}, v{ZT+3}, v{ZT+2}, vcc')
def stats_load(a):
    a(f'buffer_load_dwordx4 {V(ZD, 4)}, v{ZT+2}, s[{SX}:{SX+3}], s{sST} offen', tag='z')
    a(f'buffer_load_dwordx4 {V(ZD+4, 4)}, v{ZT+2}, s[{SX}:{SX+3}], s{sST} offen offset:448', tag='z')
def stats_do(a_, more=None):
    cnt = [-1]
    def a(t, **k):
        for x in t.split('\n'):
            a_(x, **k)
            if cnt[0] >= 0 and more:
                if cnt[0] % OPT['zi'] == 0: more()
                cnt[0] += 1
    s, q, lo, hi = ZT + 4, ZT + 5, ZT + 6, ZT + 7
    a(f'v_and_b32 v{ZT+2}, 1, v0\nv_cmp_eq_u32 s[{sM0}:{sM0+1}], 1, v{ZT+2}\nv_lshlrev_b32 v{ZT+2}, 5, v{ZT+2}\nv_lshl_add_u32 v{ZT+2}, v{ZT}, 2, v{ZT+2}')
    a(f'v_bfe_u32 v{ZT+1}, v0, 4, 1\nv_lshlrev_b32 v{ZT+1}, 6, v{ZT+1}\nv_sub_u32 v{ZT+2}, v{ZT+2}, v{ZT+1}\ns_lshl3_add_u32 s{T0}, s{sW}, {ZL + 64}')
    a(f'v_cmp_eq_u32 vcc, 0, v0\nv_add_u32 v{ZT+2}, s{T0}, v{ZT+2}\nv_mov_b32 v{ZT}, 0\nv_cndmask_b32 v1, v{ZT+3}, v{ZT}, vcc')
    a_.raw(';HOP')
    stamp(a_, 'z0')
    a('@wait vm=z')
    stamp(a_, 'z1')
    cnt[0] = 0
    for k in range(8):
        r = ZD + k
        a(f'v_lshlrev_b32 v{lo}, 16, v{r}\nv_and_b32 v{hi}, 0xffff0000, v{r}')
        if k == 0: a(f'v_pk_add_f32 {V(ZT, 2)}, {V(lo, 2)}, 0\nv_pk_mul_f32 {V(s, 2)}, {V(lo, 2)}, {V(lo, 2)}')
        else: a(f'v_pk_add_f32 {V(ZT, 2)}, {V(ZT, 2)}, {V(lo, 2)}\nv_pk_fma_f32 {V(s, 2)}, {V(lo, 2)}, {V(lo, 2)}, {V(s, 2)}')
    a(f'v_add_f32 v{q}, v{s}, v{q}\nv_add_f32 v{s}, v{ZT}, v{ZT+1}')
    for ctl in ('quad_perm:[1,0,3,2] row_mask:0xf', 'quad_perm:[2,3,0,1] row_mask:0xf', 'row_half_mirror row_mask:0xf', 'row_mirror row_mask:0xf', 'row_bcast:15 row_mask:0xa'):
        for r in (q, s): a(f'v_add_f32_dpp v{r}, v{r}, v{r} {ctl} bank_mask:0xf')
    a(f'v_mul_f32 v{s}, {hx(f2u(1/448))}, v{s}\nv_mul_f32 v{q}, {hx(f2u(1/448))}, v{q}\nv_fma_f32 v{q}, -v{s}, v{s}, v{q}\nv_max_f32 v{q}, 0, v{q}')
    a(f'v_cvt_pk_bf16_f32 v{s}, -v{s}, v{q}\nv_and_b32 v{q}, 0xffff0000, v{s}\nv_lshlrev_b32 v{s}, 16, v{s}')
    a(f'v_add_f32 v{q}, {hx(f2u(1e-5))}, v{q}\nv_cvt_pk_bf16_f32 v{q}, v{q}, v{q}\nv_and_b32 v{q}, 0xffff0000, v{q}\nv_sqrt_f32 v{q}, v{q}')
    a(f'v_cvt_pk_bf16_f32 v{q}, v{q}, v{q}\nv_and_b32 v{q}, 0xffff0000, v{q}\nv_rcp_f32 v{q}, v{q}')
    a(f'v_cndmask_b32 v{s}, v{s}, v{q}, s[{sM0}:{sM0+1}]\nv_or_b32 v{s}, 1, v{s}')
    a(f'ds_write_b32 v{ZT+2}, v{s}')
    stamp(a_, 'z2')
def cert_load(v, k=0): return f'buffer_load_dword v{v}, off, s[{SDB}:{SDB+3}], 0 offset:{128*k} sc1'
def stats_prep(vd, va):
    return [f'v_and_b32 v{va}, 3, v0', f'v_lshlrev_b32 v{va}, 4, v{va}', f'v_add_u32 v{va}, {ZL}, v{va}', f'ds_read_b128 {V(vd, 4)}, v{va}',
            f's_lshl_b32 s{T0}, s{zb()}, 6', f's_add_u32 s{T0}, s{T0}, {STATS - ZL}', [f's_cmp_eq_u32 s{sW}, 0', f's_cselect_b32 s{T0}, s{T0}, {OOB}'],
            f'v_add_u32 v{va}, s{T0}, v{va}', f'v_cmp_gt_u32 vcc, 4, v0', f'v_cndmask_b32 v{va}, v1, v{va}, vcc']
def stats_post(vd, va): return f'buffer_store_dwordx4 {V(vd, 4)}, v{va}, s[{SH}:{SH+3}], 0 offen sc1'
def stats_src(vd, vt):
    return [f'v_min_u32 v{vd}, 1023, v{vd}', f'v_and_b32 v{vt}, 7, v{vd}', f'v_lshrrev_b32 v{vd}, 3, v{vd}', f'v_lshlrev_b32 v{vd}, 7, v{vd}', f'v_lshl_add_u32 v{vd}, v{vt}, 2, v{vd}']
def sync_stream(pfx, G, tc, src, loads, regs, writes, t_load, t_check, C=ZD+5):
    D = ZD
    loads = loads + [cert_load(C, 1)]; regs = regs + [C]
    o = items(stats_prep(D, D + 4), tag='zg')
    if tc >= 0: o.append(Item(cert_load(C), tag='cert', t0=tc * G))
    def chk(wait, c, t0, nm):
        if not OPT['vs']: return [Item([wait] + c, t0=t0)]
        k = c.index('s_nop 4')
        o_ = [Item(wait, t0=t0)] + items(c[:k]); o_[-1].name = nm
        return o_ + [Item(c[k+1:], after={nm: 6})]
    o += chk('@wait vm=cert lg=zg', vec_check(pfx + '_cert', [cert_load(C)], [C]), (tc + OPT['tk']) * G + 2, 'c1')
    if OPT['diag']:
        o.append(Item(['s_waitcnt vmcnt(0)', 's_memrealtime s[84:85]', 's_waitcnt lgkmcnt(0)', 's_mov_b32 s88, s84', stats_post(D, D + 4), 's_waitcnt vmcnt(0)', 's_memrealtime s[84:85]', 's_waitcnt lgkmcnt(0)', 's_mov_b32 s89, s84']))
    else: o.append(Item(stats_post(D, D + 4)))
    o += items(src) + items(loads, tag='par', t0=t_load * G)
    o += chk('@wait vm=par', vec_check(pfx + '_par', loads, regs), t_check * G, 'c2')
    return Stream(o + items(writes, tag='sw'))

def rot_init(a, spec, rowbytes):
    if not spec: return
    if spec == 'x':
        a(f's_and_b32 s{sXJ}, s2, 7\ns_cmp_eq_u32 s{sXJ}, 7\ns_cselect_b32 s{sXJ}, 0, s{sXJ}\ns_mul_i32 s{sWJ}, s{sXJ}, {64*rowbytes}\ns_lshl_b32 s{sXJ}, s{sXJ}, 7')
        return
    if spec[0] == 'h':
        a(f's_mul_i32 s{sWJ}, s{T1}, {64*rowbytes*int(spec[1])}\ns_mul_i32 s{sXJ}, s{T1}, {128*int(spec[1])}')
        return
    p, q, s, m, k = map(int, spec.split('.'))
    terms = [(c, r) for c, r in ((p, sR), (q, sC), (s, T1)) if c]
    src = terms[0][1]
    if terms[0][0] != 1 or len(terms) > 1:
        a(f's_mul_i32 s{sXJ}, s{src}, {terms[0][0]}'); src = sXJ
        for c, r in terms[1:]: a(f's_mul_i32 s{sWJ}, s{r}, {c}\ns_add_u32 s{sXJ}, s{sXJ}, s{sWJ}')
    a(f's_mul_i32 s{sWJ}, s{src}, {65536 // m + 1}\ns_lshr_b32 s{sWJ}, s{sWJ}, 16\ns_mul_i32 s{sWJ}, s{sWJ}, {m}\ns_sub_u32 s{sXJ}, s{src}, s{sWJ}')
    a(f's_mul_i32 s{sWJ}, s{sXJ}, {64*k*rowbytes}\ns_mulk_i32 s{sXJ}, {128*k}')
def x_off(spec, j):
    if not spec: return [f's_movk_i32 s{sXJ}, {128*j}']
    return [f's_add_u32 s{sXJ}, s{sXJ}, 128', [f's_cmp_eq_u32 s{sXJ}, 896', f's_cselect_b32 s{sXJ}, 0, s{sXJ}']] if j else []
def w_off(spec, m, i, rowbytes, comp):
    if not spec: return [f's_mov_b32 s{sSO}, {(32*m + 16*i)*rowbytes - comp}']
    o = []
    if i == 0 and m and m % 2 == 0: o = [f's_add_u32 s{sWJ}, s{sWJ}, {64*rowbytes}', [f's_cmp_eq_u32 s{sWJ}, {448*rowbytes}', f's_cselect_b32 s{sWJ}, 0, s{sWJ}']]
    return o + [f's_add_u32 s{sSO}, s{sWJ}, {(32*(m&1) + 16*i)*rowbytes - comp}']

def add_touches(d, vb, vt, vdump):
    mats = dict(d=([0], 7), o=([18], 7))
    n = OPT['tn']; pieces = []
    for sp in [x for x in OPT['touch'].split(',') if x]:
        m, r0, r1 = sp.split(':')
        ptrs, lpr = mats[m]; l0 = int(r0) * lpr; l1 = int(r1) * lpr
        for l in range(l0, l1, 1024 * n):
            o = [f'v_add_u32 v{vt}, {l*128}, v{vb}'] + ([f'v_min_u32 v{vt}, {(l1-1)*128}, v{vt}'] if l + 1024 * n > l1 else [])
            for p in ptrs:
                pieces.append(items(o) + [Item(f'global_load_dword v{vdump}, v{vt}, s[{p}:{p+1}]', tag='touch')]); o = []
    ins = {}
    for k, p in enumerate(pieces): ins.setdefault(int(OPT['tpos'] + k * OPT['tstep']), []).extend(p)
    if pieces:
        ins[OPT['tpos']][:0] = items([f's_lshl2_add_u32 s79, s2, s{sW}', f's_mul_i32 s79, s79, {n}', f'v_min_u32 v{vb}, {n-1}, v0', f'v_add_lshl_u32 v{vb}, v{vb}, s79, 7'])
    out = []; k = 0; done = False
    for it in d:
        out.append(it)
        if it.paced:
            k += 1; out += ins.pop(k, [])
    return out
def keep_ptrs(a): a('s_mov_b64 s[0:1], s[16:17]\ns_mov_b64 s[18:19], s[8:9]')

XL = 54
def x_read_addr(a, XA, XB, t, octet_stride):
    a(f'v_and_b32 v{t}, 7, v0\nv_bfe_u32 v{t+1}, v0, 3, 1\nv_lshrrev_b32 v{t+2}, 4, v0\nv_bfe_u32 v{t+3}, v0, 1, 3')
    a(f'v_xor_b32 v{t+2}, v{t+2}, v{t+3}\nv_lshlrev_b32 v{t+2}, 4, v{t+2}\nv_lshl_add_u32 v{t+2}, v{t}, 7, v{t+2}')
    a(f'v_mul_u32_u24 v{t+1}, {octet_stride}, v{t+1}\nv_add_u32 v{XA}, v{t+1}, v{t+2}\nv_xor_b32 v{XA+1}, 64, v{XA}')
    a(f'v_and_b32 v{t+1}, 15, v0\nv_cmp_eq_u32 vcc, 15, v{t+1}\nv_mov_b32 v{t+3}, 0x100\nv_lshlrev_b32 v{t}, 4, v{t}\nv_cndmask_b32 v{t+3}, 0, v{t+3}, vcc')
    a(f'v_add_u32 v{XB}, v{XA}, v{t+3}\nv_add_u32 v{XB+1}, v{XA+1}, v{t+3}')
    for k in range(4): a(f'v_mov_b32 v{t+2+k}, 0x3f803f80')

def bar_gap(G, nt, nc, dist, M, m):
    if m < 0: return 0
    if m < M: return (2 * m + 1) * G + 1
    if m == M: return 2 * M * G + nc + 1
    if m == 14: return 27 * G + (nt - 1) * nc + 1
    return (2 * m - 1) * G + (nt - dist) * 2 * nc + 1
def x_bar(M, j):
    return -1 if j < 3 else (2 * j - 4 if 2 * j - 5 < M else 2 * j - 3)
def gemm1(a, S_, G, nt, nc, dist, M, areads, bread, mfma, dma, others, checks, hooks={}, last_bar=False):
    segs = []
    for k in range(M): segs += [(0, [k], None, None), (1, [k], k, 0)]
    segs.append((0, [M], M, 1))
    segs += [(m & 1, [m - 1, m], m, nt - dist) for m in range(M + 1, 14)]
    segs.append((0, [13], 14, nt - 1 if last_bar else None))
    units = [(g, q, ks, bm if q == bq else None) for g, ks, bm, bq in segs for q in range(nt)]
    def brd(u):
        if u >= len(units): return []
        g, q, ks, _ = units[u]
        return [Item(bread(g, q, k, u & 3, n), tag=f'b{u}') for n, k in enumerate(ks)]
    S_.flush(Stream(items(areads(0), tag='a0') + sum((brd(u) for u in range(dist)), [])))
    rds = Stream([]); forced = []
    for u, (g, q, ks, m) in enumerate(units):
        while any(x.tag in (f'b{u}', f'a{ks[-1]}') for x in rds.items[rds.i:]): S_.put(rds, rds.items[rds.i])
        bar = m is not None
        if bar and m in checks: checks[m]()
        a(f'@wait lg=b{u}' + (f',a{ks[-1]}' if q == 0 else '') + (',sw' if bar and m in checks else ''))
        if S_.t % G == 0 or S_.t % G + len(ks) * nc > G:
            n = -(-S_.t // G)
            if n in hooks: hooks[n]()
            stamp(a, f's{n}')
        nb = brd(u + dist)
        if not bar: rds.items += nb
        seq = [(c, n ^ (c & 1) if len(ks) == 2 else n) for c in (range(nc) if u % 2 == 0 or len(ks) == 2 else range(nc - 1, -1, -1)) for n in range(len(ks))]
        seen = set()
        for p, (c, n) in enumerate(seq):
            a(mfma(g, q, c, ks[n], u & 3, n, ks[0] == 0 and c not in seen)); seen.add(c)
            if bar and p == 0:
                assert S_.t + 1 == bar_gap(G, nt, nc, dist, M, m)
                need = (f'x{(m+1)>>1}', f'w{m+1}')
                while True:
                    if dma.done() and hasattr(dma, 'refill'): dma.refill()
                    young = len(a.vm) - 1 - max([k for k, tg in enumerate(a.vm) if tg in need], default=-99)
                    nxp = next((x for x in dma.items[dma.i:] if x.paced), None)
                    if nxp is None or nxp.t0 > S_.t or not (young < OPT['lead'] or any(x.tag in need for x in dma.items[dma.i:])): break
                    S_.flush(dma, 1); forced.append(m)
                a(f'@wait vm={need[0]},{need[1]}\ns_barrier'); S_.gap([], 0)
                rds.items += nb + (items(areads(m + 1), tag=f'a{m+1}') if m < 13 else [])
                continue
            left = (nt - q) * len(seq) - p - 1
            pend = [x.tag for x in rds.items[rds.i:]]
            na = max([k + 1 for k, tg in enumerate(pend) if tg[0] == 'a'], default=0)
            urgent = na >= left - 7 or f'b{u+1}' in pend or (f'b{u+2}' in pend and p >= len(seq) - 4)
            S_.gap(([rds, dma] if urgent else [dma, rds]) + others, 1 if p == len(seq) - 1 else 2)
    print('forced', forced, file=sys.stderr)

FXS = 162 * 128; FW0 = 3 * FXS; FPAR = FW0 + 6 * 16384
assert FPAR + 2048 <= ZL
def ffn(a):
    DV, RX, RW, RH, HV, PA, FV, DZ = 2, 6, 10, 14, 18, 19, 20, 21
    XV, WV, XA, XB, WA = 22, 27, 28, 30, 32
    E, O = 22, 30
    CS = 38; PR = 56; t = 56
    ACC = 96
    BF = 176; AF = 208
    if OPT['map2']:
        a(f's_mul_i32 s{sTH}, s{T1}, 91\ns_add_u32 s{sTH}, s{sTH}, s{T0}\ns_cmp_ge_u32 s{T0}, 49\ns_cselect_b32 s{T3}, 7, 0\ns_cselect_b32 s{sR}, 43, 37\ns_cselect_b32 s{T2}, 6, 7')
        a(f's_sub_u32 s{T0}, s{T0}, s{T3}\ns_mul_i32 s{sC}, s{T0}, s{sR}\ns_lshr_b32 s{sC}, s{sC}, 8\ns_mul_i32 s{T2}, s{T2}, s{sC}\ns_sub_u32 s{sR}, s{T0}, s{T2}')
        a(f's_sub_u32 s{T2}, 12, s{sR}\ns_sub_u32 s{T3}, 13, s{sC}\ns_cmp_eq_u32 s{T1}, 0\ns_cselect_b32 s{sR}, s{sR}, s{T2}\ns_cselect_b32 s{sC}, s{sC}, s{T3}')
        a_ = a; a = lambda t: None
    a(f's_mul_i32 s{sTH}, s{T1}, 91\ns_add_u32 s{sTH}, s{sTH}, s{T0}\ns_mul_i32 s{T2}, s{T1}, 7\ns_sub_u32 s{T2}, 49, s{T2}')
    a(f's_cmp_ge_u32 s{T0}, s{T2}\ns_cselect_b32 s{T3}, 7, 0\ns_cselect_b32 s{T2}, s{T2}, 0\ns_cselect_b32 s{sCT}, 6, 7\ns_cselect_b32 s{sMX}, 1, 0\ns_sub_u32 s{T0}, s{T0}, s{T2}')
    a(f's_cmp_eq_u32 s{sMX}, s{T1}\ns_cselect_b32 s{sR}, 37, 43\ns_cselect_b32 s{T2}, 7, 6')
    a(f's_mul_i32 s{sC}, s{T0}, s{sR}\ns_lshr_b32 s{sC}, s{sC}, 8\ns_mul_i32 s{T2}, s{T2}, s{sC}\ns_sub_u32 s{sR}, s{T0}, s{T2}')
    a(f's_add_u32 s{sC}, s{sC}, s{T3}\ns_mul_i32 s{sCT}, s{sCT}, s{T1}\ns_add_u32 s{sR}, s{sR}, s{sCT}')
    if OPT['map2']: a = a_
    rot_init(a, OPT['rotf'], 3584)
    a(f'v_and_b32 v{t+1}, 15, v0\nv_lshl_add_u32 v{t}, v{XL+1}, 1, s{sWO}\nv_lshlrev_b32 v{t}, 1, v{t}\nv_xor_b32 v{t+1}, v{t+1}, v{t}')
    a(f's_mul_i32 s{T0}, s{sW}, 56\ns_add_u32 s{T0}, s{T0}, s{sC}\ns_lshl_b32 s{T0}, s{T0}, 8')
    a(f'v_mul_u32_u24 v{t+2}, 224, v{XL+1}\nv_add_lshl_u32 v{t+2}, v{t+1}, v{t+2}, 4\nv_add_u32 v{WV}, s{T0}, v{t+2}')
    a(f's_mul_i32 s{T2}, s{sR}, 158\ns_lshl4_add_u32 s{T2}, s{sWO}, s{T2}\ns_add_u32 s{T2}, s{T2}, s{sJ}\ns_mulk_i32 s{T2}, 896\nv_add_u32 v{XV}, s{T2}, v{XL}')
    for i in range(1, 5): a(f'v_add_u32 v{XV+i}, {i*28672 - (i*1024 if i < 4 else 0)}, v{XV}')
    a(f's_mul_i32 s{sMX}, s{sW}, 5120\ns_lshl_b32 s{sMW}, s{sW}, 12\ns_add_u32 s{sMW}, s{sMW}, {FW0}')
    a(f's_mov_b32 s{SG+2}, {448*3584}\ns_mov_b32 s{SG+3}, s{SX+3}\ns_mov_b32 s{SU+2}, {448*3584 + 1024}\ns_mov_b32 s{SU+3}, s{SX+3}')
    a('s_waitcnt lgkmcnt(0)')
    stamp(a, 'ka')
    em(a, srd_p(SX, 4))
    if not OPT['zpos']: stats_load(a)
    em(a, srd_p(SG, 12) + srd_p(SU, 14, back=1024))
    G = 20
    B = lambda m: bar_gap(G, 5, 4, OPT['fd'], OPT['fm'], m)
    def xd(j):
        e = B(x_bar(OPT['fm'], j)); o = items(x_off(OPT['rotf'], j))
        for i in range(5):
            if i in (0, 4): o.append(Item(f's_add_u32 m0, s{sMX}, {(j%3)*FXS + i*1024}'))
            o.append(Item(f'buffer_load_dwordx4 v{XV+i}, s[{SX}:{SX+3}], s{sXJ} offen offset:{(i&3)*1024} lds', tag=f'x{j}', t0=e, paced=True))
        return o
    def wd(m):
        e = B(m - 4); o = [Item(f's_add_u32 m0, s{sMW}, {(m&3)*16384}', brk=False)]
        o[0].brk = False
        for i in range(2):
            o += items(w_off(OPT['rotf'], m, i, 3584, i*2048))
            o.append(Item(f'buffer_load_dwordx4 v{WV}, s[{SG}:{SG+3}], s{sSO} offen offset:{i*2048} lds', tag=f'w{m}', t0=e, paced=True))
            o.append(Item(f'buffer_load_dwordx4 v{WV}, s[{SU}:{SU+3}], s{sSO} offen offset:{i*2048 + 1024} lds', tag=f'w{m}', t0=e, paced=True))
        return o
    def wslot(k, free): return (RW if k < 4 else RH, (k & 3) * 16384, sMW, k * 16384, free)
    slots = [wslot(4, 0), wslot(5, 0), wslot(2, B(10)), wslot(3, B(11)), (RX, FXS, sMX, FXS, B(11)), wslot(0, B(12)), wslot(1, B(13)), (RX, 2*FXS, sMX, 2*FXS, B(13)), (RX, 0, sMX, 0, B(14))]
    kslot = []
    NG = 14 if OPT['xo'] else 18 - OPT['dw']
    WX = 56
    def wfrag(kk, c):
        i = 16 * kk + 4 * c
        return (i, 'a') if i < 256 else (WX + i - 256, 'v')
    def w2d(kk):
        reg, off, base, moff, free = slots[kslot[kk]]
        prev = [k for k in range(kk) if kslot[k] == kslot[kk]]
        o = [Item(f's_add_u32 m0, s{base}, {moff}')]; o[0].brk = False
        if kk < 14: o += [Item(f's_mul_i32 s{sSO}, s{sRT+kk}, 28')]; sr = SD
        elif OPT['roto']: o += items([f's_add_u32 s{sSO}, s2, {kk-14}', f's_and_b32 s{sSO}, s{sSO}, 3', f's_mul_i32 s{sSO}, s{sSO}, {28*896}']); sr = SO
        else: o += [Item(f's_mov_b32 s{sSO}, {28*(kk-14)*896}')]; sr = SO
        if prev: o.append(Item(f'@wait lg=t{prev[-1]}'))
        for i in range(4):
            o.append(Item(f'buffer_load_dwordx4 v{DZ if (kk >= 14 and i == 3) else DV+i}, s[{sr}:{sr+3}], s{sSO} offen offset:{i*1024} lds', tag=f'k{kk}', t0=free, paced=True, name=f'k{kk}' if i == 3 else None))
        return o
    def w2r(kk, lag):
        reg, off, base, moff, free = slots[kslot[kk]]
        o = [Item(f'@wait vm=k{kk}', after={f'k{kk}': lag})]
        for c in range(4):
            r, k = wfrag(kk, c)
            for jj in range(2):
                o.append(Item(f'ds_read_b64_tr_b16 {V(r + 2*jj, 2, k)}, v{reg+c} offset:{off + jj*2048}', tag=f't{kk}', name=f't{kk}' if (c, jj) == (3, 1) else None))
        return o
    d = add_touches(wd(0) + xd(0) + wd(1) + xd(1) + wd(2) + wd(3), 35, 36, 37)
    p1 = []
    for m in range(10):
        p1 += [xd(j) for j in range(2, 7) if max(0, x_bar(OPT['fm'], j)) == m]
        p1.append(wd(m + 4))
    dma = Stream(d, rate=OPT['rate'])
    trs = Stream([])
    S_ = Sched(a)
    NT = 11
    st8 = dict(last=-999, lag=OPT['lag'])
    def refill(force=False):
        if p1 and p1[0][-1].t0 <= S_.t + 3:
            dma.items += p1.pop(0); return
        kk = len(kslot)
        if not bgs.done(): return
        if kk == NG or S_.t < OPT['w2s'] * G or (p1 and S_.t < st8['last'] + OPT['w2g']): return
        for k, sl in enumerate(slots):
            prev = [q for q in range(kk) if kslot[q] == k]
            if sl[4] <= S_.t and (not prev or S_.when.get(f't{prev[-1]}', 1e9) + (0 if force else 5) <= S_.t):
                kslot.append(k); st8['last'] = S_.t
                dma.items += w2d(kk)
                if kk < NT: trs.items += w2r(kk, st8['lag'])
                return
    dma.refill = refill
    def steady(): dma.rate = OPT['rate2']
    def late(): dma.rate = OPT['rate3']
    S_.flush(dma, 7)
    a.raw('L_f7:')
    stamp(a, 'i7')
    x_read_addr(a, XA, XB, t, 5120)
    for st in range(3): a(f'ds_write_b128 v{t}, v[{t+2}:{t+5}] offset:{st*FXS + 161*128}')
    u = t + 6
    a(f'v_bfe_u32 v{u}, v0, 4, 1\nv_bfe_u32 v{u+1}, v0, 2, 2\nv_lshrrev_b32 v{u+2}, 5, v0\nv_and_b32 v{u+3}, 3, v0')
    a(f'v_lshl_add_u32 v{u+4}, v{u+1}, 1, v{u}\ns_lshl_b32 s{T0}, s{sW}, 1\nv_xor_b32 v{u+4}, s{T0}, v{u+4}\nv_lshlrev_b32 v{u+4}, 5, v{u+4}')
    a(f'v_lshl_add_u32 v{u+4}, v{u+3}, 3, v{u+4}\nv_lshl_add_u32 v{u+4}, v{u+1}, 8, v{u+4}\nv_lshl_add_u32 v{u+4}, v{u+2}, 11, v{u+4}')
    a(f'v_lshl_add_u32 v{u+4}, v{u}, 13, v{u+4}\nv_add_u32 v{WA}, {FW0}, v{u+4}\nv_xor_b32 v{WA+1}, 32, v{WA}')
    S_.flush(dma, 2)
    if OPT['zpos']: stats_load(a)
    em(a, srd(SH, 22, WS_USED) + srd(SDB, 20, 256) + srd(SOUT, 18, 2048 * 896))
    a(f's_mul_i32 s{T0}, s{sW}, {448*896}\ns_add_u32 s{SD}, s16, s{T0}\ns_addc_u32 s{SD+1}, s17, 0')
    a(f's_mul_i32 s{T0}, s{sW}, {112*896}\ns_add_u32 s{SO}, s8, s{T0}\ns_addc_u32 s{SO+1}, s9, 0')
    em(a, srd_c(SD, 448 * 896) + srd_c(SO, 112 * 896))
    if OPT['p2']: a(f's_cmp_ge_u32 s{sC}, 7\ns_cselect_b32 s{T3}, 7, 0\ns_addc_u32 s{sTH}, s{sR}, s{sR}\ns_sub_u32 s{sCT}, s{sC}, s{T3}')
    else: a(f's_mul_i32 s{T3}, s{sTH}, 9363\ns_lshr_b32 s{T3}, s{T3}, 16\ns_mul_i32 s{sCT}, s{T3}, 7\ns_sub_u32 s{sCT}, s{sTH}, s{sCT}\ns_mov_b32 s{sTH}, s{T3}')
    a(f'v_lshrrev_b32 v{u}, 3, v0\nv_and_b32 v{u+1}, 7, v0\nv_lshlrev_b32 v{u+2}, 1, v{XL+1}\nv_xor_b32 v{u+1}, v{u+1}, v{u+2}\nv_lshlrev_b32 v{u+1}, 4, v{u+1}')
    a(f'v_mul_u32_u24 v{u}, 896, v{u}\ns_lshl_b32 s{T3}, s{sCT}, 7\nv_add3_u32 v{DV}, v{u}, v{u+1}, s{T3}')
    for i in range(1, 4): a(f'v_add_u32 v{DV+i}, {6144*i}, v{DV}')
    a(f'v_cmp_gt_u32 vcc, 32, v0\nv_bfe_u32 v{u}, v0, 2, 3\nv_lshrrev_b32 v{u+1}, 5, v0\nv_cndmask_b32 v{DZ}, v{ZT+3}, v{DV+3}, vcc')
    a(f'v_and_b32 v{u+2}, 3, v0\nv_bfe_u32 v{u+3}, v0, 3, 2\nv_lshlrev_b32 v{u}, 7, v{u}\nv_lshl_add_u32 v{u}, v{u+1}, 10, v{u}')
    a(f'v_lshl_add_u32 v{u}, v{u+2}, 3, v{u}\nv_lshl_add_u32 v{u}, v{u+3}, 5, v{u}\nv_add_u32 v{RX}, s{sMX}, v{u}\nv_add_u32 v{RW}, s{sMW}, v{u}')
    for c in range(1, 4): a(f'v_xor_b32 v{RX+c}, {32*c}, v{RX}\nv_xor_b32 v{RW+c}, {32*c}, v{RW}')
    for c in range(4): a(f'v_add_u32 v{RH+c}, 0x10000, v{RW+c}')
    bg = []
    if OPT['rot2'] == 2:
        bg += [f's_and_b32 s{T3}, s2, 7', f's_mul_i32 s{T3}, s{T3}, 7', f's_lshr_b32 s{T3}, s{T3}, 2', f's_lshl_b32 s{sRT}, s{T3}, 10']
    elif OPT['rot2'] == 4:
        bg += [f's_bfe_u32 s{T3}, s2, 0x20001', f's_mul_i32 s{T3}, s{T3}, 7', f's_lshr_b32 s{T3}, s{T3}, 1', f's_lshl_b32 s{sRT}, s{T3}, 10']
    elif OPT['rot2'] == 3:
        bg += [f's_and_b32 s{T3}, s2, 7', f's_mul_i32 s{T3}, s{T3}, 7', f's_lshr_b32 s{T3}, s{T3}, 2', f's_lshl1_add_u32 s{T3}, s{sCT}, s{T3}', f's_sub_u32 s{sRT}, s{T3}, 14',
               f's_min_u32 s{T3}, s{T3}, s{sRT}', f's_lshl_b32 s{sRT}, s{T3}, 10']
    elif OPT['rot2']:
        bg += [f's_mul_i32 s{T3}, s{sTH}, 5', f's_lshl1_add_u32 s{T3}, s{sCT}, s{T3}', f's_mul_i32 s{sRT}, s{T3}, 4682', f's_lshr_b32 s{sRT}, s{sRT}, 16',
               f's_mul_i32 s{sRT}, s{sRT}, 14', f's_sub_u32 s{sRT}, s{T3}, s{sRT}', f's_lshl_b32 s{sRT}, s{sRT}, 10']
    else:
        bg += [f's_mov_b32 s{sRT}, 0']
    for k in range(1, 14):
        bg += [f's_add_u32 s{sRT+k}, s{sRT+k-1}, 1024', [f's_cmp_eq_u32 s{sRT+k}, {14*1024}', f's_cselect_b32 s{sRT+k}, 0, s{sRT+k}']]
    bg += [f'v_lshlrev_b32 v{HV}, 4, v0', f'v_mov_b32 v{FV}, 1', f's_mov_b32 s{sONE}, 1',
           f'v_and_b32 v{PA}, 7, v0', f'v_bfe_u32 v{u}, v0, 3, 1', f'v_lshlrev_b32 v{PA}, 2, v{PA}', f'v_lshl_add_u32 v{PA}, v{u}, 10, v{PA}', f'v_add_u32 v{PA}, {FPAR}, v{PA}',
           f's_lshl2_add_u32 s{T3}, s{sC}, s{sW}', f's_mul_i32 s{sFL}, s{T3}, 4682', f's_lshr_b32 s{sFL}, s{sFL}, 16', f's_lshl2_add_u32 s{sFL}, s{sR}, s{sFL}',
           f's_lshl_b32 s{sFL}, s{sFL}, 7', f's_add_u32 s{sFL}, s{sFL}, {FH}', [f's_add_u32 s{sM1}, s22, s{sFL}', f's_addc_u32 s{sM1+1}, s23, 0'],
           f's_lshl_b32 s{T3}, s{T3}, 10', f's_mul_i32 s{sST}, s{sR}, {2*TH_BYTES}', f's_add_u32 s{sST}, s{sST}, s{T3}',
           f's_lshr_b32 s{T3}, s{sTH}, 1', f's_lshl2_add_u32 s{sFH}, s{T3}, s{sW}', f's_lshl_b32 s{sFH}, s{sFH}, 7', f's_add_u32 s{sFH}, s{sFH}, {FH}',
           [f's_add_u32 s{sFH}, s22, s{sFH}', f's_addc_u32 s{sFH+1}, s23, 0'],
           f's_mul_i32 s{T3}, s{T3}, 158', f's_add_u32 s{sNO}, s{T3}, {157-14}', f's_min_u32 s{sNO}, s{sNO}, {2047-14}', f's_mul_i32 s{sNO}, s{sNO}, 580', f's_lshr_b32 s{sNO}, s{sNO}, 16',
           f's_max_u32 s{T3}, s{T3}, 14', f's_sub_u32 s{T3}, s{T3}, 14', f's_mul_i32 s{T3}, s{T3}, 580', f's_lshr_b32 s{T3}, s{T3}, 16',
           f's_sub_u32 s{sNO}, s{sNO}, s{T3}', f's_lshl2_add_u32 s{sNO}, s{sNO}, 4',
           f's_mul_i32 s{sJ}, s{sTH}, {TH_BYTES}', f's_mul_i32 s{T3}, s{sW}, {14*1024}', f's_add_u32 s{sJ}, s{sJ}, s{T3}',
           f's_mul_i32 s{T3}, s{sW}, {10*1024}', f's_sub_u32 s{sWO}, {56*1024}, s{T3}']
    keep_ptrs(a); em(a, bg[:OPT['nbg']])
    bgs = Stream(items(bg[OPT['nbg']:]))
    left = [OPT['npro'] - 9]
    def more():
        if left[0] and OPT['zi'] < 99: S_.flush(dma, 1); left[0] -= 1
    stats_do(a, more)
    if OPT['tc'] < 0: a(cert_load(ZD + 5), tag='cert')
    S_.flush(dma, left[0])

    tiles = [[(T, 0) for T in range(5)], [(4, 1), (0, 1), (1, 1), (2, 1), (3, 1)]]
    def bread(g, q, k, sl, n):
        T, h = tiles[g][q]
        return f'ds_read_b128 {A(BF + 8*sl + 4*n, 4)}, v{(XB if (T, h) == (4, 1) else XA) + (k & 1)} offset:{((k>>1)%3)*FXS + (10*h + T)*1024}'
    def areads(m):
        return [f'ds_read_b64_tr_b16 {A(AF + 16*(m%3) + 8*mat + 4*uu + 2*jj, 2)}, v{WA + uu} offset:{(m&3)*16384 + jj*4096 + mat*1024}'
                for mat in range(2) for uu in range(2) for jj in range(2)]
    acc = lambda T, h: ACC + 16 * (2 * T + h)
    def mfma(g, q, c, k, sl, n, first):
        dd = V(acc(*tiles[g][q]) + 4 * c, 4)
        return f'{MF} {dd}, {A(AF + 16*(k%3) + 4*c, 4)}, {A(BF + 8*sl + 4*n, 4)}, {0 if first else dd}'
    stamp(a, 'pre')
    a('@wait vm=x0,w0 lg=*\ns_barrier')
    stamp(a, 'b0')
    z = ZD + 6
    src = [f's_mul_i32 s{T0}, s{sR}, 79', f'v_add_u32 v{z}, s{T0}, v0', f'v_min_u32 v{z+1}, 15, v0', f'v_add3_u32 v{z+1}, v{z+1}, s{T0}, 64']
    src += stats_src(z, z + 2) + stats_src(z + 1, z + 2)
    src += [f's_and_b32 s{T0}, s{sW}, 1', f's_lshr_b32 s{T2}, s{sW}, 1', f's_lshl1_add_u32 s{T0}, s{T0}, s{T2}', f's_lshl_b32 s{T1}, s{T0}, 5',
            f's_add_u32 s{T1}, s{T1}, {STATS}', f's_lshl_b32 s{T0}, s{T0}, 9', f's_add_u32 s{T0}, s{T0}, {FPAR}', f'v_lshl_add_u32 v{z+2}, v0, 2, s{T0}']
    sy = sync_stream('Lf', G, OPT['tc'], src, [f'buffer_load_dword v{z+3+i}, v{z+i}, s[{SH}:{SH+3}], s{T1} offen sc1' for i in range(2)], [z + 3, z + 4],
                     [f'ds_write_b32 v{z+2}, v{z+3+i} offset:{256*i}' for i in range(2)], OPT['tl'], OPT['tl'] + OPT['tk'])
    pb = (OPT['tl'] + OPT['tk'] + 2) // 2
    par = []
    for T in range(5):
        for h in (1, 0):
            par.append(Item(f'ds_read2_b32 {V(PR + 4*(2*T + h), 2)}, v{PA} offset0:{16*T + 8*h} offset1:{128 + 16*T + 8*h}', t0=B(pb), tag='pr', name='pr' if (T, h) == (4, 0) else None))
    par.append(Item('@wait lg=pr', after={'pr': 6}))
    for T in range(5):
        for h in (1, 0):
            P = PR + 4 * (2 * T + h)
            par += items([f'v_mul_f32 v{P+2}, {hx(f2u(-LOG2E))}, v{P+1}', f'v_mul_f32 v{P+1}, v{P+1}, v{P+1}', f'v_rcp_f32 v{P+1}, v{P+1}'])
    par += [Item(f'v_mov_b32_dpp v{CS+k}, v{acc(4, 1)+k} row_newbcast:15 row_mask:0xf bank_mask:0xf', t0=25*G + 12) for k in range(16)]
    pars = Stream(par)
    def ck23(): assert sy.done() and bgs.done()
    gemm1(a, S_, G, 5, 4, OPT['fd'], OPT['fm'], areads, bread, mfma, dma, [bgs, sy, pars, trs], {pb: ck23}, {OPT['rs']: steady, 19: late}, True)
    assert not p1
    ntr = sum(f't{k}' in S_.when for k in range(18))
    print('end of gemm: par left', pars.left(), 'groups', len(kslot), 'left in group', sum(x.paced for x in dma.items[dma.i:]), 'read', ntr, [S_.when.get(f'k{k}', 0) // G for k in range(18)], file=sys.stderr)
    NT = max(NG - 9, ntr + (trs.i % 9 > 0)); trs.items = trs.items[:9 * NT]; st8['lag'] = OPT['elag']
    S_.flush(pars)
    stamp(a, 'g1')
    a.raw(';EPI')
    l0 = len(a.lines)
    dma.rate = OPT['erate']
    for it in trs.items[trs.i:]:
        for k in it.after: it.after[k] = OPT['elag']
    def post(f): return [f'@wait vm=h{f}', f's_add_u32 s{T3}, s{sFL}, {f*FST}', f'buffer_atomic_add v{FV}, v1, s[{SH}:{SH+3}], s{T3} offen sc1']
    ACC2, HB, NHB = 176, 96, OPT['nhb']
    XO, XR, WRA, RDA, t = 22, 28, 38, 46, 48
    LEAD = NHB - 2
    nO = OPT['nO']
    hl = [(T, kk) for T in range(nO) for kk in range(14)] + [(T, kk) for T in range(nO) for kk in range(14, 18)] + [(T, kk) for T in range(nO, 5) for kk in range(18)]
    if OPT['nA']:
        mv = [(nO, kk) for kk in range(OPT['nA'])]
        hl = hl[:14*nO] + mv + [x for x in hl[14*nO:] if x not in mv]
    if OPT['xo']: hl = [x for x in hl if x[1] not in (15, 16)]
    HA = 88
    E_ = OPT['xb']; hbuf = {}
    assert E_ <= 4 and (E_ * OPT['xs'] <= 18 or OPT['xs'] >= 999)
    PE = E_ if OPT['xs'] >= 999 else 0
    freeb = [HB + 4*k for k in range(NHB)] + [144 + 4*k for k in range(E_)]
    def hb(i):
        if i not in hbuf: hbuf[i] = freeb.pop(0)
        return hbuf[i]
    def hload(i, ha=HA):
        T, kk = hl[i]
        if kk < 14: return f'buffer_load_dwordx4 {V(hb(i), 4)}, v{ha+T}, s[{SH}:{SH+3}], s{sRT+kk} offen sc1'
        if OPT['roto']: return f'buffer_load_dwordx4 {V(hb(i), 4)}, v{ha+T}, s[{SH}:{SH+3}], s{SG+kk-14} offen sc1'
        return f'buffer_load_dwordx4 {V(hb(i), 4)}, v{ha+T}, s[{SH}:{SH+3}], s{sWO} offen offset:{(kk-14)*1024} sc1'
    for T in range(5):
        stamp(a, f'T{T}')
        for h in (1, 0):
            P = PR + 4 * (2 * T + h); dd = acc(T, h); OO = O + 4 * h
            ops = []
            for k in range(0, 16, 2): ops.append(f'v_pk_fma_f32 {V(dd+k, 2)}, {V(CS+k, 2)}, {V(P, 2)}, {V(dd+k, 2)} op_sel_hi:[1,0,1]')
            for k in range(0, 8, 2): ops.append(f'v_pk_mul_f32 {V(E+k, 2)}, {V(dd+k, 2)}, {V(P+2, 2)} op_sel_hi:[1,0]')
            for k in range(8): ops.append(f'v_exp_f32 v{E+k}, v{E+k}')
            for k in range(0, 8, 2): ops.append(f'v_pk_mul_f32 {V(dd+k, 2)}, {V(dd+k, 2)}, {V(dd+8+k, 2)}')
            for k in range(0, 8, 2): ops.append(f'v_pk_fma_f32 {V(E+k, 2)}, {V(E+k, 2)}, {V(P, 2)}, {V(P, 2)} op_sel:[0,1,1] op_sel_hi:[1,1,1]')
            for k in range(8): ops.append(f'v_rcp_f32 v{E+k}, v{E+k}')
            for k in range(0, 8, 2): ops.append(f'v_pk_mul_f32 {V(dd+k, 2)}, {V(dd+k, 2)}, {V(E+k, 2)}')
            ops.append(f's_add_u32 s{T2}, s{sST}, {h*TH_BYTES + T*72*1024}')
            for k in range(4): ops.append(f'v_cvt_pk_bf16_f32 v{OO+k}, v{dd+2*k}, v{dd+2*k+1}')
            n2 = 2 * T + 1 - h
            if n2 == OPT['pi']:
                print('at poll: groups', len(kslot), 'tr left', trs.left(), file=sys.stderr)
                if OPT['pd']: S_.flush(trs)
                while not OPT['pd'] and (len(kslot) < NG or not trs.done()):
                    S_.flush(dma); S_.flush(trs)
                a('@wait lg=*'); a(poll_issue(0))
            if n2 == 9 and OPT['pe']:
                S_.flush(dma); a(f'v_add_u32 v168, s{sJ}, v{HV}')
                em(a, poll_check('Lf_p0', 0, 14)); stamp(a, 'p0')
                dma = Stream([Item(hload(i, 168), tag=f'g{i}') for i in range(LEAD)])
            for x in ops:
                a(x)
                if x.startswith(TRANS): S_.gap([dma, trs], 2)
            if n2 == 9: S_.flush(dma)
            a(f'buffer_store_dwordx4 {V(OO, 4)}, v{HV}, s[{SH}:{SH+3}], s{T2} offen sc1', tag=f'h{T}')
            if n2 in (4, 6, 8): em(a, post(n2 // 2 - 2)); stamp(a, f'F{n2//2-2}')
    if OPT['x']:
        pats = dict(s='buffer_store', t='ds_read_b64_tr', d='buffer_load', v='v_')
        a.lines[l0:] = [l for l in a.lines[l0:] if not any(l.strip().startswith(pats[c]) for c in OPT['x'])]
    stamp(a, 'e1')
    fin = f's_atomic_add s{sONE}, s[{sM1}:{sM1+1}], {3*FST}'
    early = ['s_waitcnt vmcnt(0)', fin, 's_waitcnt lgkmcnt(0)', f's_mov_b32 s{sONE}, 0'] if OPT['early'] else []
    a(f'v_add_u32 v{HA}, s{sJ}, v{HV}')
    if not OPT['pe']:
        em(a, poll_check('Lf_p0', 0, 14, early))
        stamp(a, 'p0')
    a(poll_issue(1))
    NR = min(NG, 14) if OPT['dt'] else NG
    rest = Stream(sum((w2r(kk, 0) for kk in range(NT, NR)), []))
    for i in range(0 if OPT['pe'] else LEAD + E_):
        a(hload(i), tag=f'g{i}'); S_.gap([rest], 4, ds=4)
    S_.flush(rest)
    free = [k for k in range(9) if k not in kslot[NR:]]
    wod = []
    for kk in range(NG, 14 if OPT['xo'] else 18):
        kslot.append(free.pop(0)); wod += [x for x in w2d(kk) if not x.body[0].startswith('@wait')]
    wod = Stream(wod, rate=OPT['wrate'], burst=0.1)
    wor = Stream(sum((w2r(kk, 4 * LEAD + 8 if kk >= NG else 0) for kk in range(NR, 14 if OPT['xo'] else 18)), []))
    stamp(a, 'tr')
    bg2 = [f'v_add_u32 v{HA+T}, {T*72*1024}, v{HA}' for T in range(1, 5)]
    bg2 += f"""s_lshr_b32 s{T0}, s{sTH}, 1
s_mul_i32 s{T0}, s{T0}, 158
s_and_b32 s{T1}, s{sTH}, 1
s_and_b32 s{T2}, s{sW}, 1
s_lshl1_add_u32 s{T1}, s{T1}, s{T2}
s_lshr_b32 s{T3}, s{sW}, 1
s_lshl3_add_u32 s{T1}, s{T1}, s{T3}
v_lshl_add_u32 v{t}, v{XL+1}, 1, s{T1}
v_add_u32 v{t+1}, s{T0}, v{t}
v_mul_u32_u24 v{t+1}, 896, v{t+1}
v_and_b32 v{t+3}, 15, v0
v_lshlrev_b32 v{t+2}, 3, v{t+3}
s_lshl_b32 s{T0}, s{sCT}, 7
v_add3_u32 v{XO}, v{t+1}, v{t+2}, s{T0}""".split('\n')
    bg2 += [f'v_add_u32 v{XO+T}, {32*896*T}, v{XO}' for T in range(1, 5)]
    bg2 += f"""v_cmp_gt_u32 vcc, 30, v{t}
v_mov_b32 v{t+1}, {OOB}
v_and_b32 v{t+2}, 7, v0
v_cndmask_b32 v{XO+4}, v{t+1}, v{XO+4}, vcc
v_xor_b32 v{t+1}, v{XL+1}, v{t+2}
v_lshlrev_b32 v{t+1}, 4, v{t+1}
v_lshl_add_u32 v{t}, v{t+3}, 8, v{t+1}
s_lshl_b32 s{T0}, s{sW}, 12
v_add_u32 v{WRA}, s{T0}, v{t}""".split('\n')
    bg2 += [f'v_xor_b32 v{WRA+c}, {64*c}, v{WRA}' for c in range(1, 4)] + [f'v_add_u32 v{WRA+4+c}, 0x10000, v{WRA+c}' for c in range(4)]
    bg2 += f"""s_lshl_b32 s{T0}, s{sW}, 2
v_add_u32 v{t}, s{T0}, v{XL+1}
v_and_b32 v{t+1}, 7, v{t}
v_xor_b32 v{t+1}, v{t+1}, v{t+3}
v_lshlrev_b32 v{t+1}, 4, v{t+1}
v_lshl_add_u32 v{RDA}, v{t}, 8, v{t+1}
v_add_u32 v{RDA+1}, 0x10000, v{RDA}""".split('\n')
    if OPT['roto']:
        for k in range(4): bg2 += [f's_add_u32 s{T0}, s2, {k}', f's_and_b32 s{T0}, s{T0}, 3', f's_lshl_b32 s{T0}, s{T0}, 10', f's_add_u32 s{SG+k}, s{T0}, s{sWO}']
    em(a, bg2[:1]); bg2s = Stream(items(bg2[1:])); bg2s.items[-1].name = 'bg2'
    em(a, poll_check('Lf_p1', 1, 14, early))
    stamp(a, 'p1')
    pre = {}
    if OPT['fp']: pre[OPT['fp']] = ['@wait vm=h4', fin]
    else: a('@wait vm=h4'); stamp(a, 'e2'); a(fin)
    def guard(name, f, want, first):
        stp = first - LEAD - PE - 1
        pre.setdefault(stp - 8, []).append(poll_issue(f)); pre.setdefault(stp, []).extend(poll_check(name, f, want))
        return stp
    guard('Lf_p2', 2, 14, hl.index((2, 0)))
    i3, iO = hl.index((3, 0)), hl.index((0, 14))
    if i3 > iO: i3 = iO - 9
    lastg = max(guard('Lf_p3', 3, 14, i3), 0 if OPT['nochk'] else guard('Lf_p4', 4, f's{sNO}', iO + OPT['ol']))
    first_done = hl.index((0, 17))
    assert lastg < first_done
    pre.setdefault(first_done, []).append('s_barrier')
    t_base = S_.t
    xr = Stream([Item(f'buffer_load_dwordx2 {V(XR + 2*T, 2)}, v{XO+T}, s[{SX}:{SX+3}], 0 offen', tag=f'xr{T}', t0=t_base + 4*(24 + 3*T), after={'bg2': 0}) for T in range(5)])
    RD = (144, 160); U = 48
    def wr(T): return [Item(f'ds_write_b128 v{WRA + c + (4 if T == 4 else 0)}, {V(ACC2 + 16*T + 4*c, 4)} offset:{(T & 3)*16384}', tag=f'pw{T}', paced=True, name=f'pw{T}' if c == 3 else None) for c in range(4)]
    wr0 = wr
    def wr(T):
        w_ = wr0(T)
        for x in w_: x.cost += OPT['wc']
        return w_
    def rdp(T): return [Item(f'ds_read_b128 {V(RD[T&1] + 4*w, 4)}, v{RDA + (T == 4)} offset:{(T & 3)*16384 + w*4096}', tag=f'p{T}', name=f'p{T}' if w == 3 else None) for w in range(4)]
    def unp(T):
        x = XR + 2 * T
        return [f'@wait vm=xr{T}', f'v_lshlrev_b32 v{U}, 16, v{x}', f'v_and_b32 v{U+1}, 0xffff0000, v{x}', f'v_lshlrev_b32 v{U+2}, 16, v{x+1}', f'v_and_b32 v{U+3}, 0xffff0000, v{x+1}']
    def fin2(T, pk):
        x = XR + 2 * T; b = RD[T & 1]
        if pk: o = [f'v_pk_add_f32 {V(U+k, 2)}, {V(U+k, 2)}, {V(b+4*w+k, 2)}' for w in range(4) for k in (0, 2)]
        else: o = [f'v_add_f32 v{U+k}, v{U+k}, v{b+4*w+k}' for w in range(4) for k in range(4)]
        return o + [f'v_cvt_pk_bf16_f32 v{x}, v{U}, v{U+1}', f'v_cvt_pk_bf16_f32 v{x+1}, v{U+2}, v{U+3}', f'buffer_store_dwordx2 {V(x, 2)}, v{XO+T}, s[{SOUT}:{SOUT+3}], 0 offen {OPT["ofl" if pk else "of"].replace("+", " ")}']
    assert NHB <= 12
    wrs = Stream([], rate=0.27, burst=0.1); red = Stream([]); outs = Stream([])
    shadow = [T for T in range(5) if len(hl) - hl.index((T, 17)) > 14]
    CH = 2 if OPT['chain'] else 1
    nxt = [LEAD + E_]
    ends = list(range(CH - 1, len(hl) - OPT['lc'], CH)) + [len(hl) - 1]
    for i in ends:
        T, kk = hl[i]
        if i == len(hl) - 1:
            CH = OPT['lc']
            w_ = wr(T)
            for c in range(4): w_[c].t0 = S_.t + CH * (c + 1) + 3
            wrs.items += w_
        a(f'@wait vm=g{i}')
        for q in range(i - CH + 1, i + 1): stamp(a, f'h{q}')
        fx = []
        for q in range(i - CH + 1, i + 1):
            due = [x for x in range(nxt[0], min(q + LEAD + max(0, E_ - q // OPT['xs']) + 1, len(hl))) if x < iO or q + LEAD + PE >= iO + OPT['ol']][:2]
            fx += [Item(hload(x), tag=f'g{x}', t0=S_.t + 4 * (q - i + CH - 1) + 2 * n_) for n_, x in enumerate(due)]
            nxt[0] += len(due)
            fx += items(pre.get(q, []))
        fx = Stream(fx)
        for c in range(4):
            for q in (range(i - CH + 1, i + 1) if c % 2 == 0 or kk < 2 else range(i, i - CH, -1)):
                r, k = wfrag(hl[q][1], c)
                if OPT['xo'] and hl[q][1] >= 14 and (c >> 1) != (q & 1): continue
                dd = V(ACC2 + 16 * T + 4 * c, 4)
                a(f'{MF} {dd}, {V(r, 4, k)}, {V(hb(q), 4)}, {dd if hl[q][1] else 0}')
                S_.gap([fx, wod, wrs, xr, wor, bg2s, outs, red], 1 if (c, q) == (3, i if kk < 2 else i - CH + 1) else 2)
        S_.flush(fx)
        if PE and i >= 36: assert wor.done() and not any(str(x).startswith('t') for x in a.lg)
        freeb += [hb(q) - (142 if hb(q) >= 144 and i >= 36 else 0) for q in range(i - CH + 1, i + 1) if hb(q) < 144 or i < 30 or PE]
        if i + LEAD + PE + 4 >= iO: assert bg2s.done() and wor.done() and not OPT['nochk'] or not wor.items, wor.left()
        if kk == 17 and i < len(hl) - 1:
            w_ = wr(T); w_[0].t0 = S_.t + 1
            wrs.items += w_
            grp = [T - 1, T] if OPT['pair'] and T & 1 else ([] if OPT['pair'] and T + 1 in shadow else [T])
            if T in shadow and grp:
                red.items += [Item([f'@wait lg=pw{T}', 's_barrier'], after={f'pw{T}': 6}, t0=S_.t + OPT['rt'])] + sum((rdp(x) for x in grp), [])
                for x in grp:
                    red.items += items(unp(x)) + [Item(f'@wait lg=p{x}', after={f'p{x}': 5})] + items(fin2(x, False)[:-1])
                    red.items[-1].name = f'r{x}'
                    outs.items.append(Item(fin2(x, False)[-1], after={f'r{x}': 1}, t0=t_base + OPT['ost'] * 4))
    todo = [T for T in range(5) if T not in shadow]
    if red.done():
        S_.flush(outs); em(a, unp(todo[0])); S_.flush(wrs)
    else:
        S_.flush(wrs); S_.flush(red); S_.flush(outs); em(a, unp(todo[0]))
    a('s_waitcnt lgkmcnt(0)\ns_barrier')
    stamp(a, 'red')
    S_.flush(Stream(rdp(todo[0])))
    for k, T in enumerate(todo):
        if k + 1 < len(todo): S_.flush(Stream(rdp(todo[k + 1])))
        if k: em(a, unp(T))
        a(f'@wait lg=p{T}')
        em(a, fin2(T, True))

AXS = 130 * 128; AW0 = 3 * AXS; APAR = AW0 + 4 * 24576
def attn(a, split):
    XV, WV, XA, XB, WA = 2, 4, 7, 9, 11
    PA, RA, CB = 15, 16, 17
    OA = 20
    MK = 28
    CV = 36
    PR = 38
    t = 56
    Q, K, V0, V1 = 64, 128, 192, 224
    BF = 0; AF = 32
    if OPT['map2']:
        a(f's_sub_u32 s{T0}, s{T0}, s{T2}\ns_lshl_b32 s{T2}, s{sC}, 3\ns_lshr_b32 s{T2}, 0x160b1900, s{T2}\ns_and_b32 s{T2}, s{T2}, 31\ns_add_u32 s{sNO}, s{T0}, s{T2}')
        a(f's_or_b32 s{T0}, s2, 4\ns_cmpk_eq_u32 s{T0}, 255\ns_cbranch_scc1 L_idle0\ns_mul_i32 s{sC}, s{sNO}, 57\ns_lshr_b32 s{sC}, s{sC}, 9')
        a(f's_sub_u32 s{T0}, s{T1}, s{sC}\ns_mul_i32 s{T0}, s{T0}, 9\ns_add_u32 s{sR}, s{sNO}, s{T0}\ns_xor_b32 s{sC}, s{sC}, 1')
    else: a(f's_mul_i32 s{sR}, s{T1}, 9\ns_add_u32 s{sR}, s{sR}, s{T0}\ns_sub_u32 s{sR}, s{sR}, 23')
    if OPT['gx']: a(f's_xor_b32 s{sC}, s{sC}, 1')
    rot_init(a, OPT['rota'], 2688)
    a(f'v_lshl_add_u32 v{t}, v{XL+1}, 1, s{sWO}\nv_lshlrev_b32 v{t}, 1, v{t}\nv_sub_u32 v{t+1}, v0, v{t}\nv_and_b32 v{t+1}, 15, v{t+1}')
    a(f'v_cmp_gt_u32 vcc, 14, v{t+1}' if OPT['zpad'] else f'v_min_u32 v{t+1}, 13, v{t+1}')
    a(f's_mul_i32 s{T0}, s{sW}, 48\ns_add_u32 s{T0}, s{T0}, s{sC}\ns_mulk_i32 s{T0}, 224')
    a(f'v_mul_u32_u24 v{t+2}, 168, v{XL+1}\nv_add_lshl_u32 v{t+2}, v{t+1}, v{t+2}, 4\nv_add_u32 v{WV+2}, s{T0}, v{t+2}')
    if OPT['zpad']: a(f'v_cndmask_b32 v{WV+2}, v{ZT+3}, v{WV+2}, vcc')
    a(f'v_add_u32 v{WV+1}, 128, v{WV+2}\nv_add_u32 v{WV}, 256, v{WV+2}')
    a(f's_mul_i32 s{sMW}, s{sW}, 6144\ns_add_u32 s{sMW}, s{sMW}, {AW0}')
    a(f's_mov_b32 s{SG+2}, {448*2688 + 256}\ns_mov_b32 s{SG+3}, s{SX+3}')
    a('s_waitcnt lgkmcnt(0)')
    stamp(a, 'ka')
    em(a, srd_p(SX, 4)); stats_load(a)
    def help_w():
        r0 = OPT['aw']
        if OPT['rotf'] == 'h3':
            a(f's_lshr_b32 s{T0}, s2, 3\ns_lshl1_add_u32 s{T0}, s{T0}, s{sWO}\ns_mul_i32 s{T2}, s{T1}, 192\ns_add_u32 s{T0}, s{T0}, s{T2}\ns_add_u32 s{T0}, s{T0}, {r0 - 46}')
            a(f'v_mul_u32_u24 v18, 37, v0\nv_lshrrev_b32 v18, 8, v18\nv_mul_u32_u24 v36, 7, v18\nv_sub_u32 v36, v0, v36\nv_mad_u32_u24 v18, v18, 18, s{T0}')
            a(f's_lshl_b32 s{T2}, s{T1}, 8\ns_add_u32 s{T2}, s{T2}, 191\ns_mul_i32 s{T0}, s{sC}, 7\nv_min_u32 v18, s{T2}, v18\nv_mad_u32_u24 v18, v18, 28, v36')
            a(f's_cmp_eq_u32 s{sJ}, 0\ns_cselect_b64 s[{sM1}:{sM1+1}], s[12:13], s[14:15]\nv_add_lshl_u32 v18, v18, s{T0}, 7\nglobal_load_dword v19, v18, s[{sM1}:{sM1+1}]')
            return
        a(f's_lshr_b32 s{T0}, s2, 3\ns_sub_u32 s{T0}, s{T0}, 23\ns_lshl1_add_u32 s{T0}, s{T0}, s{sWO}\ns_lshl1_add_u32 s{T0}, s{T0}, s{T1}\ns_add_u32 s{T0}, s{T0}, {r0}')
        a(f'v_mul_u32_u24 v18, 37, v0\nv_lshrrev_b32 v18, 8, v18\nv_mul_u32_u24 v36, 7, v18\nv_sub_u32 v36, v0, v36\nv_mad_u32_u24 v18, v18, 36, s{T0}')
        a(f's_mul_i32 s{T0}, s{sC}, 7\nv_min_u32 v18, 447, v18\nv_mad_u32_u24 v18, v18, 28, v36\ns_cmp_eq_u32 s{sJ}, 0\ns_cselect_b64 s[{sM1}:{sM1+1}], s[12:13], s[14:15]')
        if OPT['a6']:
            a(f's_add_u32 s{T2}, s{sC}, 1\ns_bitcmp0_b32 s{T2}, 1\ns_cselect_b32 s{T2}, -1, 0\ns_and_b32 s{T0}, s{sC}, 2\ns_mul_i32 s{T0}, s{T0}, 7')
            a(f'v_add_lshl_u32 v18, v18, s{T0}, 7\nv_and_b32 v18, s{T2}, v18\nglobal_load_dword v19, v18, s[{sM1}:{sM1+1}]\nglobal_load_dword v19, v18, s[{sM1}:{sM1+1}] offset:896')
            return
        a(f'v_add_lshl_u32 v18, v18, s{T0}, 7\nglobal_load_dword v19, v18, s[{sM1}:{sM1+1}]')
    def help_d():
        if OPT['a6']:
            a(f's_sub_u32 s{T0}, s2, 184\ns_lshr_b32 s{T0}, s{T0}, 1\ns_lshl2_add_u32 s{T0}, s{T0}, s{sW}\ns_mul_i32 s{T2}, s{T0}, 88\ns_mul_i32 s{T0}, s{T0}, 22')
            a(f'v_min_u32 v18, 43, v0\nv_lshl_add_u32 v18, v18, 1, s{T2}\ns_add_u32 s{T2}, s{sC}, 1\ns_bfe_i32 s{T2}, s{T2}, 0x10001\nv_min_u32 v18, 12542, v18\nv_lshlrev_b32 v18, 7, v18')
            a(f'v_bfi_b32 v18, s{T2}, 0, v18\nglobal_load_dword v19, v18, s[16:17]\nglobal_load_dword v19, v18, s[16:17] offset:128')
            a(f'v_min_u32 v18, 21, v0\nv_add_u32 v18, s{T0}, v18\nv_min_u32 v18, 3135, v18\nv_lshlrev_b32 v18, 7, v18\nv_bfi_b32 v18, s{T2}, 0, v18\nglobal_load_dword v19, v18, s[8:9]')
            return
        a(f's_lshl2_add_u32 s{T0}, s{sR}, s{sC}' if OPT['map2'] else f's_sub_u32 s{T0}, s2, 184')
        a(f's_lshl2_add_u32 s{T0}, s{T0}, s{sW}\ns_mul_i32 s{T2}, s{T0}, 44\ns_mul_i32 s{T0}, s{T0}, 11')
        a(f'v_min_u32 v18, 43, v0\nv_add_u32 v18, s{T2}, v18\nv_min_u32 v18, 12543, v18\nv_lshlrev_b32 v18, 7, v18\nglobal_load_dword v19, v18, s[16:17]')
        a(f'v_min_u32 v18, 10, v0\nv_add_u32 v18, s{T0}, v18\nv_min_u32 v18, 3135, v18\nv_lshlrev_b32 v18, 7, v18\nglobal_load_dword v19, v18, s[8:9]')
    if OPT['aw'] and not OPT['awp']: split(); help_w()
    if OPT['ad'] == 1: help_d()
    em(a, srd_p(SG, 6, back=256))
    G = 24
    B = lambda m: bar_gap(G, 4, 6, OPT['ad_'], OPT['am'], m)
    def xd(j):
        o = items(x_off(OPT['rota'], j))
        for i in range(4):
            if i % 2 == 0: o.append(Item(f's_add_u32 m0, s{sMX}, {(j%3)*AXS + (i>>1)*(2048 - 896)}'))
            o.append(Item(f'buffer_load_dwordx4 v{XV + (i&1)}, s[{SX}:{SX+3}], s{sXJ} offen offset:{(i&1)*1024 + (i>>1)*896} lds', tag=f'x{j}', t0=B(x_bar(OPT['am'], j)), paced=True))
        return o
    def wd(h):
        o = []
        for i in range(2):
            o.append(Item(f's_add_u32 m0, s{sMW}, {(h%4)*24576 + i*3072}')); o[-1].brk = False
            o += items(w_off(OPT['rota'], h, i, 2688, 0))
            o += [Item(f'buffer_load_dwordx4 v{WV+m}, s[{SG}:{SG+3}], s{sSO} offen offset:{m*1024} lds', tag=f'w{h}', t0=B(h - 4), paced=True) for m in range(3)]
        return o
    d = wd(0) + xd(0) + wd(1)
    for h in range(2, 14):
        if h in (2, 4): d += xd(h // 2)
        for j in range(3, 7):
            if x_bar(OPT['am'], j) == h - 4: d += xd(j)
        d += wd(h)
    d = add_touches(d, 36, 18, 19)
    if OPT['ap']:
        k0 = OPT['ap']; n = (14 - k0) * 224; per = -(-n // 9)
        d += items([f's_and_b32 s79, s2, 7', f's_mul_i32 s79, s79, 7', f's_lshr_b32 s79, s79, 2', f's_add_u32 s79, s79, {k0}', f's_mul_i32 s79, s79, 224',
                    f's_lshr_b32 s{sPL}, s2, 3', f's_sub_u32 s{sPL}, s{sPL}, 23', f's_mul_i32 s{sSPIN}, s{sPL}, {per}', f's_add_u32 s79, s79, s{sSPIN}', f's_mul_i32 s{sSPIN}, s{sW}, 3136'])
        for k in range(0, per, 64):
            d += items([f'v_min_u32 v18, {min(63, per - 1 - k)}, v0', f'v_add_u32 v18, s79, v18', f'v_subrev_u32 v36, 3136, v18', 'v_min_u32 v18, v18, v36', f'v_subrev_u32 v36, 3136, v18', 'v_min_u32 v18, v18, v36',
                        f'v_add_lshl_u32 v18, v18, s{sSPIN}, 7', 's_add_u32 s79, s79, 64']) + [Item('global_load_dword v19, v18, s[0:1]', paced=True)]
        d += items([f's_mul_i32 s79, s{sPL}, 88', f's_mul_i32 s{sSPIN}, s{sW}, 784'])
        for k in (0, 44):
            d += items([f'v_min_u32 v18, 43, v0', f'v_add3_u32 v18, v18, s79, {k}', 'v_min_u32 v18, 783, v18', f'v_add_lshl_u32 v18, v18, s{sSPIN}, 7']) + [Item('global_load_dword v19, v18, s[18:19]', paced=True, name='apd')]
    dma = Stream(d, rate=OPT['arate0'])
    def steady(): dma.rate = OPT['arate']
    S_ = Sched(a)
    S_.flush(dma, 6)
    if not OPT['aw'] or OPT['awp']: split()
    stamp(a, 'i7')
    a(f's_mul_i32 s{T2}, s{sR}, 113\ns_lshl4_add_u32 s{T2}, s{sW}, s{T2}\ns_mul_i32 s{T2}, s{T2}, 896\ns_lshl_b32 s{sMX}, s{sW}, 12')
    a(f'v_add_u32 v{XV}, s{T2}, v{XL}\nv_add_u32 v{XV+1}, {64*896 - 1024}, v{XV}')
    S_.flush(dma, 2)
    em(a, srd(SH, 22, WS_USED) + srd(SDB, 20, 256)); keep_ptrs(a)
    x_read_addr(a, XA, XB, t, 4096)
    for st in range(3): a(f'ds_write_b128 v{t}, v[{t+2}:{t+5}] offset:{st*AXS + 129*128}')
    u = 20
    a(f'v_bfe_u32 v{u}, v0, 4, 1\nv_bfe_u32 v{u+1}, v0, 2, 2\nv_lshrrev_b32 v{u+2}, 5, v0\nv_and_b32 v{u+3}, 3, v0')
    a(f'v_lshl_add_u32 v{u+4}, v{u+1}, 1, v{u}\nv_lshl_add_u32 v{u+4}, v{u+4}, 2, v{u+3}\ns_mul_i32 s{T0}, s{sW}, 56\nv_lshl_add_u32 v{u+4}, v{u+4}, 3, s{T0}')
    a(f'v_add_u32 v{u+5}, 32, v{u+4}')
    if OPT['zpad']: a(f's_sub_u32 s{T0}, 168, s{T0}\nv_cmp_eq_u32 vcc, 3, v{u+3}\nv_add_u32 v{u+6}, s{T0}, v{u+5}\nv_cndmask_b32 v{u+5}, v{u+5}, v{u+6}, vcc')
    a(f'v_and_b32 v{u+4}, 0xff, v{u+4}\nv_and_b32 v{u+5}, 0xff, v{u+5}')
    a(f'v_mul_u32_u24 v{u}, 12288, v{u}\nv_mul_u32_u24 v{u+2}, 3072, v{u+2}\nv_lshl_add_u32 v{u}, v{u+1}, 8, v{u}\nv_add_u32 v{u}, v{u}, v{u+2}\nv_add_u32 v{u}, {AW0}, v{u}')
    a(f'v_add_u32 v{WA}, v{u}, v{u+4}\nv_add_u32 v{WA+1}, v{u}, v{u+5}\nv_add_u32 v{WA+2}, 49152, v{WA}\nv_add_u32 v{WA+3}, 49152, v{WA+1}')
    left = [OPT['anpro'] - 8]
    def more():
        if left[0] and OPT['zi'] < 99: S_.flush(dma, 1); left[0] -= 1
    if not OPT['azs']: stats_do(a, more)
    else: a.raw(';HOP')
    S_.flush(dma, left[0])
    if OPT['ad'] == 2: help_d()
    if OPT['ad'] > 2:
        rec = []; a_ = a; a = lambda t: rec.extend(t.split('\n')); help_d(); a = a_
        k = [i for i, x in enumerate(dma.items) if x.paced][OPT['ad'] - 1] + 1
        dma.items[k:k] = items([x.replace(f's{T0}', 's79').replace(f's{T2}', f's{sPL}') for x in rec])

    tiles = [[0, 1, 2, 3], [7, 4, 5, 6]]
    def bread(g, q, k, sl, n):
        T = tiles[g][q]
        return f'ds_read_b128 {A(BF + 8*sl + 4*n, 4)}, v{(XB if T == 7 else XA) + (k & 1)} offset:{((k>>1)%3)*AXS + (8*(T&1) + (T>>1))*1024}'
    def areads(h):
        o = []
        for mat in range(3):
            for ct in range(2):
                for jj in range(2):
                    off = (h % 4) * 24576 + jj * 6144 + mat * 1024
                    o.append(f'ds_read_b64_tr_b16 {A(AF + 24*(h%3) + 8*mat + 4*ct + 2*jj, 2)}, v{WA + ct + (2 if off >= 49152 else 0)} offset:{off % 49152}')
        return o
    def acc(T, c): return (Q + 8*T, Q + 8*T + 4, K + 8*T, K + 8*T + 4, V0 + 4*T, V1 + 4*T)[c]
    def mfma(g, q, c, k, sl, n, first):
        dd = V(acc(tiles[g][q], c), 4); w_, x_ = A(AF + 24*(k%3) + 4*c, 4), A(BF + 8*sl + 4*n, 4)
        return f'{MF} {dd}, {w_ if c < 4 else x_}, {x_ if c < 4 else w_}, {0 if first else dd}'
    stamp(a, 'pre')
    a('@wait vm=x0,w0 lg=*\ns_barrier')
    stamp(a, 'b0')
    if OPT['atc'] < 0: a(cert_load(27), tag='cert')
    bg = [f'v_and_b32 v{t}, 15, v0', f'v_lshlrev_b32 v{PA}, 2, v{t}', f'v_add_u32 v{PA}, {APAR}, v{PA}',
          f'v_lshlrev_b32 v{RA}, 4, v{XL+1}', f'v_add_u32 v{RA}, {APAR}, v{RA}', f'v_cmp_gt_u32 s[{sM1}:{sM1+1}], 48, v0',
          f'v_lshlrev_b32 v{t+1}, 2, v{XL+1}', f'v_sub_u32 v{t+1}, v{t}, v{t+1}', f'v_mov_b32 v{t+3}, {hx(f2u(-1e30))}']
    for i in range(8):
        bg += [f'v_add_u32 v{t+2}, {(16 if i < 4 else 0) - (i & 3)}, v{t+1}', f'v_cmp_gt_u32 s[{sM0}:{sM0+1}], 8, v{t+2}',
               f'v_cndmask_b32 v{MK+i}, v{t+3}, 0, s[{sM0}:{sM0+1}]']
    kA, kB, kC, kD = sTH, sCT, sJ, sWO
    bg += [f's_mul_i32 s{kD}, s{sR}, 113', f's_lshl2_add_u32 s{T3}, s{sC}, s{sW}', f's_add_u32 s{T3}, s{T3}, 56', f's_lshl_b32 s{sST}, s{T3}, 10',
           [f's_cmp_eq_u32 s{sR}, 0', f's_cselect_b32 s{T3}, 0, 14'], f's_mov_b32 s{kA}, 26547', f's_mov_b32 s{kB}, {TH_BYTES}', f's_mov_b32 s{kC}, {72*1024}',
           f'v_mov_b32 v{t+7}, {OOB}']
    for p in range(2):
        bg += [f'v_lshl_add_u32 v{t+1}, v0, 1, {p}', f'v_add_u32 v{t+2}, s{kD}, v{t+1}', f'v_mul_u32_u24 v{t+3}, s{kA}, v{t+2}', f'v_lshrrev_b32 v{t+3}, 22, v{t+3}',
               f'v_mul_u32_u24 v{t+4}, 158, v{t+3}', f'v_sub_u32 v{t+2}, v{t+2}, v{t+4}',
               f'v_bfe_u32 v{t+4}, v{t+2}, 4, 1', f'v_lshl_add_u32 v{t+3}, v{t+3}, 1, v{t+4}', f'v_mul_u32_u24 v{t+3}, s{kB}, v{t+3}',
               f'v_lshrrev_b32 v{t+4}, 5, v{t+2}', f'v_mad_u32_u24 v{t+3}, v{t+4}, s{kC}, v{t+3}',
               f'v_bfe_u32 v{t+4}, v{t+2}, 1, 3', f'v_lshl_add_u32 v{t+3}, v{t+4}, 4, v{t+3}', f'v_and_b32 v{t+4}, 1, v{t+2}', f'v_lshl_add_u32 v{OA+p}, v{t+4}, 7, v{t+3}',
               f'v_cmp_le_u32 s[{sM0}:{sM0+1}], s{T3}, v{t+1}', f'v_cndmask_b32 v{OA+p}, v{t+7}, v{OA+p}, s[{sM0}:{sM0+1}]']
    bg += [f'v_cmp_gt_u32 s[{sM0}:{sM0+1}], 63, v0', f'v_cndmask_b32 v{OA+1}, v{t+7}, v{OA+1}, s[{sM0}:{sM0+1}]']
    bg += [f's_add_u32 s{T3}, s{T3}, s{kD}', f's_mul_i32 s{T3}, s{T3}, 26547', f's_lshr_b32 s{T3}, s{T3}, 22', f's_add_u32 s{kD}, s{kD}, 126', f's_mul_i32 s{kD}, s{kD}, 26547',
           f's_lshr_b32 s{kD}, s{kD}, 22', f's_sub_u32 s{kD}, s{kD}, s{T3}', f'v_cmp_ge_u32 s[{sM0}:{sM0+1}], s{kD}, v0', f'v_lshlrev_b32 v{CB}, 9, v0',
           f's_lshl2_add_u32 s{T3}, s{T3}, s{sC}', f's_lshl_b32 s{T3}, s{T3}, 7', f's_add_u32 s{sFL}, s{T3}, {FH + 4*FST}',
           f'v_cndmask_b32 v{CB}, v{t+7}, v{CB}, s[{sM0}:{sM0+1}]']
    HP = 26
    if OPT['hp']:
        assert not OPT['map2']
        bg += [f's_bfe_u32 s{kA}, s2, 0x10002', f's_mul_i32 s{kA}, s{kA}, 13', f's_and_b32 s{kB}, s2, 3', f's_mul_i32 s{kB}, s{kB}, 3', f's_add_u32 s{kA}, s{kA}, s{kB}',
               f's_lshr_b32 s{kB}, s2, 3', f's_sub_u32 s{kB}, s{kB}, 23', f's_and_b32 s{kC}, s{kB}, 3', f's_add_u32 s{kA}, s{kA}, s{kC}', f's_bfe_u32 s{kB}, s{kB}, 0x10002',
               f's_lshl1_add_u32 s{kC}, s{sW}, s{kB}', f's_mul_i32 s{kC}, s{kC}, 7168', f's_mul_i32 s{kD}, s{kA}, {TH_BYTES}', f's_add_u32 s{kC}, s{kC}, s{kD}',
               f'v_min_u32 v{HP}, 55, v0', f'v_lshl_add_u32 v{HP}, v{HP}, 7, s{kC}',
               f's_lshr_b32 s{T3}, s{kA}, 1', f's_lshl2_add_u32 s{sFH}, s{T3}, s{sW}', f's_lshl_b32 s{sFH}, s{sFH}, 7', f's_add_u32 s{sFH}, s{sFH}, {FH}',
               [f's_add_u32 s{sFH}, s22, s{sFH}', f's_addc_u32 s{sFH+1}, s23, 0'],
               f's_mul_i32 s{T3}, s{T3}, 158', f's_add_u32 s{sNO}, s{T3}, {157-14}', f's_min_u32 s{sNO}, s{sNO}, {2047-14}', f's_mul_i32 s{sNO}, s{sNO}, 580', f's_lshr_b32 s{sNO}, s{sNO}, 16',
               f's_max_u32 s{T3}, s{T3}, 14', f's_sub_u32 s{T3}, s{T3}, 14', f's_mul_i32 s{T3}, s{T3}, 580', f's_lshr_b32 s{T3}, s{T3}, 16',
               f's_sub_u32 s{sNO}, s{sNO}, s{T3}', f's_lshl2_add_u32 s{sNO}, s{sNO}, 4',
               f's_lshl1_add_u32 s{kC}, s{sW}, s{kB}', f's_lshl_b32 s{kC}, s{kC}, 11', f's_add_u32 s{kD}, s{kD}, s{kC}', f's_add_u32 s{kD}, s{kD}, {56*1024}']
    def touch(Ts): return [x for T in Ts for x in (f's_mov_b32 s{T3}, {T*72*1024}', f'buffer_load_dword v27, v{HP}, s[{SH}:{SH+3}], s{T3} offen sc1')]
    def try_touch(f, Ts):
        em(a, ['s_waitcnt lgkmcnt(0)', f's_cmp_eq_u32 s{preg(f)}, 14', f's_cbranch_scc0 La_nt{f}'] + touch(Ts) + [f'La_nt{f}:'])
    bgs = Stream(items(bg))
    z = ZD + 6
    src = [f's_and_b32 s{T0}, s{sW}, 1', f's_mul_i32 s{T1}, s{sR}, 113', f's_add_u32 s{T1}, s{T1}, s{T0}', f's_lshr_b32 s{T2}, s{T1}, 1', f'v_add_u32 v{z}, s{T2}, v0']
    src += stats_src(z, z + 1)
    src += [f's_and_b32 s{T1}, s{T1}, 1', f's_lshr_b32 s{T2}, s{sW}, 1', f's_lshl1_add_u32 s{T1}, s{T1}, s{T2}', f's_lshl_b32 s{T1}, s{T1}, 5',
            f's_add_u32 s{T1}, s{T1}, {STATS}', f's_lshl1_add_u32 s{T0}, s{T0}, s{T2}', f's_lshl_b32 s{T0}, s{T0}, 8', f's_add_u32 s{T0}, s{T0}, {APAR}',
            f'v_lshl_add_u32 v{z+1}, v0, 2, s{T0}']
    sy = sync_stream('La', G, OPT['atc'], src, [f'buffer_load_dword v{z+2}, v{z}, s[{SH}:{SH+3}], s{T1} offen sc1'], [z + 2], [f'ds_write_b32 v{z+1}, v{z+2}'], OPT['atl'], OPT['atl'] + 5, 27)
    par = [Item(f'ds_read2_b32 {V(PR + 2*T, 2)}, v{PA} offset0:{128*(T>>2) + 16*(T&3)} offset1:{64 + 128*(T>>2) + 16*(T&3)}', t0=B(12), tag='pr') for T in range(8)]
    CQ, CK = 2, 54
    par += [Item(f'v_mov_b32_dpp v{CK+k}, v{K+56+k} row_newbcast:15 row_mask:0xf bank_mask:0xf', t0=25*G + 16) for k in range(8)]
    for c, sv in enumerate((V0 + 31, V1 + 31)):
        par += items([f'v_mov_b32 v62, v{sv}', f'v_mov_b32 v63, v{sv}', 'v_permlane32_swap_b32 v62, v63', f'v_mov_b32 v{CV+c}, v63', f'v_permlane16_swap_b32 v63, v{CV+c}'])
    par += [Item(f'v_mov_b32_dpp v{CQ+k}, v{Q+56+k} row_newbcast:15 row_mask:0xf bank_mask:0xf', t0=27*G + 13) for k in range(8)]
    par[15].name = 'ck'
    pars = Stream(par)
    sh = [Item('@wait lg=pr', after={'ck': 0})]
    for q, T in enumerate(tiles[1] if OPT['ash'] else []):
        P = PR + 2 * T; t0 = 25 * G + 12 * (q + 1) + 3
        o = [f'v_fmac_f32 v{K+8*T+k}, v{CK+k}, v{P}' for k in range(8)] + [f'v_mul_f32 v{K+8*T+k}, v{K+8*T+k}, v{P+1}' for k in range(8)]
        sh += items(o, t0=t0); sh[-1].name = f'K{T}'
        if T != 7:
            sh += items([f'v_fmac_f32_dpp v{Q+8*T+k}, v{Q+56+k}, v{P} row_newbcast:15 row_mask:0xf bank_mask:0xf' for k in range(8)], t0=t0); sh[-1].name = f'Q{T}'
    shs = Stream(sh)
    hooks = {5: steady}
    if OPT['azs']:
        zb_ = min(m for m in range(14) if B(m) > OPT['azs'] * G + 12)
        def late_stats():
            n0 = len(a.lines); stats_do(a); a.lines.remove(';HOP') if a.lines.count(';HOP') > 1 else None
            a('@wait lg=*')
        hooks[OPT['azs']] = late_stats
        assert OPT['atc'] < 0
        sy.items[0].t0 = B(zb_)
    if OPT['adip']: hooks[OPT['adip']] = lambda: (steady() if OPT['adip'] == 5 else None, S_.flush(bgs))
    def ck25(): assert sy.done() and bgs.done() and dma.done()
    gemm1(a, S_, G, 4, 6, OPT['ad_'], OPT['am'], areads, bread, mfma, dma, [sy, pars, shs] + ([] if OPT['adip'] else [bgs]), {12: ck25}, hooks)
    while shs.i > 1 and not shs.done() and shs.items[shs.i - 1].name is None: S_.put(shs, shs.items[shs.i])
    print('shadow', [k for k in S_.when if k[0] in 'KQ'], file=sys.stderr)
    assert dma.done()
    S_.flush(pars)
    a('@wait lg=*')
    stamp(a, 'g1')
    a.raw(';EPI')
    def SR(T): return (Q + 32 + 8 * T) if T < 4 else (K + 32 + 8 * (T - 4))
    RB = (2, 54)
    def rread(T):
        for ar in range(2): a(f'ds_read_b128 {V(RB[T&1] + 4*ar, 4)}, v{RA} offset:{512*(T>>2) + 256*ar + 64*(T&3)}', tag=f'R{T}')
    for T in range(8):
        P = PR + 2 * T; dd = Q + 8 * T; dk = K + 8 * T
        if f'Q{T}' not in S_.when:
            for k in range(0, 8, 2): a(f'v_pk_fma_f32 {V(dd+k, 2)}, {V(CQ+k, 2)}, {V(P, 2)}, {V(dd+k, 2)} op_sel_hi:[1,0,1]')
        if f'K{T}' not in S_.when:
            for k in range(0, 8, 2): a(f'v_pk_fma_f32 {V(dk+k, 2)}, {V(CK+k, 2)}, {V(P, 2)}, {V(dk+k, 2)} op_sel_hi:[1,0,1]')
            for k in range(0, 8, 2): a(f'v_pk_mul_f32 {V(dk+k, 2)}, {V(dk+k, 2)}, {V(P, 2)} op_sel:[0,1] op_sel_hi:[1,1]')
    rread(0); rread(1)
    cv = []
    for T in range(8):
        cv += [f'v_cvt_pk_bf16_f32 v{Q+4*T+k}, v{Q+8*T+2*k}, v{Q+8*T+2*k+1}' for k in range(4)]
        cv += [f'v_cndmask_b32 v{Q+4*T+k}, 0, v{Q+4*T+k}, s[{sM1}:{sM1+1}]' for k in (() if OPT['zpad'] else (2, 3))]
        cv += [f'v_cvt_pk_bf16_f32 v{K+4*T+k}, v{K+8*T+2*k}, v{K+8*T+2*k+1}' for k in range(4)]
    n8 = len(cv) // 8
    for T in range(8):
        em(a, cv[n8*T:n8*(T+1)])
        a(f'@wait lg=R{T}')
        b = RB[T & 1]
        for c, base in enumerate((V0, V1)):
            for k in (0, 2): a(f'v_pk_fma_f32 {V(base+4*T+k, 2)}, {V(b+k, 2)}, {V(CV, 2)}, {V(base+4*T+k, 2)} op_sel:[0,{c},0] op_sel_hi:[1,{c},1]')
        for c, base in enumerate((V0, V1)):
            for k in (0, 2): a(f'v_pk_mul_f32 {V(base+4*T+k, 2)}, {V(base+4*T+k, 2)}, {V(b+4+k, 2)}')
        if T < 6: rread(T + 2)
    if OPT['hp'] & 1: a(poll_issue(1))
    fill = [f'v_cvt_pk_bf16_f32 v{base+2*T+k}, v{base+4*T+2*k}, v{base+4*T+2*k+1}' for T in range(8) for base in (V0, V1) for k in range(2)]
    fill += [f'v_mul_f32 v{PR + 2*T + 1}, {hx(f2u(LOG2E * 28 ** -0.5))}, v{PR + 2*T + 1}' for T in range(8)]
    for T in range(8):
        if T & 3:
            a(f'{MF} {V(SR(T), 4)}, {V(K + 4*(T-1), 4)}, {V(Q + 4*T, 4)}, {V(MK, 4)}'); em(a, fill[:2]); del fill[:2]
        a(f'{MF} {V(SR(T) + 4, 4)}, {V(K + 4*T, 4)}, {V(Q + 4*T, 4)}, {V(MK + 4, 4)}'); em(a, fill[:2]); del fill[:2]
    em(a, fill)
    mx = [10, 11, 12, 13, 22, 23, 24, 25]
    for T in range(8):
        s = SR(T); m = mx[T]
        if T & 3: a(f'v_max3_f32 v{m}, v{s}, v{s+1}, v{s+2}\nv_max3_f32 v{m}, v{m}, v{s+3}, v{s+4}\nv_max3_f32 v{m}, v{m}, v{s+5}, v{s+6}\nv_max_f32 v{m}, v{m}, v{s+7}')
        else: a(f'v_max3_f32 v{m}, v{s+4}, v{s+5}, v{s+6}\nv_max_f32 v{m}, v{m}, v{s+7}')
    stamp(a, 'e1')
    for b in (0, 2, 4, 6): a(f'v_permlane32_swap_b32 v{mx[b]}, v{mx[b+1]}')
    for b in (0, 2, 4, 6): a(f'v_max_f32 v{mx[b]}, v{mx[b]}, v{mx[b+1]}')
    for b in (0, 4): a(f'v_permlane16_swap_b32 v{mx[b]}, v{mx[b+2]}')
    for b in (0, 4): a(f'v_max_f32 v{mx[b]}, v{mx[b]}, v{mx[b+2]}')
    for b in (0, 4): a(f'v_mov_b32 v{mx[b+2]}, v{mx[b]}')
    ONE = 54; PF = 56; OT = K
    for k in range(2): a(f'v_mov_b32 v{2+k}, 0x3f803f80')
    for b in (0, 4): a(f'v_permlane16_swap_b32 v{mx[b]}, v{mx[b+2]}')
    for b in (0, 2, 4, 6): a(f'v_mov_b32 v{mx[b+1]}, v{mx[b]}')
    for k in range(2, 4): a(f'v_mov_b32 v{2+k}, 0x3f803f80')
    ONE = 2
    for b in (0, 2, 4, 6): a(f'v_permlane32_swap_b32 v{mx[b]}, v{mx[b+1]}')
    for T in range(8): a(f'v_mul_f32 v{PR + 2*T}, v{mx[T]}, v{PR + 2*T + 1}')
    if OPT['hp'] & 1: try_touch(1, [1])
    def pf(T): return PF + 4 * (T & 1)
    def soft(T):
        s = SR(T); P = PR + 2 * T
        lo = 0 if T & 3 else 4
        for k in range(lo, 8, 2): a(f'v_pk_fma_f32 {V(s+k, 2)}, {V(s+k, 2)}, {V(P, 2)}, {V(P, 2)} op_sel:[0,1,0] op_sel_hi:[1,1,0] neg_lo:[0,0,1] neg_hi:[0,0,1]')
        return [f'v_exp_f32 v{s+k}, v{s+k}' for k in range(lo, 8)]
    def pack(T):
        s = SR(T)
        if T & 3:
            for k in range(4): a(f'v_cvt_pk_bf16_f32 v{pf(T)+k}, v{s+2*k}, v{s+2*k+1}')
        else:
            for k in range(2): a(f'v_cvt_pk_bf16_f32 v{pf(T)+k}, v{s+4+2*k}, v{s+5+2*k}')
            a(f'v_mov_b32 v{pf(T)+2}, 0\nv_mov_b32 v{pf(T)+3}, 0')
    def OB(T): return OT + 12 * (T & 1)
    def pv(T):
        v = 2 * (T - 1) if T & 3 else 2 * T
        o = OB(T)
        return [f'{MF} {V(o + 8, 4)}, {V(ONE, 4)}, {V(pf(T), 4)}, 0', f'{MF} {V(o, 4)}, {V(V0 + v, 4)}, {V(pf(T), 4)}, 0', f'{MF} {V(o + 4, 4)}, {V(V1 + v, 4)}, {V(pf(T), 4)}, 0']
    def fin(T):
        o = OB(T); R = Q + 4 * T
        for k in range(0, 8, 2): a(f'v_pk_mul_f32 {V(o+k, 2)}, {V(o+k, 2)}, {V(o+8, 2)} op_sel_hi:[1,0]')
        for k in range(4): a(f'v_cvt_pk_bf16_f32 v{R+k}, v{o+2*k}, v{o+2*k+1}')
        if T & 3 == 3:
            R0 = R - 12
            for k in range(4):
                for q in (0, 1): a(f'v_permlane32_swap_b32 v{R0+4*q+k}, v{R0+4*(q+2)+k}')
            for q in (0, 2):
                for k in range(4): a(f'v_permlane16_swap_b32 v{R0+4*q+k}, v{R0+4*(q+1)+k}')
                for g in (q, q + 1): a(f'buffer_store_dwordx4 {V(R0+4*g, 4)}, v{OA + (T>>2)}, s[{SH}:{SH+3}], s{sST} offen offset:{256*g} sc1', tag='o')
    for T in range(9):
        ex = soft(T) if T < 8 else []
        mm = pv(T - 1) if T else []
        for x in mm:
            a(x)
            if ex: a(ex.pop(0))
        em(a, ex)
        if T: a(f'v_rcp_f32 v{OB(T-1)+8}, v{OB(T-1)+8}')
        if T < 8: pack(T)
        if T: fin(T - 1)
        if OPT['hp'] & 2 and T == 2: a(poll_issue(2))
        if OPT['hp'] & 2 and T == 4: try_touch(2, [2])
    stamp(a, 'e2')
    if OPT['hp'] & 4: a(poll_issue(3))
    a(f'v_mov_b32 v2, 1\ns_waitcnt vmcnt(0)\nbuffer_atomic_add v2, v{CB}, s[{SH}:{SH+3}], s{sFL} offen sc1')
    if OPT['hp'] & 4: em(a, poll_check('La_h3', 3, 14) + touch([3, 4]))
    if OPT['hp'] & 8:
        a(poll_issue(4))
        a(f'v_and_b32 v3, 15, v0\nv_mul_u32_u24 v4, {72*8}, v{XL+1}'.replace(f'v{XL+1}', 'v5').replace('v_and_b32 v3', 'v_lshrrev_b32 v5, 4, v0\nv_and_b32 v3'))
        a(f'v_add_lshl_u32 v4, v3, v4, 7\nv_lshlrev_b32 v3, 7, v3\nv_add_u32 v3, {4*72*1024}, v3')
        em(a, poll_check('La_h4', 4, f's{sNO}'))
        a(f'buffer_load_dword v27, v4, s[{SH}:{SH+3}], s{kD} offen sc1\nbuffer_load_dword v27, v3, s[{SH}:{SH+3}], s{kD} offen sc1')

def add_pads(lines, pfx):
    flat = []
    for l in lines: flat += l.split('\n')
    h = flat.index(';HOP')
    if not OPT['iw']: return flat[:h] + flat[h+1:]
    start = flat.index(';EPI') if OPT['iws'] else h + OPT['iw']
    pos = []; k = start
    while k < len(flat) - 60:
        j = k
        while j < k + 40 and not (flat[j-1].strip().startswith('v_mfma') and flat[j].strip().startswith('v_mfma')): j += 1
        pos.append(j if j < k + 40 else k); k += OPT['iw']
    n = len(pos); first = [w * n // 4 for w in range(5)]
    hop = ['    s_mov_b64 exec, 0']
    for w in range(3): hop += [f'    s_cmp_eq_u32 s{sW}, {w}', f'    s_cbranch_scc1 {pfx}_pad{first[w]}']
    hop += [f'    s_branch {pfx}_pad{first[3]}', f'{pfx}_back:', '    s_mov_b64 exec, -1']
    out = flat[:h] + hop
    for i in range(h + 1, len(flat)):
        if i in pos:
            q = pos.index(i)
            out += [f'{pfx}_pad{q}:', f'    s_cbranch_execz {pfx}_' + ('back' if q + 1 in first else f'pad{q+1}')]
        out.append(flat[i])
    print(pfx, 'pads', n, file=sys.stderr)
    return out

def desc(name):
    return f""".amdhsa_kernel {name}
  .amdhsa_next_free_vgpr 512
  .amdhsa_next_free_sgpr 102
  .amdhsa_accum_offset 256
  .amdhsa_group_segment_fixed_size 0
  .amdhsa_kernarg_size 80
  .amdhsa_user_sgpr_count 2
  .amdhsa_user_sgpr_kernarg_segment_ptr 1
  .amdhsa_system_sgpr_workgroup_id_x 1
  .amdhsa_float_denorm_mode_32 3
.end_amdhsa_kernel
"""

DOC = """;
; Straight-line code written by a hand-made scheduler script (4 waves, 512 registers each, 16x16x32 bf16 MFMA).
;                then an output tile of 80 token slots x 64 columns over K = [H | O], K split over the waves.
;   A workgroups (72 = 18 row blocks x 4)  : q/k/v GEMM of 127 tokens x 4 heads (one head per wave), windowed
; LayerNorm is applied after the first GEMMs: (x W - mean * colsum(W)) / std; colsum comes from an all-ones token
; Hand-offs: write-through (sc1) stores -> s_waitcnt vmcnt -> arrival counter; consumers poll, then load (sc1).
; Workgroup ids are mapped to tiles for cache locality only; any placement gives the same result.
"""
def build():
    del SLOW[:]
    hdr = open('cdna_kernels/' + NAME + '.s.ref').read().split('; Override launch')[0]
    k1 = NAME + '_kernel'
    out = hdr + '; @launch grid=(256,1,1) block=(256,1,1) lds=163840\n' + DOC + '.amdgcn_target "amdgcn-amd-amdhsa--gfx950"\n.text\n'
    c = Asm()
    c.raw(f'.globl {k1}\n.type {k1},@function\n.p2align 10\n.fill {OPT["pad"] // 4}, 4, 0xbf810000\n.p2align 8\n{k1}:')
    c('s_cmpk_ge_u32 s2, 256\ns_cbranch_scc1 L_done')
    if PROF: c.raw(f'    s_mem{"real" if "real" in STAMPS else ""}time s[86:87]\n    s_memrealtime s[84:85]\n    s_waitcnt lgkmcnt(0)\n    s_mov_b32 s87, s84\n    s_getreg_b32 s99, hwreg(HW_REG_XCC_ID)\n    s_lshl_b32 s99, s99, 16')
    else: stamp(c, 0)
    c('s_load_dwordx16 s[4:19], s[0:1], 0\ns_load_dwordx4 s[20:23], s[0:1], 64')
    per = OPT['pfn']
    c(f's_getpc_b64 s[{sFH}:{sFH+1}]\nv_lshrrev_b32 v1, 6, v0\nv_and_b32 v0, 63, v0\ns_lshr_b32 s{T0}, s2, 3\ns_mul_i32 s{T1}, s{T0}, {per}')
    c(f'v_min_u32 v{XL}, {per-1}, v0\nv_readfirstlane_b32 s{sW}, v1\nv_add_lshl_u32 v{XL}, v{XL}, s{T1}, 7')
    c(f'global_load_dword v37, v{XL}, s[{sFH}:{sFH+1}] offset:896', tag='pf')
    stats_addr(c); em(c, srd_c(SX, 2048 * 896))
    c(f's_and_b32 s{sJ}, s{sW}, 1\ns_lshr_b32 s{sWO}, s{sW}, 1\ns_lshl_b32 s{T2}, s{sJ}, 2')
    c(f'v_lshrrev_b32 v{XL}, 3, v0\nv_and_b32 v1, 7, v0\nv_lshrrev_b32 v{XL+1}, 4, v0\nv_mul_u32_u24 v{XL}, 112, v{XL}\nv_xor_b32 v1, s{T2}, v1')
    c(f's_bfe_u32 s{T1}, s2, 0x10002\ns_and_b32 s{sC}, s2, 3\nv_xor_b32 v1, v1, v{XL+1}\n' + (f's_cmp_eq_u32 s{sC}, 3\ns_cselect_b32 s{T2}, 28, 21\ns_cmp_lt_u32 s{T0}, s{T2}' if OPT['map2'] else f's_cmp_lt_u32 s{T0}, 23') + f'\nv_add_lshl_u32 v{XL}, v{XL}, v1, 4\ns_cbranch_scc1 L_ffn')
    aa = Asm(); aa.vm = ['pf']
    if OPT['noa']: aa(f's_mov_b32 s{T1}, 1\ns_branch L_idle')
    cut = []
    def split():
        aa('s_branch L_attn'); cut.append(len(aa.lines)); aa.label('L_attn')
    attn(aa, split); dump(aa); aa('s_endpgm')
    f = Asm(); f.vm = ['pf']
    f.label('L_ffn')
    if OPT['map2']: f(f's_mul_i32 s{T2}, s{sC}, 21\ns_add_u32 s{T0}, s{T0}, s{T2}')
    else: f(f's_mul_i32 s{T2}, s{sC}, 23\ns_add_u32 s{T0}, s{T0}, s{T2}\ns_cmpk_ge_u32 s{T0}, 91\ns_cbranch_scc1 L_idle0')
    ffn(f); dump(f)
    f.label('L_done'); f('s_endpgm')
    a = Asm(); a.vm = ['pf']
    a.label('L_idle')
    z = Asm(); z.label('L_idle0')
    z(f'v_mov_b32 v4, 0\nv_mov_b32 v5, 0\nv_mov_b32 v6, 0\nv_mov_b32 v7, 0\ns_lshl_b32 s{T0}, s{sW}, 12\ns_add_u32 s{T0}, s{T0}, {STATS}\nv_lshl_add_u32 v2, v0, 4, s{T0}')
    z(f's_cmp_lg_u32 s{T1}, 0\ns_waitcnt lgkmcnt(0)\ns_cbranch_scc1 L_idle1')
    for i in range(4): z(f'global_store_dwordx4 v2, v[4:7], s[22:23] offset:{i*1024} sc1')
    z('s_branch L_idle')
    a.lines[-1:] = ['L_idle1:']
    a(f's_mul_i32 s{T0}, s{sW}, {5*FST//4}\ns_add_u32 s{T0}, s{T0}, {FH + 4096}\nv_lshl_add_u32 v2, v0, 4, s{T0}\nv_add_u32 v3, 4096, v2')
    for i in range(10): a(f'global_store_dwordx4 v{2 + (i >= 8)}, v[4:7], s[22:23] offset:{(i - 4 - 4*(i >= 8))*1024} sc1')
    if OPT['oc']:
        a(f's_lshl_b32 s{T0}, s{sW}, 12\ns_add_u32 s{T0}, s{T0}, {25*TH_BYTES + (4*72 + 56)*1024}\nv_lshl_add_u32 v2, v0, 4, s{T0}')
        for i in range(4): a(f'global_store_dwordx4 v2, v[4:7], s[22:23] offset:{i*1024} sc1')
    a.label('L_idle')
    em(a, srd(SH, 22, WS_USED) + srd(SDB, 20, 256) + srd_p(SX, 4))
    a(f's_lshl_b32 s{T3}, s{T1}, 7\ns_cmp_eq_u32 s{sW}, 0\ns_cselect_b32 s{T3}, s{T3}, {OOB}\nv_mov_b32 v8, 1\nv_lshl_add_u32 v9, v0, 8, s{T3}')
    a(f's_waitcnt vmcnt(0)\ns_barrier\nbuffer_store_dword v8, v9, s[{SDB}:{SDB+3}], 0 offen sc1')
    stats_load(a); stats_do(a)
    a('s_waitcnt lgkmcnt(0)\ns_barrier')
    em(a, stats_prep(ZD, ZD + 4))
    a(cert_load(ZD + 5)); a('s_waitcnt vmcnt(0) lgkmcnt(0)')
    em(a, vec_check('Li_cert', [cert_load(ZD + 5)], [ZD + 5])); a(stats_post(ZD, ZD + 4)); a('s_endpgm')
    for s in SLOW: a.raw(s)
    a.raw('L_end:\n.fill 3072, 4, 0xbf810000')
    sys.stderr.write(f'instr: ffn {f.count} attn {aa.count}; nops {f.nops} {aa.nops}\n')
    lines = c.lines + aa.lines[:cut[0]] + z.lines + add_pads(f.lines, 'Lf') + add_pads(aa.lines[cut[0]:], 'La') + a.lines
    lines = [l for l in lines if not l.startswith(';')]
    if OPT['align']: lines = align_pass(lines, k1, 'L_end', 'L_f7')
    text = '\n'.join(lines) + '\n'
    if OPT['hf_'] != 'sc1': text = re.sub(r'(buffer_load_dwordx4 v\[.*) sc1', lambda m: m.group(1) + ' ' + OPT['hf_'], text)
    if OPT['sf'] != 'sc1': text = re.sub(r'(buffer_store_dwordx4 .*) sc1', lambda m: m.group(1) + ' ' + OPT['sf'].replace('+', ' '), text)
    return out + text + '.section .rodata,"a"\n.p2align 6\n' + desc(k1)

if __name__ == '__main__':
    args = sys.argv[1:]
    for x in [x for x in args if x.startswith('enc:')]:
        args.remove(x); ENC = (x.split(':')[1], int(x.split(':')[2]))
    for x in [x for x in args if x.startswith('st:')]:
        PROF = True; args.remove(x); STAMPS[:] = x[3:].split(',')
    for x in [x for x in args if '=' in x]:
        k, v = x.split('='); args.remove(x)
        OPT[k] = type(OPT[k])(v) if not isinstance(OPT[k], bool) else v == '1'
    roles = [decode_py(b) for b in range(256)]
    F = [r for r in roles if r and r[0] == 'F']; Aa = [r for r in roles if r and r[0] == 'A']
    assert sorted((r[1], r[2]) for r in F) == [(r, c) for r in range(13) for c in range(14)]
    assert sorted((r[3], r[4]) for r in F) == [(t, c) for t in range(26) for c in range(7)]
    assert sorted((r[1], r[2]) for r in Aa) == [(x, g) for x in range(18) for g in range(4)]
    assert all(((t * 26547) >> 22) == t // 158 for t in range(2200))
    assert all(((t * 4682) >> 16) == t // 14 for t in range(140))
    for r in range(13):
        need = {0 if tk < 127 else (tk - 14) // 113 for tk in range(158 * r, min(158 * r + 158, 2048))}
        assert len(need) == ((min(158 * r + 143, 2033) * 580) >> 16) - (((max(158 * r, 14) - 14) * 580) >> 16) + 1
        assert need == {x for x in range(18) if ((113 * x + (14 if x else 0)) // 158) <= r <= (113 * x + 126) // 158}
    open(args[0] if args else 'cdna_kernels/' + NAME + '.s', 'w').write(build())
```

```python
import sys, struct
from asmlib import *

NAME = "parallel_sum__sliding_local_dilated__swiglu_ffn__prompt"
LOG2E = 1.4426950408889634
def f2u(x): return struct.unpack('<I', struct.pack('<f', x))[0]
def hx(x): return f'0x{x & 0xffffffff:08x}'

OPT = dict(rotf='h3', rota='1.0.0.7.1', rate=0.25, rate2=0.2, rate3=0.22, rs=4, arate=0.2, erate=0.25, w2s=13, w2g=50, npro=17, anpro=16, rot2=2, sleep=3,
           tc=1, atc=-1, atl=13, tl=13, nhb=12, pi=9, early=0, lag=60, touch='', tn=4, tpos=20, tstep=4.0, nO=4, pad=256, otr=1, lt=0, ltr=128, zpos=0, align=1, lead=8, fm=6, am=0, arate0=0.3, fd=3, ad_=2, chain=1, zpad=1, of='sc1', ofl='sc1', xo=0, sf='sc1', wso=0, diag=0, roto=0, aw=0, ad=60, awp=0, ol=0, ado=0, alate=1, wc=0, vs=0, hf_='sc1', hp=0, oc=1, map2=1, gx=0, pd=0, xb=0, xs=4, ash=1, dw=0, dt=1, pe=0, wrate=0.12, fp=0, azs=0, adip=3, pair=0, lc=4, rt=18, zi=99, nbg=999, p2=0, zr=1, noa=0, pfn=11, iw=0, iws=1, nA=8, a6=0, ost=80, nochk=0, x='', ap=0, tk=4, elag=40)

SX, SG, SU, SH, SD, SO, SOUT, SDB = 24, 28, 32, 36, 40, 44, 48, 52
sR, sC, sTH, sCT, sW = 56, 57, 58, 59, 60
T0, T1, T2, T3 = 61, 62, 63, 64
sMX, sMW, sSO, sJ, sWO, sST, sSPIN = 65, 66, 67, 68, 69, 70, 71
sPL, sONE, sXJ, sWJ = 72, 73, 74, 75
sFH, sNO = 76, 78
sM0, sM1 = 80, 82
sRT = 4
sFL = 3

TH_BYTES = 5 * 72 * 1024
FH, FST, STATS, WS_USED = 0x930000, 8192, 0x93a000, 0x940000
OOB = 0x7ffffff0
MF = 'v_mfma_f32_16x16x32_bf16'

PROF = False; STAMPS = []; ENC = None; sP = 86
def stamp(a, i, real=False):
    if ENC:
        if i == 0 or i == ENC[0]:
            a.raw(f'    s_memrealtime s[84:85]\n    s_waitcnt lgkmcnt(0)\n    s_mov_b32 s{86 + (i != 0)}, s84'); a.lg = []
        return
    if not PROF: return
    if isinstance(i, str):
        if i not in STAMPS: return
        i = 2 + STAMPS.index(i)
    real = real or 'real' in STAMPS
    a.raw(f'    s_mem{"real" if real else ""}time s[84:85]\n    s_waitcnt lgkmcnt(0)\n    s_mov_b32 s{sP+i}, s84')
    a.lg = []
def dump(a):
    if ENC:
        l = f'Lenc{a.count}'
        stamp(a, 'end')
        a.raw(f'    s_cmp_eq_u32 s2, {ENC[1]}\n    s_cbranch_scc0 {l}_e\n    s_sub_u32 s87, s87, s86\n    s_min_u32 s87, s87, 5000\n    s_mul_i32 s87, s87, 10\n    s_memrealtime s[88:89]\n{l}:\n    s_memrealtime s[84:85]\n    s_waitcnt lgkmcnt(0)\n    s_sub_u32 s84, s84, s88\n    s_cmp_lt_u32 s84, s87\n    s_cbranch_scc1 {l}\n{l}_e:')
        return
    if not PROF: return
    a('s_waitcnt vmcnt(0)')
    stamp(a, 14); stamp(a, 15, True)
    a(f's_mov_b32 s{SH+2}, 0x2000000')
    a(f's_lshl_b32 s{T0}, s2, 2\ns_add_u32 s{T0}, s{T0}, s{sW}\ns_lshl_b32 s{T0}, s{T0}, 6\ns_add_u32 s{T0}, s{T0}, 0x1000000')
    for i in range(16): a(f'v_mov_b32 v{4+i}, s{sP+i}')
    a('v_mov_b32 v2, 0\ns_mov_b64 exec, 1')
    for i in range(4): a(f'buffer_store_dwordx4 v[{4+4*i}:{7+4*i}], v2, s[{SH}:{SH+3}], s{T0} offen offset:{16*i}')

def srd_c(dst, nbytes): return [f's_mov_b32 s{dst+2}, {nbytes}', f's_mov_b32 s{dst+3}, 0x20000']
def srd_p(dst, ptr, back=0):
    if back: return [[f's_sub_u32 s{dst}, s{ptr}, {back}', f's_subb_u32 s{dst+1}, s{ptr+1}, 0']]
    return [f's_mov_b64 s[{dst}:{dst+1}], s[{ptr}:{ptr+1}]']
def srd(dst, ptr, nbytes): return srd_p(dst, ptr) + srd_c(dst, nbytes)
def em(a, l, tag=None):
    for x in l:
        for y in ([x] if isinstance(x, str) else x): a(y, tag=tag)
def items(l, **k): return [Item(x, **k) for x in l]

SLOW = []
NL = '\n    '
def mark(): return f'{NL}s_bitset1_b32 s99, {len(SLOW)}' if PROF and len(STAMPS) < 12 else ''
def vec_check(name, loads, regs):
    r = regs[-1]
    t = {1: [], 2: [f'v_min_u32 v{r}, v{regs[0]}, v{r}'], 3: [f'v_min3_u32 v{r}, v{regs[0]}, v{regs[1]}, v{r}']}[len(regs)] if len(regs) > 1 else []
    t.append(f'v_cmp_eq_u32 vcc, 0, v{r}')
    SLOW.append(f"""{name}:{mark()}
    s_mov_b32 s{sSPIN}, 0
{name}_l:
    s_sleep 4
    {NL.join(loads)}
    s_add_u32 s{sSPIN}, s{sSPIN}, 1
    s_waitcnt vmcnt(0)
    {NL.join(t)}
    s_nop 4
    s_cbranch_vccz {name}_r
    s_cmp_lt_u32 s{sSPIN}, 0x40000
    s_cbranch_scc1 {name}_l
    s_branch {name}_r""")
    return t + ['s_nop 4', f's_cbranch_vccnz {name}', f'{name}_r:']
def preg(f): return 79 if f & 1 else sPL
def poll_issue(f): return f's_load_dword s{preg(f)}, s[{sFH}:{sFH+1}], {f*FST} glc'
def poll_check(name, f, want, first=()):
    SLOW.append(f"""{name}:{mark()}
    {NL.join(list(first) + [f's_mov_b32 s{sSPIN}, 0'])}
{name}_l:
    {poll_issue(f)}
    s_add_u32 s{sSPIN}, s{sSPIN}, 1
    s_waitcnt lgkmcnt(0)
    s_cmp_eq_u32 s{preg(f)}, {want}
    s_cbranch_scc1 {name}_r
    s_sleep {OPT['sleep']}
    s_cmp_lt_u32 s{sSPIN}, 0x40000
    s_cbranch_scc1 {name}_l
    s_branch {name}_r""")
    return ['s_waitcnt lgkmcnt(0)', [f's_cmp_eq_u32 s{preg(f)}, {want}', f's_cbranch_scc0 {name}', f'{name}_r:']]

def decode_py(b):
    i, hf, q = b >> 3, (b >> 2) & 1, b & 3
    if OPT['map2']:
        n = 28 if q == 3 else 21
        if i >= n:
            if (b | 4) == 255: return None
            u = i - n + ((0x160b1900 >> (8 * q)) & 31); G = (u * 57) >> 9
            return ('A', u + 9 * (hf - G), G ^ 1)
        f = 21 * q + i; p = 91 * hf + f; th = (p * 9363) >> 16
        m, n, f2 = (43, 6, f - 7) if f >= 49 else (37, 7, f)
        c = (f2 * m) >> 8; r = f2 - n * c
        return ('F', 12 - r if hf else r, 13 - c if hf else c, th, p - 7 * th)
    if i >= 23: return ('A', 9 * hf + i - 23, q)
    f = i + 23 * q
    if f >= 91: return None
    p = 91 * hf + f; th = (p * 9363) >> 16; ct = p - 7 * th
    l1 = 49 - 7 * hf; sec = int(f >= l1); f2 = f - (l1 if sec else 0)
    m, n = (37, 7) if (sec ^ hf) == 0 else (43, 6)
    c = (f2 * m) >> 8; r = f2 - n * c
    return ('F', r + (7 - sec) * hf, c + 7 * sec, th, ct)

ZD, ZT = 38, 46
ZL = 163840 - 128
sZB = sSPIN
def zb(): return sZB if OPT['zr'] else 2
def stats_addr(a):
    if OPT['zr']: a(f's_bfe_u32 s{T3}, s2, 0x10002\ns_lshl_b32 s{T3}, s{T3}, 5\ns_add_u32 s{T3}, s{T3}, s{T0}\ns_and_b32 s{sZB}, s2, 3\ns_lshl2_add_u32 s{sZB}, s{T3}, s{sZB}')
    a(f's_andn2_b32 s{T3}, s{zb()}, 1\ns_lshl1_add_u32 s{T3}, s{T3}, s{sW}\ns_and_b32 s{sSO}, s2, 1\ns_lshl2_add_u32 s{sST}, s{T3}, s{sSO}\ns_mulk_i32 s{sST}, 896')
    a(f'v_lshrrev_b32 v{ZT}, 5, v0\nv_and_b32 v{ZT+1}, 31, v0\nv_mul_u32_u24 v{ZT+2}, 1792, v{ZT}\nv_cmp_gt_u32 vcc, 28, v{ZT+1}')
    a(f'v_lshl_add_u32 v{ZT+2}, v{ZT+1}, 4, v{ZT+2}\nv_mov_b32 v{ZT+3}, {OOB}\nv_cndmask_b32 v{ZT+2}, v{ZT+3}, v{ZT+2}, vcc')
def stats_load(a):
    a(f'buffer_load_dwordx4 {V(ZD, 4)}, v{ZT+2}, s[{SX}:{SX+3}], s{sST} offen', tag='z')
    a(f'buffer_load_dwordx4 {V(ZD+4, 4)}, v{ZT+2}, s[{SX}:{SX+3}], s{sST} offen offset:448', tag='z')
def stats_do(a_, more=None):
    cnt = [-1]
    def a(t, **k):
        for x in t.split('\n'):
            a_(x, **k)
            if cnt[0] >= 0 and more:
                if cnt[0] % OPT['zi'] == 0: more()
                cnt[0] += 1
    s, q, lo, hi = ZT + 4, ZT + 5, ZT + 6, ZT + 7
    a(f'v_and_b32 v{ZT+2}, 1, v0\nv_cmp_eq_u32 s[{sM0}:{sM0+1}], 1, v{ZT+2}\nv_lshlrev_b32 v{ZT+2}, 5, v{ZT+2}\nv_lshl_add_u32 v{ZT+2}, v{ZT}, 2, v{ZT+2}')
    a(f'v_bfe_u32 v{ZT+1}, v0, 4, 1\nv_lshlrev_b32 v{ZT+1}, 6, v{ZT+1}\nv_sub_u32 v{ZT+2}, v{ZT+2}, v{ZT+1}\ns_lshl3_add_u32 s{T0}, s{sW}, {ZL + 64}')
    a(f'v_cmp_eq_u32 vcc, 0, v0\nv_add_u32 v{ZT+2}, s{T0}, v{ZT+2}\nv_mov_b32 v{ZT}, 0\nv_cndmask_b32 v1, v{ZT+3}, v{ZT}, vcc')
    a_.raw(';HOP')
    stamp(a_, 'z0')
    a('@wait vm=z')
    stamp(a_, 'z1')
    cnt[0] = 0
    for k in range(8):
        r = ZD + k
        a(f'v_lshlrev_b32 v{lo}, 16, v{r}\nv_and_b32 v{hi}, 0xffff0000, v{r}')
        if k == 0: a(f'v_pk_add_f32 {V(ZT, 2)}, {V(lo, 2)}, 0\nv_pk_mul_f32 {V(s, 2)}, {V(lo, 2)}, {V(lo, 2)}')
        else: a(f'v_pk_add_f32 {V(ZT, 2)}, {V(ZT, 2)}, {V(lo, 2)}\nv_pk_fma_f32 {V(s, 2)}, {V(lo, 2)}, {V(lo, 2)}, {V(s, 2)}')
    a(f'v_add_f32 v{q}, v{s}, v{q}\nv_add_f32 v{s}, v{ZT}, v{ZT+1}')
    for ctl in ('quad_perm:[1,0,3,2] row_mask:0xf', 'quad_perm:[2,3,0,1] row_mask:0xf', 'row_half_mirror row_mask:0xf', 'row_mirror row_mask:0xf', 'row_bcast:15 row_mask:0xa'):
        for r in (q, s): a(f'v_add_f32_dpp v{r}, v{r}, v{r} {ctl} bank_mask:0xf')
    a(f'v_mul_f32 v{s}, {hx(f2u(1/448))}, v{s}\nv_mul_f32 v{q}, {hx(f2u(1/448))}, v{q}\nv_fma_f32 v{q}, -v{s}, v{s}, v{q}\nv_max_f32 v{q}, 0, v{q}')
    a(f'v_cvt_pk_bf16_f32 v{s}, -v{s}, v{q}\nv_and_b32 v{q}, 0xffff0000, v{s}\nv_lshlrev_b32 v{s}, 16, v{s}')
    a(f'v_add_f32 v{q}, {hx(f2u(1e-5))}, v{q}\nv_cvt_pk_bf16_f32 v{q}, v{q}, v{q}\nv_and_b32 v{q}, 0xffff0000, v{q}\nv_sqrt_f32 v{q}, v{q}')
    a(f'v_cvt_pk_bf16_f32 v{q}, v{q}, v{q}\nv_and_b32 v{q}, 0xffff0000, v{q}\nv_rcp_f32 v{q}, v{q}')
    a(f'v_cndmask_b32 v{s}, v{s}, v{q}, s[{sM0}:{sM0+1}]\nv_or_b32 v{s}, 1, v{s}')
    a(f'ds_write_b32 v{ZT+2}, v{s}')
    stamp(a_, 'z2')
def cert_load(v, k=0): return f'buffer_load_dword v{v}, off, s[{SDB}:{SDB+3}], 0 offset:{128*k} sc1'
def stats_prep(vd, va):
    return [f'v_and_b32 v{va}, 3, v0', f'v_lshlrev_b32 v{va}, 4, v{va}', f'v_add_u32 v{va}, {ZL}, v{va}', f'ds_read_b128 {V(vd, 4)}, v{va}',
            f's_lshl_b32 s{T0}, s{zb()}, 6', f's_add_u32 s{T0}, s{T0}, {STATS - ZL}', [f's_cmp_eq_u32 s{sW}, 0', f's_cselect_b32 s{T0}, s{T0}, {OOB}'],
            f'v_add_u32 v{va}, s{T0}, v{va}', f'v_cmp_gt_u32 vcc, 4, v0', f'v_cndmask_b32 v{va}, v1, v{va}, vcc']
def stats_post(vd, va): return f'buffer_store_dwordx4 {V(vd, 4)}, v{va}, s[{SH}:{SH+3}], 0 offen sc1'
def stats_src(vd, vt):
    return [f'v_min_u32 v{vd}, 1023, v{vd}', f'v_and_b32 v{vt}, 7, v{vd}', f'v_lshrrev_b32 v{vd}, 3, v{vd}', f'v_lshlrev_b32 v{vd}, 7, v{vd}', f'v_lshl_add_u32 v{vd}, v{vt}, 2, v{vd}']
def sync_stream(pfx, G, tc, src, loads, regs, writes, t_load, t_check, C=ZD+5):
    D = ZD
    loads = loads + [cert_load(C, 1)]; regs = regs + [C]
    o = items(stats_prep(D, D + 4), tag='zg')
    if tc >= 0: o.append(Item(cert_load(C), tag='cert', t0=tc * G))
    def chk(wait, c, t0, nm):
        if not OPT['vs']: return [Item([wait] + c, t0=t0)]
        k = c.index('s_nop 4')
        o_ = [Item(wait, t0=t0)] + items(c[:k]); o_[-1].name = nm
        return o_ + [Item(c[k+1:], after={nm: 6})]
    o += chk('@wait vm=cert lg=zg', vec_check(pfx + '_cert', [cert_load(C)], [C]), (tc + OPT['tk']) * G + 2, 'c1')
    if OPT['diag']:
        o.append(Item(['s_waitcnt vmcnt(0)', 's_memrealtime s[84:85]', 's_waitcnt lgkmcnt(0)', 's_mov_b32 s88, s84', stats_post(D, D + 4), 's_waitcnt vmcnt(0)', 's_memrealtime s[84:85]', 's_waitcnt lgkmcnt(0)', 's_mov_b32 s89, s84']))
    else: o.append(Item(stats_post(D, D + 4)))
    o += items(src) + items(loads, tag='par', t0=t_load * G)
    o += chk('@wait vm=par', vec_check(pfx + '_par', loads, regs), t_check * G, 'c2')
    return Stream(o + items(writes, tag='sw'))

def rot_init(a, spec, rowbytes):
    if not spec: return
    if spec == 'x':
        a(f's_and_b32 s{sXJ}, s2, 7\ns_cmp_eq_u32 s{sXJ}, 7\ns_cselect_b32 s{sXJ}, 0, s{sXJ}\ns_mul_i32 s{sWJ}, s{sXJ}, {64*rowbytes}\ns_lshl_b32 s{sXJ}, s{sXJ}, 7')
        return
    if spec[0] == 'h':
        a(f's_mul_i32 s{sWJ}, s{T1}, {64*rowbytes*int(spec[1])}\ns_mul_i32 s{sXJ}, s{T1}, {128*int(spec[1])}')
        return
    p, q, s, m, k = map(int, spec.split('.'))
    terms = [(c, r) for c, r in ((p, sR), (q, sC), (s, T1)) if c]
    src = terms[0][1]
    if terms[0][0] != 1 or len(terms) > 1:
        a(f's_mul_i32 s{sXJ}, s{src}, {terms[0][0]}'); src = sXJ
        for c, r in terms[1:]: a(f's_mul_i32 s{sWJ}, s{r}, {c}\ns_add_u32 s{sXJ}, s{sXJ}, s{sWJ}')
    a(f's_mul_i32 s{sWJ}, s{src}, {65536 // m + 1}\ns_lshr_b32 s{sWJ}, s{sWJ}, 16\ns_mul_i32 s{sWJ}, s{sWJ}, {m}\ns_sub_u32 s{sXJ}, s{src}, s{sWJ}')
    a(f's_mul_i32 s{sWJ}, s{sXJ}, {64*k*rowbytes}\ns_mulk_i32 s{sXJ}, {128*k}')
def x_off(spec, j):
    if not spec: return [f's_movk_i32 s{sXJ}, {128*j}']
    return [f's_add_u32 s{sXJ}, s{sXJ}, 128', [f's_cmp_eq_u32 s{sXJ}, 896', f's_cselect_b32 s{sXJ}, 0, s{sXJ}']] if j else []
def w_off(spec, m, i, rowbytes, comp):
    if not spec: return [f's_mov_b32 s{sSO}, {(32*m + 16*i)*rowbytes - comp}']
    o = []
    if i == 0 and m and m % 2 == 0: o = [f's_add_u32 s{sWJ}, s{sWJ}, {64*rowbytes}', [f's_cmp_eq_u32 s{sWJ}, {448*rowbytes}', f's_cselect_b32 s{sWJ}, 0, s{sWJ}']]
    return o + [f's_add_u32 s{sSO}, s{sWJ}, {(32*(m&1) + 16*i)*rowbytes - comp}']

def add_touches(d, vb, vt, vdump):
    mats = dict(d=([0], 7), o=([18], 7))
    n = OPT['tn']; pieces = []
    for sp in [x for x in OPT['touch'].split(',') if x]:
        m, r0, r1 = sp.split(':')
        ptrs, lpr = mats[m]; l0 = int(r0) * lpr; l1 = int(r1) * lpr
        for l in range(l0, l1, 1024 * n):
            o = [f'v_add_u32 v{vt}, {l*128}, v{vb}'] + ([f'v_min_u32 v{vt}, {(l1-1)*128}, v{vt}'] if l + 1024 * n > l1 else [])
            for p in ptrs:
                pieces.append(items(o) + [Item(f'global_load_dword v{vdump}, v{vt}, s[{p}:{p+1}]', tag='touch')]); o = []
    ins = {}
    for k, p in enumerate(pieces): ins.setdefault(int(OPT['tpos'] + k * OPT['tstep']), []).extend(p)
    if pieces:
        ins[OPT['tpos']][:0] = items([f's_lshl2_add_u32 s79, s2, s{sW}', f's_mul_i32 s79, s79, {n}', f'v_min_u32 v{vb}, {n-1}, v0', f'v_add_lshl_u32 v{vb}, v{vb}, s79, 7'])
    out = []; k = 0; done = False
    for it in d:
        out.append(it)
        if it.paced:
            k += 1; out += ins.pop(k, [])
    return out
def keep_ptrs(a): a('s_mov_b64 s[0:1], s[16:17]\ns_mov_b64 s[18:19], s[8:9]')

XL = 54
def x_read_addr(a, XA, XB, t, octet_stride):
    a(f'v_and_b32 v{t}, 7, v0\nv_bfe_u32 v{t+1}, v0, 3, 1\nv_lshrrev_b32 v{t+2}, 4, v0\nv_bfe_u32 v{t+3}, v0, 1, 3')
    a(f'v_xor_b32 v{t+2}, v{t+2}, v{t+3}\nv_lshlrev_b32 v{t+2}, 4, v{t+2}\nv_lshl_add_u32 v{t+2}, v{t}, 7, v{t+2}')
    a(f'v_mul_u32_u24 v{t+1}, {octet_stride}, v{t+1}\nv_add_u32 v{XA}, v{t+1}, v{t+2}\nv_xor_b32 v{XA+1}, 64, v{XA}')
    a(f'v_and_b32 v{t+1}, 15, v0\nv_cmp_eq_u32 vcc, 15, v{t+1}\nv_mov_b32 v{t+3}, 0x100\nv_lshlrev_b32 v{t}, 4, v{t}\nv_cndmask_b32 v{t+3}, 0, v{t+3}, vcc')
    a(f'v_add_u32 v{XB}, v{XA}, v{t+3}\nv_add_u32 v{XB+1}, v{XA+1}, v{t+3}')
    for k in range(4): a(f'v_mov_b32 v{t+2+k}, 0x3f803f80')

def bar_gap(G, nt, nc, dist, M, m):
    if m < 0: return 0
    if m < M: return (2 * m + 1) * G + 1
    if m == M: return 2 * M * G + nc + 1
    if m == 14: return 27 * G + (nt - 1) * nc + 1
    return (2 * m - 1) * G + (nt - dist) * 2 * nc + 1
def x_bar(M, j):
    return -1 if j < 3 else (2 * j - 4 if 2 * j - 5 < M else 2 * j - 3)
def gemm1(a, S_, G, nt, nc, dist, M, areads, bread, mfma, dma, others, checks, hooks={}, last_bar=False):
    segs = []
    for k in range(M): segs += [(0, [k], None, None), (1, [k], k, 0)]
    segs.append((0, [M], M, 1))
    segs += [(m & 1, [m - 1, m], m, nt - dist) for m in range(M + 1, 14)]
    segs.append((0, [13], 14, nt - 1 if last_bar else None))
    units = [(g, q, ks, bm if q == bq else None) for g, ks, bm, bq in segs for q in range(nt)]
    def brd(u):
        if u >= len(units): return []
        g, q, ks, _ = units[u]
        return [Item(bread(g, q, k, u & 3, n), tag=f'b{u}') for n, k in enumerate(ks)]
    S_.flush(Stream(items(areads(0), tag='a0') + sum((brd(u) for u in range(dist)), [])))
    rds = Stream([]); forced = []
    for u, (g, q, ks, m) in enumerate(units):
        while any(x.tag in (f'b{u}', f'a{ks[-1]}') for x in rds.items[rds.i:]): S_.put(rds, rds.items[rds.i])
        bar = m is not None
        if bar and m in checks: checks[m]()
        a(f'@wait lg=b{u}' + (f',a{ks[-1]}' if q == 0 else '') + (',sw' if bar and m in checks else ''))
        if S_.t % G == 0 or S_.t % G + len(ks) * nc > G:
            n = -(-S_.t // G)
            if n in hooks: hooks[n]()
            stamp(a, f's{n}')
        nb = brd(u + dist)
        if not bar: rds.items += nb
        seq = [(c, n ^ (c & 1) if len(ks) == 2 else n) for c in (range(nc) if u % 2 == 0 or len(ks) == 2 else range(nc - 1, -1, -1)) for n in range(len(ks))]
        seen = set()
        for p, (c, n) in enumerate(seq):
            a(mfma(g, q, c, ks[n], u & 3, n, ks[0] == 0 and c not in seen)); seen.add(c)
            if bar and p == 0:
                assert S_.t + 1 == bar_gap(G, nt, nc, dist, M, m)
                need = (f'x{(m+1)>>1}', f'w{m+1}')
                while True:
                    if dma.done() and hasattr(dma, 'refill'): dma.refill()
                    young = len(a.vm) - 1 - max([k for k, tg in enumerate(a.vm) if tg in need], default=-99)
                    nxp = next((x for x in dma.items[dma.i:] if x.paced), None)
                    if nxp is None or nxp.t0 > S_.t or not (young < OPT['lead'] or any(x.tag in need for x in dma.items[dma.i:])): break
                    S_.flush(dma, 1); forced.append(m)
                a(f'@wait vm={need[0]},{need[1]}\ns_barrier'); S_.gap([], 0)
                rds.items += nb + (items(areads(m + 1), tag=f'a{m+1}') if m < 13 else [])
                continue
            left = (nt - q) * len(seq) - p - 1
            pend = [x.tag for x in rds.items[rds.i:]]
            na = max([k + 1 for k, tg in enumerate(pend) if tg[0] == 'a'], default=0)
            urgent = na >= left - 7 or f'b{u+1}' in pend or (f'b{u+2}' in pend and p >= len(seq) - 4)
            S_.gap(([rds, dma] if urgent else [dma, rds]) + others, 1 if p == len(seq) - 1 else 2)
    print('forced', forced, file=sys.stderr)

FXS = 162 * 128; FW0 = 3 * FXS; FPAR = FW0 + 6 * 16384
assert FPAR + 2048 <= ZL
def ffn(a):
    DV, RX, RW, RH, HV, PA, FV, DZ = 2, 6, 10, 14, 18, 19, 20, 21
    XV, WV, XA, XB, WA = 22, 27, 28, 30, 32
    E, O = 22, 30
    CS = 38; PR = 56; t = 56
    ACC = 96
    BF = 176; AF = 208
    if OPT['map2']:
        a(f's_mul_i32 s{sTH}, s{T1}, 91\ns_add_u32 s{sTH}, s{sTH}, s{T0}\ns_cmp_ge_u32 s{T0}, 49\ns_cselect_b32 s{T3}, 7, 0\ns_cselect_b32 s{sR}, 43, 37\ns_cselect_b32 s{T2}, 6, 7')
        a(f's_sub_u32 s{T0}, s{T0}, s{T3}\ns_mul_i32 s{sC}, s{T0}, s{sR}\ns_lshr_b32 s{sC}, s{sC}, 8\ns_mul_i32 s{T2}, s{T2}, s{sC}\ns_sub_u32 s{sR}, s{T0}, s{T2}')
        a(f's_sub_u32 s{T2}, 12, s{sR}\ns_sub_u32 s{T3}, 13, s{sC}\ns_cmp_eq_u32 s{T1}, 0\ns_cselect_b32 s{sR}, s{sR}, s{T2}\ns_cselect_b32 s{sC}, s{sC}, s{T3}')
        a_ = a; a = lambda t: None
    a(f's_mul_i32 s{sTH}, s{T1}, 91\ns_add_u32 s{sTH}, s{sTH}, s{T0}\ns_mul_i32 s{T2}, s{T1}, 7\ns_sub_u32 s{T2}, 49, s{T2}')
    a(f's_cmp_ge_u32 s{T0}, s{T2}\ns_cselect_b32 s{T3}, 7, 0\ns_cselect_b32 s{T2}, s{T2}, 0\ns_cselect_b32 s{sCT}, 6, 7\ns_cselect_b32 s{sMX}, 1, 0\ns_sub_u32 s{T0}, s{T0}, s{T2}')
    a(f's_cmp_eq_u32 s{sMX}, s{T1}\ns_cselect_b32 s{sR}, 37, 43\ns_cselect_b32 s{T2}, 7, 6')
    a(f's_mul_i32 s{sC}, s{T0}, s{sR}\ns_lshr_b32 s{sC}, s{sC}, 8\ns_mul_i32 s{T2}, s{T2}, s{sC}\ns_sub_u32 s{sR}, s{T0}, s{T2}')
    a(f's_add_u32 s{sC}, s{sC}, s{T3}\ns_mul_i32 s{sCT}, s{sCT}, s{T1}\ns_add_u32 s{sR}, s{sR}, s{sCT}')
    if OPT['map2']: a = a_
    rot_init(a, OPT['rotf'], 3584)
    a(f'v_and_b32 v{t+1}, 15, v0\nv_lshl_add_u32 v{t}, v{XL+1}, 1, s{sWO}\nv_lshlrev_b32 v{t}, 1, v{t}\nv_xor_b32 v{t+1}, v{t+1}, v{t}')
    a(f's_mul_i32 s{T0}, s{sW}, 56\ns_add_u32 s{T0}, s{T0}, s{sC}\ns_lshl_b32 s{T0}, s{T0}, 8')
    a(f'v_mul_u32_u24 v{t+2}, 224, v{XL+1}\nv_add_lshl_u32 v{t+2}, v{t+1}, v{t+2}, 4\nv_add_u32 v{WV}, s{T0}, v{t+2}')
    a(f's_mul_i32 s{T2}, s{sR}, 158\ns_lshl4_add_u32 s{T2}, s{sWO}, s{T2}\ns_add_u32 s{T2}, s{T2}, s{sJ}\ns_mulk_i32 s{T2}, 896\nv_add_u32 v{XV}, s{T2}, v{XL}')
    for i in range(1, 5): a(f'v_add_u32 v{XV+i}, {i*28672 - (i*1024 if i < 4 else 0)}, v{XV}')
    a(f's_mul_i32 s{sMX}, s{sW}, 5120\ns_lshl_b32 s{sMW}, s{sW}, 12\ns_add_u32 s{sMW}, s{sMW}, {FW0}')
    a(f's_mov_b32 s{SG+2}, {448*3584}\ns_mov_b32 s{SG+3}, s{SX+3}\ns_mov_b32 s{SU+2}, {448*3584 + 1024}\ns_mov_b32 s{SU+3}, s{SX+3}')
    a('s_waitcnt lgkmcnt(0)')
    stamp(a, 'ka')
    em(a, srd_p(SX, 4))
    if not OPT['zpos']: stats_load(a)
    em(a, srd_p(SG, 12) + srd_p(SU, 14, back=1024))
    G = 20
    B = lambda m: bar_gap(G, 5, 4, OPT['fd'], OPT['fm'], m)
    def xd(j):
        e = B(x_bar(OPT['fm'], j)); o = items(x_off(OPT['rotf'], j))
        for i in range(5):
            if i in (0, 4): o.append(Item(f's_add_u32 m0, s{sMX}, {(j%3)*FXS + i*1024}'))
            o.append(Item(f'buffer_load_dwordx4 v{XV+i}, s[{SX}:{SX+3}], s{sXJ} offen offset:{(i&3)*1024} lds', tag=f'x{j}', t0=e, paced=True))
        return o
    def wd(m):
        e = B(m - 4); o = [Item(f's_add_u32 m0, s{sMW}, {(m&3)*16384}', brk=False)]
        o[0].brk = False
        for i in range(2):
            o += items(w_off(OPT['rotf'], m, i, 3584, i*2048))
            o.append(Item(f'buffer_load_dwordx4 v{WV}, s[{SG}:{SG+3}], s{sSO} offen offset:{i*2048} lds', tag=f'w{m}', t0=e, paced=True))
            o.append(Item(f'buffer_load_dwordx4 v{WV}, s[{SU}:{SU+3}], s{sSO} offen offset:{i*2048 + 1024} lds', tag=f'w{m}', t0=e, paced=True))
        return o
    def wslot(k, free): return (RW if k < 4 else RH, (k & 3) * 16384, sMW, k * 16384, free)
    slots = [wslot(4, 0), wslot(5, 0), wslot(2, B(10)), wslot(3, B(11)), (RX, FXS, sMX, FXS, B(11)), wslot(0, B(12)), wslot(1, B(13)), (RX, 2*FXS, sMX, 2*FXS, B(13)), (RX, 0, sMX, 0, B(14))]
    kslot = []
    NG = 14 if OPT['xo'] else 18 - OPT['dw']
    WX = 56
    def wfrag(kk, c):
        i = 16 * kk + 4 * c
        return (i, 'a') if i < 256 else (WX + i - 256, 'v')
    def w2d(kk):
        reg, off, base, moff, free = slots[kslot[kk]]
        prev = [k for k in range(kk) if kslot[k] == kslot[kk]]
        o = [Item(f's_add_u32 m0, s{base}, {moff}')]; o[0].brk = False
        if kk < 14: o += [Item(f's_mul_i32 s{sSO}, s{sRT+kk}, 28')]; sr = SD
        elif OPT['roto']: o += items([f's_add_u32 s{sSO}, s2, {kk-14}', f's_and_b32 s{sSO}, s{sSO}, 3', f's_mul_i32 s{sSO}, s{sSO}, {28*896}']); sr = SO
        else: o += [Item(f's_mov_b32 s{sSO}, {28*(kk-14)*896}')]; sr = SO
        if prev: o.append(Item(f'@wait lg=t{prev[-1]}'))
        for i in range(4):
            o.append(Item(f'buffer_load_dwordx4 v{DZ if (kk >= 14 and i == 3) else DV+i}, s[{sr}:{sr+3}], s{sSO} offen offset:{i*1024} lds', tag=f'k{kk}', t0=free, paced=True, name=f'k{kk}' if i == 3 else None))
        return o
    def w2r(kk, lag):
        reg, off, base, moff, free = slots[kslot[kk]]
        o = [Item(f'@wait vm=k{kk}', after={f'k{kk}': lag})]
        for c in range(4):
            r, k = wfrag(kk, c)
            for jj in range(2):
                o.append(Item(f'ds_read_b64_tr_b16 {V(r + 2*jj, 2, k)}, v{reg+c} offset:{off + jj*2048}', tag=f't{kk}', name=f't{kk}' if (c, jj) == (3, 1) else None))
        return o
    d = add_touches(wd(0) + xd(0) + wd(1) + xd(1) + wd(2) + wd(3), 35, 36, 37)
    p1 = []
    for m in range(10):
        p1 += [xd(j) for j in range(2, 7) if max(0, x_bar(OPT['fm'], j)) == m]
        p1.append(wd(m + 4))
    dma = Stream(d, rate=OPT['rate'])
    trs = Stream([])
    S_ = Sched(a)
    NT = 11
    st8 = dict(last=-999, lag=OPT['lag'])
    def refill(force=False):
        if p1 and p1[0][-1].t0 <= S_.t + 3:
            dma.items += p1.pop(0); return
        kk = len(kslot)
        if not bgs.done(): return
        if kk == NG or S_.t < OPT['w2s'] * G or (p1 and S_.t < st8['last'] + OPT['w2g']): return
        for k, sl in enumerate(slots):
            prev = [q for q in range(kk) if kslot[q] == k]
            if sl[4] <= S_.t and (not prev or S_.when.get(f't{prev[-1]}', 1e9) + (0 if force else 5) <= S_.t):
                kslot.append(k); st8['last'] = S_.t
                dma.items += w2d(kk)
                if kk < NT: trs.items += w2r(kk, st8['lag'])
                return
    dma.refill = refill
    def steady(): dma.rate = OPT['rate2']
    def late(): dma.rate = OPT['rate3']
    S_.flush(dma, 7)
    a.raw('L_f7:')
    stamp(a, 'i7')
    x_read_addr(a, XA, XB, t, 5120)
    for st in range(3): a(f'ds_write_b128 v{t}, v[{t+2}:{t+5}] offset:{st*FXS + 161*128}')
    u = t + 6
    a(f'v_bfe_u32 v{u}, v0, 4, 1\nv_bfe_u32 v{u+1}, v0, 2, 2\nv_lshrrev_b32 v{u+2}, 5, v0\nv_and_b32 v{u+3}, 3, v0')
    a(f'v_lshl_add_u32 v{u+4}, v{u+1}, 1, v{u}\ns_lshl_b32 s{T0}, s{sW}, 1\nv_xor_b32 v{u+4}, s{T0}, v{u+4}\nv_lshlrev_b32 v{u+4}, 5, v{u+4}')
    a(f'v_lshl_add_u32 v{u+4}, v{u+3}, 3, v{u+4}\nv_lshl_add_u32 v{u+4}, v{u+1}, 8, v{u+4}\nv_lshl_add_u32 v{u+4}, v{u+2}, 11, v{u+4}')
    a(f'v_lshl_add_u32 v{u+4}, v{u}, 13, v{u+4}\nv_add_u32 v{WA}, {FW0}, v{u+4}\nv_xor_b32 v{WA+1}, 32, v{WA}')
    S_.flush(dma, 2)
    if OPT['zpos']: stats_load(a)
    em(a, srd(SH, 22, WS_USED) + srd(SDB, 20, 256) + srd(SOUT, 18, 2048 * 896))
    a(f's_mul_i32 s{T0}, s{sW}, {448*896}\ns_add_u32 s{SD}, s16, s{T0}\ns_addc_u32 s{SD+1}, s17, 0')
    a(f's_mul_i32 s{T0}, s{sW}, {112*896}\ns_add_u32 s{SO}, s8, s{T0}\ns_addc_u32 s{SO+1}, s9, 0')
    em(a, srd_c(SD, 448 * 896) + srd_c(SO, 112 * 896))
    if OPT['p2']: a(f's_cmp_ge_u32 s{sC}, 7\ns_cselect_b32 s{T3}, 7, 0\ns_addc_u32 s{sTH}, s{sR}, s{sR}\ns_sub_u32 s{sCT}, s{sC}, s{T3}')
    else: a(f's_mul_i32 s{T3}, s{sTH}, 9363\ns_lshr_b32 s{T3}, s{T3}, 16\ns_mul_i32 s{sCT}, s{T3}, 7\ns_sub_u32 s{sCT}, s{sTH}, s{sCT}\ns_mov_b32 s{sTH}, s{T3}')
    a(f'v_lshrrev_b32 v{u}, 3, v0\nv_and_b32 v{u+1}, 7, v0\nv_lshlrev_b32 v{u+2}, 1, v{XL+1}\nv_xor_b32 v{u+1}, v{u+1}, v{u+2}\nv_lshlrev_b32 v{u+1}, 4, v{u+1}')
    a(f'v_mul_u32_u24 v{u}, 896, v{u}\ns_lshl_b32 s{T3}, s{sCT}, 7\nv_add3_u32 v{DV}, v{u}, v{u+1}, s{T3}')
    for i in range(1, 4): a(f'v_add_u32 v{DV+i}, {6144*i}, v{DV}')
    a(f'v_cmp_gt_u32 vcc, 32, v0\nv_bfe_u32 v{u}, v0, 2, 3\nv_lshrrev_b32 v{u+1}, 5, v0\nv_cndmask_b32 v{DZ}, v{ZT+3}, v{DV+3}, vcc')
    a(f'v_and_b32 v{u+2}, 3, v0\nv_bfe_u32 v{u+3}, v0, 3, 2\nv_lshlrev_b32 v{u}, 7, v{u}\nv_lshl_add_u32 v{u}, v{u+1}, 10, v{u}')
    a(f'v_lshl_add_u32 v{u}, v{u+2}, 3, v{u}\nv_lshl_add_u32 v{u}, v{u+3}, 5, v{u}\nv_add_u32 v{RX}, s{sMX}, v{u}\nv_add_u32 v{RW}, s{sMW}, v{u}')
    for c in range(1, 4): a(f'v_xor_b32 v{RX+c}, {32*c}, v{RX}\nv_xor_b32 v{RW+c}, {32*c}, v{RW}')
    for c in range(4): a(f'v_add_u32 v{RH+c}, 0x10000, v{RW+c}')
    bg = []
    if OPT['rot2'] == 2:
        bg += [f's_and_b32 s{T3}, s2, 7', f's_mul_i32 s{T3}, s{T3}, 7', f's_lshr_b32 s{T3}, s{T3}, 2', f's_lshl_b32 s{sRT}, s{T3}, 10']
    elif OPT['rot2'] == 4:
        bg += [f's_bfe_u32 s{T3}, s2, 0x20001', f's_mul_i32 s{T3}, s{T3}, 7', f's_lshr_b32 s{T3}, s{T3}, 1', f's_lshl_b32 s{sRT}, s{T3}, 10']
    elif OPT['rot2'] == 3:
        bg += [f's_and_b32 s{T3}, s2, 7', f's_mul_i32 s{T3}, s{T3}, 7', f's_lshr_b32 s{T3}, s{T3}, 2', f's_lshl1_add_u32 s{T3}, s{sCT}, s{T3}', f's_sub_u32 s{sRT}, s{T3}, 14',
               f's_min_u32 s{T3}, s{T3}, s{sRT}', f's_lshl_b32 s{sRT}, s{T3}, 10']
    elif OPT['rot2']:
        bg += [f's_mul_i32 s{T3}, s{sTH}, 5', f's_lshl1_add_u32 s{T3}, s{sCT}, s{T3}', f's_mul_i32 s{sRT}, s{T3}, 4682', f's_lshr_b32 s{sRT}, s{sRT}, 16',
               f's_mul_i32 s{sRT}, s{sRT}, 14', f's_sub_u32 s{sRT}, s{T3}, s{sRT}', f's_lshl_b32 s{sRT}, s{sRT}, 10']
    else:
        bg += [f's_mov_b32 s{sRT}, 0']
    for k in range(1, 14):
        bg += [f's_add_u32 s{sRT+k}, s{sRT+k-1}, 1024', [f's_cmp_eq_u32 s{sRT+k}, {14*1024}', f's_cselect_b32 s{sRT+k}, 0, s{sRT+k}']]
    bg += [f'v_lshlrev_b32 v{HV}, 4, v0', f'v_mov_b32 v{FV}, 1', f's_mov_b32 s{sONE}, 1',
           f'v_and_b32 v{PA}, 7, v0', f'v_bfe_u32 v{u}, v0, 3, 1', f'v_lshlrev_b32 v{PA}, 2, v{PA}', f'v_lshl_add_u32 v{PA}, v{u}, 10, v{PA}', f'v_add_u32 v{PA}, {FPAR}, v{PA}',
           f's_lshl2_add_u32 s{T3}, s{sC}, s{sW}', f's_mul_i32 s{sFL}, s{T3}, 4682', f's_lshr_b32 s{sFL}, s{sFL}, 16', f's_lshl2_add_u32 s{sFL}, s{sR}, s{sFL}',
           f's_lshl_b32 s{sFL}, s{sFL}, 7', f's_add_u32 s{sFL}, s{sFL}, {FH}', [f's_add_u32 s{sM1}, s22, s{sFL}', f's_addc_u32 s{sM1+1}, s23, 0'],
           f's_lshl_b32 s{T3}, s{T3}, 10', f's_mul_i32 s{sST}, s{sR}, {2*TH_BYTES}', f's_add_u32 s{sST}, s{sST}, s{T3}',
           f's_lshr_b32 s{T3}, s{sTH}, 1', f's_lshl2_add_u32 s{sFH}, s{T3}, s{sW}', f's_lshl_b32 s{sFH}, s{sFH}, 7', f's_add_u32 s{sFH}, s{sFH}, {FH}',
           [f's_add_u32 s{sFH}, s22, s{sFH}', f's_addc_u32 s{sFH+1}, s23, 0'],
           f's_mul_i32 s{T3}, s{T3}, 158', f's_add_u32 s{sNO}, s{T3}, {157-14}', f's_min_u32 s{sNO}, s{sNO}, {2047-14}', f's_mul_i32 s{sNO}, s{sNO}, 580', f's_lshr_b32 s{sNO}, s{sNO}, 16',
           f's_max_u32 s{T3}, s{T3}, 14', f's_sub_u32 s{T3}, s{T3}, 14', f's_mul_i32 s{T3}, s{T3}, 580', f's_lshr_b32 s{T3}, s{T3}, 16',
           f's_sub_u32 s{sNO}, s{sNO}, s{T3}', f's_lshl2_add_u32 s{sNO}, s{sNO}, 4',
           f's_mul_i32 s{sJ}, s{sTH}, {TH_BYTES}', f's_mul_i32 s{T3}, s{sW}, {14*1024}', f's_add_u32 s{sJ}, s{sJ}, s{T3}',
           f's_mul_i32 s{T3}, s{sW}, {10*1024}', f's_sub_u32 s{sWO}, {56*1024}, s{T3}']
    keep_ptrs(a); em(a, bg[:OPT['nbg']])
    bgs = Stream(items(bg[OPT['nbg']:]))
    left = [OPT['npro'] - 9]
    def more():
        if left[0] and OPT['zi'] < 99: S_.flush(dma, 1); left[0] -= 1
    stats_do(a, more)
    if OPT['tc'] < 0: a(cert_load(ZD + 5), tag='cert')
    S_.flush(dma, left[0])

    tiles = [[(T, 0) for T in range(5)], [(4, 1), (0, 1), (1, 1), (2, 1), (3, 1)]]
    def bread(g, q, k, sl, n):
        T, h = tiles[g][q]
        return f'ds_read_b128 {A(BF + 8*sl + 4*n, 4)}, v{(XB if (T, h) == (4, 1) else XA) + (k & 1)} offset:{((k>>1)%3)*FXS + (10*h + T)*1024}'
    def areads(m):
        return [f'ds_read_b64_tr_b16 {A(AF + 16*(m%3) + 8*mat + 4*uu + 2*jj, 2)}, v{WA + uu} offset:{(m&3)*16384 + jj*4096 + mat*1024}'
                for mat in range(2) for uu in range(2) for jj in range(2)]
    acc = lambda T, h: ACC + 16 * (2 * T + h)
    def mfma(g, q, c, k, sl, n, first):
        dd = V(acc(*tiles[g][q]) + 4 * c, 4)
        return f'{MF} {dd}, {A(AF + 16*(k%3) + 4*c, 4)}, {A(BF + 8*sl + 4*n, 4)}, {0 if first else dd}'
    stamp(a, 'pre')
    a('@wait vm=x0,w0 lg=*\ns_barrier')
    stamp(a, 'b0')
    z = ZD + 6
    src = [f's_mul_i32 s{T0}, s{sR}, 79', f'v_add_u32 v{z}, s{T0}, v0', f'v_min_u32 v{z+1}, 15, v0', f'v_add3_u32 v{z+1}, v{z+1}, s{T0}, 64']
    src += stats_src(z, z + 2) + stats_src(z + 1, z + 2)
    src += [f's_and_b32 s{T0}, s{sW}, 1', f's_lshr_b32 s{T2}, s{sW}, 1', f's_lshl1_add_u32 s{T0}, s{T0}, s{T2}', f's_lshl_b32 s{T1}, s{T0}, 5',
            f's_add_u32 s{T1}, s{T1}, {STATS}', f's_lshl_b32 s{T0}, s{T0}, 9', f's_add_u32 s{T0}, s{T0}, {FPAR}', f'v_lshl_add_u32 v{z+2}, v0, 2, s{T0}']
    sy = sync_stream('Lf', G, OPT['tc'], src, [f'buffer_load_dword v{z+3+i}, v{z+i}, s[{SH}:{SH+3}], s{T1} offen sc1' for i in range(2)], [z + 3, z + 4],
                     [f'ds_write_b32 v{z+2}, v{z+3+i} offset:{256*i}' for i in range(2)], OPT['tl'], OPT['tl'] + OPT['tk'])
    pb = (OPT['tl'] + OPT['tk'] + 2) // 2
    par = []
    for T in range(5):
        for h in (1, 0):
            par.append(Item(f'ds_read2_b32 {V(PR + 4*(2*T + h), 2)}, v{PA} offset0:{16*T + 8*h} offset1:{128 + 16*T + 8*h}', t0=B(pb), tag='pr', name='pr' if (T, h) == (4, 0) else None))
    par.append(Item('@wait lg=pr', after={'pr': 6}))
    for T in range(5):
        for h in (1, 0):
            P = PR + 4 * (2 * T + h)
            par += items([f'v_mul_f32 v{P+2}, {hx(f2u(-LOG2E))}, v{P+1}', f'v_mul_f32 v{P+1}, v{P+1}, v{P+1}', f'v_rcp_f32 v{P+1}, v{P+1}'])
    par += [Item(f'v_mov_b32_dpp v{CS+k}, v{acc(4, 1)+k} row_newbcast:15 row_mask:0xf bank_mask:0xf', t0=25*G + 12) for k in range(16)]
    pars = Stream(par)
    def ck23(): assert sy.done() and bgs.done()
    gemm1(a, S_, G, 5, 4, OPT['fd'], OPT['fm'], areads, bread, mfma, dma, [bgs, sy, pars, trs], {pb: ck23}, {OPT['rs']: steady, 19: late}, True)
    assert not p1
    ntr = sum(f't{k}' in S_.when for k in range(18))
    print('end of gemm: par left', pars.left(), 'groups', len(kslot), 'left in group', sum(x.paced for x in dma.items[dma.i:]), 'read', ntr, [S_.when.get(f'k{k}', 0) // G for k in range(18)], file=sys.stderr)
    NT = max(NG - 9, ntr + (trs.i % 9 > 0)); trs.items = trs.items[:9 * NT]; st8['lag'] = OPT['elag']
    S_.flush(pars)
    stamp(a, 'g1')
    a.raw(';EPI')
    l0 = len(a.lines)
    dma.rate = OPT['erate']
    for it in trs.items[trs.i:]:
        for k in it.after: it.after[k] = OPT['elag']
    def post(f): return [f'@wait vm=h{f}', f's_add_u32 s{T3}, s{sFL}, {f*FST}', f'buffer_atomic_add v{FV}, v1, s[{SH}:{SH+3}], s{T3} offen sc1']
    ACC2, HB, NHB = 176, 96, OPT['nhb']
    XO, XR, WRA, RDA, t = 22, 28, 38, 46, 48
    LEAD = NHB - 2
    nO = OPT['nO']
    hl = [(T, kk) for T in range(nO) for kk in range(14)] + [(T, kk) for T in range(nO) for kk in range(14, 18)] + [(T, kk) for T in range(nO, 5) for kk in range(18)]
    if OPT['nA']:
        mv = [(nO, kk) for kk in range(OPT['nA'])]
        hl = hl[:14*nO] + mv + [x for x in hl[14*nO:] if x not in mv]
    if OPT['xo']: hl = [x for x in hl if x[1] not in (15, 16)]
    HA = 88
    E_ = OPT['xb']; hbuf = {}
    assert E_ <= 4 and (E_ * OPT['xs'] <= 18 or OPT['xs'] >= 999)
    PE = E_ if OPT['xs'] >= 999 else 0
    freeb = [HB + 4*k for k in range(NHB)] + [144 + 4*k for k in range(E_)]
    def hb(i):
        if i not in hbuf: hbuf[i] = freeb.pop(0)
        return hbuf[i]
    def hload(i, ha=HA):
        T, kk = hl[i]
        if kk < 14: return f'buffer_load_dwordx4 {V(hb(i), 4)}, v{ha+T}, s[{SH}:{SH+3}], s{sRT+kk} offen sc1'
        if OPT['roto']: return f'buffer_load_dwordx4 {V(hb(i), 4)}, v{ha+T}, s[{SH}:{SH+3}], s{SG+kk-14} offen sc1'
        return f'buffer_load_dwordx4 {V(hb(i), 4)}, v{ha+T}, s[{SH}:{SH+3}], s{sWO} offen offset:{(kk-14)*1024} sc1'
    for T in range(5):
        stamp(a, f'T{T}')
        for h in (1, 0):
            P = PR + 4 * (2 * T + h); dd = acc(T, h); OO = O + 4 * h
            ops = []
            for k in range(0, 16, 2): ops.append(f'v_pk_fma_f32 {V(dd+k, 2)}, {V(CS+k, 2)}, {V(P, 2)}, {V(dd+k, 2)} op_sel_hi:[1,0,1]')
            for k in range(0, 8, 2): ops.append(f'v_pk_mul_f32 {V(E+k, 2)}, {V(dd+k, 2)}, {V(P+2, 2)} op_sel_hi:[1,0]')
            for k in range(8): ops.append(f'v_exp_f32 v{E+k}, v{E+k}')
            for k in range(0, 8, 2): ops.append(f'v_pk_mul_f32 {V(dd+k, 2)}, {V(dd+k, 2)}, {V(dd+8+k, 2)}')
            for k in range(0, 8, 2): ops.append(f'v_pk_fma_f32 {V(E+k, 2)}, {V(E+k, 2)}, {V(P, 2)}, {V(P, 2)} op_sel:[0,1,1] op_sel_hi:[1,1,1]')
            for k in range(8): ops.append(f'v_rcp_f32 v{E+k}, v{E+k}')
            for k in range(0, 8, 2): ops.append(f'v_pk_mul_f32 {V(dd+k, 2)}, {V(dd+k, 2)}, {V(E+k, 2)}')
            ops.append(f's_add_u32 s{T2}, s{sST}, {h*TH_BYTES + T*72*1024}')
            for k in range(4): ops.append(f'v_cvt_pk_bf16_f32 v{OO+k}, v{dd+2*k}, v{dd+2*k+1}')
            n2 = 2 * T + 1 - h
            if n2 == OPT['pi']:
                print('at poll: groups', len(kslot), 'tr left', trs.left(), file=sys.stderr)
                if OPT['pd']: S_.flush(trs)
                while not OPT['pd'] and (len(kslot) < NG or not trs.done()):
                    S_.flush(dma); S_.flush(trs)
                a('@wait lg=*'); a(poll_issue(0))
            if n2 == 9 and OPT['pe']:
                S_.flush(dma); a(f'v_add_u32 v168, s{sJ}, v{HV}')
                em(a, poll_check('Lf_p0', 0, 14)); stamp(a, 'p0')
                dma = Stream([Item(hload(i, 168), tag=f'g{i}') for i in range(LEAD)])
            for x in ops:
                a(x)
                if x.startswith(TRANS): S_.gap([dma, trs], 2)
            if n2 == 9: S_.flush(dma)
            a(f'buffer_store_dwordx4 {V(OO, 4)}, v{HV}, s[{SH}:{SH+3}], s{T2} offen sc1', tag=f'h{T}')
            if n2 in (4, 6, 8): em(a, post(n2 // 2 - 2)); stamp(a, f'F{n2//2-2}')
    if OPT['x']:
        pats = dict(s='buffer_store', t='ds_read_b64_tr', d='buffer_load', v='v_')
        a.lines[l0:] = [l for l in a.lines[l0:] if not any(l.strip().startswith(pats[c]) for c in OPT['x'])]
    stamp(a, 'e1')
    fin = f's_atomic_add s{sONE}, s[{sM1}:{sM1+1}], {3*FST}'
    early = ['s_waitcnt vmcnt(0)', fin, 's_waitcnt lgkmcnt(0)', f's_mov_b32 s{sONE}, 0'] if OPT['early'] else []
    a(f'v_add_u32 v{HA}, s{sJ}, v{HV}')
    if not OPT['pe']:
        em(a, poll_check('Lf_p0', 0, 14, early))
        stamp(a, 'p0')
    a(poll_issue(1))
    NR = min(NG, 14) if OPT['dt'] else NG
    rest = Stream(sum((w2r(kk, 0) for kk in range(NT, NR)), []))
    for i in range(0 if OPT['pe'] else LEAD + E_):
        a(hload(i), tag=f'g{i}'); S_.gap([rest], 4, ds=4)
    S_.flush(rest)
    free = [k for k in range(9) if k not in kslot[NR:]]
    wod = []
    for kk in range(NG, 14 if OPT['xo'] else 18):
        kslot.append(free.pop(0)); wod += [x for x in w2d(kk) if not x.body[0].startswith('@wait')]
    wod = Stream(wod, rate=OPT['wrate'], burst=0.1)
    wor = Stream(sum((w2r(kk, 4 * LEAD + 8 if kk >= NG else 0) for kk in range(NR, 14 if OPT['xo'] else 18)), []))
    stamp(a, 'tr')
    bg2 = [f'v_add_u32 v{HA+T}, {T*72*1024}, v{HA}' for T in range(1, 5)]
    bg2 += f"""s_lshr_b32 s{T0}, s{sTH}, 1
s_mul_i32 s{T0}, s{T0}, 158
s_and_b32 s{T1}, s{sTH}, 1
s_and_b32 s{T2}, s{sW}, 1
s_lshl1_add_u32 s{T1}, s{T1}, s{T2}
s_lshr_b32 s{T3}, s{sW}, 1
s_lshl3_add_u32 s{T1}, s{T1}, s{T3}
v_lshl_add_u32 v{t}, v{XL+1}, 1, s{T1}
v_add_u32 v{t+1}, s{T0}, v{t}
v_mul_u32_u24 v{t+1}, 896, v{t+1}
v_and_b32 v{t+3}, 15, v0
v_lshlrev_b32 v{t+2}, 3, v{t+3}
s_lshl_b32 s{T0}, s{sCT}, 7
v_add3_u32 v{XO}, v{t+1}, v{t+2}, s{T0}""".split('\n')
    bg2 += [f'v_add_u32 v{XO+T}, {32*896*T}, v{XO}' for T in range(1, 5)]
    bg2 += f"""v_cmp_gt_u32 vcc, 30, v{t}
v_mov_b32 v{t+1}, {OOB}
v_and_b32 v{t+2}, 7, v0
v_cndmask_b32 v{XO+4}, v{t+1}, v{XO+4}, vcc
v_xor_b32 v{t+1}, v{XL+1}, v{t+2}
v_lshlrev_b32 v{t+1}, 4, v{t+1}
v_lshl_add_u32 v{t}, v{t+3}, 8, v{t+1}
s_lshl_b32 s{T0}, s{sW}, 12
v_add_u32 v{WRA}, s{T0}, v{t}""".split('\n')
    bg2 += [f'v_xor_b32 v{WRA+c}, {64*c}, v{WRA}' for c in range(1, 4)] + [f'v_add_u32 v{WRA+4+c}, 0x10000, v{WRA+c}' for c in range(4)]
    bg2 += f"""s_lshl_b32 s{T0}, s{sW}, 2
v_add_u32 v{t}, s{T0}, v{XL+1}
v_and_b32 v{t+1}, 7, v{t}
v_xor_b32 v{t+1}, v{t+1}, v{t+3}
v_lshlrev_b32 v{t+1}, 4, v{t+1}
v_lshl_add_u32 v{RDA}, v{t}, 8, v{t+1}
v_add_u32 v{RDA+1}, 0x10000, v{RDA}""".split('\n')
    if OPT['roto']:
        for k in range(4): bg2 += [f's_add_u32 s{T0}, s2, {k}', f's_and_b32 s{T0}, s{T0}, 3', f's_lshl_b32 s{T0}, s{T0}, 10', f's_add_u32 s{SG+k}, s{T0}, s{sWO}']
    em(a, bg2[:1]); bg2s = Stream(items(bg2[1:])); bg2s.items[-1].name = 'bg2'
    em(a, poll_check('Lf_p1', 1, 14, early))
    stamp(a, 'p1')
    pre = {}
    if OPT['fp']: pre[OPT['fp']] = ['@wait vm=h4', fin]
    else: a('@wait vm=h4'); stamp(a, 'e2'); a(fin)
    def guard(name, f, want, first):
        stp = first - LEAD - PE - 1
        pre.setdefault(stp - 8, []).append(poll_issue(f)); pre.setdefault(stp, []).extend(poll_check(name, f, want))
        return stp
    guard('Lf_p2', 2, 14, hl.index((2, 0)))
    i3, iO = hl.index((3, 0)), hl.index((0, 14))
    if i3 > iO: i3 = iO - 9
    lastg = max(guard('Lf_p3', 3, 14, i3), 0 if OPT['nochk'] else guard('Lf_p4', 4, f's{sNO}', iO + OPT['ol']))
    first_done = hl.index((0, 17))
    assert lastg < first_done
    pre.setdefault(first_done, []).append('s_barrier')
    t_base = S_.t
    xr = Stream([Item(f'buffer_load_dwordx2 {V(XR + 2*T, 2)}, v{XO+T}, s[{SX}:{SX+3}], 0 offen', tag=f'xr{T}', t0=t_base + 4*(24 + 3*T), after={'bg2': 0}) for T in range(5)])
    RD = (144, 160); U = 48
    def wr(T): return [Item(f'ds_write_b128 v{WRA + c + (4 if T == 4 else 0)}, {V(ACC2 + 16*T + 4*c, 4)} offset:{(T & 3)*16384}', tag=f'pw{T}', paced=True, name=f'pw{T}' if c == 3 else None) for c in range(4)]
    wr0 = wr
    def wr(T):
        w_ = wr0(T)
        for x in w_: x.cost += OPT['wc']
        return w_
    def rdp(T): return [Item(f'ds_read_b128 {V(RD[T&1] + 4*w, 4)}, v{RDA + (T == 4)} offset:{(T & 3)*16384 + w*4096}', tag=f'p{T}', name=f'p{T}' if w == 3 else None) for w in range(4)]
    def unp(T):
        x = XR + 2 * T
        return [f'@wait vm=xr{T}', f'v_lshlrev_b32 v{U}, 16, v{x}', f'v_and_b32 v{U+1}, 0xffff0000, v{x}', f'v_lshlrev_b32 v{U+2}, 16, v{x+1}', f'v_and_b32 v{U+3}, 0xffff0000, v{x+1}']
    def fin2(T, pk):
        x = XR + 2 * T; b = RD[T & 1]
        if pk: o = [f'v_pk_add_f32 {V(U+k, 2)}, {V(U+k, 2)}, {V(b+4*w+k, 2)}' for w in range(4) for k in (0, 2)]
        else: o = [f'v_add_f32 v{U+k}, v{U+k}, v{b+4*w+k}' for w in range(4) for k in range(4)]
        return o + [f'v_cvt_pk_bf16_f32 v{x}, v{U}, v{U+1}', f'v_cvt_pk_bf16_f32 v{x+1}, v{U+2}, v{U+3}', f'buffer_store_dwordx2 {V(x, 2)}, v{XO+T}, s[{SOUT}:{SOUT+3}], 0 offen {OPT["ofl" if pk else "of"].replace("+", " ")}']
    assert NHB <= 12
    wrs = Stream([], rate=0.27, burst=0.1); red = Stream([]); outs = Stream([])
    shadow = [T for T in range(5) if len(hl) - hl.index((T, 17)) > 14]
    CH = 2 if OPT['chain'] else 1
    nxt = [LEAD + E_]
    ends = list(range(CH - 1, len(hl) - OPT['lc'], CH)) + [len(hl) - 1]
    for i in ends:
        T, kk = hl[i]
        if i == len(hl) - 1:
            CH = OPT['lc']
            w_ = wr(T)
            for c in range(4): w_[c].t0 = S_.t + CH * (c + 1) + 3
            wrs.items += w_
        a(f'@wait vm=g{i}')
        for q in range(i - CH + 1, i + 1): stamp(a, f'h{q}')
        fx = []
        for q in range(i - CH + 1, i + 1):
            due = [x for x in range(nxt[0], min(q + LEAD + max(0, E_ - q // OPT['xs']) + 1, len(hl))) if x < iO or q + LEAD + PE >= iO + OPT['ol']][:2]
            fx += [Item(hload(x), tag=f'g{x}', t0=S_.t + 4 * (q - i + CH - 1) + 2 * n_) for n_, x in enumerate(due)]
            nxt[0] += len(due)
            fx += items(pre.get(q, []))
        fx = Stream(fx)
        for c in range(4):
            for q in (range(i - CH + 1, i + 1) if c % 2 == 0 or kk < 2 else range(i, i - CH, -1)):
                r, k = wfrag(hl[q][1], c)
                if OPT['xo'] and hl[q][1] >= 14 and (c >> 1) != (q & 1): continue
                dd = V(ACC2 + 16 * T + 4 * c, 4)
                a(f'{MF} {dd}, {V(r, 4, k)}, {V(hb(q), 4)}, {dd if hl[q][1] else 0}')
                S_.gap([fx, wod, wrs, xr, wor, bg2s, outs, red], 1 if (c, q) == (3, i if kk < 2 else i - CH + 1) else 2)
        S_.flush(fx)
        if PE and i >= 36: assert wor.done() and not any(str(x).startswith('t') for x in a.lg)
        freeb += [hb(q) - (142 if hb(q) >= 144 and i >= 36 else 0) for q in range(i - CH + 1, i + 1) if hb(q) < 144 or i < 30 or PE]
        if i + LEAD + PE + 4 >= iO: assert bg2s.done() and wor.done() and not OPT['nochk'] or not wor.items, wor.left()
        if kk == 17 and i < len(hl) - 1:
            w_ = wr(T); w_[0].t0 = S_.t + 1
            wrs.items += w_
            grp = [T - 1, T] if OPT['pair'] and T & 1 else ([] if OPT['pair'] and T + 1 in shadow else [T])
            if T in shadow and grp:
                red.items += [Item([f'@wait lg=pw{T}', 's_barrier'], after={f'pw{T}': 6}, t0=S_.t + OPT['rt'])] + sum((rdp(x) for x in grp), [])
                for x in grp:
                    red.items += items(unp(x)) + [Item(f'@wait lg=p{x}', after={f'p{x}': 5})] + items(fin2(x, False)[:-1])
                    red.items[-1].name = f'r{x}'
                    outs.items.append(Item(fin2(x, False)[-1], after={f'r{x}': 1}, t0=t_base + OPT['ost'] * 4))
    todo = [T for T in range(5) if T not in shadow]
    if red.done():
        S_.flush(outs); em(a, unp(todo[0])); S_.flush(wrs)
    else:
        S_.flush(wrs); S_.flush(red); S_.flush(outs); em(a, unp(todo[0]))
    a('s_waitcnt lgkmcnt(0)\ns_barrier')
    stamp(a, 'red')
    S_.flush(Stream(rdp(todo[0])))
    for k, T in enumerate(todo):
        if k + 1 < len(todo): S_.flush(Stream(rdp(todo[k + 1])))
        if k: em(a, unp(T))
        a(f'@wait lg=p{T}')
        em(a, fin2(T, True))

AXS = 130 * 128; AW0 = 3 * AXS; APAR = AW0 + 4 * 24576
def attn(a, split):
    XV, WV, XA, XB, WA = 2, 4, 7, 9, 11
    PA, RA, CB = 15, 16, 17
    OA = 20
    MK = 28
    CV = 36
    PR = 38
    t = 56
    Q, K, V0, V1 = 64, 128, 192, 224
    BF = 0; AF = 32
    if OPT['map2']:
        a(f's_sub_u32 s{T0}, s{T0}, s{T2}\ns_lshl_b32 s{T2}, s{sC}, 3\ns_lshr_b32 s{T2}, 0x160b1900, s{T2}\ns_and_b32 s{T2}, s{T2}, 31\ns_add_u32 s{sNO}, s{T0}, s{T2}')
        a(f's_or_b32 s{T0}, s2, 4\ns_cmpk_eq_u32 s{T0}, 255\ns_cbranch_scc1 L_idle0\ns_mul_i32 s{sC}, s{sNO}, 57\ns_lshr_b32 s{sC}, s{sC}, 9')
        a(f's_sub_u32 s{T0}, s{T1}, s{sC}\ns_mul_i32 s{T0}, s{T0}, 9\ns_add_u32 s{sR}, s{sNO}, s{T0}\ns_xor_b32 s{sC}, s{sC}, 1')
    else: a(f's_mul_i32 s{sR}, s{T1}, 9\ns_add_u32 s{sR}, s{sR}, s{T0}\ns_sub_u32 s{sR}, s{sR}, 23')
    if OPT['gx']: a(f's_xor_b32 s{sC}, s{sC}, 1')
    rot_init(a, OPT['rota'], 2688)
    a(f'v_lshl_add_u32 v{t}, v{XL+1}, 1, s{sWO}\nv_lshlrev_b32 v{t}, 1, v{t}\nv_sub_u32 v{t+1}, v0, v{t}\nv_and_b32 v{t+1}, 15, v{t+1}')
    a(f'v_cmp_gt_u32 vcc, 14, v{t+1}' if OPT['zpad'] else f'v_min_u32 v{t+1}, 13, v{t+1}')
    a(f's_mul_i32 s{T0}, s{sW}, 48\ns_add_u32 s{T0}, s{T0}, s{sC}\ns_mulk_i32 s{T0}, 224')
    a(f'v_mul_u32_u24 v{t+2}, 168, v{XL+1}\nv_add_lshl_u32 v{t+2}, v{t+1}, v{t+2}, 4\nv_add_u32 v{WV+2}, s{T0}, v{t+2}')
    if OPT['zpad']: a(f'v_cndmask_b32 v{WV+2}, v{ZT+3}, v{WV+2}, vcc')
    a(f'v_add_u32 v{WV+1}, 128, v{WV+2}\nv_add_u32 v{WV}, 256, v{WV+2}')
    a(f's_mul_i32 s{sMW}, s{sW}, 6144\ns_add_u32 s{sMW}, s{sMW}, {AW0}')
    a(f's_mov_b32 s{SG+2}, {448*2688 + 256}\ns_mov_b32 s{SG+3}, s{SX+3}')
    a('s_waitcnt lgkmcnt(0)')
    stamp(a, 'ka')
    em(a, srd_p(SX, 4)); stats_load(a)
    def help_w():
        r0 = OPT['aw']
        if OPT['rotf'] == 'h3':
            a(f's_lshr_b32 s{T0}, s2, 3\ns_lshl1_add_u32 s{T0}, s{T0}, s{sWO}\ns_mul_i32 s{T2}, s{T1}, 192\ns_add_u32 s{T0}, s{T0}, s{T2}\ns_add_u32 s{T0}, s{T0}, {r0 - 46}')
            a(f'v_mul_u32_u24 v18, 37, v0\nv_lshrrev_b32 v18, 8, v18\nv_mul_u32_u24 v36, 7, v18\nv_sub_u32 v36, v0, v36\nv_mad_u32_u24 v18, v18, 18, s{T0}')
            a(f's_lshl_b32 s{T2}, s{T1}, 8\ns_add_u32 s{T2}, s{T2}, 191\ns_mul_i32 s{T0}, s{sC}, 7\nv_min_u32 v18, s{T2}, v18\nv_mad_u32_u24 v18, v18, 28, v36')
            a(f's_cmp_eq_u32 s{sJ}, 0\ns_cselect_b64 s[{sM1}:{sM1+1}], s[12:13], s[14:15]\nv_add_lshl_u32 v18, v18, s{T0}, 7\nglobal_load_dword v19, v18, s[{sM1}:{sM1+1}]')
            return
        a(f's_lshr_b32 s{T0}, s2, 3\ns_sub_u32 s{T0}, s{T0}, 23\ns_lshl1_add_u32 s{T0}, s{T0}, s{sWO}\ns_lshl1_add_u32 s{T0}, s{T0}, s{T1}\ns_add_u32 s{T0}, s{T0}, {r0}')
        a(f'v_mul_u32_u24 v18, 37, v0\nv_lshrrev_b32 v18, 8, v18\nv_mul_u32_u24 v36, 7, v18\nv_sub_u32 v36, v0, v36\nv_mad_u32_u24 v18, v18, 36, s{T0}')
        a(f's_mul_i32 s{T0}, s{sC}, 7\nv_min_u32 v18, 447, v18\nv_mad_u32_u24 v18, v18, 28, v36\ns_cmp_eq_u32 s{sJ}, 0\ns_cselect_b64 s[{sM1}:{sM1+1}], s[12:13], s[14:15]')
        if OPT['a6']:
            a(f's_add_u32 s{T2}, s{sC}, 1\ns_bitcmp0_b32 s{T2}, 1\ns_cselect_b32 s{T2}, -1, 0\ns_and_b32 s{T0}, s{sC}, 2\ns_mul_i32 s{T0}, s{T0}, 7')
            a(f'v_add_lshl_u32 v18, v18, s{T0}, 7\nv_and_b32 v18, s{T2}, v18\nglobal_load_dword v19, v18, s[{sM1}:{sM1+1}]\nglobal_load_dword v19, v18, s[{sM1}:{sM1+1}] offset:896')
            return
        a(f'v_add_lshl_u32 v18, v18, s{T0}, 7\nglobal_load_dword v19, v18, s[{sM1}:{sM1+1}]')
    def help_d():
        if OPT['a6']:
            a(f's_sub_u32 s{T0}, s2, 184\ns_lshr_b32 s{T0}, s{T0}, 1\ns_lshl2_add_u32 s{T0}, s{T0}, s{sW}\ns_mul_i32 s{T2}, s{T0}, 88\ns_mul_i32 s{T0}, s{T0}, 22')
            a(f'v_min_u32 v18, 43, v0\nv_lshl_add_u32 v18, v18, 1, s{T2}\ns_add_u32 s{T2}, s{sC}, 1\ns_bfe_i32 s{T2}, s{T2}, 0x10001\nv_min_u32 v18, 12542, v18\nv_lshlrev_b32 v18, 7, v18')
            a(f'v_bfi_b32 v18, s{T2}, 0, v18\nglobal_load_dword v19, v18, s[16:17]\nglobal_load_dword v19, v18, s[16:17] offset:128')
            a(f'v_min_u32 v18, 21, v0\nv_add_u32 v18, s{T0}, v18\nv_min_u32 v18, 3135, v18\nv_lshlrev_b32 v18, 7, v18\nv_bfi_b32 v18, s{T2}, 0, v18\nglobal_load_dword v19, v18, s[8:9]')
            return
        a(f's_lshl2_add_u32 s{T0}, s{sR}, s{sC}' if OPT['map2'] else f's_sub_u32 s{T0}, s2, 184')
        a(f's_lshl2_add_u32 s{T0}, s{T0}, s{sW}\ns_mul_i32 s{T2}, s{T0}, 44\ns_mul_i32 s{T0}, s{T0}, 11')
        if not OPT['ado']: a(f'v_min_u32 v18, 43, v0\nv_add_u32 v18, s{T2}, v18\nv_min_u32 v18, 12543, v18\nv_lshlrev_b32 v18, 7, v18\nglobal_load_dword v19, v18, s[16:17]')
        a(f'v_min_u32 v18, 10, v0\nv_add_u32 v18, s{T0}, v18\nv_min_u32 v18, 3135, v18\nv_lshlrev_b32 v18, 7, v18\nglobal_load_dword v19, v18, s[8:9]')
    if OPT['aw'] and not OPT['awp']: split(); help_w()
    if OPT['ad'] == 1: help_d()
    em(a, srd_p(SG, 6, back=256))
    G = 24
    B = lambda m: bar_gap(G, 4, 6, OPT['ad_'], OPT['am'], m)
    def xd(j):
        o = items(x_off(OPT['rota'], j))
        for i in range(4):
            if i % 2 == 0: o.append(Item(f's_add_u32 m0, s{sMX}, {(j%3)*AXS + (i>>1)*(2048 - 896)}'))
            o.append(Item(f'buffer_load_dwordx4 v{XV + (i&1)}, s[{SX}:{SX+3}], s{sXJ} offen offset:{(i&1)*1024 + (i>>1)*896} lds', tag=f'x{j}', t0=B(x_bar(OPT['am'], j)), paced=True))
        return o
    def wd(h):
        o = []
        for i in range(2):
            o.append(Item(f's_add_u32 m0, s{sMW}, {(h%4)*24576 + i*3072}')); o[-1].brk = False
            o += items(w_off(OPT['rota'], h, i, 2688, 0))
            o += [Item(f'buffer_load_dwordx4 v{WV+m}, s[{SG}:{SG+3}], s{sSO} offen offset:{m*1024} lds', tag=f'w{h}', t0=B(h - 4), paced=True) for m in range(3)]
        return o
    d = wd(0) + xd(0) + wd(1)
    for h in range(2, 14):
        if h in (2, 4): d += xd(h // 2)
        for j in range(3, 7):
            if x_bar(OPT['am'], j) == h - 4: d += xd(j)
        d += wd(h)
    d = add_touches(d, 36, 18, 19)
    if OPT['ap']:
        k0 = OPT['ap']; n = (14 - k0) * 224; per = -(-n // 9)
        d += items([f's_and_b32 s79, s2, 7', f's_mul_i32 s79, s79, 7', f's_lshr_b32 s79, s79, 2', f's_add_u32 s79, s79, {k0}', f's_mul_i32 s79, s79, 224',
                    f's_lshr_b32 s{sPL}, s2, 3', f's_sub_u32 s{sPL}, s{sPL}, 23', f's_mul_i32 s{sSPIN}, s{sPL}, {per}', f's_add_u32 s79, s79, s{sSPIN}', f's_mul_i32 s{sSPIN}, s{sW}, 3136'])
        for k in range(0, per, 64):
            d += items([f'v_min_u32 v18, {min(63, per - 1 - k)}, v0', f'v_add_u32 v18, s79, v18', f'v_subrev_u32 v36, 3136, v18', 'v_min_u32 v18, v18, v36', f'v_subrev_u32 v36, 3136, v18', 'v_min_u32 v18, v18, v36',
                        f'v_add_lshl_u32 v18, v18, s{sSPIN}, 7', 's_add_u32 s79, s79, 64']) + [Item('global_load_dword v19, v18, s[0:1]', paced=True)]
        d += items([f's_mul_i32 s79, s{sPL}, 88', f's_mul_i32 s{sSPIN}, s{sW}, 784'])
        for k in (0, 44):
            d += items([f'v_min_u32 v18, 43, v0', f'v_add3_u32 v18, v18, s79, {k}', 'v_min_u32 v18, 783, v18', f'v_add_lshl_u32 v18, v18, s{sSPIN}, 7']) + [Item('global_load_dword v19, v18, s[18:19]', paced=True, name='apd')]
    dma = Stream(d, rate=OPT['arate0'])
    def steady(): dma.rate = OPT['arate']
    S_ = Sched(a)
    bg = [f'v_and_b32 v{t}, 15, v0', f'v_lshlrev_b32 v{PA}, 2, v{t}', f'v_add_u32 v{PA}, {APAR}, v{PA}',
          f'v_lshlrev_b32 v{RA}, 4, v{XL+1}', f'v_add_u32 v{RA}, {APAR}, v{RA}', f'v_cmp_gt_u32 s[{sM1}:{sM1+1}], 48, v0',
          f'v_lshlrev_b32 v{t+1}, 2, v{XL+1}', f'v_sub_u32 v{t+1}, v{t}, v{t+1}', f'v_mov_b32 v{t+3}, {hx(f2u(-1e30))}']
    for i in range(8):
        bg += [f'v_add_u32 v{t+2}, {(16 if i < 4 else 0) - (i & 3)}, v{t+1}', f'v_cmp_gt_u32 s[{sM0}:{sM0+1}], 8, v{t+2}',
               f'v_cndmask_b32 v{MK+i}, v{t+3}, 0, s[{sM0}:{sM0+1}]']
    kA, kB, kC, kD = sTH, sCT, sJ, sWO
    bg += [f's_mul_i32 s{kD}, s{sR}, 113', f's_lshl2_add_u32 s{T3}, s{sC}, s{sW}', f's_add_u32 s{T3}, s{T3}, 56', f's_lshl_b32 s{sST}, s{T3}, 10',
           [f's_cmp_eq_u32 s{sR}, 0', f's_cselect_b32 s{T3}, 0, 14'], f's_mov_b32 s{kA}, 26547', f's_mov_b32 s{kB}, {TH_BYTES}', f's_mov_b32 s{kC}, {72*1024}',
           f'v_mov_b32 v{t+7}, {OOB}']
    for p in range(2):
        bg += [f'v_lshl_add_u32 v{t+1}, v0, 1, {p}', f'v_add_u32 v{t+2}, s{kD}, v{t+1}', f'v_mul_u32_u24 v{t+3}, s{kA}, v{t+2}', f'v_lshrrev_b32 v{t+3}, 22, v{t+3}',
               f'v_mul_u32_u24 v{t+4}, 158, v{t+3}', f'v_sub_u32 v{t+2}, v{t+2}, v{t+4}',
               f'v_bfe_u32 v{t+4}, v{t+2}, 4, 1', f'v_lshl_add_u32 v{t+3}, v{t+3}, 1, v{t+4}', f'v_mul_u32_u24 v{t+3}, s{kB}, v{t+3}',
               f'v_lshrrev_b32 v{t+4}, 5, v{t+2}', f'v_mad_u32_u24 v{t+3}, v{t+4}, s{kC}, v{t+3}',
               f'v_bfe_u32 v{t+4}, v{t+2}, 1, 3', f'v_lshl_add_u32 v{t+3}, v{t+4}, 4, v{t+3}', f'v_and_b32 v{t+4}, 1, v{t+2}', f'v_lshl_add_u32 v{OA+p}, v{t+4}, 7, v{t+3}',
               f'v_cmp_le_u32 s[{sM0}:{sM0+1}], s{T3}, v{t+1}', f'v_cndmask_b32 v{OA+p}, v{t+7}, v{OA+p}, s[{sM0}:{sM0+1}]']
    bg += [f'v_cmp_gt_u32 s[{sM0}:{sM0+1}], 63, v0', f'v_cndmask_b32 v{OA+1}, v{t+7}, v{OA+1}, s[{sM0}:{sM0+1}]']
    bg += [f's_add_u32 s{T3}, s{T3}, s{kD}', f's_mul_i32 s{T3}, s{T3}, 26547', f's_lshr_b32 s{T3}, s{T3}, 22', f's_add_u32 s{kD}, s{kD}, 126', f's_mul_i32 s{kD}, s{kD}, 26547',
           f's_lshr_b32 s{kD}, s{kD}, 22', f's_sub_u32 s{kD}, s{kD}, s{T3}', f'v_cmp_ge_u32 s[{sM0}:{sM0+1}], s{kD}, v0', f'v_lshlrev_b32 v{CB}, 9, v0',
           f's_lshl2_add_u32 s{T3}, s{T3}, s{sC}', f's_lshl_b32 s{T3}, s{T3}, 7', f's_add_u32 s{sFL}, s{T3}, {FH + 4*FST}',
           f'v_cndmask_b32 v{CB}, v{t+7}, v{CB}, s[{sM0}:{sM0+1}]']
    if not OPT['alate']: S_.flush(dma, 6)
    if not OPT['aw'] or OPT['awp']: split()
    stamp(a, 'i7')
    a(f's_mul_i32 s{T2}, s{sR}, 113\ns_lshl4_add_u32 s{T2}, s{sW}, s{T2}\ns_mul_i32 s{T2}, s{T2}, 896\ns_lshl_b32 s{sMX}, s{sW}, 12')
    a(f'v_add_u32 v{XV}, s{T2}, v{XL}\nv_add_u32 v{XV+1}, {64*896 - 1024}, v{XV}')
    if not OPT['alate']: S_.flush(dma, 2)
    em(a, srd(SH, 22, WS_USED) + srd(SDB, 20, 256)); keep_ptrs(a)
    x_read_addr(a, XA, XB, t, 4096)
    for st in range(3): a(f'ds_write_b128 v{t}, v[{t+2}:{t+5}] offset:{st*AXS + 129*128}')
    u = 20
    a(f'v_bfe_u32 v{u}, v0, 4, 1\nv_bfe_u32 v{u+1}, v0, 2, 2\nv_lshrrev_b32 v{u+2}, 5, v0\nv_and_b32 v{u+3}, 3, v0')
    a(f'v_lshl_add_u32 v{u+4}, v{u+1}, 1, v{u}\nv_lshl_add_u32 v{u+4}, v{u+4}, 2, v{u+3}\ns_mul_i32 s{T0}, s{sW}, 56\nv_lshl_add_u32 v{u+4}, v{u+4}, 3, s{T0}')
    a(f'v_add_u32 v{u+5}, 32, v{u+4}')
    if OPT['zpad']: a(f's_sub_u32 s{T0}, 168, s{T0}\nv_cmp_eq_u32 vcc, 3, v{u+3}\nv_add_u32 v{u+6}, s{T0}, v{u+5}\nv_cndmask_b32 v{u+5}, v{u+5}, v{u+6}, vcc')
    a(f'v_and_b32 v{u+4}, 0xff, v{u+4}\nv_and_b32 v{u+5}, 0xff, v{u+5}')
    a(f'v_mul_u32_u24 v{u}, 12288, v{u}\nv_mul_u32_u24 v{u+2}, 3072, v{u+2}\nv_lshl_add_u32 v{u}, v{u+1}, 8, v{u}\nv_add_u32 v{u}, v{u}, v{u+2}\nv_add_u32 v{u}, {AW0}, v{u}')
    a(f'v_add_u32 v{WA}, v{u}, v{u+4}\nv_add_u32 v{WA+1}, v{u}, v{u+5}\nv_add_u32 v{WA+2}, 49152, v{WA}\nv_add_u32 v{WA+3}, 49152, v{WA+1}')
    if OPT['alate'] == 2: em(a, bg); bg = []
    n0_ = {0: 8, 1: 8, 2: 8, 3: 0, 4: 3}[OPT['alate']]
    if OPT['alate'] and n0_: S_.flush(dma, n0_)
    left = [OPT['anpro'] - n0_]
    def more():
        if left[0] and OPT['zi'] < 99: S_.flush(dma, 1); left[0] -= 1
    if not OPT['azs']: stats_do(a, more)
    else: a.raw(';HOP')
    S_.flush(dma, left[0])
    if OPT['ad'] == 2: help_d()
    if OPT['ad'] > 2:
        rec = []; a_ = a; a = lambda t: rec.extend(t.split('\n')); help_d(); a = a_
        k = [i for i, x in enumerate(dma.items) if x.paced][OPT['ad'] - 1] + 1
        dma.items[k:k] = items([x.replace(f's{T0}', 's79').replace(f's{T2}', f's{sPL}') for x in rec])

    tiles = [[0, 1, 2, 3], [7, 4, 5, 6]]
    def bread(g, q, k, sl, n):
        T = tiles[g][q]
        return f'ds_read_b128 {A(BF + 8*sl + 4*n, 4)}, v{(XB if T == 7 else XA) + (k & 1)} offset:{((k>>1)%3)*AXS + (8*(T&1) + (T>>1))*1024}'
    def areads(h):
        o = []
        for mat in range(3):
            for ct in range(2):
                for jj in range(2):
                    off = (h % 4) * 24576 + jj * 6144 + mat * 1024
                    o.append(f'ds_read_b64_tr_b16 {A(AF + 24*(h%3) + 8*mat + 4*ct + 2*jj, 2)}, v{WA + ct + (2 if off >= 49152 else 0)} offset:{off % 49152}')
        return o
    def acc(T, c): return (Q + 8*T, Q + 8*T + 4, K + 8*T, K + 8*T + 4, V0 + 4*T, V1 + 4*T)[c]
    def mfma(g, q, c, k, sl, n, first):
        dd = V(acc(tiles[g][q], c), 4); w_, x_ = A(AF + 24*(k%3) + 4*c, 4), A(BF + 8*sl + 4*n, 4)
        return f'{MF} {dd}, {w_ if c < 4 else x_}, {x_ if c < 4 else w_}, {0 if first else dd}'
    stamp(a, 'pre')
    a('@wait vm=x0,w0 lg=*\ns_barrier')
    stamp(a, 'b0')
    if OPT['atc'] < 0: a(cert_load(27), tag='cert')
    HP = 26
    if OPT['hp']:
        assert not OPT['map2']
        bg += [f's_bfe_u32 s{kA}, s2, 0x10002', f's_mul_i32 s{kA}, s{kA}, 13', f's_and_b32 s{kB}, s2, 3', f's_mul_i32 s{kB}, s{kB}, 3', f's_add_u32 s{kA}, s{kA}, s{kB}',
               f's_lshr_b32 s{kB}, s2, 3', f's_sub_u32 s{kB}, s{kB}, 23', f's_and_b32 s{kC}, s{kB}, 3', f's_add_u32 s{kA}, s{kA}, s{kC}', f's_bfe_u32 s{kB}, s{kB}, 0x10002',
               f's_lshl1_add_u32 s{kC}, s{sW}, s{kB}', f's_mul_i32 s{kC}, s{kC}, 7168', f's_mul_i32 s{kD}, s{kA}, {TH_BYTES}', f's_add_u32 s{kC}, s{kC}, s{kD}',
               f'v_min_u32 v{HP}, 55, v0', f'v_lshl_add_u32 v{HP}, v{HP}, 7, s{kC}',
               f's_lshr_b32 s{T3}, s{kA}, 1', f's_lshl2_add_u32 s{sFH}, s{T3}, s{sW}', f's_lshl_b32 s{sFH}, s{sFH}, 7', f's_add_u32 s{sFH}, s{sFH}, {FH}',
               [f's_add_u32 s{sFH}, s22, s{sFH}', f's_addc_u32 s{sFH+1}, s23, 0'],
               f's_mul_i32 s{T3}, s{T3}, 158', f's_add_u32 s{sNO}, s{T3}, {157-14}', f's_min_u32 s{sNO}, s{sNO}, {2047-14}', f's_mul_i32 s{sNO}, s{sNO}, 580', f's_lshr_b32 s{sNO}, s{sNO}, 16',
               f's_max_u32 s{T3}, s{T3}, 14', f's_sub_u32 s{T3}, s{T3}, 14', f's_mul_i32 s{T3}, s{T3}, 580', f's_lshr_b32 s{T3}, s{T3}, 16',
               f's_sub_u32 s{sNO}, s{sNO}, s{T3}', f's_lshl2_add_u32 s{sNO}, s{sNO}, 4',
               f's_lshl1_add_u32 s{kC}, s{sW}, s{kB}', f's_lshl_b32 s{kC}, s{kC}, 11', f's_add_u32 s{kD}, s{kD}, s{kC}', f's_add_u32 s{kD}, s{kD}, {56*1024}']
    def touch(Ts): return [x for T in Ts for x in (f's_mov_b32 s{T3}, {T*72*1024}', f'buffer_load_dword v27, v{HP}, s[{SH}:{SH+3}], s{T3} offen sc1')]
    def try_touch(f, Ts):
        em(a, ['s_waitcnt lgkmcnt(0)', f's_cmp_eq_u32 s{preg(f)}, 14', f's_cbranch_scc0 La_nt{f}'] + touch(Ts) + [f'La_nt{f}:'])
    bgs = Stream(items(bg))
    z = ZD + 6
    src = [f's_and_b32 s{T0}, s{sW}, 1', f's_mul_i32 s{T1}, s{sR}, 113', f's_add_u32 s{T1}, s{T1}, s{T0}', f's_lshr_b32 s{T2}, s{T1}, 1', f'v_add_u32 v{z}, s{T2}, v0']
    src += stats_src(z, z + 1)
    src += [f's_and_b32 s{T1}, s{T1}, 1', f's_lshr_b32 s{T2}, s{sW}, 1', f's_lshl1_add_u32 s{T1}, s{T1}, s{T2}', f's_lshl_b32 s{T1}, s{T1}, 5',
            f's_add_u32 s{T1}, s{T1}, {STATS}', f's_lshl1_add_u32 s{T0}, s{T0}, s{T2}', f's_lshl_b32 s{T0}, s{T0}, 8', f's_add_u32 s{T0}, s{T0}, {APAR}',
            f'v_lshl_add_u32 v{z+1}, v0, 2, s{T0}']
    sy = sync_stream('La', G, OPT['atc'], src, [f'buffer_load_dword v{z+2}, v{z}, s[{SH}:{SH+3}], s{T1} offen sc1'], [z + 2], [f'ds_write_b32 v{z+1}, v{z+2}'], OPT['atl'], OPT['atl'] + 5, 27)
    par = [Item(f'ds_read2_b32 {V(PR + 2*T, 2)}, v{PA} offset0:{128*(T>>2) + 16*(T&3)} offset1:{64 + 128*(T>>2) + 16*(T&3)}', t0=B(12), tag='pr') for T in range(8)]
    CQ, CK = 2, 54
    par += [Item(f'v_mov_b32_dpp v{CK+k}, v{K+56+k} row_newbcast:15 row_mask:0xf bank_mask:0xf', t0=25*G + 16) for k in range(8)]
    for c, sv in enumerate((V0 + 31, V1 + 31)):
        par += items([f'v_mov_b32 v62, v{sv}', f'v_mov_b32 v63, v{sv}', 'v_permlane32_swap_b32 v62, v63', f'v_mov_b32 v{CV+c}, v63', f'v_permlane16_swap_b32 v63, v{CV+c}'])
    par += [Item(f'v_mov_b32_dpp v{CQ+k}, v{Q+56+k} row_newbcast:15 row_mask:0xf bank_mask:0xf', t0=27*G + 13) for k in range(8)]
    par[15].name = 'ck'
    pars = Stream(par)
    sh = [Item('@wait lg=pr', after={'ck': 0})]
    for q, T in enumerate(tiles[1] if OPT['ash'] else []):
        P = PR + 2 * T; t0 = 25 * G + 12 * (q + 1) + 3
        o = [f'v_fmac_f32 v{K+8*T+k}, v{CK+k}, v{P}' for k in range(8)] + [f'v_mul_f32 v{K+8*T+k}, v{K+8*T+k}, v{P+1}' for k in range(8)]
        sh += items(o, t0=t0); sh[-1].name = f'K{T}'
        if T != 7:
            sh += items([f'v_fmac_f32_dpp v{Q+8*T+k}, v{Q+56+k}, v{P} row_newbcast:15 row_mask:0xf bank_mask:0xf' for k in range(8)], t0=t0); sh[-1].name = f'Q{T}'
    shs = Stream(sh)
    hooks = {5: steady}
    if OPT['azs']:
        zb_ = min(m for m in range(14) if B(m) > OPT['azs'] * G + 12)
        def late_stats():
            n0 = len(a.lines); stats_do(a); a.lines.remove(';HOP') if a.lines.count(';HOP') > 1 else None
            a('@wait lg=*')
        hooks[OPT['azs']] = late_stats
        assert OPT['atc'] < 0
        sy.items[0].t0 = B(zb_)
    if OPT['adip']: hooks[OPT['adip']] = lambda: (steady() if OPT['adip'] == 5 else None, S_.flush(bgs))
    def ck25(): assert sy.done() and bgs.done() and dma.done()
    gemm1(a, S_, G, 4, 6, OPT['ad_'], OPT['am'], areads, bread, mfma, dma, [sy, pars, shs] + ([] if OPT['adip'] else [bgs]), {12: ck25}, hooks)
    while shs.i > 1 and not shs.done() and shs.items[shs.i - 1].name is None: S_.put(shs, shs.items[shs.i])
    print('shadow', [k for k in S_.when if k[0] in 'KQ'], file=sys.stderr)
    assert dma.done()
    S_.flush(pars)
    a('@wait lg=*')
    stamp(a, 'g1')
    a.raw(';EPI')
    def SR(T): return (Q + 32 + 8 * T) if T < 4 else (K + 32 + 8 * (T - 4))
    RB = (2, 54)
    def rread(T):
        for ar in range(2): a(f'ds_read_b128 {V(RB[T&1] + 4*ar, 4)}, v{RA} offset:{512*(T>>2) + 256*ar + 64*(T&3)}', tag=f'R{T}')
    for T in range(8):
        P = PR + 2 * T; dd = Q + 8 * T; dk = K + 8 * T
        if f'Q{T}' not in S_.when:
            for k in range(0, 8, 2): a(f'v_pk_fma_f32 {V(dd+k, 2)}, {V(CQ+k, 2)}, {V(P, 2)}, {V(dd+k, 2)} op_sel_hi:[1,0,1]')
        if f'K{T}' not in S_.when:
            for k in range(0, 8, 2): a(f'v_pk_fma_f32 {V(dk+k, 2)}, {V(CK+k, 2)}, {V(P, 2)}, {V(dk+k, 2)} op_sel_hi:[1,0,1]')
            for k in range(0, 8, 2): a(f'v_pk_mul_f32 {V(dk+k, 2)}, {V(dk+k, 2)}, {V(P, 2)} op_sel:[0,1] op_sel_hi:[1,1]')
    rread(0); rread(1)
    cv = []
    for T in range(8):
        cv += [f'v_cvt_pk_bf16_f32 v{Q+4*T+k}, v{Q+8*T+2*k}, v{Q+8*T+2*k+1}' for k in range(4)]
        cv += [f'v_cndmask_b32 v{Q+4*T+k}, 0, v{Q+4*T+k}, s[{sM1}:{sM1+1}]' for k in (() if OPT['zpad'] else (2, 3))]
        cv += [f'v_cvt_pk_bf16_f32 v{K+4*T+k}, v{K+8*T+2*k}, v{K+8*T+2*k+1}' for k in range(4)]
    n8 = len(cv) // 8
    for T in range(8):
        em(a, cv[n8*T:n8*(T+1)])
        a(f'@wait lg=R{T}')
        b = RB[T & 1]
        for c, base in enumerate((V0, V1)):
            for k in (0, 2): a(f'v_pk_fma_f32 {V(base+4*T+k, 2)}, {V(b+k, 2)}, {V(CV, 2)}, {V(base+4*T+k, 2)} op_sel:[0,{c},0] op_sel_hi:[1,{c},1]')
        for c, base in enumerate((V0, V1)):
            for k in (0, 2): a(f'v_pk_mul_f32 {V(base+4*T+k, 2)}, {V(base+4*T+k, 2)}, {V(b+4+k, 2)}')
        if T < 6: rread(T + 2)
    if OPT['hp'] & 1: a(poll_issue(1))
    fill = [f'v_cvt_pk_bf16_f32 v{base+2*T+k}, v{base+4*T+2*k}, v{base+4*T+2*k+1}' for T in range(8) for base in (V0, V1) for k in range(2)]
    fill += [f'v_mul_f32 v{PR + 2*T + 1}, {hx(f2u(LOG2E * 28 ** -0.5))}, v{PR + 2*T + 1}' for T in range(8)]
    for T in range(8):
        if T & 3:
            a(f'{MF} {V(SR(T), 4)}, {V(K + 4*(T-1), 4)}, {V(Q + 4*T, 4)}, {V(MK, 4)}'); em(a, fill[:2]); del fill[:2]
        a(f'{MF} {V(SR(T) + 4, 4)}, {V(K + 4*T, 4)}, {V(Q + 4*T, 4)}, {V(MK + 4, 4)}'); em(a, fill[:2]); del fill[:2]
    em(a, fill)
    mx = [10, 11, 12, 13, 22, 23, 24, 25]
    for T in range(8):
        s = SR(T); m = mx[T]
        if T & 3: a(f'v_max3_f32 v{m}, v{s}, v{s+1}, v{s+2}\nv_max3_f32 v{m}, v{m}, v{s+3}, v{s+4}\nv_max3_f32 v{m}, v{m}, v{s+5}, v{s+6}\nv_max_f32 v{m}, v{m}, v{s+7}')
        else: a(f'v_max3_f32 v{m}, v{s+4}, v{s+5}, v{s+6}\nv_max_f32 v{m}, v{m}, v{s+7}')
    stamp(a, 'e1')
    for b in (0, 2, 4, 6): a(f'v_permlane32_swap_b32 v{mx[b]}, v{mx[b+1]}')
    for b in (0, 2, 4, 6): a(f'v_max_f32 v{mx[b]}, v{mx[b]}, v{mx[b+1]}')
    for b in (0, 4): a(f'v_permlane16_swap_b32 v{mx[b]}, v{mx[b+2]}')
    for b in (0, 4): a(f'v_max_f32 v{mx[b]}, v{mx[b]}, v{mx[b+2]}')
    for b in (0, 4): a(f'v_mov_b32 v{mx[b+2]}, v{mx[b]}')
    ONE = 54; PF = 56; OT = K
    for k in range(2): a(f'v_mov_b32 v{2+k}, 0x3f803f80')
    for b in (0, 4): a(f'v_permlane16_swap_b32 v{mx[b]}, v{mx[b+2]}')
    for b in (0, 2, 4, 6): a(f'v_mov_b32 v{mx[b+1]}, v{mx[b]}')
    for k in range(2, 4): a(f'v_mov_b32 v{2+k}, 0x3f803f80')
    ONE = 2
    for b in (0, 2, 4, 6): a(f'v_permlane32_swap_b32 v{mx[b]}, v{mx[b+1]}')
    for T in range(8): a(f'v_mul_f32 v{PR + 2*T}, v{mx[T]}, v{PR + 2*T + 1}')
    if OPT['hp'] & 1: try_touch(1, [1])
    def pf(T): return PF + 4 * (T & 1)
    def soft(T):
        s = SR(T); P = PR + 2 * T
        lo = 0 if T & 3 else 4
        for k in range(lo, 8, 2): a(f'v_pk_fma_f32 {V(s+k, 2)}, {V(s+k, 2)}, {V(P, 2)}, {V(P, 2)} op_sel:[0,1,0] op_sel_hi:[1,1,0] neg_lo:[0,0,1] neg_hi:[0,0,1]')
        return [f'v_exp_f32 v{s+k}, v{s+k}' for k in range(lo, 8)]
    def pack(T):
        s = SR(T)
        if T & 3:
            for k in range(4): a(f'v_cvt_pk_bf16_f32 v{pf(T)+k}, v{s+2*k}, v{s+2*k+1}')
        else:
            for k in range(2): a(f'v_cvt_pk_bf16_f32 v{pf(T)+k}, v{s+4+2*k}, v{s+5+2*k}')
            a(f'v_mov_b32 v{pf(T)+2}, 0\nv_mov_b32 v{pf(T)+3}, 0')
    def OB(T): return OT + 12 * (T & 1)
    def pv(T):
        v = 2 * (T - 1) if T & 3 else 2 * T
        o = OB(T)
        return [f'{MF} {V(o + 8, 4)}, {V(ONE, 4)}, {V(pf(T), 4)}, 0', f'{MF} {V(o, 4)}, {V(V0 + v, 4)}, {V(pf(T), 4)}, 0', f'{MF} {V(o + 4, 4)}, {V(V1 + v, 4)}, {V(pf(T), 4)}, 0']
    def fin(T):
        o = OB(T); R = Q + 4 * T
        for k in range(0, 8, 2): a(f'v_pk_mul_f32 {V(o+k, 2)}, {V(o+k, 2)}, {V(o+8, 2)} op_sel_hi:[1,0]')
        for k in range(4): a(f'v_cvt_pk_bf16_f32 v{R+k}, v{o+2*k}, v{o+2*k+1}')
        if T & 3 == 3:
            R0 = R - 12
            for k in range(4):
                for q in (0, 1): a(f'v_permlane32_swap_b32 v{R0+4*q+k}, v{R0+4*(q+2)+k}')
            for q in (0, 2):
                for k in range(4): a(f'v_permlane16_swap_b32 v{R0+4*q+k}, v{R0+4*(q+1)+k}')
                for g in (q, q + 1): a(f'buffer_store_dwordx4 {V(R0+4*g, 4)}, v{OA + (T>>2)}, s[{SH}:{SH+3}], s{sST} offen offset:{256*g} sc1', tag='o')
    for T in range(9):
        ex = soft(T) if T < 8 else []
        mm = pv(T - 1) if T else []
        for x in mm:
            a(x)
            if ex: a(ex.pop(0))
        em(a, ex)
        if T: a(f'v_rcp_f32 v{OB(T-1)+8}, v{OB(T-1)+8}')
        if T < 8: pack(T)
        if T: fin(T - 1)
        if OPT['hp'] & 2 and T == 2: a(poll_issue(2))
        if OPT['hp'] & 2 and T == 4: try_touch(2, [2])
    stamp(a, 'e2')
    if OPT['hp'] & 4: a(poll_issue(3))
    a(f'v_mov_b32 v2, 1\ns_waitcnt vmcnt(0)\nbuffer_atomic_add v2, v{CB}, s[{SH}:{SH+3}], s{sFL} offen sc1')
    if OPT['hp'] & 4: em(a, poll_check('La_h3', 3, 14) + touch([3, 4]))
    if OPT['hp'] & 8:
        a(poll_issue(4))
        a(f'v_and_b32 v3, 15, v0\nv_mul_u32_u24 v4, {72*8}, v{XL+1}'.replace(f'v{XL+1}', 'v5').replace('v_and_b32 v3', 'v_lshrrev_b32 v5, 4, v0\nv_and_b32 v3'))
        a(f'v_add_lshl_u32 v4, v3, v4, 7\nv_lshlrev_b32 v3, 7, v3\nv_add_u32 v3, {4*72*1024}, v3')
        em(a, poll_check('La_h4', 4, f's{sNO}'))
        a(f'buffer_load_dword v27, v4, s[{SH}:{SH+3}], s{kD} offen sc1\nbuffer_load_dword v27, v3, s[{SH}:{SH+3}], s{kD} offen sc1')

def add_pads(lines, pfx):
    flat = []
    for l in lines: flat += l.split('\n')
    h = flat.index(';HOP')
    if not OPT['iw']: return flat[:h] + flat[h+1:]
    start = flat.index(';EPI') if OPT['iws'] else h + OPT['iw']
    pos = []; k = start
    while k < len(flat) - 60:
        j = k
        while j < k + 40 and not (flat[j-1].strip().startswith('v_mfma') and flat[j].strip().startswith('v_mfma')): j += 1
        pos.append(j if j < k + 40 else k); k += OPT['iw']
    n = len(pos); first = [w * n // 4 for w in range(5)]
    hop = ['    s_mov_b64 exec, 0']
    for w in range(3): hop += [f'    s_cmp_eq_u32 s{sW}, {w}', f'    s_cbranch_scc1 {pfx}_pad{first[w]}']
    hop += [f'    s_branch {pfx}_pad{first[3]}', f'{pfx}_back:', '    s_mov_b64 exec, -1']
    out = flat[:h] + hop
    for i in range(h + 1, len(flat)):
        if i in pos:
            q = pos.index(i)
            out += [f'{pfx}_pad{q}:', f'    s_cbranch_execz {pfx}_' + ('back' if q + 1 in first else f'pad{q+1}')]
        out.append(flat[i])
    print(pfx, 'pads', n, file=sys.stderr)
    return out

def desc(name):
    return f""".amdhsa_kernel {name}
  .amdhsa_next_free_vgpr 512
  .amdhsa_next_free_sgpr 102
  .amdhsa_accum_offset 256
  .amdhsa_group_segment_fixed_size 0
  .amdhsa_kernarg_size 80
  .amdhsa_user_sgpr_count 2
  .amdhsa_user_sgpr_kernarg_segment_ptr 1
  .amdhsa_system_sgpr_workgroup_id_x 1
  .amdhsa_float_denorm_mode_32 3
.end_amdhsa_kernel
"""

DOC = """;
; Straight-line code written by a hand-made scheduler script (4 waves, 512 registers each, 16x16x32 bf16 MFMA).
;                then an output tile of 80 token slots x 64 columns over K = [H | O], K split over the waves.
;   A workgroups (72 = 18 row blocks x 4)  : q/k/v GEMM of 127 tokens x 4 heads (one head per wave), windowed
; LayerNorm is applied after the first GEMMs: (x W - mean * colsum(W)) / std; colsum comes from an all-ones token
; Hand-offs: write-through (sc1) stores -> s_waitcnt vmcnt -> arrival counter; consumers poll, then load (sc1).
; Workgroup ids are mapped to tiles for cache locality only; any placement gives the same result.
"""
def build():
    del SLOW[:]
    hdr = open('cdna_kernels/' + NAME + '.s.ref').read().split('; Override launch')[0]
    k1 = NAME + '_kernel'
    out = hdr + '; @launch grid=(256,1,1) block=(256,1,1) lds=163840\n' + DOC + '.amdgcn_target "amdgcn-amd-amdhsa--gfx950"\n.text\n'
    c = Asm()
    c.raw(f'.globl {k1}\n.type {k1},@function\n.p2align 10\n.fill {OPT["pad"] // 4}, 4, 0xbf810000\n.p2align 8\n{k1}:')
    c('s_cmpk_ge_u32 s2, 256\ns_cbranch_scc1 L_done')
    if PROF: c.raw(f'    s_mem{"real" if "real" in STAMPS else ""}time s[86:87]\n    s_memrealtime s[84:85]\n    s_waitcnt lgkmcnt(0)\n    s_mov_b32 s87, s84\n    s_getreg_b32 s99, hwreg(HW_REG_XCC_ID)\n    s_lshl_b32 s99, s99, 16')
    else: stamp(c, 0)
    c('s_load_dwordx16 s[4:19], s[0:1], 0\ns_load_dwordx4 s[20:23], s[0:1], 64')
    per = OPT['pfn']
    c(f's_getpc_b64 s[{sFH}:{sFH+1}]\nv_lshrrev_b32 v1, 6, v0\nv_and_b32 v0, 63, v0\ns_lshr_b32 s{T0}, s2, 3\ns_mul_i32 s{T1}, s{T0}, {per}')
    c(f'v_min_u32 v{XL}, {per-1}, v0\nv_readfirstlane_b32 s{sW}, v1\nv_add_lshl_u32 v{XL}, v{XL}, s{T1}, 7')
    c(f'global_load_dword v37, v{XL}, s[{sFH}:{sFH+1}] offset:896', tag='pf')
    stats_addr(c); em(c, srd_c(SX, 2048 * 896))
    c(f's_and_b32 s{sJ}, s{sW}, 1\ns_lshr_b32 s{sWO}, s{sW}, 1\ns_lshl_b32 s{T2}, s{sJ}, 2')
    c(f'v_lshrrev_b32 v{XL}, 3, v0\nv_and_b32 v1, 7, v0\nv_lshrrev_b32 v{XL+1}, 4, v0\nv_mul_u32_u24 v{XL}, 112, v{XL}\nv_xor_b32 v1, s{T2}, v1')
    c(f's_bfe_u32 s{T1}, s2, 0x10002\ns_and_b32 s{sC}, s2, 3\nv_xor_b32 v1, v1, v{XL+1}\n' + (f's_cmp_eq_u32 s{sC}, 3\ns_cselect_b32 s{T2}, 28, 21\ns_cmp_lt_u32 s{T0}, s{T2}' if OPT['map2'] else f's_cmp_lt_u32 s{T0}, 23') + f'\nv_add_lshl_u32 v{XL}, v{XL}, v1, 4\ns_cbranch_scc1 L_ffn')
    aa = Asm(); aa.vm = ['pf']
    if OPT['noa']: aa(f's_mov_b32 s{T1}, 1\ns_branch L_idle')
    cut = []
    def split():
        aa('s_branch L_attn'); cut.append(len(aa.lines)); aa.label('L_attn')
    attn(aa, split); dump(aa); aa('s_endpgm')
    f = Asm(); f.vm = ['pf']
    f.label('L_ffn')
    if OPT['map2']: f(f's_mul_i32 s{T2}, s{sC}, 21\ns_add_u32 s{T0}, s{T0}, s{T2}')
    else: f(f's_mul_i32 s{T2}, s{sC}, 23\ns_add_u32 s{T0}, s{T0}, s{T2}\ns_cmpk_ge_u32 s{T0}, 91\ns_cbranch_scc1 L_idle0')
    ffn(f); dump(f)
    f.label('L_done'); f('s_endpgm')
    a = Asm(); a.vm = ['pf']
    a.label('L_idle')
    z = Asm(); z.label('L_idle0')
    z(f'v_mov_b32 v4, 0\nv_mov_b32 v5, 0\nv_mov_b32 v6, 0\nv_mov_b32 v7, 0\ns_lshl_b32 s{T0}, s{sW}, 12\ns_add_u32 s{T0}, s{T0}, {STATS}\nv_lshl_add_u32 v2, v0, 4, s{T0}')
    z(f's_cmp_lg_u32 s{T1}, 0\ns_waitcnt lgkmcnt(0)\ns_cbranch_scc1 L_idle1')
    for i in range(4): z(f'global_store_dwordx4 v2, v[4:7], s[22:23] offset:{i*1024} sc1')
    z('s_branch L_idle')
    a.lines[-1:] = ['L_idle1:']
    a(f's_mul_i32 s{T0}, s{sW}, {5*FST//4}\ns_add_u32 s{T0}, s{T0}, {FH + 4096}\nv_lshl_add_u32 v2, v0, 4, s{T0}\nv_add_u32 v3, 4096, v2')
    for i in range(10): a(f'global_store_dwordx4 v{2 + (i >= 8)}, v[4:7], s[22:23] offset:{(i - 4 - 4*(i >= 8))*1024} sc1')
    if OPT['oc']:
        a(f's_lshl_b32 s{T0}, s{sW}, 12\ns_add_u32 s{T0}, s{T0}, {25*TH_BYTES + (4*72 + 56)*1024}\nv_lshl_add_u32 v2, v0, 4, s{T0}')
        for i in range(4): a(f'global_store_dwordx4 v2, v[4:7], s[22:23] offset:{i*1024} sc1')
    a.label('L_idle')
    em(a, srd(SH, 22, WS_USED) + srd(SDB, 20, 256) + srd_p(SX, 4))
    a(f's_lshl_b32 s{T3}, s{T1}, 7\ns_cmp_eq_u32 s{sW}, 0\ns_cselect_b32 s{T3}, s{T3}, {OOB}\nv_mov_b32 v8, 1\nv_lshl_add_u32 v9, v0, 8, s{T3}')
    a(f's_waitcnt vmcnt(0)\ns_barrier\nbuffer_store_dword v8, v9, s[{SDB}:{SDB+3}], 0 offen sc1')
    stats_load(a); stats_do(a)
    a('s_waitcnt lgkmcnt(0)\ns_barrier')
    em(a, stats_prep(ZD, ZD + 4))
    a(cert_load(ZD + 5)); a('s_waitcnt vmcnt(0) lgkmcnt(0)')
    em(a, vec_check('Li_cert', [cert_load(ZD + 5)], [ZD + 5])); a(stats_post(ZD, ZD + 4)); a('s_endpgm')
    for s in SLOW: a.raw(s)
    a.raw('L_end:\n.fill 3072, 4, 0xbf810000')
    sys.stderr.write(f'instr: ffn {f.count} attn {aa.count}; nops {f.nops} {aa.nops}\n')
    lines = c.lines + aa.lines[:cut[0]] + z.lines + add_pads(f.lines, 'Lf') + add_pads(aa.lines[cut[0]:], 'La') + a.lines
    lines = [l for l in lines if not l.startswith(';')]
    if OPT['align']: lines = align_pass(lines, k1, 'L_end', 'L_f7')
    text = '\n'.join(lines) + '\n'
    if OPT['hf_'] != 'sc1': text = re.sub(r'(buffer_load_dwordx4 v\[.*) sc1', lambda m: m.group(1) + ' ' + OPT['hf_'], text)
    if OPT['sf'] != 'sc1': text = re.sub(r'(buffer_store_dwordx4 .*) sc1', lambda m: m.group(1) + ' ' + OPT['sf'].replace('+', ' '), text)
    return out + text + '.section .rodata,"a"\n.p2align 6\n' + desc(k1)

if __name__ == '__main__':
    args = sys.argv[1:]
    for x in [x for x in args if x.startswith('enc:')]:
        args.remove(x); ENC = (x.split(':')[1], int(x.split(':')[2]))
    for x in [x for x in args if x.startswith('st:')]:
        PROF = True; args.remove(x); STAMPS[:] = x[3:].split(',')
    for x in [x for x in args if '=' in x]:
        k, v = x.split('='); args.remove(x)
        OPT[k] = type(OPT[k])(v) if not isinstance(OPT[k], bool) else v == '1'
    roles = [decode_py(b) for b in range(256)]
    F = [r for r in roles if r and r[0] == 'F']; Aa = [r for r in roles if r and r[0] == 'A']
    assert sorted((r[1], r[2]) for r in F) == [(r, c) for r in range(13) for c in range(14)]
    assert sorted((r[3], r[4]) for r in F) == [(t, c) for t in range(26) for c in range(7)]
    assert sorted((r[1], r[2]) for r in Aa) == [(x, g) for x in range(18) for g in range(4)]
    assert all(((t * 26547) >> 22) == t // 158 for t in range(2200))
    assert all(((t * 4682) >> 16) == t // 14 for t in range(140))
    for r in range(13):
        need = {0 if tk < 127 else (tk - 14) // 113 for tk in range(158 * r, min(158 * r + 158, 2048))}
        assert len(need) == ((min(158 * r + 143, 2033) * 580) >> 16) - (((max(158 * r, 14) - 14) * 580) >> 16) + 1
        assert need == {x for x in range(18) if ((113 * x + (14 if x else 0)) // 158) <= r <= (113 * x + 126) // 158}
    open(args[0] if args else 'cdna_kernels/' + NAME + '.s', 'w').write(build())
```

```python
import sys, struct
from asmlib import *

NAME = "parallel_sum__sliding_local_dilated__swiglu_ffn__prompt"
LOG2E = 1.4426950408889634
def f2u(x): return struct.unpack('<I', struct.pack('<f', x))[0]
def hx(x): return f'0x{x & 0xffffffff:08x}'

OPT = dict(rotf='h3', rota='1.0.0.7.1', rate=0.25, rate2=0.2, rate3=0.22, rs=4, arate=0.2, erate=0.25, w2s=13, w2g=50, npro=17, anpro=16, rot2=2, sleep=3,
           tc=1, atc=-1, atl=13, tl=13, nhb=12, pi=9, early=0, lag=60, touch='', tn=4, tpos=20, tstep=4.0, nO=4, pad=256, otr=1, lt=0, ltr=128, zpos=0, align=1, lead=8, fm=6, am=0, arate0=0.3, fd=3, ad_=2, chain=1, zpad=1, of='sc1', ofl='sc1', xo=0, sf='sc1', wso=0, diag=0, roto=0, aw=0, ad=60, awp=0, ol=0, n1=7, za=0, ado=0, alate=1, wc=0, vs=0, hf_='sc1', hp=0, oc=1, map2=1, gx=0, pd=0, xb=0, xs=4, ash=1, dw=0, dt=1, pe=0, wrate=0.12, fp=0, azs=0, adip=3, pair=0, lc=4, rt=18, zi=99, nbg=999, p2=0, zr=1, noa=0, pfn=11, iw=0, iws=1, nA=8, a6=0, ost=80, nochk=0, x='', ap=0, tk=4, elag=40)

SX, SG, SU, SH, SD, SO, SOUT, SDB = 24, 28, 32, 36, 40, 44, 48, 52
sR, sC, sTH, sCT, sW = 56, 57, 58, 59, 60
T0, T1, T2, T3 = 61, 62, 63, 64
sMX, sMW, sSO, sJ, sWO, sST, sSPIN = 65, 66, 67, 68, 69, 70, 71
sPL, sONE, sXJ, sWJ = 72, 73, 74, 75
sFH, sNO = 76, 78
sM0, sM1 = 80, 82
sRT = 4
sFL = 3

TH_BYTES = 5 * 72 * 1024
FH, FST, STATS, WS_USED = 0x930000, 8192, 0x93a000, 0x940000
OOB = 0x7ffffff0
MF = 'v_mfma_f32_16x16x32_bf16'

PROF = False; STAMPS = []; ENC = None; sP = 86
def stamp(a, i, real=False):
    if ENC:
        if i == 0 or i == ENC[0]:
            a.raw(f'    s_memrealtime s[84:85]\n    s_waitcnt lgkmcnt(0)\n    s_mov_b32 s{86 + (i != 0)}, s84'); a.lg = []
        return
    if not PROF: return
    if isinstance(i, str):
        if i not in STAMPS: return
        i = 2 + STAMPS.index(i)
    real = real or 'real' in STAMPS
    a.raw(f'    s_mem{"real" if real else ""}time s[84:85]\n    s_waitcnt lgkmcnt(0)\n    s_mov_b32 s{sP+i}, s84')
    a.lg = []
def dump(a):
    if ENC:
        l = f'Lenc{a.count}'
        stamp(a, 'end')
        a.raw(f'    s_cmp_eq_u32 s2, {ENC[1]}\n    s_cbranch_scc0 {l}_e\n    s_sub_u32 s87, s87, s86\n    s_min_u32 s87, s87, 5000\n    s_mul_i32 s87, s87, 10\n    s_memrealtime s[88:89]\n{l}:\n    s_memrealtime s[84:85]\n    s_waitcnt lgkmcnt(0)\n    s_sub_u32 s84, s84, s88\n    s_cmp_lt_u32 s84, s87\n    s_cbranch_scc1 {l}\n{l}_e:')
        return
    if not PROF: return
    a('s_waitcnt vmcnt(0)')
    stamp(a, 14); stamp(a, 15, True)
    a(f's_mov_b32 s{SH+2}, 0x2000000')
    a(f's_lshl_b32 s{T0}, s2, 2\ns_add_u32 s{T0}, s{T0}, s{sW}\ns_lshl_b32 s{T0}, s{T0}, 6\ns_add_u32 s{T0}, s{T0}, 0x1000000')
    for i in range(16): a(f'v_mov_b32 v{4+i}, s{sP+i}')
    a('v_mov_b32 v2, 0\ns_mov_b64 exec, 1')
    for i in range(4): a(f'buffer_store_dwordx4 v[{4+4*i}:{7+4*i}], v2, s[{SH}:{SH+3}], s{T0} offen offset:{16*i}')

def srd_c(dst, nbytes): return [f's_mov_b32 s{dst+2}, {nbytes}', f's_mov_b32 s{dst+3}, 0x20000']
def srd_p(dst, ptr, back=0):
    if back: return [[f's_sub_u32 s{dst}, s{ptr}, {back}', f's_subb_u32 s{dst+1}, s{ptr+1}, 0']]
    return [f's_mov_b64 s[{dst}:{dst+1}], s[{ptr}:{ptr+1}]']
def srd(dst, ptr, nbytes): return srd_p(dst, ptr) + srd_c(dst, nbytes)
def em(a, l, tag=None):
    for x in l:
        for y in ([x] if isinstance(x, str) else x): a(y, tag=tag)
def items(l, **k): return [Item(x, **k) for x in l]

SLOW = []
NL = '\n    '
def mark(): return f'{NL}s_bitset1_b32 s99, {len(SLOW)}' if PROF and len(STAMPS) < 12 else ''
def vec_check(name, loads, regs):
    r = regs[-1]
    t = {1: [], 2: [f'v_min_u32 v{r}, v{regs[0]}, v{r}'], 3: [f'v_min3_u32 v{r}, v{regs[0]}, v{regs[1]}, v{r}']}[len(regs)] if len(regs) > 1 else []
    t.append(f'v_cmp_eq_u32 vcc, 0, v{r}')
    SLOW.append(f"""{name}:{mark()}
    s_mov_b32 s{sSPIN}, 0
{name}_l:
    s_sleep 4
    {NL.join(loads)}
    s_add_u32 s{sSPIN}, s{sSPIN}, 1
    s_waitcnt vmcnt(0)
    {NL.join(t)}
    s_nop 4
    s_cbranch_vccz {name}_r
    s_cmp_lt_u32 s{sSPIN}, 0x40000
    s_cbranch_scc1 {name}_l
    s_branch {name}_r""")
    return t + ['s_nop 4', f's_cbranch_vccnz {name}', f'{name}_r:']
def preg(f): return 79 if f & 1 else sPL
def poll_issue(f): return f's_load_dword s{preg(f)}, s[{sFH}:{sFH+1}], {f*FST} glc'
def poll_check(name, f, want, first=()):
    SLOW.append(f"""{name}:{mark()}
    {NL.join(list(first) + [f's_mov_b32 s{sSPIN}, 0'])}
{name}_l:
    {poll_issue(f)}
    s_add_u32 s{sSPIN}, s{sSPIN}, 1
    s_waitcnt lgkmcnt(0)
    s_cmp_eq_u32 s{preg(f)}, {want}
    s_cbranch_scc1 {name}_r
    s_sleep {OPT['sleep']}
    s_cmp_lt_u32 s{sSPIN}, 0x40000
    s_cbranch_scc1 {name}_l
    s_branch {name}_r""")
    return ['s_waitcnt lgkmcnt(0)', [f's_cmp_eq_u32 s{preg(f)}, {want}', f's_cbranch_scc0 {name}', f'{name}_r:']]

def decode_py(b):
    i, hf, q = b >> 3, (b >> 2) & 1, b & 3
    if OPT['map2']:
        n = 28 if q == 3 else 21
        if i >= n:
            if (b | 4) == 255: return None
            u = i - n + ((0x160b1900 >> (8 * q)) & 31); G = (u * 57) >> 9
            return ('A', u + 9 * (hf - G), G ^ 1)
        f = 21 * q + i; p = 91 * hf + f; th = (p * 9363) >> 16
        m, n, f2 = (43, 6, f - 7) if f >= 49 else (37, 7, f)
        c = (f2 * m) >> 8; r = f2 - n * c
        return ('F', 12 - r if hf else r, 13 - c if hf else c, th, p - 7 * th)
    if i >= 23: return ('A', 9 * hf + i - 23, q)
    f = i + 23 * q
    if f >= 91: return None
    p = 91 * hf + f; th = (p * 9363) >> 16; ct = p - 7 * th
    l1 = 49 - 7 * hf; sec = int(f >= l1); f2 = f - (l1 if sec else 0)
    m, n = (37, 7) if (sec ^ hf) == 0 else (43, 6)
    c = (f2 * m) >> 8; r = f2 - n * c
    return ('F', r + (7 - sec) * hf, c + 7 * sec, th, ct)

ZD, ZT = 38, 46
ZL = 163840 - 128
sZB = sSPIN
def zb(): return sZB if OPT['zr'] else 2
def stats_addr(a):
    if OPT['za']: a(f'v_mov_b32 v{ZT+3}, {OOB}'); return
    if OPT['zr']: a(f's_bfe_u32 s{T3}, s2, 0x10002\ns_lshl_b32 s{T3}, s{T3}, 5\ns_add_u32 s{T3}, s{T3}, s{T0}\ns_and_b32 s{sZB}, s2, 3\ns_lshl2_add_u32 s{sZB}, s{T3}, s{sZB}')
    a(f's_andn2_b32 s{T3}, s{zb()}, 1\ns_lshl1_add_u32 s{T3}, s{T3}, s{sW}\ns_and_b32 s{sSO}, s2, 1\ns_lshl2_add_u32 s{sST}, s{T3}, s{sSO}\ns_mulk_i32 s{sST}, 896')
    a(f'v_lshrrev_b32 v{ZT}, 5, v0\nv_and_b32 v{ZT+1}, 31, v0\nv_mul_u32_u24 v{ZT+2}, 1792, v{ZT}\nv_cmp_gt_u32 vcc, 28, v{ZT+1}')
    a(f'v_lshl_add_u32 v{ZT+2}, v{ZT+1}, 4, v{ZT+2}\nv_mov_b32 v{ZT+3}, {OOB}\nv_cndmask_b32 v{ZT+2}, v{ZT+3}, v{ZT+2}, vcc')
def stats_load(a):
    a(f'buffer_load_dwordx4 {V(ZD, 4)}, v{ZT+2}, s[{SX}:{SX+3}], s{sST} offen', tag='z')
    a(f'buffer_load_dwordx4 {V(ZD+4, 4)}, v{ZT+2}, s[{SX}:{SX+3}], s{sST} offen offset:448', tag='z')
def stats_do(a_, more=None):
    cnt = [-1]
    def a(t, **k):
        for x in t.split('\n'):
            a_(x, **k)
            if cnt[0] >= 0 and more:
                if cnt[0] % OPT['zi'] == 0: more()
                cnt[0] += 1
    s, q, lo, hi = ZT + 4, ZT + 5, ZT + 6, ZT + 7
    a(f'v_and_b32 v{ZT+2}, 1, v0\nv_cmp_eq_u32 s[{sM0}:{sM0+1}], 1, v{ZT+2}\nv_lshlrev_b32 v{ZT+2}, 5, v{ZT+2}\nv_lshl_add_u32 v{ZT+2}, v{ZT}, 2, v{ZT+2}')
    a(f'v_bfe_u32 v{ZT+1}, v0, 4, 1\nv_lshlrev_b32 v{ZT+1}, 6, v{ZT+1}\nv_sub_u32 v{ZT+2}, v{ZT+2}, v{ZT+1}\ns_lshl3_add_u32 s{T0}, s{sW}, {ZL + 64}')
    a(f'v_cmp_eq_u32 vcc, 0, v0\nv_add_u32 v{ZT+2}, s{T0}, v{ZT+2}\nv_mov_b32 v{ZT}, 0\nv_cndmask_b32 v1, v{ZT+3}, v{ZT}, vcc')
    a_.raw(';HOP')
    stamp(a_, 'z0')
    a('@wait vm=z')
    stamp(a_, 'z1')
    cnt[0] = 0
    for k in range(8):
        r = ZD + k
        a(f'v_lshlrev_b32 v{lo}, 16, v{r}\nv_and_b32 v{hi}, 0xffff0000, v{r}')
        if k == 0: a(f'v_pk_add_f32 {V(ZT, 2)}, {V(lo, 2)}, 0\nv_pk_mul_f32 {V(s, 2)}, {V(lo, 2)}, {V(lo, 2)}')
        else: a(f'v_pk_add_f32 {V(ZT, 2)}, {V(ZT, 2)}, {V(lo, 2)}\nv_pk_fma_f32 {V(s, 2)}, {V(lo, 2)}, {V(lo, 2)}, {V(s, 2)}')
    a(f'v_add_f32 v{q}, v{s}, v{q}\nv_add_f32 v{s}, v{ZT}, v{ZT+1}')
    for ctl in ('quad_perm:[1,0,3,2] row_mask:0xf', 'quad_perm:[2,3,0,1] row_mask:0xf', 'row_half_mirror row_mask:0xf', 'row_mirror row_mask:0xf', 'row_bcast:15 row_mask:0xa'):
        for r in (q, s): a(f'v_add_f32_dpp v{r}, v{r}, v{r} {ctl} bank_mask:0xf')
    stats_tail(a, s, q)
    a(f'ds_write_b32 v{ZT+2}, v{s}')
    stamp(a_, 'z2')
def stats_tail(a, s, q):
    a(f'v_mul_f32 v{s}, {hx(f2u(1/448))}, v{s}\nv_mul_f32 v{q}, {hx(f2u(1/448))}, v{q}\nv_fma_f32 v{q}, -v{s}, v{s}, v{q}\nv_max_f32 v{q}, 0, v{q}')
    a(f'v_cvt_pk_bf16_f32 v{s}, -v{s}, v{q}\nv_and_b32 v{q}, 0xffff0000, v{s}\nv_lshlrev_b32 v{s}, 16, v{s}')
    a(f'v_add_f32 v{q}, {hx(f2u(1e-5))}, v{q}\nv_cvt_pk_bf16_f32 v{q}, v{q}, v{q}\nv_and_b32 v{q}, 0xffff0000, v{q}\nv_sqrt_f32 v{q}, v{q}')
    a(f'v_cvt_pk_bf16_f32 v{q}, v{q}, v{q}\nv_and_b32 v{q}, 0xffff0000, v{q}\nv_rcp_f32 v{q}, v{q}')
    a(f'v_cndmask_b32 v{s}, v{s}, v{q}, s[{sM0}:{sM0+1}]\nv_or_b32 v{s}, 1, v{s}')
ZB = 64
def stats8_addr(a):
    a(f's_sub_u32 s{T0}, s{sR}, s{T1}\ns_lshl2_add_u32 s{T0}, s{T0}, s{sC}\ns_lshl2_add_u32 s{sZB}, s{T0}, s{sW}\ns_andn2_b32 s{T0}, s{sZB}, 1\ns_lshl3_add_u32 s{T0}, s{T0}, s{sJ}')
    a(f's_mul_i32 s{T0}, s{T0}, 896\ns_lshl_b32 s{sZB}, s{sZB}, 6\ns_mul_i32 s{T3}, s{T1}, 9\ns_add_u32 s{T3}, s{T3}, 8\ns_cmp_eq_u32 s{sR}, s{T3}')
    a(f's_cselect_b32 s{T0}, {OOB}, s{T0}\ns_cselect_b32 s{sZB}, s{T0}, s{sZB}\nv_add_u32 v{ZT+2}, s{T0}, v{XL}')
def stats8_load(a):
    for j in range(7): a(f'buffer_load_dwordx4 {V(ZB + 4*j, 4)}, v{ZT+2}, s[{SX}:{SX+3}], 0 offen offset:{128*j}', tag='z')
def stats8_do(a, lds):
    s, q, lo, hi = ZT + 4, ZT + 5, ZT + 6, ZT + 7
    va = ZD + 4
    a(f'v_and_b32 v{ZD}, 1, v0\nv_cmp_eq_u32 s[{sM0}:{sM0+1}], 1, v{ZD}\nv_lshrrev_b32 v{ZD+1}, 3, v0\nv_lshl_add_u32 v{ZD+1}, v{ZD}, 3, v{ZD+1}')
    a(f's_lshl_b32 s{T0}, s{sW}, 6\ns_add_u32 s{T0}, s{T0}, {lds}\nv_lshl_add_u32 v{ZT+2}, v{ZD+1}, 2, s{T0}\nv_and_b32 v{ZD}, 3, v0\nv_lshl_add_u32 v{ZD+5}, v{ZD}, 4, s{T0}')
    a(f's_add_u32 s{sZB}, s{sZB}, {STATS}\nv_cmp_gt_u32 vcc, 4, v0\nv_lshl_add_u32 v{va}, v0, 4, s{sZB}\nv_cndmask_b32 v{va}, v{ZT+3}, v{va}, vcc')
    a.raw(';HOP'); stamp(a, 'z0'); a('@wait vm=z'); stamp(a, 'z1')
    for k in range(28):
        r = ZB + k
        a(f'v_lshlrev_b32 v{lo}, 16, v{r}\nv_and_b32 v{hi}, 0xffff0000, v{r}')
        if k == 0: a(f'v_pk_add_f32 {V(ZT, 2)}, {V(lo, 2)}, 0\nv_pk_mul_f32 {V(s, 2)}, {V(lo, 2)}, {V(lo, 2)}')
        else: a(f'v_pk_add_f32 {V(ZT, 2)}, {V(ZT, 2)}, {V(lo, 2)}\nv_pk_fma_f32 {V(s, 2)}, {V(lo, 2)}, {V(lo, 2)}, {V(s, 2)}')
    a(f'v_add_f32 v{q}, v{s}, v{q}\nv_add_f32 v{s}, v{ZT}, v{ZT+1}')
    for ctl in ('quad_perm:[1,0,3,2]', 'quad_perm:[2,3,0,1]', 'row_half_mirror'):
        for r in (q, s): a(f'v_add_f32_dpp v{r}, v{r}, v{r} {ctl} row_mask:0xf bank_mask:0xf')
    stats_tail(a, s, q)
    a(f'ds_write_b32 v{ZT+2}, v{s}\nds_read_b128 {V(ZD, 4)}, v{ZD+5}')
    stamp(a, 'z2')
def cert_load(v, k=0): return f'buffer_load_dword v{v}, off, s[{SDB}:{SDB+3}], 0 offset:{128*k} sc1'
def stats_prep(vd, va):
    return [f'v_and_b32 v{va}, 3, v0', f'v_lshlrev_b32 v{va}, 4, v{va}', f'v_add_u32 v{va}, {ZL}, v{va}', f'ds_read_b128 {V(vd, 4)}, v{va}',
            f's_lshl_b32 s{T0}, s{zb()}, 6', f's_add_u32 s{T0}, s{T0}, {STATS - ZL}', [f's_cmp_eq_u32 s{sW}, 0', f's_cselect_b32 s{T0}, s{T0}, {OOB}'],
            f'v_add_u32 v{va}, s{T0}, v{va}', f'v_cmp_gt_u32 vcc, 4, v0', f'v_cndmask_b32 v{va}, v1, v{va}, vcc']
def stats_post(vd, va): return f'buffer_store_dwordx4 {V(vd, 4)}, v{va}, s[{SH}:{SH+3}], 0 offen sc1'
def stats_src(vd, vt):
    return [f'v_min_u32 v{vd}, 1023, v{vd}', f'v_and_b32 v{vt}, 7, v{vd}', f'v_lshrrev_b32 v{vd}, 3, v{vd}', f'v_lshlrev_b32 v{vd}, 7, v{vd}', f'v_lshl_add_u32 v{vd}, v{vt}, 2, v{vd}']
def sync_stream(pfx, G, tc, src, loads, regs, writes, t_load, t_check, C=ZD+5):
    D = ZD
    loads = loads + [cert_load(C, 1)]; regs = regs + [C]
    o = [] if OPT['za'] else items(stats_prep(D, D + 4), tag='zg')
    if tc >= 0: o.append(Item(cert_load(C), tag='cert', t0=tc * G))
    def chk(wait, c, t0, nm):
        if not OPT['vs']: return [Item([wait] + c, t0=t0)]
        k = c.index('s_nop 4')
        o_ = [Item(wait, t0=t0)] + items(c[:k]); o_[-1].name = nm
        return o_ + [Item(c[k+1:], after={nm: 6})]
    o += chk('@wait vm=cert lg=zg', vec_check(pfx + '_cert', [cert_load(C)], [C]), (tc + OPT['tk']) * G + 2, 'c1')
    if OPT['diag']:
        o.append(Item(['s_waitcnt vmcnt(0)', 's_memrealtime s[84:85]', 's_waitcnt lgkmcnt(0)', 's_mov_b32 s88, s84', stats_post(D, D + 4), 's_waitcnt vmcnt(0)', 's_memrealtime s[84:85]', 's_waitcnt lgkmcnt(0)', 's_mov_b32 s89, s84']))
    elif not (OPT['za'] and pfx == 'Lf'): o.append(Item(stats_post(D, D + 4)))
    o += items(src) + items(loads, tag='par', t0=t_load * G)
    o += chk('@wait vm=par', vec_check(pfx + '_par', loads, regs), t_check * G, 'c2')
    return Stream(o + items(writes, tag='sw'))

def rot_init(a, spec, rowbytes):
    if not spec: return
    if spec == 'x':
        a(f's_and_b32 s{sXJ}, s2, 7\ns_cmp_eq_u32 s{sXJ}, 7\ns_cselect_b32 s{sXJ}, 0, s{sXJ}\ns_mul_i32 s{sWJ}, s{sXJ}, {64*rowbytes}\ns_lshl_b32 s{sXJ}, s{sXJ}, 7')
        return
    if spec[0] == 'h':
        a(f's_mul_i32 s{sWJ}, s{T1}, {64*rowbytes*int(spec[1])}\ns_mul_i32 s{sXJ}, s{T1}, {128*int(spec[1])}')
        return
    p, q, s, m, k = map(int, spec.split('.'))
    terms = [(c, r) for c, r in ((p, sR), (q, sC), (s, T1)) if c]
    src = terms[0][1]
    if terms[0][0] != 1 or len(terms) > 1:
        a(f's_mul_i32 s{sXJ}, s{src}, {terms[0][0]}'); src = sXJ
        for c, r in terms[1:]: a(f's_mul_i32 s{sWJ}, s{r}, {c}\ns_add_u32 s{sXJ}, s{sXJ}, s{sWJ}')
    a(f's_mul_i32 s{sWJ}, s{src}, {65536 // m + 1}\ns_lshr_b32 s{sWJ}, s{sWJ}, 16\ns_mul_i32 s{sWJ}, s{sWJ}, {m}\ns_sub_u32 s{sXJ}, s{src}, s{sWJ}')
    a(f's_mul_i32 s{sWJ}, s{sXJ}, {64*k*rowbytes}\ns_mulk_i32 s{sXJ}, {128*k}')
def x_off(spec, j):
    if not spec: return [f's_movk_i32 s{sXJ}, {128*j}']
    return [f's_add_u32 s{sXJ}, s{sXJ}, 128', [f's_cmp_eq_u32 s{sXJ}, 896', f's_cselect_b32 s{sXJ}, 0, s{sXJ}']] if j else []
def w_off(spec, m, i, rowbytes, comp):
    if not spec: return [f's_mov_b32 s{sSO}, {(32*m + 16*i)*rowbytes - comp}']
    o = []
    if i == 0 and m and m % 2 == 0: o = [f's_add_u32 s{sWJ}, s{sWJ}, {64*rowbytes}', [f's_cmp_eq_u32 s{sWJ}, {448*rowbytes}', f's_cselect_b32 s{sWJ}, 0, s{sWJ}']]
    return o + [f's_add_u32 s{sSO}, s{sWJ}, {(32*(m&1) + 16*i)*rowbytes - comp}']

def add_touches(d, vb, vt, vdump):
    mats = dict(d=([0], 7), o=([18], 7))
    n = OPT['tn']; pieces = []
    for sp in [x for x in OPT['touch'].split(',') if x]:
        m, r0, r1 = sp.split(':')
        ptrs, lpr = mats[m]; l0 = int(r0) * lpr; l1 = int(r1) * lpr
        for l in range(l0, l1, 1024 * n):
            o = [f'v_add_u32 v{vt}, {l*128}, v{vb}'] + ([f'v_min_u32 v{vt}, {(l1-1)*128}, v{vt}'] if l + 1024 * n > l1 else [])
            for p in ptrs:
                pieces.append(items(o) + [Item(f'global_load_dword v{vdump}, v{vt}, s[{p}:{p+1}]', tag='touch')]); o = []
    ins = {}
    for k, p in enumerate(pieces): ins.setdefault(int(OPT['tpos'] + k * OPT['tstep']), []).extend(p)
    if pieces:
        ins[OPT['tpos']][:0] = items([f's_lshl2_add_u32 s79, s2, s{sW}', f's_mul_i32 s79, s79, {n}', f'v_min_u32 v{vb}, {n-1}, v0', f'v_add_lshl_u32 v{vb}, v{vb}, s79, 7'])
    out = []; k = 0; done = False
    for it in d:
        out.append(it)
        if it.paced:
            k += 1; out += ins.pop(k, [])
    return out
def keep_ptrs(a): a('s_mov_b64 s[0:1], s[16:17]\ns_mov_b64 s[18:19], s[8:9]')

XL = 54
def x_read_addr(a, XA, XB, t, octet_stride):
    a(f'v_and_b32 v{t}, 7, v0\nv_bfe_u32 v{t+1}, v0, 3, 1\nv_lshrrev_b32 v{t+2}, 4, v0\nv_bfe_u32 v{t+3}, v0, 1, 3')
    a(f'v_xor_b32 v{t+2}, v{t+2}, v{t+3}\nv_lshlrev_b32 v{t+2}, 4, v{t+2}\nv_lshl_add_u32 v{t+2}, v{t}, 7, v{t+2}')
    a(f'v_mul_u32_u24 v{t+1}, {octet_stride}, v{t+1}\nv_add_u32 v{XA}, v{t+1}, v{t+2}\nv_xor_b32 v{XA+1}, 64, v{XA}')
    a(f'v_and_b32 v{t+1}, 15, v0\nv_cmp_eq_u32 vcc, 15, v{t+1}\nv_mov_b32 v{t+3}, 0x100\nv_lshlrev_b32 v{t}, 4, v{t}\nv_cndmask_b32 v{t+3}, 0, v{t+3}, vcc')
    a(f'v_add_u32 v{XB}, v{XA}, v{t+3}\nv_add_u32 v{XB+1}, v{XA+1}, v{t+3}')
    for k in range(4): a(f'v_mov_b32 v{t+2+k}, 0x3f803f80')

def bar_gap(G, nt, nc, dist, M, m):
    if m < 0: return 0
    if m < M: return (2 * m + 1) * G + 1
    if m == M: return 2 * M * G + nc + 1
    if m == 14: return 27 * G + (nt - 1) * nc + 1
    return (2 * m - 1) * G + (nt - dist) * 2 * nc + 1
def x_bar(M, j):
    return -1 if j < 3 else (2 * j - 4 if 2 * j - 5 < M else 2 * j - 3)
def gemm1(a, S_, G, nt, nc, dist, M, areads, bread, mfma, dma, others, checks, hooks={}, last_bar=False):
    segs = []
    for k in range(M): segs += [(0, [k], None, None), (1, [k], k, 0)]
    segs.append((0, [M], M, 1))
    segs += [(m & 1, [m - 1, m], m, nt - dist) for m in range(M + 1, 14)]
    segs.append((0, [13], 14, nt - 1 if last_bar else None))
    units = [(g, q, ks, bm if q == bq else None) for g, ks, bm, bq in segs for q in range(nt)]
    def brd(u):
        if u >= len(units): return []
        g, q, ks, _ = units[u]
        return [Item(bread(g, q, k, u & 3, n), tag=f'b{u}') for n, k in enumerate(ks)]
    S_.flush(Stream(items(areads(0), tag='a0') + sum((brd(u) for u in range(dist)), [])))
    rds = Stream([]); forced = []
    for u, (g, q, ks, m) in enumerate(units):
        while any(x.tag in (f'b{u}', f'a{ks[-1]}') for x in rds.items[rds.i:]): S_.put(rds, rds.items[rds.i])
        bar = m is not None
        if bar and m in checks: checks[m]()
        a(f'@wait lg=b{u}' + (f',a{ks[-1]}' if q == 0 else '') + (',sw' if bar and m in checks else ''))
        if S_.t % G == 0 or S_.t % G + len(ks) * nc > G:
            n = -(-S_.t // G)
            if n in hooks: hooks[n]()
            stamp(a, f's{n}')
        nb = brd(u + dist)
        if not bar: rds.items += nb
        seq = [(c, n ^ (c & 1) if len(ks) == 2 else n) for c in (range(nc) if u % 2 == 0 or len(ks) == 2 else range(nc - 1, -1, -1)) for n in range(len(ks))]
        seen = set()
        for p, (c, n) in enumerate(seq):
            a(mfma(g, q, c, ks[n], u & 3, n, ks[0] == 0 and c not in seen)); seen.add(c)
            if bar and p == 0:
                assert S_.t + 1 == bar_gap(G, nt, nc, dist, M, m)
                need = (f'x{(m+1)>>1}', f'w{m+1}')
                while True:
                    if dma.done() and hasattr(dma, 'refill'): dma.refill()
                    young = len(a.vm) - 1 - max([k for k, tg in enumerate(a.vm) if tg in need], default=-99)
                    nxp = next((x for x in dma.items[dma.i:] if x.paced), None)
                    if nxp is None or nxp.t0 > S_.t or not (young < OPT['lead'] or any(x.tag in need for x in dma.items[dma.i:])): break
                    S_.flush(dma, 1); forced.append(m)
                a(f'@wait vm={need[0]},{need[1]}\ns_barrier'); S_.gap([], 0)
                rds.items += nb + (items(areads(m + 1), tag=f'a{m+1}') if m < 13 else [])
                continue
            left = (nt - q) * len(seq) - p - 1
            pend = [x.tag for x in rds.items[rds.i:]]
            na = max([k + 1 for k, tg in enumerate(pend) if tg[0] == 'a'], default=0)
            urgent = na >= left - 7 or f'b{u+1}' in pend or (f'b{u+2}' in pend and p >= len(seq) - 4)
            S_.gap(([rds, dma] if urgent else [dma, rds]) + others, 1 if p == len(seq) - 1 else 2)
    print('forced', forced, file=sys.stderr)

FXS = 162 * 128; FW0 = 3 * FXS; FPAR = FW0 + 6 * 16384
assert FPAR + 2048 <= ZL
def ffn(a):
    DV, RX, RW, RH, HV, PA, FV, DZ = 2, 6, 10, 14, 18, 19, 20, 21
    XV, WV, XA, XB, WA = 22, 27, 28, 30, 32
    E, O = 22, 30
    CS = 38; PR = 56; t = 56
    ACC = 96
    BF = 176; AF = 208
    if OPT['map2']:
        a(f's_mul_i32 s{sTH}, s{T1}, 91\ns_add_u32 s{sTH}, s{sTH}, s{T0}\ns_cmp_ge_u32 s{T0}, 49\ns_cselect_b32 s{T3}, 7, 0\ns_cselect_b32 s{sR}, 43, 37\ns_cselect_b32 s{T2}, 6, 7')
        a(f's_sub_u32 s{T0}, s{T0}, s{T3}\ns_mul_i32 s{sC}, s{T0}, s{sR}\ns_lshr_b32 s{sC}, s{sC}, 8\ns_mul_i32 s{T2}, s{T2}, s{sC}\ns_sub_u32 s{sR}, s{T0}, s{T2}')
        a(f's_sub_u32 s{T2}, 12, s{sR}\ns_sub_u32 s{T3}, 13, s{sC}\ns_cmp_eq_u32 s{T1}, 0\ns_cselect_b32 s{sR}, s{sR}, s{T2}\ns_cselect_b32 s{sC}, s{sC}, s{T3}')
        a_ = a; a = lambda t: None
    a(f's_mul_i32 s{sTH}, s{T1}, 91\ns_add_u32 s{sTH}, s{sTH}, s{T0}\ns_mul_i32 s{T2}, s{T1}, 7\ns_sub_u32 s{T2}, 49, s{T2}')
    a(f's_cmp_ge_u32 s{T0}, s{T2}\ns_cselect_b32 s{T3}, 7, 0\ns_cselect_b32 s{T2}, s{T2}, 0\ns_cselect_b32 s{sCT}, 6, 7\ns_cselect_b32 s{sMX}, 1, 0\ns_sub_u32 s{T0}, s{T0}, s{T2}')
    a(f's_cmp_eq_u32 s{sMX}, s{T1}\ns_cselect_b32 s{sR}, 37, 43\ns_cselect_b32 s{T2}, 7, 6')
    a(f's_mul_i32 s{sC}, s{T0}, s{sR}\ns_lshr_b32 s{sC}, s{sC}, 8\ns_mul_i32 s{T2}, s{T2}, s{sC}\ns_sub_u32 s{sR}, s{T0}, s{T2}')
    a(f's_add_u32 s{sC}, s{sC}, s{T3}\ns_mul_i32 s{sCT}, s{sCT}, s{T1}\ns_add_u32 s{sR}, s{sR}, s{sCT}')
    if OPT['map2']: a = a_
    rot_init(a, OPT['rotf'], 3584)
    a(f'v_and_b32 v{t+1}, 15, v0\nv_lshl_add_u32 v{t}, v{XL+1}, 1, s{sWO}\nv_lshlrev_b32 v{t}, 1, v{t}\nv_xor_b32 v{t+1}, v{t+1}, v{t}')
    a(f's_mul_i32 s{T0}, s{sW}, 56\ns_add_u32 s{T0}, s{T0}, s{sC}\ns_lshl_b32 s{T0}, s{T0}, 8')
    a(f'v_mul_u32_u24 v{t+2}, 224, v{XL+1}\nv_add_lshl_u32 v{t+2}, v{t+1}, v{t+2}, 4\nv_add_u32 v{WV}, s{T0}, v{t+2}')
    a(f's_mul_i32 s{T2}, s{sR}, 158\ns_lshl4_add_u32 s{T2}, s{sWO}, s{T2}\ns_add_u32 s{T2}, s{T2}, s{sJ}\ns_mulk_i32 s{T2}, 896\nv_add_u32 v{XV}, s{T2}, v{XL}')
    for i in range(1, 5): a(f'v_add_u32 v{XV+i}, {i*28672 - (i*1024 if i < 4 else 0)}, v{XV}')
    a(f's_mul_i32 s{sMX}, s{sW}, 5120\ns_lshl_b32 s{sMW}, s{sW}, 12\ns_add_u32 s{sMW}, s{sMW}, {FW0}')
    a(f's_mov_b32 s{SG+2}, {448*3584}\ns_mov_b32 s{SG+3}, s{SX+3}\ns_mov_b32 s{SU+2}, {448*3584 + 1024}\ns_mov_b32 s{SU+3}, s{SX+3}')
    a('s_waitcnt lgkmcnt(0)')
    stamp(a, 'ka')
    em(a, srd_p(SX, 4))
    if not OPT['zpos'] and not OPT['za']: stats_load(a)
    em(a, srd_p(SG, 12) + srd_p(SU, 14, back=1024))
    G = 20
    B = lambda m: bar_gap(G, 5, 4, OPT['fd'], OPT['fm'], m)
    def xd(j):
        e = B(x_bar(OPT['fm'], j)); o = items(x_off(OPT['rotf'], j))
        for i in range(5):
            if i in (0, 4): o.append(Item(f's_add_u32 m0, s{sMX}, {(j%3)*FXS + i*1024}'))
            o.append(Item(f'buffer_load_dwordx4 v{XV+i}, s[{SX}:{SX+3}], s{sXJ} offen offset:{(i&3)*1024} lds', tag=f'x{j}', t0=e, paced=True))
        return o
    def wd(m):
        e = B(m - 4); o = [Item(f's_add_u32 m0, s{sMW}, {(m&3)*16384}', brk=False)]
        o[0].brk = False
        for i in range(2):
            o += items(w_off(OPT['rotf'], m, i, 3584, i*2048))
            o.append(Item(f'buffer_load_dwordx4 v{WV}, s[{SG}:{SG+3}], s{sSO} offen offset:{i*2048} lds', tag=f'w{m}', t0=e, paced=True))
            o.append(Item(f'buffer_load_dwordx4 v{WV}, s[{SU}:{SU+3}], s{sSO} offen offset:{i*2048 + 1024} lds', tag=f'w{m}', t0=e, paced=True))
        return o
    def wslot(k, free): return (RW if k < 4 else RH, (k & 3) * 16384, sMW, k * 16384, free)
    slots = [wslot(4, 0), wslot(5, 0), wslot(2, B(10)), wslot(3, B(11)), (RX, FXS, sMX, FXS, B(11)), wslot(0, B(12)), wslot(1, B(13)), (RX, 2*FXS, sMX, 2*FXS, B(13)), (RX, 0, sMX, 0, B(14))]
    kslot = []
    NG = 14 if OPT['xo'] else 18 - OPT['dw']
    WX = 56
    def wfrag(kk, c):
        i = 16 * kk + 4 * c
        return (i, 'a') if i < 256 else (WX + i - 256, 'v')
    def w2d(kk):
        reg, off, base, moff, free = slots[kslot[kk]]
        prev = [k for k in range(kk) if kslot[k] == kslot[kk]]
        o = [Item(f's_add_u32 m0, s{base}, {moff}')]; o[0].brk = False
        if kk < 14: o += [Item(f's_mul_i32 s{sSO}, s{sRT+kk}, 28')]; sr = SD
        elif OPT['roto']: o += items([f's_add_u32 s{sSO}, s2, {kk-14}', f's_and_b32 s{sSO}, s{sSO}, 3', f's_mul_i32 s{sSO}, s{sSO}, {28*896}']); sr = SO
        else: o += [Item(f's_mov_b32 s{sSO}, {28*(kk-14)*896}')]; sr = SO
        if prev: o.append(Item(f'@wait lg=t{prev[-1]}'))
        for i in range(4):
            o.append(Item(f'buffer_load_dwordx4 v{DZ if (kk >= 14 and i == 3) else DV+i}, s[{sr}:{sr+3}], s{sSO} offen offset:{i*1024} lds', tag=f'k{kk}', t0=free, paced=True, name=f'k{kk}' if i == 3 else None))
        return o
    def w2r(kk, lag):
        reg, off, base, moff, free = slots[kslot[kk]]
        o = [Item(f'@wait vm=k{kk}', after={f'k{kk}': lag})]
        for c in range(4):
            r, k = wfrag(kk, c)
            for jj in range(2):
                o.append(Item(f'ds_read_b64_tr_b16 {V(r + 2*jj, 2, k)}, v{reg+c} offset:{off + jj*2048}', tag=f't{kk}', name=f't{kk}' if (c, jj) == (3, 1) else None))
        return o
    d = add_touches(wd(0) + xd(0) + wd(1) + xd(1) + wd(2) + wd(3), 35, 36, 37)
    p1 = []
    for m in range(10):
        p1 += [xd(j) for j in range(2, 7) if max(0, x_bar(OPT['fm'], j)) == m]
        p1.append(wd(m + 4))
    dma = Stream(d, rate=OPT['rate'])
    trs = Stream([])
    S_ = Sched(a)
    NT = 11
    st8 = dict(last=-999, lag=OPT['lag'])
    def refill(force=False):
        if p1 and p1[0][-1].t0 <= S_.t + 3:
            dma.items += p1.pop(0); return
        kk = len(kslot)
        if not bgs.done(): return
        if kk == NG or S_.t < OPT['w2s'] * G or (p1 and S_.t < st8['last'] + OPT['w2g']): return
        for k, sl in enumerate(slots):
            prev = [q for q in range(kk) if kslot[q] == k]
            if sl[4] <= S_.t and (not prev or S_.when.get(f't{prev[-1]}', 1e9) + (0 if force else 5) <= S_.t):
                kslot.append(k); st8['last'] = S_.t
                dma.items += w2d(kk)
                if kk < NT: trs.items += w2r(kk, st8['lag'])
                return
    dma.refill = refill
    def steady(): dma.rate = OPT['rate2']
    def late(): dma.rate = OPT['rate3']
    S_.flush(dma, OPT['n1'])
    a.raw('L_f7:')
    stamp(a, 'i7')
    x_read_addr(a, XA, XB, t, 5120)
    for st in range(3): a(f'ds_write_b128 v{t}, v[{t+2}:{t+5}] offset:{st*FXS + 161*128}')
    u = t + 6
    a(f'v_bfe_u32 v{u}, v0, 4, 1\nv_bfe_u32 v{u+1}, v0, 2, 2\nv_lshrrev_b32 v{u+2}, 5, v0\nv_and_b32 v{u+3}, 3, v0')
    a(f'v_lshl_add_u32 v{u+4}, v{u+1}, 1, v{u}\ns_lshl_b32 s{T0}, s{sW}, 1\nv_xor_b32 v{u+4}, s{T0}, v{u+4}\nv_lshlrev_b32 v{u+4}, 5, v{u+4}')
    a(f'v_lshl_add_u32 v{u+4}, v{u+3}, 3, v{u+4}\nv_lshl_add_u32 v{u+4}, v{u+1}, 8, v{u+4}\nv_lshl_add_u32 v{u+4}, v{u+2}, 11, v{u+4}')
    a(f'v_lshl_add_u32 v{u+4}, v{u}, 13, v{u+4}\nv_add_u32 v{WA}, {FW0}, v{u+4}\nv_xor_b32 v{WA+1}, 32, v{WA}')
    S_.flush(dma, 9 - OPT['n1'])
    if OPT['zpos']: stats_load(a)
    em(a, srd(SH, 22, WS_USED) + srd(SDB, 20, 256) + srd(SOUT, 18, 2048 * 896))
    a(f's_mul_i32 s{T0}, s{sW}, {448*896}\ns_add_u32 s{SD}, s16, s{T0}\ns_addc_u32 s{SD+1}, s17, 0')
    a(f's_mul_i32 s{T0}, s{sW}, {112*896}\ns_add_u32 s{SO}, s8, s{T0}\ns_addc_u32 s{SO+1}, s9, 0')
    em(a, srd_c(SD, 448 * 896) + srd_c(SO, 112 * 896))
    if OPT['p2']: a(f's_cmp_ge_u32 s{sC}, 7\ns_cselect_b32 s{T3}, 7, 0\ns_addc_u32 s{sTH}, s{sR}, s{sR}\ns_sub_u32 s{sCT}, s{sC}, s{T3}')
    else: a(f's_mul_i32 s{T3}, s{sTH}, 9363\ns_lshr_b32 s{T3}, s{T3}, 16\ns_mul_i32 s{sCT}, s{T3}, 7\ns_sub_u32 s{sCT}, s{sTH}, s{sCT}\ns_mov_b32 s{sTH}, s{T3}')
    a(f'v_lshrrev_b32 v{u}, 3, v0\nv_and_b32 v{u+1}, 7, v0\nv_lshlrev_b32 v{u+2}, 1, v{XL+1}\nv_xor_b32 v{u+1}, v{u+1}, v{u+2}\nv_lshlrev_b32 v{u+1}, 4, v{u+1}')
    a(f'v_mul_u32_u24 v{u}, 896, v{u}\ns_lshl_b32 s{T3}, s{sCT}, 7\nv_add3_u32 v{DV}, v{u}, v{u+1}, s{T3}')
    for i in range(1, 4): a(f'v_add_u32 v{DV+i}, {6144*i}, v{DV}')
    a(f'v_cmp_gt_u32 vcc, 32, v0\nv_bfe_u32 v{u}, v0, 2, 3\nv_lshrrev_b32 v{u+1}, 5, v0\nv_cndmask_b32 v{DZ}, v{ZT+3}, v{DV+3}, vcc')
    a(f'v_and_b32 v{u+2}, 3, v0\nv_bfe_u32 v{u+3}, v0, 3, 2\nv_lshlrev_b32 v{u}, 7, v{u}\nv_lshl_add_u32 v{u}, v{u+1}, 10, v{u}')
    a(f'v_lshl_add_u32 v{u}, v{u+2}, 3, v{u}\nv_lshl_add_u32 v{u}, v{u+3}, 5, v{u}\nv_add_u32 v{RX}, s{sMX}, v{u}\nv_add_u32 v{RW}, s{sMW}, v{u}')
    for c in range(1, 4): a(f'v_xor_b32 v{RX+c}, {32*c}, v{RX}\nv_xor_b32 v{RW+c}, {32*c}, v{RW}')
    for c in range(4): a(f'v_add_u32 v{RH+c}, 0x10000, v{RW+c}')
    bg = []
    if OPT['rot2'] == 2:
        bg += [f's_and_b32 s{T3}, s2, 7', f's_mul_i32 s{T3}, s{T3}, 7', f's_lshr_b32 s{T3}, s{T3}, 2', f's_lshl_b32 s{sRT}, s{T3}, 10']
    elif OPT['rot2'] == 4:
        bg += [f's_bfe_u32 s{T3}, s2, 0x20001', f's_mul_i32 s{T3}, s{T3}, 7', f's_lshr_b32 s{T3}, s{T3}, 1', f's_lshl_b32 s{sRT}, s{T3}, 10']
    elif OPT['rot2'] == 3:
        bg += [f's_and_b32 s{T3}, s2, 7', f's_mul_i32 s{T3}, s{T3}, 7', f's_lshr_b32 s{T3}, s{T3}, 2', f's_lshl1_add_u32 s{T3}, s{sCT}, s{T3}', f's_sub_u32 s{sRT}, s{T3}, 14',
               f's_min_u32 s{T3}, s{T3}, s{sRT}', f's_lshl_b32 s{sRT}, s{T3}, 10']
    elif OPT['rot2']:
        bg += [f's_mul_i32 s{T3}, s{sTH}, 5', f's_lshl1_add_u32 s{T3}, s{sCT}, s{T3}', f's_mul_i32 s{sRT}, s{T3}, 4682', f's_lshr_b32 s{sRT}, s{sRT}, 16',
               f's_mul_i32 s{sRT}, s{sRT}, 14', f's_sub_u32 s{sRT}, s{T3}, s{sRT}', f's_lshl_b32 s{sRT}, s{sRT}, 10']
    else:
        bg += [f's_mov_b32 s{sRT}, 0']
    for k in range(1, 14):
        bg += [f's_add_u32 s{sRT+k}, s{sRT+k-1}, 1024', [f's_cmp_eq_u32 s{sRT+k}, {14*1024}', f's_cselect_b32 s{sRT+k}, 0, s{sRT+k}']]
    bg += [f'v_lshlrev_b32 v{HV}, 4, v0', f'v_mov_b32 v{FV}, 1', f's_mov_b32 s{sONE}, 1',
           f'v_and_b32 v{PA}, 7, v0', f'v_bfe_u32 v{u}, v0, 3, 1', f'v_lshlrev_b32 v{PA}, 2, v{PA}', f'v_lshl_add_u32 v{PA}, v{u}, 10, v{PA}', f'v_add_u32 v{PA}, {FPAR}, v{PA}',
           f's_lshl2_add_u32 s{T3}, s{sC}, s{sW}', f's_mul_i32 s{sFL}, s{T3}, 4682', f's_lshr_b32 s{sFL}, s{sFL}, 16', f's_lshl2_add_u32 s{sFL}, s{sR}, s{sFL}',
           f's_lshl_b32 s{sFL}, s{sFL}, 7', f's_add_u32 s{sFL}, s{sFL}, {FH}', [f's_add_u32 s{sM1}, s22, s{sFL}', f's_addc_u32 s{sM1+1}, s23, 0'],
           f's_lshl_b32 s{T3}, s{T3}, 10', f's_mul_i32 s{sST}, s{sR}, {2*TH_BYTES}', f's_add_u32 s{sST}, s{sST}, s{T3}',
           f's_lshr_b32 s{T3}, s{sTH}, 1', f's_lshl2_add_u32 s{sFH}, s{T3}, s{sW}', f's_lshl_b32 s{sFH}, s{sFH}, 7', f's_add_u32 s{sFH}, s{sFH}, {FH}',
           [f's_add_u32 s{sFH}, s22, s{sFH}', f's_addc_u32 s{sFH+1}, s23, 0'],
           f's_mul_i32 s{T3}, s{T3}, 158', f's_add_u32 s{sNO}, s{T3}, {157-14}', f's_min_u32 s{sNO}, s{sNO}, {2047-14}', f's_mul_i32 s{sNO}, s{sNO}, 580', f's_lshr_b32 s{sNO}, s{sNO}, 16',
           f's_max_u32 s{T3}, s{T3}, 14', f's_sub_u32 s{T3}, s{T3}, 14', f's_mul_i32 s{T3}, s{T3}, 580', f's_lshr_b32 s{T3}, s{T3}, 16',
           f's_sub_u32 s{sNO}, s{sNO}, s{T3}', f's_lshl2_add_u32 s{sNO}, s{sNO}, 4',
           f's_mul_i32 s{sJ}, s{sTH}, {TH_BYTES}', f's_mul_i32 s{T3}, s{sW}, {14*1024}', f's_add_u32 s{sJ}, s{sJ}, s{T3}',
           f's_mul_i32 s{T3}, s{sW}, {10*1024}', f's_sub_u32 s{sWO}, {56*1024}, s{T3}']
    keep_ptrs(a); em(a, bg[:OPT['nbg']])
    bgs = Stream(items(bg[OPT['nbg']:]))
    left = [OPT['npro'] - 9]
    def more():
        if left[0] and OPT['zi'] < 99: S_.flush(dma, 1); left[0] -= 1
    if OPT['za']: a.raw(';HOP'); a(f'v_cmp_eq_u32 vcc, 0, v0\nv_mov_b32 v{ZT}, 0\nv_cndmask_b32 v1, v{ZT+3}, v{ZT}, vcc')
    else: stats_do(a, more)
    if OPT['tc'] < 0: a(cert_load(ZD + 5), tag='cert')
    S_.flush(dma, left[0])

    tiles = [[(T, 0) for T in range(5)], [(4, 1), (0, 1), (1, 1), (2, 1), (3, 1)]]
    def bread(g, q, k, sl, n):
        T, h = tiles[g][q]
        return f'ds_read_b128 {A(BF + 8*sl + 4*n, 4)}, v{(XB if (T, h) == (4, 1) else XA) + (k & 1)} offset:{((k>>1)%3)*FXS + (10*h + T)*1024}'
    def areads(m):
        return [f'ds_read_b64_tr_b16 {A(AF + 16*(m%3) + 8*mat + 4*uu + 2*jj, 2)}, v{WA + uu} offset:{(m&3)*16384 + jj*4096 + mat*1024}'
                for mat in range(2) for uu in range(2) for jj in range(2)]
    acc = lambda T, h: ACC + 16 * (2 * T + h)
    def mfma(g, q, c, k, sl, n, first):
        dd = V(acc(*tiles[g][q]) + 4 * c, 4)
        return f'{MF} {dd}, {A(AF + 16*(k%3) + 4*c, 4)}, {A(BF + 8*sl + 4*n, 4)}, {0 if first else dd}'
    stamp(a, 'pre')
    a('@wait vm=x0,w0 lg=*\ns_barrier')
    stamp(a, 'b0')
    z = ZD + 6
    src = [f's_mul_i32 s{T0}, s{sR}, 79', f'v_add_u32 v{z}, s{T0}, v0', f'v_min_u32 v{z+1}, 15, v0', f'v_add3_u32 v{z+1}, v{z+1}, s{T0}, 64']
    src += stats_src(z, z + 2) + stats_src(z + 1, z + 2)
    src += [f's_and_b32 s{T0}, s{sW}, 1', f's_lshr_b32 s{T2}, s{sW}, 1', f's_lshl1_add_u32 s{T0}, s{T0}, s{T2}', f's_lshl_b32 s{T1}, s{T0}, 5',
            f's_add_u32 s{T1}, s{T1}, {STATS}', f's_lshl_b32 s{T0}, s{T0}, 9', f's_add_u32 s{T0}, s{T0}, {FPAR}', f'v_lshl_add_u32 v{z+2}, v0, 2, s{T0}']
    sy = sync_stream('Lf', G, OPT['tc'], src, [f'buffer_load_dword v{z+3+i}, v{z+i}, s[{SH}:{SH+3}], s{T1} offen sc1' for i in range(2)], [z + 3, z + 4],
                     [f'ds_write_b32 v{z+2}, v{z+3+i} offset:{256*i}' for i in range(2)], OPT['tl'], OPT['tl'] + OPT['tk'])
    pb = (OPT['tl'] + OPT['tk'] + 2) // 2
    par = []
    for T in range(5):
        for h in (1, 0):
            par.append(Item(f'ds_read2_b32 {V(PR + 4*(2*T + h), 2)}, v{PA} offset0:{16*T + 8*h} offset1:{128 + 16*T + 8*h}', t0=B(pb), tag='pr', name='pr' if (T, h) == (4, 0) else None))
    par.append(Item('@wait lg=pr', after={'pr': 6}))
    for T in range(5):
        for h in (1, 0):
            P = PR + 4 * (2 * T + h)
            par += items([f'v_mul_f32 v{P+2}, {hx(f2u(-LOG2E))}, v{P+1}', f'v_mul_f32 v{P+1}, v{P+1}, v{P+1}', f'v_rcp_f32 v{P+1}, v{P+1}'])
    par += [Item(f'v_mov_b32_dpp v{CS+k}, v{acc(4, 1)+k} row_newbcast:15 row_mask:0xf bank_mask:0xf', t0=25*G + 12) for k in range(16)]
    pars = Stream(par)
    def ck23(): assert sy.done() and bgs.done()
    gemm1(a, S_, G, 5, 4, OPT['fd'], OPT['fm'], areads, bread, mfma, dma, [bgs, sy, pars, trs], {pb: ck23}, {OPT['rs']: steady, 19: late}, True)
    assert not p1
    ntr = sum(f't{k}' in S_.when for k in range(18))
    print('end of gemm: par left', pars.left(), 'groups', len(kslot), 'left in group', sum(x.paced for x in dma.items[dma.i:]), 'read', ntr, [S_.when.get(f'k{k}', 0) // G for k in range(18)], file=sys.stderr)
    NT = max(NG - 9, ntr + (trs.i % 9 > 0)); trs.items = trs.items[:9 * NT]; st8['lag'] = OPT['elag']
    S_.flush(pars)
    stamp(a, 'g1')
    a.raw(';EPI')
    l0 = len(a.lines)
    dma.rate = OPT['erate']
    for it in trs.items[trs.i:]:
        for k in it.after: it.after[k] = OPT['elag']
    def post(f): return [f'@wait vm=h{f}', f's_add_u32 s{T3}, s{sFL}, {f*FST}', f'buffer_atomic_add v{FV}, v1, s[{SH}:{SH+3}], s{T3} offen sc1']
    ACC2, HB, NHB = 176, 96, OPT['nhb']
    XO, XR, WRA, RDA, t = 22, 28, 38, 46, 48
    LEAD = NHB - 2
    nO = OPT['nO']
    hl = [(T, kk) for T in range(nO) for kk in range(14)] + [(T, kk) for T in range(nO) for kk in range(14, 18)] + [(T, kk) for T in range(nO, 5) for kk in range(18)]
    if OPT['nA']:
        mv = [(nO, kk) for kk in range(OPT['nA'])]
        hl = hl[:14*nO] + mv + [x for x in hl[14*nO:] if x not in mv]
    if OPT['xo']: hl = [x for x in hl if x[1] not in (15, 16)]
    HA = 88
    E_ = OPT['xb']; hbuf = {}
    assert E_ <= 4 and (E_ * OPT['xs'] <= 18 or OPT['xs'] >= 999)
    PE = E_ if OPT['xs'] >= 999 else 0
    freeb = [HB + 4*k for k in range(NHB)] + [144 + 4*k for k in range(E_)]
    def hb(i):
        if i not in hbuf: hbuf[i] = freeb.pop(0)
        return hbuf[i]
    def hload(i, ha=HA):
        T, kk = hl[i]
        if kk < 14: return f'buffer_load_dwordx4 {V(hb(i), 4)}, v{ha+T}, s[{SH}:{SH+3}], s{sRT+kk} offen sc1'
        if OPT['roto']: return f'buffer_load_dwordx4 {V(hb(i), 4)}, v{ha+T}, s[{SH}:{SH+3}], s{SG+kk-14} offen sc1'
        return f'buffer_load_dwordx4 {V(hb(i), 4)}, v{ha+T}, s[{SH}:{SH+3}], s{sWO} offen offset:{(kk-14)*1024} sc1'
    for T in range(5):
        stamp(a, f'T{T}')
        for h in (1, 0):
            P = PR + 4 * (2 * T + h); dd = acc(T, h); OO = O + 4 * h
            ops = []
            for k in range(0, 16, 2): ops.append(f'v_pk_fma_f32 {V(dd+k, 2)}, {V(CS+k, 2)}, {V(P, 2)}, {V(dd+k, 2)} op_sel_hi:[1,0,1]')
            for k in range(0, 8, 2): ops.append(f'v_pk_mul_f32 {V(E+k, 2)}, {V(dd+k, 2)}, {V(P+2, 2)} op_sel_hi:[1,0]')
            for k in range(8): ops.append(f'v_exp_f32 v{E+k}, v{E+k}')
            for k in range(0, 8, 2): ops.append(f'v_pk_mul_f32 {V(dd+k, 2)}, {V(dd+k, 2)}, {V(dd+8+k, 2)}')
            for k in range(0, 8, 2): ops.append(f'v_pk_fma_f32 {V(E+k, 2)}, {V(E+k, 2)}, {V(P, 2)}, {V(P, 2)} op_sel:[0,1,1] op_sel_hi:[1,1,1]')
            for k in range(8): ops.append(f'v_rcp_f32 v{E+k}, v{E+k}')
            for k in range(0, 8, 2): ops.append(f'v_pk_mul_f32 {V(dd+k, 2)}, {V(dd+k, 2)}, {V(E+k, 2)}')
            ops.append(f's_add_u32 s{T2}, s{sST}, {h*TH_BYTES + T*72*1024}')
            for k in range(4): ops.append(f'v_cvt_pk_bf16_f32 v{OO+k}, v{dd+2*k}, v{dd+2*k+1}')
            n2 = 2 * T + 1 - h
            if n2 == OPT['pi']:
                print('at poll: groups', len(kslot), 'tr left', trs.left(), file=sys.stderr)
                if OPT['pd']: S_.flush(trs)
                while not OPT['pd'] and (len(kslot) < NG or not trs.done()):
                    S_.flush(dma); S_.flush(trs)
                a('@wait lg=*'); a(poll_issue(0))
            if n2 == 9 and OPT['pe']:
                S_.flush(dma); a(f'v_add_u32 v168, s{sJ}, v{HV}')
                em(a, poll_check('Lf_p0', 0, 14)); stamp(a, 'p0')
                dma = Stream([Item(hload(i, 168), tag=f'g{i}') for i in range(LEAD)])
            for x in ops:
                a(x)
                if x.startswith(TRANS): S_.gap([dma, trs], 2)
            if n2 == 9: S_.flush(dma)
            a(f'buffer_store_dwordx4 {V(OO, 4)}, v{HV}, s[{SH}:{SH+3}], s{T2} offen sc1', tag=f'h{T}')
            if n2 in (4, 6, 8): em(a, post(n2 // 2 - 2)); stamp(a, f'F{n2//2-2}')
    if OPT['x']:
        pats = dict(s='buffer_store', t='ds_read_b64_tr', d='buffer_load', v='v_')
        a.lines[l0:] = [l for l in a.lines[l0:] if not any(l.strip().startswith(pats[c]) for c in OPT['x'])]
    stamp(a, 'e1')
    fin = f's_atomic_add s{sONE}, s[{sM1}:{sM1+1}], {3*FST}'
    early = ['s_waitcnt vmcnt(0)', fin, 's_waitcnt lgkmcnt(0)', f's_mov_b32 s{sONE}, 0'] if OPT['early'] else []
    a(f'v_add_u32 v{HA}, s{sJ}, v{HV}')
    if not OPT['pe']:
        em(a, poll_check('Lf_p0', 0, 14, early))
        stamp(a, 'p0')
    a(poll_issue(1))
    NR = min(NG, 14) if OPT['dt'] else NG
    rest = Stream(sum((w2r(kk, 0) for kk in range(NT, NR)), []))
    for i in range(0 if OPT['pe'] else LEAD + E_):
        a(hload(i), tag=f'g{i}'); S_.gap([rest], 4, ds=4)
    S_.flush(rest)
    free = [k for k in range(9) if k not in kslot[NR:]]
    wod = []
    for kk in range(NG, 14 if OPT['xo'] else 18):
        kslot.append(free.pop(0)); wod += [x for x in w2d(kk) if not x.body[0].startswith('@wait')]
    wod = Stream(wod, rate=OPT['wrate'], burst=0.1)
    wor = Stream(sum((w2r(kk, 4 * LEAD + 8 if kk >= NG else 0) for kk in range(NR, 14 if OPT['xo'] else 18)), []))
    stamp(a, 'tr')
    bg2 = [f'v_add_u32 v{HA+T}, {T*72*1024}, v{HA}' for T in range(1, 5)]
    bg2 += f"""s_lshr_b32 s{T0}, s{sTH}, 1
s_mul_i32 s{T0}, s{T0}, 158
s_and_b32 s{T1}, s{sTH}, 1
s_and_b32 s{T2}, s{sW}, 1
s_lshl1_add_u32 s{T1}, s{T1}, s{T2}
s_lshr_b32 s{T3}, s{sW}, 1
s_lshl3_add_u32 s{T1}, s{T1}, s{T3}
v_lshl_add_u32 v{t}, v{XL+1}, 1, s{T1}
v_add_u32 v{t+1}, s{T0}, v{t}
v_mul_u32_u24 v{t+1}, 896, v{t+1}
v_and_b32 v{t+3}, 15, v0
v_lshlrev_b32 v{t+2}, 3, v{t+3}
s_lshl_b32 s{T0}, s{sCT}, 7
v_add3_u32 v{XO}, v{t+1}, v{t+2}, s{T0}""".split('\n')
    bg2 += [f'v_add_u32 v{XO+T}, {32*896*T}, v{XO}' for T in range(1, 5)]
    bg2 += f"""v_cmp_gt_u32 vcc, 30, v{t}
v_mov_b32 v{t+1}, {OOB}
v_and_b32 v{t+2}, 7, v0
v_cndmask_b32 v{XO+4}, v{t+1}, v{XO+4}, vcc
v_xor_b32 v{t+1}, v{XL+1}, v{t+2}
v_lshlrev_b32 v{t+1}, 4, v{t+1}
v_lshl_add_u32 v{t}, v{t+3}, 8, v{t+1}
s_lshl_b32 s{T0}, s{sW}, 12
v_add_u32 v{WRA}, s{T0}, v{t}""".split('\n')
    bg2 += [f'v_xor_b32 v{WRA+c}, {64*c}, v{WRA}' for c in range(1, 4)] + [f'v_add_u32 v{WRA+4+c}, 0x10000, v{WRA+c}' for c in range(4)]
    bg2 += f"""s_lshl_b32 s{T0}, s{sW}, 2
v_add_u32 v{t}, s{T0}, v{XL+1}
v_and_b32 v{t+1}, 7, v{t}
v_xor_b32 v{t+1}, v{t+1}, v{t+3}
v_lshlrev_b32 v{t+1}, 4, v{t+1}
v_lshl_add_u32 v{RDA}, v{t}, 8, v{t+1}
v_add_u32 v{RDA+1}, 0x10000, v{RDA}""".split('\n')
    if OPT['roto']:
        for k in range(4): bg2 += [f's_add_u32 s{T0}, s2, {k}', f's_and_b32 s{T0}, s{T0}, 3', f's_lshl_b32 s{T0}, s{T0}, 10', f's_add_u32 s{SG+k}, s{T0}, s{sWO}']
    em(a, bg2[:1]); bg2s = Stream(items(bg2[1:])); bg2s.items[-1].name = 'bg2'
    em(a, poll_check('Lf_p1', 1, 14, early))
    stamp(a, 'p1')
    pre = {}
    if OPT['fp']: pre[OPT['fp']] = ['@wait vm=h4', fin]
    else: a('@wait vm=h4'); stamp(a, 'e2'); a(fin)
    def guard(name, f, want, first):
        stp = first - LEAD - PE - 1
        pre.setdefault(stp - 8, []).append(poll_issue(f)); pre.setdefault(stp, []).extend(poll_check(name, f, want))
        return stp
    guard('Lf_p2', 2, 14, hl.index((2, 0)))
    i3, iO = hl.index((3, 0)), hl.index((0, 14))
    if i3 > iO: i3 = iO - 9
    lastg = max(guard('Lf_p3', 3, 14, i3), 0 if OPT['nochk'] else guard('Lf_p4', 4, f's{sNO}', iO + OPT['ol']))
    first_done = hl.index((0, 17))
    assert lastg < first_done
    pre.setdefault(first_done, []).append('s_barrier')
    t_base = S_.t
    xr = Stream([Item(f'buffer_load_dwordx2 {V(XR + 2*T, 2)}, v{XO+T}, s[{SX}:{SX+3}], 0 offen', tag=f'xr{T}', t0=t_base + 4*(24 + 3*T), after={'bg2': 0}) for T in range(5)])
    RD = (144, 160); U = 48
    def wr(T): return [Item(f'ds_write_b128 v{WRA + c + (4 if T == 4 else 0)}, {V(ACC2 + 16*T + 4*c, 4)} offset:{(T & 3)*16384}', tag=f'pw{T}', paced=True, name=f'pw{T}' if c == 3 else None) for c in range(4)]
    wr0 = wr
    def wr(T):
        w_ = wr0(T)
        for x in w_: x.cost += OPT['wc']
        return w_
    def rdp(T): return [Item(f'ds_read_b128 {V(RD[T&1] + 4*w, 4)}, v{RDA + (T == 4)} offset:{(T & 3)*16384 + w*4096}', tag=f'p{T}', name=f'p{T}' if w == 3 else None) for w in range(4)]
    def unp(T):
        x = XR + 2 * T
        return [f'@wait vm=xr{T}', f'v_lshlrev_b32 v{U}, 16, v{x}', f'v_and_b32 v{U+1}, 0xffff0000, v{x}', f'v_lshlrev_b32 v{U+2}, 16, v{x+1}', f'v_and_b32 v{U+3}, 0xffff0000, v{x+1}']
    def fin2(T, pk):
        x = XR + 2 * T; b = RD[T & 1]
        if pk: o = [f'v_pk_add_f32 {V(U+k, 2)}, {V(U+k, 2)}, {V(b+4*w+k, 2)}' for w in range(4) for k in (0, 2)]
        else: o = [f'v_add_f32 v{U+k}, v{U+k}, v{b+4*w+k}' for w in range(4) for k in range(4)]
        return o + [f'v_cvt_pk_bf16_f32 v{x}, v{U}, v{U+1}', f'v_cvt_pk_bf16_f32 v{x+1}, v{U+2}, v{U+3}', f'buffer_store_dwordx2 {V(x, 2)}, v{XO+T}, s[{SOUT}:{SOUT+3}], 0 offen {OPT["ofl" if pk else "of"].replace("+", " ")}']
    assert NHB <= 12
    wrs = Stream([], rate=0.27, burst=0.1); red = Stream([]); outs = Stream([])
    shadow = [T for T in range(5) if len(hl) - hl.index((T, 17)) > 14]
    CH = 2 if OPT['chain'] else 1
    nxt = [LEAD + E_]
    ends = list(range(CH - 1, len(hl) - OPT['lc'], CH)) + [len(hl) - 1]
    for i in ends:
        T, kk = hl[i]
        if i == len(hl) - 1:
            CH = OPT['lc']
            w_ = wr(T)
            for c in range(4): w_[c].t0 = S_.t + CH * (c + 1) + 3
            wrs.items += w_
        a(f'@wait vm=g{i}')
        for q in range(i - CH + 1, i + 1): stamp(a, f'h{q}')
        fx = []
        for q in range(i - CH + 1, i + 1):
            due = [x for x in range(nxt[0], min(q + LEAD + max(0, E_ - q // OPT['xs']) + 1, len(hl))) if x < iO or q + LEAD + PE >= iO + OPT['ol']][:2]
            fx += [Item(hload(x), tag=f'g{x}', t0=S_.t + 4 * (q - i + CH - 1) + 2 * n_) for n_, x in enumerate(due)]
            nxt[0] += len(due)
            fx += items(pre.get(q, []))
        fx = Stream(fx)
        for c in range(4):
            for q in (range(i - CH + 1, i + 1) if c % 2 == 0 or kk < 2 else range(i, i - CH, -1)):
                r, k = wfrag(hl[q][1], c)
                if OPT['xo'] and hl[q][1] >= 14 and (c >> 1) != (q & 1): continue
                dd = V(ACC2 + 16 * T + 4 * c, 4)
                a(f'{MF} {dd}, {V(r, 4, k)}, {V(hb(q), 4)}, {dd if hl[q][1] else 0}')
                S_.gap([fx, wod, wrs, xr, wor, bg2s, outs, red], 1 if (c, q) == (3, i if kk < 2 else i - CH + 1) else 2)
        S_.flush(fx)
        if PE and i >= 36: assert wor.done() and not any(str(x).startswith('t') for x in a.lg)
        freeb += [hb(q) - (142 if hb(q) >= 144 and i >= 36 else 0) for q in range(i - CH + 1, i + 1) if hb(q) < 144 or i < 30 or PE]
        if i + LEAD + PE + 4 >= iO: assert bg2s.done() and wor.done() and not OPT['nochk'] or not wor.items, wor.left()
        if kk == 17 and i < len(hl) - 1:
            w_ = wr(T); w_[0].t0 = S_.t + 1
            wrs.items += w_
            grp = [T - 1, T] if OPT['pair'] and T & 1 else ([] if OPT['pair'] and T + 1 in shadow else [T])
            if T in shadow and grp:
                red.items += [Item([f'@wait lg=pw{T}', 's_barrier'], after={f'pw{T}': 6}, t0=S_.t + OPT['rt'])] + sum((rdp(x) for x in grp), [])
                for x in grp:
                    red.items += items(unp(x)) + [Item(f'@wait lg=p{x}', after={f'p{x}': 5})] + items(fin2(x, False)[:-1])
                    red.items[-1].name = f'r{x}'
                    outs.items.append(Item(fin2(x, False)[-1], after={f'r{x}': 1}, t0=t_base + OPT['ost'] * 4))
    todo = [T for T in range(5) if T not in shadow]
    if red.done():
        S_.flush(outs); em(a, unp(todo[0])); S_.flush(wrs)
    else:
        S_.flush(wrs); S_.flush(red); S_.flush(outs); em(a, unp(todo[0]))
    a('s_waitcnt lgkmcnt(0)\ns_barrier')
    stamp(a, 'red')
    S_.flush(Stream(rdp(todo[0])))
    for k, T in enumerate(todo):
        if k + 1 < len(todo): S_.flush(Stream(rdp(todo[k + 1])))
        if k: em(a, unp(T))
        a(f'@wait lg=p{T}')
        em(a, fin2(T, True))

AXS = 130 * 128; AW0 = 3 * AXS; APAR = AW0 + 4 * 24576
def attn(a, split):
    XV, WV, XA, XB, WA = 2, 4, 7, 9, 11
    PA, RA, CB = 15, 16, 17
    OA = 20
    MK = 28
    CV = 36
    PR = 38
    t = 56
    Q, K, V0, V1 = 64, 128, 192, 224
    BF = 0; AF = 32
    if OPT['map2']:
        a(f's_sub_u32 s{T0}, s{T0}, s{T2}\ns_lshl_b32 s{T2}, s{sC}, 3\ns_lshr_b32 s{T2}, 0x160b1900, s{T2}\ns_and_b32 s{T2}, s{T2}, 31\ns_add_u32 s{sNO}, s{T0}, s{T2}')
        a(f's_or_b32 s{T0}, s2, 4\ns_cmpk_eq_u32 s{T0}, 255\ns_cbranch_scc1 L_idle0\ns_mul_i32 s{sC}, s{sNO}, 57\ns_lshr_b32 s{sC}, s{sC}, 9')
        a(f's_sub_u32 s{T0}, s{T1}, s{sC}\ns_mul_i32 s{T0}, s{T0}, 9\ns_add_u32 s{sR}, s{sNO}, s{T0}\ns_xor_b32 s{sC}, s{sC}, 1')
    else: a(f's_mul_i32 s{sR}, s{T1}, 9\ns_add_u32 s{sR}, s{sR}, s{T0}\ns_sub_u32 s{sR}, s{sR}, 23')
    if OPT['gx']: a(f's_xor_b32 s{sC}, s{sC}, 1')
    if OPT['za']: stats8_addr(a)
    rot_init(a, OPT['rota'], 2688)
    a(f'v_lshl_add_u32 v{t}, v{XL+1}, 1, s{sWO}\nv_lshlrev_b32 v{t}, 1, v{t}\nv_sub_u32 v{t+1}, v0, v{t}\nv_and_b32 v{t+1}, 15, v{t+1}')
    a(f'v_cmp_gt_u32 vcc, 14, v{t+1}' if OPT['zpad'] else f'v_min_u32 v{t+1}, 13, v{t+1}')
    a(f's_mul_i32 s{T0}, s{sW}, 48\ns_add_u32 s{T0}, s{T0}, s{sC}\ns_mulk_i32 s{T0}, 224')
    a(f'v_mul_u32_u24 v{t+2}, 168, v{XL+1}\nv_add_lshl_u32 v{t+2}, v{t+1}, v{t+2}, 4\nv_add_u32 v{WV+2}, s{T0}, v{t+2}')
    if OPT['zpad']: a(f'v_cndmask_b32 v{WV+2}, v{ZT+3}, v{WV+2}, vcc')
    a(f'v_add_u32 v{WV+1}, 128, v{WV+2}\nv_add_u32 v{WV}, 256, v{WV+2}')
    a(f's_mul_i32 s{sMW}, s{sW}, 6144\ns_add_u32 s{sMW}, s{sMW}, {AW0}')
    a(f's_mov_b32 s{SG+2}, {448*2688 + 256}\ns_mov_b32 s{SG+3}, s{SX+3}')
    a('s_waitcnt lgkmcnt(0)')
    stamp(a, 'ka')
    em(a, srd_p(SX, 4))
    if OPT['za']: stats8_load(a)
    else: stats_load(a)
    def help_w():
        r0 = OPT['aw']
        if OPT['rotf'] == 'h3':
            a(f's_lshr_b32 s{T0}, s2, 3\ns_lshl1_add_u32 s{T0}, s{T0}, s{sWO}\ns_mul_i32 s{T2}, s{T1}, 192\ns_add_u32 s{T0}, s{T0}, s{T2}\ns_add_u32 s{T0}, s{T0}, {r0 - 46}')
            a(f'v_mul_u32_u24 v18, 37, v0\nv_lshrrev_b32 v18, 8, v18\nv_mul_u32_u24 v36, 7, v18\nv_sub_u32 v36, v0, v36\nv_mad_u32_u24 v18, v18, 18, s{T0}')
            a(f's_lshl_b32 s{T2}, s{T1}, 8\ns_add_u32 s{T2}, s{T2}, 191\ns_mul_i32 s{T0}, s{sC}, 7\nv_min_u32 v18, s{T2}, v18\nv_mad_u32_u24 v18, v18, 28, v36')
            a(f's_cmp_eq_u32 s{sJ}, 0\ns_cselect_b64 s[{sM1}:{sM1+1}], s[12:13], s[14:15]\nv_add_lshl_u32 v18, v18, s{T0}, 7\nglobal_load_dword v19, v18, s[{sM1}:{sM1+1}]')
            return
        a(f's_lshr_b32 s{T0}, s2, 3\ns_sub_u32 s{T0}, s{T0}, 23\ns_lshl1_add_u32 s{T0}, s{T0}, s{sWO}\ns_lshl1_add_u32 s{T0}, s{T0}, s{T1}\ns_add_u32 s{T0}, s{T0}, {r0}')
        a(f'v_mul_u32_u24 v18, 37, v0\nv_lshrrev_b32 v18, 8, v18\nv_mul_u32_u24 v36, 7, v18\nv_sub_u32 v36, v0, v36\nv_mad_u32_u24 v18, v18, 36, s{T0}')
        a(f's_mul_i32 s{T0}, s{sC}, 7\nv_min_u32 v18, 447, v18\nv_mad_u32_u24 v18, v18, 28, v36\ns_cmp_eq_u32 s{sJ}, 0\ns_cselect_b64 s[{sM1}:{sM1+1}], s[12:13], s[14:15]')
        if OPT['a6']:
            a(f's_add_u32 s{T2}, s{sC}, 1\ns_bitcmp0_b32 s{T2}, 1\ns_cselect_b32 s{T2}, -1, 0\ns_and_b32 s{T0}, s{sC}, 2\ns_mul_i32 s{T0}, s{T0}, 7')
            a(f'v_add_lshl_u32 v18, v18, s{T0}, 7\nv_and_b32 v18, s{T2}, v18\nglobal_load_dword v19, v18, s[{sM1}:{sM1+1}]\nglobal_load_dword v19, v18, s[{sM1}:{sM1+1}] offset:896')
            return
        a(f'v_add_lshl_u32 v18, v18, s{T0}, 7\nglobal_load_dword v19, v18, s[{sM1}:{sM1+1}]')
    def help_d():
        if OPT['a6']:
            a(f's_sub_u32 s{T0}, s2, 184\ns_lshr_b32 s{T0}, s{T0}, 1\ns_lshl2_add_u32 s{T0}, s{T0}, s{sW}\ns_mul_i32 s{T2}, s{T0}, 88\ns_mul_i32 s{T0}, s{T0}, 22')
            a(f'v_min_u32 v18, 43, v0\nv_lshl_add_u32 v18, v18, 1, s{T2}\ns_add_u32 s{T2}, s{sC}, 1\ns_bfe_i32 s{T2}, s{T2}, 0x10001\nv_min_u32 v18, 12542, v18\nv_lshlrev_b32 v18, 7, v18')
            a(f'v_bfi_b32 v18, s{T2}, 0, v18\nglobal_load_dword v19, v18, s[16:17]\nglobal_load_dword v19, v18, s[16:17] offset:128')
            a(f'v_min_u32 v18, 21, v0\nv_add_u32 v18, s{T0}, v18\nv_min_u32 v18, 3135, v18\nv_lshlrev_b32 v18, 7, v18\nv_bfi_b32 v18, s{T2}, 0, v18\nglobal_load_dword v19, v18, s[8:9]')
            return
        a(f's_lshl2_add_u32 s{T0}, s{sR}, s{sC}' if OPT['map2'] else f's_sub_u32 s{T0}, s2, 184')
        a(f's_lshl2_add_u32 s{T0}, s{T0}, s{sW}\ns_mul_i32 s{T2}, s{T0}, 44\ns_mul_i32 s{T0}, s{T0}, 11')
        if not OPT['ado']: a(f'v_min_u32 v18, 43, v0\nv_add_u32 v18, s{T2}, v18\nv_min_u32 v18, 12543, v18\nv_lshlrev_b32 v18, 7, v18\nglobal_load_dword v19, v18, s[16:17]')
        a(f'v_min_u32 v18, 10, v0\nv_add_u32 v18, s{T0}, v18\nv_min_u32 v18, 3135, v18\nv_lshlrev_b32 v18, 7, v18\nglobal_load_dword v19, v18, s[8:9]')
    if OPT['aw'] and not OPT['awp']: split(); help_w()
    if OPT['ad'] == 1: help_d()
    em(a, srd_p(SG, 6, back=256))
    G = 24
    B = lambda m: bar_gap(G, 4, 6, OPT['ad_'], OPT['am'], m)
    def xd(j):
        o = items(x_off(OPT['rota'], j))
        for i in range(4):
            if i % 2 == 0: o.append(Item(f's_add_u32 m0, s{sMX}, {(j%3)*AXS + (i>>1)*(2048 - 896)}'))
            o.append(Item(f'buffer_load_dwordx4 v{XV + (i&1)}, s[{SX}:{SX+3}], s{sXJ} offen offset:{(i&1)*1024 + (i>>1)*896} lds', tag=f'x{j}', t0=B(x_bar(OPT['am'], j)), paced=True))
        return o
    def wd(h):
        o = []
        for i in range(2):
            o.append(Item(f's_add_u32 m0, s{sMW}, {(h%4)*24576 + i*3072}')); o[-1].brk = False
            o += items(w_off(OPT['rota'], h, i, 2688, 0))
            o += [Item(f'buffer_load_dwordx4 v{WV+m}, s[{SG}:{SG+3}], s{sSO} offen offset:{m*1024} lds', tag=f'w{h}', t0=B(h - 4), paced=True) for m in range(3)]
        return o
    d = wd(0) + xd(0) + wd(1)
    for h in range(2, 14):
        if h in (2, 4): d += xd(h // 2)
        for j in range(3, 7):
            if x_bar(OPT['am'], j) == h - 4: d += xd(j)
        d += wd(h)
    d = add_touches(d, 36, 18, 19)
    if OPT['ap']:
        k0 = OPT['ap']; n = (14 - k0) * 224; per = -(-n // 9)
        d += items([f's_and_b32 s79, s2, 7', f's_mul_i32 s79, s79, 7', f's_lshr_b32 s79, s79, 2', f's_add_u32 s79, s79, {k0}', f's_mul_i32 s79, s79, 224',
                    f's_lshr_b32 s{sPL}, s2, 3', f's_sub_u32 s{sPL}, s{sPL}, 23', f's_mul_i32 s{sSPIN}, s{sPL}, {per}', f's_add_u32 s79, s79, s{sSPIN}', f's_mul_i32 s{sSPIN}, s{sW}, 3136'])
        for k in range(0, per, 64):
            d += items([f'v_min_u32 v18, {min(63, per - 1 - k)}, v0', f'v_add_u32 v18, s79, v18', f'v_subrev_u32 v36, 3136, v18', 'v_min_u32 v18, v18, v36', f'v_subrev_u32 v36, 3136, v18', 'v_min_u32 v18, v18, v36',
                        f'v_add_lshl_u32 v18, v18, s{sSPIN}, 7', 's_add_u32 s79, s79, 64']) + [Item('global_load_dword v19, v18, s[0:1]', paced=True)]
        d += items([f's_mul_i32 s79, s{sPL}, 88', f's_mul_i32 s{sSPIN}, s{sW}, 784'])
        for k in (0, 44):
            d += items([f'v_min_u32 v18, 43, v0', f'v_add3_u32 v18, v18, s79, {k}', 'v_min_u32 v18, 783, v18', f'v_add_lshl_u32 v18, v18, s{sSPIN}, 7']) + [Item('global_load_dword v19, v18, s[18:19]', paced=True, name='apd')]
    dma = Stream(d, rate=OPT['arate0'])
    def steady(): dma.rate = OPT['arate']
    S_ = Sched(a)
    bg = [f'v_and_b32 v{t}, 15, v0', f'v_lshlrev_b32 v{PA}, 2, v{t}', f'v_add_u32 v{PA}, {APAR}, v{PA}',
          f'v_lshlrev_b32 v{RA}, 4, v{XL+1}', f'v_add_u32 v{RA}, {APAR}, v{RA}', f'v_cmp_gt_u32 s[{sM1}:{sM1+1}], 48, v0',
          f'v_lshlrev_b32 v{t+1}, 2, v{XL+1}', f'v_sub_u32 v{t+1}, v{t}, v{t+1}', f'v_mov_b32 v{t+3}, {hx(f2u(-1e30))}']
    for i in range(8):
        bg += [f'v_add_u32 v{t+2}, {(16 if i < 4 else 0) - (i & 3)}, v{t+1}', f'v_cmp_gt_u32 s[{sM0}:{sM0+1}], 8, v{t+2}',
               f'v_cndmask_b32 v{MK+i}, v{t+3}, 0, s[{sM0}:{sM0+1}]']
    kA, kB, kC, kD = sTH, sCT, sJ, sWO
    bg += [f's_mul_i32 s{kD}, s{sR}, 113', f's_lshl2_add_u32 s{T3}, s{sC}, s{sW}', f's_add_u32 s{T3}, s{T3}, 56', f's_lshl_b32 s{sST}, s{T3}, 10',
           [f's_cmp_eq_u32 s{sR}, 0', f's_cselect_b32 s{T3}, 0, 14'], f's_mov_b32 s{kA}, 26547', f's_mov_b32 s{kB}, {TH_BYTES}', f's_mov_b32 s{kC}, {72*1024}',
           f'v_mov_b32 v{t+7}, {OOB}']
    for p in range(2):
        bg += [f'v_lshl_add_u32 v{t+1}, v0, 1, {p}', f'v_add_u32 v{t+2}, s{kD}, v{t+1}', f'v_mul_u32_u24 v{t+3}, s{kA}, v{t+2}', f'v_lshrrev_b32 v{t+3}, 22, v{t+3}',
               f'v_mul_u32_u24 v{t+4}, 158, v{t+3}', f'v_sub_u32 v{t+2}, v{t+2}, v{t+4}',
               f'v_bfe_u32 v{t+4}, v{t+2}, 4, 1', f'v_lshl_add_u32 v{t+3}, v{t+3}, 1, v{t+4}', f'v_mul_u32_u24 v{t+3}, s{kB}, v{t+3}',
               f'v_lshrrev_b32 v{t+4}, 5, v{t+2}', f'v_mad_u32_u24 v{t+3}, v{t+4}, s{kC}, v{t+3}',
               f'v_bfe_u32 v{t+4}, v{t+2}, 1, 3', f'v_lshl_add_u32 v{t+3}, v{t+4}, 4, v{t+3}', f'v_and_b32 v{t+4}, 1, v{t+2}', f'v_lshl_add_u32 v{OA+p}, v{t+4}, 7, v{t+3}',
               f'v_cmp_le_u32 s[{sM0}:{sM0+1}], s{T3}, v{t+1}', f'v_cndmask_b32 v{OA+p}, v{t+7}, v{OA+p}, s[{sM0}:{sM0+1}]']
    bg += [f'v_cmp_gt_u32 s[{sM0}:{sM0+1}], 63, v0', f'v_cndmask_b32 v{OA+1}, v{t+7}, v{OA+1}, s[{sM0}:{sM0+1}]']
    bg += [f's_add_u32 s{T3}, s{T3}, s{kD}', f's_mul_i32 s{T3}, s{T3}, 26547', f's_lshr_b32 s{T3}, s{T3}, 22', f's_add_u32 s{kD}, s{kD}, 126', f's_mul_i32 s{kD}, s{kD}, 26547',
           f's_lshr_b32 s{kD}, s{kD}, 22', f's_sub_u32 s{kD}, s{kD}, s{T3}', f'v_cmp_ge_u32 s[{sM0}:{sM0+1}], s{kD}, v0', f'v_lshlrev_b32 v{CB}, 9, v0',
           f's_lshl2_add_u32 s{T3}, s{T3}, s{sC}', f's_lshl_b32 s{T3}, s{T3}, 7', f's_add_u32 s{sFL}, s{T3}, {FH + 4*FST}',
           f'v_cndmask_b32 v{CB}, v{t+7}, v{CB}, s[{sM0}:{sM0+1}]']
    if not OPT['alate']: S_.flush(dma, 6)
    if not OPT['aw'] or OPT['awp']: split()
    stamp(a, 'i7')
    a(f's_mul_i32 s{T2}, s{sR}, 113\ns_lshl4_add_u32 s{T2}, s{sW}, s{T2}\ns_mul_i32 s{T2}, s{T2}, 896\ns_lshl_b32 s{sMX}, s{sW}, 12')
    a(f'v_add_u32 v{XV}, s{T2}, v{XL}\nv_add_u32 v{XV+1}, {64*896 - 1024}, v{XV}')
    if not OPT['alate']: S_.flush(dma, 2)
    em(a, srd(SH, 22, WS_USED) + srd(SDB, 20, 256)); keep_ptrs(a)
    x_read_addr(a, XA, XB, t, 4096)
    for st in range(3): a(f'ds_write_b128 v{t}, v[{t+2}:{t+5}] offset:{st*AXS + 129*128}')
    u = 20
    a(f'v_bfe_u32 v{u}, v0, 4, 1\nv_bfe_u32 v{u+1}, v0, 2, 2\nv_lshrrev_b32 v{u+2}, 5, v0\nv_and_b32 v{u+3}, 3, v0')
    a(f'v_lshl_add_u32 v{u+4}, v{u+1}, 1, v{u}\nv_lshl_add_u32 v{u+4}, v{u+4}, 2, v{u+3}\ns_mul_i32 s{T0}, s{sW}, 56\nv_lshl_add_u32 v{u+4}, v{u+4}, 3, s{T0}')
    a(f'v_add_u32 v{u+5}, 32, v{u+4}')
    if OPT['zpad']: a(f's_sub_u32 s{T0}, 168, s{T0}\nv_cmp_eq_u32 vcc, 3, v{u+3}\nv_add_u32 v{u+6}, s{T0}, v{u+5}\nv_cndmask_b32 v{u+5}, v{u+5}, v{u+6}, vcc')
    a(f'v_and_b32 v{u+4}, 0xff, v{u+4}\nv_and_b32 v{u+5}, 0xff, v{u+5}')
    a(f'v_mul_u32_u24 v{u}, 12288, v{u}\nv_mul_u32_u24 v{u+2}, 3072, v{u+2}\nv_lshl_add_u32 v{u}, v{u+1}, 8, v{u}\nv_add_u32 v{u}, v{u}, v{u+2}\nv_add_u32 v{u}, {AW0}, v{u}')
    a(f'v_add_u32 v{WA}, v{u}, v{u+4}\nv_add_u32 v{WA+1}, v{u}, v{u+5}\nv_add_u32 v{WA+2}, 49152, v{WA}\nv_add_u32 v{WA+3}, 49152, v{WA+1}')
    if OPT['alate'] == 2: em(a, bg); bg = []
    n0_ = {0: 8, 1: 8, 2: 8, 3: 0, 4: 3}[OPT['alate']]
    if OPT['alate'] and n0_: S_.flush(dma, n0_)
    left = [OPT['anpro'] - n0_]
    def more():
        if left[0] and OPT['zi'] < 99: S_.flush(dma, 1); left[0] -= 1
    if OPT['za']: stats8_do(a, APAR + 1024)
    elif not OPT['azs']: stats_do(a, more)
    else: a.raw(';HOP')
    S_.flush(dma, left[0])
    if OPT['ad'] == 2: help_d()
    if OPT['ad'] > 2:
        rec = []; a_ = a; a = lambda t: rec.extend(t.split('\n')); help_d(); a = a_
        k = [i for i, x in enumerate(dma.items) if x.paced][OPT['ad'] - 1] + 1
        dma.items[k:k] = items([x.replace(f's{T0}', 's79').replace(f's{T2}', f's{sPL}') for x in rec])

    tiles = [[0, 1, 2, 3], [7, 4, 5, 6]]
    def bread(g, q, k, sl, n):
        T = tiles[g][q]
        return f'ds_read_b128 {A(BF + 8*sl + 4*n, 4)}, v{(XB if T == 7 else XA) + (k & 1)} offset:{((k>>1)%3)*AXS + (8*(T&1) + (T>>1))*1024}'
    def areads(h):
        o = []
        for mat in range(3):
            for ct in range(2):
                for jj in range(2):
                    off = (h % 4) * 24576 + jj * 6144 + mat * 1024
                    o.append(f'ds_read_b64_tr_b16 {A(AF + 24*(h%3) + 8*mat + 4*ct + 2*jj, 2)}, v{WA + ct + (2 if off >= 49152 else 0)} offset:{off % 49152}')
        return o
    def acc(T, c): return (Q + 8*T, Q + 8*T + 4, K + 8*T, K + 8*T + 4, V0 + 4*T, V1 + 4*T)[c]
    def mfma(g, q, c, k, sl, n, first):
        dd = V(acc(tiles[g][q], c), 4); w_, x_ = A(AF + 24*(k%3) + 4*c, 4), A(BF + 8*sl + 4*n, 4)
        return f'{MF} {dd}, {w_ if c < 4 else x_}, {x_ if c < 4 else w_}, {0 if first else dd}'
    stamp(a, 'pre')
    a('@wait vm=x0,w0 lg=*\ns_barrier')
    stamp(a, 'b0')
    if OPT['atc'] < 0: a(cert_load(27), tag='cert')
    HP = 26
    if OPT['hp']:
        assert not OPT['map2']
        bg += [f's_bfe_u32 s{kA}, s2, 0x10002', f's_mul_i32 s{kA}, s{kA}, 13', f's_and_b32 s{kB}, s2, 3', f's_mul_i32 s{kB}, s{kB}, 3', f's_add_u32 s{kA}, s{kA}, s{kB}',
               f's_lshr_b32 s{kB}, s2, 3', f's_sub_u32 s{kB}, s{kB}, 23', f's_and_b32 s{kC}, s{kB}, 3', f's_add_u32 s{kA}, s{kA}, s{kC}', f's_bfe_u32 s{kB}, s{kB}, 0x10002',
               f's_lshl1_add_u32 s{kC}, s{sW}, s{kB}', f's_mul_i32 s{kC}, s{kC}, 7168', f's_mul_i32 s{kD}, s{kA}, {TH_BYTES}', f's_add_u32 s{kC}, s{kC}, s{kD}',
               f'v_min_u32 v{HP}, 55, v0', f'v_lshl_add_u32 v{HP}, v{HP}, 7, s{kC}',
               f's_lshr_b32 s{T3}, s{kA}, 1', f's_lshl2_add_u32 s{sFH}, s{T3}, s{sW}', f's_lshl_b32 s{sFH}, s{sFH}, 7', f's_add_u32 s{sFH}, s{sFH}, {FH}',
               [f's_add_u32 s{sFH}, s22, s{sFH}', f's_addc_u32 s{sFH+1}, s23, 0'],
               f's_mul_i32 s{T3}, s{T3}, 158', f's_add_u32 s{sNO}, s{T3}, {157-14}', f's_min_u32 s{sNO}, s{sNO}, {2047-14}', f's_mul_i32 s{sNO}, s{sNO}, 580', f's_lshr_b32 s{sNO}, s{sNO}, 16',
               f's_max_u32 s{T3}, s{T3}, 14', f's_sub_u32 s{T3}, s{T3}, 14', f's_mul_i32 s{T3}, s{T3}, 580', f's_lshr_b32 s{T3}, s{T3}, 16',
               f's_sub_u32 s{sNO}, s{sNO}, s{T3}', f's_lshl2_add_u32 s{sNO}, s{sNO}, 4',
               f's_lshl1_add_u32 s{kC}, s{sW}, s{kB}', f's_lshl_b32 s{kC}, s{kC}, 11', f's_add_u32 s{kD}, s{kD}, s{kC}', f's_add_u32 s{kD}, s{kD}, {56*1024}']
    def touch(Ts): return [x for T in Ts for x in (f's_mov_b32 s{T3}, {T*72*1024}', f'buffer_load_dword v27, v{HP}, s[{SH}:{SH+3}], s{T3} offen sc1')]
    def try_touch(f, Ts):
        em(a, ['s_waitcnt lgkmcnt(0)', f's_cmp_eq_u32 s{preg(f)}, 14', f's_cbranch_scc0 La_nt{f}'] + touch(Ts) + [f'La_nt{f}:'])
    bgs = Stream(items(bg))
    z = ZD + 6
    src = [f's_and_b32 s{T0}, s{sW}, 1', f's_mul_i32 s{T1}, s{sR}, 113', f's_add_u32 s{T1}, s{T1}, s{T0}', f's_lshr_b32 s{T2}, s{T1}, 1', f'v_add_u32 v{z}, s{T2}, v0']
    src += stats_src(z, z + 1)
    src += [f's_and_b32 s{T1}, s{T1}, 1', f's_lshr_b32 s{T2}, s{sW}, 1', f's_lshl1_add_u32 s{T1}, s{T1}, s{T2}', f's_lshl_b32 s{T1}, s{T1}, 5',
            f's_add_u32 s{T1}, s{T1}, {STATS}', f's_lshl1_add_u32 s{T0}, s{T0}, s{T2}', f's_lshl_b32 s{T0}, s{T0}, 8', f's_add_u32 s{T0}, s{T0}, {APAR}',
            f'v_lshl_add_u32 v{z+1}, v0, 2, s{T0}']
    sy = sync_stream('La', G, OPT['atc'], src, [f'buffer_load_dword v{z+2}, v{z}, s[{SH}:{SH+3}], s{T1} offen sc1'], [z + 2], [f'ds_write_b32 v{z+1}, v{z+2}'], OPT['atl'], OPT['atl'] + 5, 27)
    par = [Item(f'ds_read2_b32 {V(PR + 2*T, 2)}, v{PA} offset0:{128*(T>>2) + 16*(T&3)} offset1:{64 + 128*(T>>2) + 16*(T&3)}', t0=B(12), tag='pr') for T in range(8)]
    CQ, CK = 2, 54
    par += [Item(f'v_mov_b32_dpp v{CK+k}, v{K+56+k} row_newbcast:15 row_mask:0xf bank_mask:0xf', t0=25*G + 16) for k in range(8)]
    for c, sv in enumerate((V0 + 31, V1 + 31)):
        par += items([f'v_mov_b32 v62, v{sv}', f'v_mov_b32 v63, v{sv}', 'v_permlane32_swap_b32 v62, v63', f'v_mov_b32 v{CV+c}, v63', f'v_permlane16_swap_b32 v63, v{CV+c}'])
    par += [Item(f'v_mov_b32_dpp v{CQ+k}, v{Q+56+k} row_newbcast:15 row_mask:0xf bank_mask:0xf', t0=27*G + 13) for k in range(8)]
    par[15].name = 'ck'
    pars = Stream(par)
    sh = [Item('@wait lg=pr', after={'ck': 0})]
    for q, T in enumerate(tiles[1] if OPT['ash'] else []):
        P = PR + 2 * T; t0 = 25 * G + 12 * (q + 1) + 3
        o = [f'v_fmac_f32 v{K+8*T+k}, v{CK+k}, v{P}' for k in range(8)] + [f'v_mul_f32 v{K+8*T+k}, v{K+8*T+k}, v{P+1}' for k in range(8)]
        sh += items(o, t0=t0); sh[-1].name = f'K{T}'
        if T != 7:
            sh += items([f'v_fmac_f32_dpp v{Q+8*T+k}, v{Q+56+k}, v{P} row_newbcast:15 row_mask:0xf bank_mask:0xf' for k in range(8)], t0=t0); sh[-1].name = f'Q{T}'
    shs = Stream(sh)
    hooks = {5: steady}
    if OPT['azs']:
        zb_ = min(m for m in range(14) if B(m) > OPT['azs'] * G + 12)
        def late_stats():
            n0 = len(a.lines); stats_do(a); a.lines.remove(';HOP') if a.lines.count(';HOP') > 1 else None
            a('@wait lg=*')
        hooks[OPT['azs']] = late_stats
        assert OPT['atc'] < 0
        sy.items[0].t0 = B(zb_)
    if OPT['adip']: hooks[OPT['adip']] = lambda: (steady() if OPT['adip'] == 5 else None, S_.flush(bgs))
    def ck25(): assert sy.done() and bgs.done() and dma.done()
    gemm1(a, S_, G, 4, 6, OPT['ad_'], OPT['am'], areads, bread, mfma, dma, [sy, pars, shs] + ([] if OPT['adip'] else [bgs]), {12: ck25}, hooks)
    while shs.i > 1 and not shs.done() and shs.items[shs.i - 1].name is None: S_.put(shs, shs.items[shs.i])
    print('shadow', [k for k in S_.when if k[0] in 'KQ'], file=sys.stderr)
    assert dma.done()
    S_.flush(pars)
    a('@wait lg=*')
    stamp(a, 'g1')
    a.raw(';EPI')
    def SR(T): return (Q + 32 + 8 * T) if T < 4 else (K + 32 + 8 * (T - 4))
    RB = (2, 54)
    def rread(T):
        for ar in range(2): a(f'ds_read_b128 {V(RB[T&1] + 4*ar, 4)}, v{RA} offset:{512*(T>>2) + 256*ar + 64*(T&3)}', tag=f'R{T}')
    for T in range(8):
        P = PR + 2 * T; dd = Q + 8 * T; dk = K + 8 * T
        if f'Q{T}' not in S_.when:
            for k in range(0, 8, 2): a(f'v_pk_fma_f32 {V(dd+k, 2)}, {V(CQ+k, 2)}, {V(P, 2)}, {V(dd+k, 2)} op_sel_hi:[1,0,1]')
        if f'K{T}' not in S_.when:
            for k in range(0, 8, 2): a(f'v_pk_fma_f32 {V(dk+k, 2)}, {V(CK+k, 2)}, {V(P, 2)}, {V(dk+k, 2)} op_sel_hi:[1,0,1]')
            for k in range(0, 8, 2): a(f'v_pk_mul_f32 {V(dk+k, 2)}, {V(dk+k, 2)}, {V(P, 2)} op_sel:[0,1] op_sel_hi:[1,1]')
    rread(0); rread(1)
    cv = []
    for T in range(8):
        cv += [f'v_cvt_pk_bf16_f32 v{Q+4*T+k}, v{Q+8*T+2*k}, v{Q+8*T+2*k+1}' for k in range(4)]
        cv += [f'v_cndmask_b32 v{Q+4*T+k}, 0, v{Q+4*T+k}, s[{sM1}:{sM1+1}]' for k in (() if OPT['zpad'] else (2, 3))]
        cv += [f'v_cvt_pk_bf16_f32 v{K+4*T+k}, v{K+8*T+2*k}, v{K+8*T+2*k+1}' for k in range(4)]
    n8 = len(cv) // 8
    for T in range(8):
        em(a, cv[n8*T:n8*(T+1)])
        a(f'@wait lg=R{T}')
        b = RB[T & 1]
        for c, base in enumerate((V0, V1)):
            for k in (0, 2): a(f'v_pk_fma_f32 {V(base+4*T+k, 2)}, {V(b+k, 2)}, {V(CV, 2)}, {V(base+4*T+k, 2)} op_sel:[0,{c},0] op_sel_hi:[1,{c},1]')
        for c, base in enumerate((V0, V1)):
            for k in (0, 2): a(f'v_pk_mul_f32 {V(base+4*T+k, 2)}, {V(base+4*T+k, 2)}, {V(b+4+k, 2)}')
        if T < 6: rread(T + 2)
    if OPT['hp'] & 1: a(poll_issue(1))
    fill = [f'v_cvt_pk_bf16_f32 v{base+2*T+k}, v{base+4*T+2*k}, v{base+4*T+2*k+1}' for T in range(8) for base in (V0, V1) for k in range(2)]
    fill += [f'v_mul_f32 v{PR + 2*T + 1}, {hx(f2u(LOG2E * 28 ** -0.5))}, v{PR + 2*T + 1}' for T in range(8)]
    for T in range(8):
        if T & 3:
            a(f'{MF} {V(SR(T), 4)}, {V(K + 4*(T-1), 4)}, {V(Q + 4*T, 4)}, {V(MK, 4)}'); em(a, fill[:2]); del fill[:2]
        a(f'{MF} {V(SR(T) + 4, 4)}, {V(K + 4*T, 4)}, {V(Q + 4*T, 4)}, {V(MK + 4, 4)}'); em(a, fill[:2]); del fill[:2]
    em(a, fill)
    mx = [10, 11, 12, 13, 22, 23, 24, 25]
    for T in range(8):
        s = SR(T); m = mx[T]
        if T & 3: a(f'v_max3_f32 v{m}, v{s}, v{s+1}, v{s+2}\nv_max3_f32 v{m}, v{m}, v{s+3}, v{s+4}\nv_max3_f32 v{m}, v{m}, v{s+5}, v{s+6}\nv_max_f32 v{m}, v{m}, v{s+7}')
        else: a(f'v_max3_f32 v{m}, v{s+4}, v{s+5}, v{s+6}\nv_max_f32 v{m}, v{m}, v{s+7}')
    stamp(a, 'e1')
    for b in (0, 2, 4, 6): a(f'v_permlane32_swap_b32 v{mx[b]}, v{mx[b+1]}')
    for b in (0, 2, 4, 6): a(f'v_max_f32 v{mx[b]}, v{mx[b]}, v{mx[b+1]}')
    for b in (0, 4): a(f'v_permlane16_swap_b32 v{mx[b]}, v{mx[b+2]}')
    for b in (0, 4): a(f'v_max_f32 v{mx[b]}, v{mx[b]}, v{mx[b+2]}')
    for b in (0, 4): a(f'v_mov_b32 v{mx[b+2]}, v{mx[b]}')
    ONE = 54; PF = 56; OT = K
    for k in range(2): a(f'v_mov_b32 v{2+k}, 0x3f803f80')
    for b in (0, 4): a(f'v_permlane16_swap_b32 v{mx[b]}, v{mx[b+2]}')
    for b in (0, 2, 4, 6): a(f'v_mov_b32 v{mx[b+1]}, v{mx[b]}')
    for k in range(2, 4): a(f'v_mov_b32 v{2+k}, 0x3f803f80')
    ONE = 2
    for b in (0, 2, 4, 6): a(f'v_permlane32_swap_b32 v{mx[b]}, v{mx[b+1]}')
    for T in range(8): a(f'v_mul_f32 v{PR + 2*T}, v{mx[T]}, v{PR + 2*T + 1}')
    if OPT['hp'] & 1: try_touch(1, [1])
    def pf(T): return PF + 4 * (T & 1)
    def soft(T):
        s = SR(T); P = PR + 2 * T
        lo = 0 if T & 3 else 4
        for k in range(lo, 8, 2): a(f'v_pk_fma_f32 {V(s+k, 2)}, {V(s+k, 2)}, {V(P, 2)}, {V(P, 2)} op_sel:[0,1,0] op_sel_hi:[1,1,0] neg_lo:[0,0,1] neg_hi:[0,0,1]')
        return [f'v_exp_f32 v{s+k}, v{s+k}' for k in range(lo, 8)]
    def pack(T):
        s = SR(T)
        if T & 3:
            for k in range(4): a(f'v_cvt_pk_bf16_f32 v{pf(T)+k}, v{s+2*k}, v{s+2*k+1}')
        else:
            for k in range(2): a(f'v_cvt_pk_bf16_f32 v{pf(T)+k}, v{s+4+2*k}, v{s+5+2*k}')
            a(f'v_mov_b32 v{pf(T)+2}, 0\nv_mov_b32 v{pf(T)+3}, 0')
    def OB(T): return OT + 12 * (T & 1)
    def pv(T):
        v = 2 * (T - 1) if T & 3 else 2 * T
        o = OB(T)
        return [f'{MF} {V(o + 8, 4)}, {V(ONE, 4)}, {V(pf(T), 4)}, 0', f'{MF} {V(o, 4)}, {V(V0 + v, 4)}, {V(pf(T), 4)}, 0', f'{MF} {V(o + 4, 4)}, {V(V1 + v, 4)}, {V(pf(T), 4)}, 0']
    def fin(T):
        o = OB(T); R = Q + 4 * T
        for k in range(0, 8, 2): a(f'v_pk_mul_f32 {V(o+k, 2)}, {V(o+k, 2)}, {V(o+8, 2)} op_sel_hi:[1,0]')
        for k in range(4): a(f'v_cvt_pk_bf16_f32 v{R+k}, v{o+2*k}, v{o+2*k+1}')
        if T & 3 == 3:
            R0 = R - 12
            for k in range(4):
                for q in (0, 1): a(f'v_permlane32_swap_b32 v{R0+4*q+k}, v{R0+4*(q+2)+k}')
            for q in (0, 2):
                for k in range(4): a(f'v_permlane16_swap_b32 v{R0+4*q+k}, v{R0+4*(q+1)+k}')
                for g in (q, q + 1): a(f'buffer_store_dwordx4 {V(R0+4*g, 4)}, v{OA + (T>>2)}, s[{SH}:{SH+3}], s{sST} offen offset:{256*g} sc1', tag='o')
    for T in range(9):
        ex = soft(T) if T < 8 else []
        mm = pv(T - 1) if T else []
        for x in mm:
            a(x)
            if ex: a(ex.pop(0))
        em(a, ex)
        if T: a(f'v_rcp_f32 v{OB(T-1)+8}, v{OB(T-1)+8}')
        if T < 8: pack(T)
        if T: fin(T - 1)
        if OPT['hp'] & 2 and T == 2: a(poll_issue(2))
        if OPT['hp'] & 2 and T == 4: try_touch(2, [2])
    stamp(a, 'e2')
    if OPT['hp'] & 4: a(poll_issue(3))
    a(f'v_mov_b32 v2, 1\ns_waitcnt vmcnt(0)\nbuffer_atomic_add v2, v{CB}, s[{SH}:{SH+3}], s{sFL} offen sc1')
    if OPT['hp'] & 4: em(a, poll_check('La_h3', 3, 14) + touch([3, 4]))
    if OPT['hp'] & 8:
        a(poll_issue(4))
        a(f'v_and_b32 v3, 15, v0\nv_mul_u32_u24 v4, {72*8}, v{XL+1}'.replace(f'v{XL+1}', 'v5').replace('v_and_b32 v3', 'v_lshrrev_b32 v5, 4, v0\nv_and_b32 v3'))
        a(f'v_add_lshl_u32 v4, v3, v4, 7\nv_lshlrev_b32 v3, 7, v3\nv_add_u32 v3, {4*72*1024}, v3')
        em(a, poll_check('La_h4', 4, f's{sNO}'))
        a(f'buffer_load_dword v27, v4, s[{SH}:{SH+3}], s{kD} offen sc1\nbuffer_load_dword v27, v3, s[{SH}:{SH+3}], s{kD} offen sc1')

def add_pads(lines, pfx):
    flat = []
    for l in lines: flat += l.split('\n')
    h = flat.index(';HOP')
    if not OPT['iw']: return flat[:h] + flat[h+1:]
    start = flat.index(';EPI') if OPT['iws'] else h + OPT['iw']
    pos = []; k = start
    while k < len(flat) - 60:
        j = k
        while j < k + 40 and not (flat[j-1].strip().startswith('v_mfma') and flat[j].strip().startswith('v_mfma')): j += 1
        pos.append(j if j < k + 40 else k); k += OPT['iw']
    n = len(pos); first = [w * n // 4 for w in range(5)]
    hop = ['    s_mov_b64 exec, 0']
    for w in range(3): hop += [f'    s_cmp_eq_u32 s{sW}, {w}', f'    s_cbranch_scc1 {pfx}_pad{first[w]}']
    hop += [f'    s_branch {pfx}_pad{first[3]}', f'{pfx}_back:', '    s_mov_b64 exec, -1']
    out = flat[:h] + hop
    for i in range(h + 1, len(flat)):
        if i in pos:
            q = pos.index(i)
            out += [f'{pfx}_pad{q}:', f'    s_cbranch_execz {pfx}_' + ('back' if q + 1 in first else f'pad{q+1}')]
        out.append(flat[i])
    print(pfx, 'pads', n, file=sys.stderr)
    return out

def desc(name):
    return f""".amdhsa_kernel {name}
  .amdhsa_next_free_vgpr 512
  .amdhsa_next_free_sgpr 102
  .amdhsa_accum_offset 256
  .amdhsa_group_segment_fixed_size 0
  .amdhsa_kernarg_size 80
  .amdhsa_user_sgpr_count 2
  .amdhsa_user_sgpr_kernarg_segment_ptr 1
  .amdhsa_system_sgpr_workgroup_id_x 1
  .amdhsa_float_denorm_mode_32 3
.end_amdhsa_kernel
"""

DOC = """;
; Straight-line code written by a hand-made scheduler script (4 waves, 512 registers each, 16x16x32 bf16 MFMA).
;                then an output tile of 80 token slots x 64 columns over K = [H | O], K split over the waves.
;   A workgroups (72 = 18 row blocks x 4)  : q/k/v GEMM of 127 tokens x 4 heads (one head per wave), windowed
; LayerNorm is applied after the first GEMMs: (x W - mean * colsum(W)) / std; colsum comes from an all-ones token
; Hand-offs: write-through (sc1) stores -> s_waitcnt vmcnt -> arrival counter; consumers poll, then load (sc1).
; Workgroup ids are mapped to tiles for cache locality only; any placement gives the same result.
"""
def build():
    del SLOW[:]
    hdr = open('cdna_kernels/' + NAME + '.s.ref').read().split('; Override launch')[0]
    k1 = NAME + '_kernel'
    out = hdr + '; @launch grid=(256,1,1) block=(256,1,1) lds=163840\n' + DOC + '.amdgcn_target "amdgcn-amd-amdhsa--gfx950"\n.text\n'
    c = Asm()
    c.raw(f'.globl {k1}\n.type {k1},@function\n.p2align 10\n.fill {OPT["pad"] // 4}, 4, 0xbf810000\n.p2align 8\n{k1}:')
    c('s_cmpk_ge_u32 s2, 256\ns_cbranch_scc1 L_done')
    if PROF: c.raw(f'    s_mem{"real" if "real" in STAMPS else ""}time s[86:87]\n    s_memrealtime s[84:85]\n    s_waitcnt lgkmcnt(0)\n    s_mov_b32 s87, s84\n    s_getreg_b32 s99, hwreg(HW_REG_XCC_ID)\n    s_lshl_b32 s99, s99, 16')
    else: stamp(c, 0)
    c('s_load_dwordx16 s[4:19], s[0:1], 0\ns_load_dwordx4 s[20:23], s[0:1], 64')
    per = OPT['pfn']
    c(f's_getpc_b64 s[{sFH}:{sFH+1}]\nv_lshrrev_b32 v1, 6, v0\nv_and_b32 v0, 63, v0\ns_lshr_b32 s{T0}, s2, 3\ns_mul_i32 s{T1}, s{T0}, {per}')
    c(f'v_min_u32 v{XL}, {per-1}, v0\nv_readfirstlane_b32 s{sW}, v1\nv_add_lshl_u32 v{XL}, v{XL}, s{T1}, 7')
    c(f'global_load_dword v37, v{XL}, s[{sFH}:{sFH+1}] offset:896', tag='pf')
    stats_addr(c); em(c, srd_c(SX, 2048 * 896))
    c(f's_and_b32 s{sJ}, s{sW}, 1\ns_lshr_b32 s{sWO}, s{sW}, 1\ns_lshl_b32 s{T2}, s{sJ}, 2')
    c(f'v_lshrrev_b32 v{XL}, 3, v0\nv_and_b32 v1, 7, v0\nv_lshrrev_b32 v{XL+1}, 4, v0\nv_mul_u32_u24 v{XL}, 112, v{XL}\nv_xor_b32 v1, s{T2}, v1')
    c(f's_bfe_u32 s{T1}, s2, 0x10002\ns_and_b32 s{sC}, s2, 3\nv_xor_b32 v1, v1, v{XL+1}\n' + (f's_cmp_eq_u32 s{sC}, 3\ns_cselect_b32 s{T2}, 28, 21\ns_cmp_lt_u32 s{T0}, s{T2}' if OPT['map2'] else f's_cmp_lt_u32 s{T0}, 23') + f'\nv_add_lshl_u32 v{XL}, v{XL}, v1, 4\ns_cbranch_scc1 L_ffn')
    aa = Asm(); aa.vm = ['pf']
    if OPT['noa']: aa(f's_mov_b32 s{T1}, 1\ns_branch L_idle')
    cut = []
    def split():
        aa('s_branch L_attn'); cut.append(len(aa.lines)); aa.label('L_attn')
    attn(aa, split); dump(aa); aa('s_endpgm')
    f = Asm(); f.vm = ['pf']
    f.label('L_ffn')
    if OPT['map2']: f(f's_mul_i32 s{T2}, s{sC}, 21\ns_add_u32 s{T0}, s{T0}, s{T2}')
    else: f(f's_mul_i32 s{T2}, s{sC}, 23\ns_add_u32 s{T0}, s{T0}, s{T2}\ns_cmpk_ge_u32 s{T0}, 91\ns_cbranch_scc1 L_idle0')
    ffn(f); dump(f)
    f.label('L_done'); f('s_endpgm')
    a = Asm(); a.vm = ['pf']
    a.label('L_idle')
    z = Asm(); z.label('L_idle0')
    z(f'v_mov_b32 v4, 0\nv_mov_b32 v5, 0\nv_mov_b32 v6, 0\nv_mov_b32 v7, 0\ns_lshl_b32 s{T0}, s{sW}, 12\ns_add_u32 s{T0}, s{T0}, {STATS}\nv_lshl_add_u32 v2, v0, 4, s{T0}')
    z(f's_cmp_lg_u32 s{T1}, 0\ns_waitcnt lgkmcnt(0)\ns_cbranch_scc1 L_idle1')
    for i in range(4): z(f'global_store_dwordx4 v2, v[4:7], s[22:23] offset:{i*1024} sc1')
    z('s_branch L_idle')
    a.lines[-1:] = ['L_idle1:']
    a(f's_mul_i32 s{T0}, s{sW}, {5*FST//4}\ns_add_u32 s{T0}, s{T0}, {FH + 4096}\nv_lshl_add_u32 v2, v0, 4, s{T0}\nv_add_u32 v3, 4096, v2')
    for i in range(10): a(f'global_store_dwordx4 v{2 + (i >= 8)}, v[4:7], s[22:23] offset:{(i - 4 - 4*(i >= 8))*1024} sc1')
    if OPT['oc']:
        a(f's_lshl_b32 s{T0}, s{sW}, 12\ns_add_u32 s{T0}, s{T0}, {25*TH_BYTES + (4*72 + 56)*1024}\nv_lshl_add_u32 v2, v0, 4, s{T0}')
        for i in range(4): a(f'global_store_dwordx4 v2, v[4:7], s[22:23] offset:{i*1024} sc1')
    a.label('L_idle')
    em(a, srd(SH, 22, WS_USED) + srd(SDB, 20, 256) + srd_p(SX, 4))
    a(f's_lshl_b32 s{T3}, s{T1}, 7\ns_cmp_eq_u32 s{sW}, 0\ns_cselect_b32 s{T3}, s{T3}, {OOB}\nv_mov_b32 v8, 1\nv_lshl_add_u32 v9, v0, 8, s{T3}')
    a(f's_waitcnt vmcnt(0)\ns_barrier\nbuffer_store_dword v8, v9, s[{SDB}:{SDB+3}], 0 offen sc1')
    if not OPT['za']:
        stats_load(a); stats_do(a)
        a('s_waitcnt lgkmcnt(0)\ns_barrier')
        em(a, stats_prep(ZD, ZD + 4))
        a(cert_load(ZD + 5)); a('s_waitcnt vmcnt(0) lgkmcnt(0)')
        em(a, vec_check('Li_cert', [cert_load(ZD + 5)], [ZD + 5])); a(stats_post(ZD, ZD + 4))
    a('s_endpgm')
    for s in SLOW: a.raw(s)
    a.raw('L_end:\n.fill 3072, 4, 0xbf810000')
    sys.stderr.write(f'instr: ffn {f.count} attn {aa.count}; nops {f.nops} {aa.nops}\n')
    lines = c.lines + aa.lines[:cut[0]] + z.lines + add_pads(f.lines, 'Lf') + add_pads(aa.lines[cut[0]:], 'La') + a.lines
    lines = [l for l in lines if not l.startswith(';')]
    if OPT['align']: lines = align_pass(lines, k1, 'L_end', 'L_f7')
    text = '\n'.join(lines) + '\n'
    if OPT['hf_'] != 'sc1': text = re.sub(r'(buffer_load_dwordx4 v\[.*) sc1', lambda m: m.group(1) + ' ' + OPT['hf_'], text)
    if OPT['sf'] != 'sc1': text = re.sub(r'(buffer_store_dwordx4 .*) sc1', lambda m: m.group(1) + ' ' + OPT['sf'].replace('+', ' '), text)
    return out + text + '.section .rodata,"a"\n.p2align 6\n' + desc(k1)

if __name__ == '__main__':
    args = sys.argv[1:]
    for x in [x for x in args if x.startswith('enc:')]:
        args.remove(x); ENC = (x.split(':')[1], int(x.split(':')[2]))
    for x in [x for x in args if x.startswith('st:')]:
        PROF = True; args.remove(x); STAMPS[:] = x[3:].split(',')
    for x in [x for x in args if '=' in x]:
        k, v = x.split('='); args.remove(x)
        OPT[k] = type(OPT[k])(v) if not isinstance(OPT[k], bool) else v == '1'
    roles = [decode_py(b) for b in range(256)]
    F = [r for r in roles if r and r[0] == 'F']; Aa = [r for r in roles if r and r[0] == 'A']
    assert sorted((r[1], r[2]) for r in F) == [(r, c) for r in range(13) for c in range(14)]
    assert sorted((r[3], r[4]) for r in F) == [(t, c) for t in range(26) for c in range(7)]
    assert sorted((r[1], r[2]) for r in Aa) == [(x, g) for x in range(18) for g in range(4)]
    assert all(((t * 26547) >> 22) == t // 158 for t in range(2200))
    assert all(((t * 4682) >> 16) == t // 14 for t in range(140))
    for r in range(13):
        need = {0 if tk < 127 else (tk - 14) // 113 for tk in range(158 * r, min(158 * r + 158, 2048))}
        assert len(need) == ((min(158 * r + 143, 2033) * 580) >> 16) - (((max(158 * r, 14) - 14) * 580) >> 16) + 1
        assert need == {x for x in range(18) if ((113 * x + (14 if x else 0)) // 158) <= r <= (113 * x + 126) // 158}
    open(args[0] if args else 'cdna_kernels/' + NAME + '.s', 'w').write(build())
```
